```python
import torch

def _softmax(x, axis=-1):
    return torch.softmax(x, dim=axis)
def _gelu(x):
    return torch.nn.functional.gelu(x, approximate="tanh")
def _silu(x):
    return torch.nn.functional.silu(x)
def _sigmoid(x):
    return torch.sigmoid(x)
def _layernorm(x, axis=-1, eps=1e-5):
    m = x.mean(dim=axis, keepdim=True)
    v = x.var(dim=axis, keepdim=True, unbiased=False)
    return (x - m) / torch.sqrt(v + eps)
def _scatter_add(tgt, idx, src, axis=0):
    return tgt.clone().index_add_(axis, idx, src)
def _segment_sum(src, seg, n):
    out = torch.zeros((n,) + src.shape[1:], dtype=src.dtype)
    return out.index_add_(0, seg, src)
def _pad(x, pw):
    flat = tuple(v for pair in reversed(pw) for v in pair)
    return torch.nn.functional.pad(x, flat)

kernel_name = 'sequential_preLN__spectral_gfnet__geglu_ffn__prompt'

def setup_inputs():

    _w = (lambda a: (lambda t: t.to(torch.bfloat16) if t.is_floating_point() else t)(torch.as_tensor(a)))
    def _A_setup():
        B, S, D = 1, 2048, 576
        Df = D // 2 + 1
        return {
            "x": _w((lambda *s: torch.randn(*s, dtype=torch.bfloat16) * 0.05)(B, S, D)),
            "w_r": _w((lambda *s: torch.randn(*s, dtype=torch.bfloat16) * 0.4)(S, Df) * 0.02),
            "w_i": _w((lambda *s: torch.randn(*s, dtype=torch.bfloat16) * 0.4)(S, Df) * 0.02),
        }
    _A_in = _A_setup()

    def _B_setup():
        B, S, D, F = 1, 2048, 576, 4608
        return {
            "x": _w((lambda *s: torch.randn(*s, dtype=torch.bfloat16) * 0.05)(B, S, D)),
            "w_gate": _w((lambda *s: torch.randn(*s, dtype=torch.bfloat16) * 0.05)(D, F)),
            "w_up": _w((lambda *s: torch.randn(*s, dtype=torch.bfloat16) * 0.05)(D, F)),
            "w_down": _w((lambda *s: torch.randn(*s, dtype=torch.bfloat16) * 0.05)(F, D)),
        }
    _B_in = _B_setup()

    return {
        "A_x": _A_in["x"],
        "A_w_r": _A_in["w_r"],
        "A_w_i": _A_in["w_i"],
        "B_x": _B_in["x"],
        "B_w_gate": _B_in["w_gate"],
        "B_w_up": _B_in["w_up"],
        "B_w_down": _B_in["w_down"],
    }

def reference(A_x, A_w_r, A_w_i, B_x, B_w_gate, B_w_up, B_w_down):
    def _A_ref(x, w_r, w_i):
        B, S, D = x.shape
        X = (lambda x, axes=(-2,-1): torch.fft.rfft2(x.float(), dim=axes))(x, axes=(-2, -1))
        W = w_r + 1j * w_i
        X = X * W
        y = (lambda x, s, axes=(-2,-1): torch.fft.irfft2(x, s=s, dim=axes).to(torch.bfloat16))(X, (S, D), axes=(-2, -1))
        return y

    def _B_ref(x, w_gate, w_up, w_down):
        return (_gelu(x @ w_gate) * (x @ w_up)) @ w_down

    x = A_x
    h = x + _A_ref(_layernorm(x, axis=-1), A_w_r, A_w_i)
    h2 = h + _B_ref(_layernorm(h, axis=-1), B_w_gate, B_w_up, B_w_down)
    return h2
```

```python
class Kern:
    def __init__(self, name):
        self.name = name
        self.lines = []
        self.vm = []
        self.vm_done = 0
        self.lg = []
        self.lg_done = 0
        self.nlabel = 0
    def e(self, s):
        self.lines.append("    " + s)
    def c(self, s):
        self.lines.append("    ; " + s)
    def label(self, s):
        self.lines.append(s + ":")
    def vmem(self, s, tag=None):
        self.e(s); self.vm.append(tag)
    def lds(self, s, tag=None):
        self.e(s); self.lg.append(tag)
    def _need(self, lst, done, tags):
        if not isinstance(tags, (list, set)): tags = [tags]
        idx = -1
        for i in range(len(lst) - 1, -1, -1):
            if lst[i] in tags:
                idx = i; break
        if idx < done: return None
        return idx
    def wait(self, vm=None, lg=None, lg0=False, vm0=False):
        parts = []
        if vm0:
            if self.vm_done < len(self.vm):
                parts.append("vmcnt(0)"); self.vm_done = len(self.vm)
        elif vm is not None:
            idx = self._need(self.vm, self.vm_done, vm)
            if idx is not None:
                n = len(self.vm) - 1 - idx
                if n > 63:
                    n = 63
                parts.append(f"vmcnt({n})"); self.vm_done = len(self.vm) - n
        if lg0:
            if self.lg_done < len(self.lg):
                parts.append("lgkmcnt(0)"); self.lg_done = len(self.lg)
        elif lg is not None:
            idx = self._need(self.lg, self.lg_done, lg)
            if idx is not None:
                n = len(self.lg) - 1 - idx
                if n > 15: n = 15
                parts.append(f"lgkmcnt({n})"); self.lg_done = len(self.lg) - n
        if parts:
            self.e("s_waitcnt " + " ".join(parts))
            return True
        return False
    def srd(self, d, base, nbytes):
        self.e(f"s_mov_b32 s{d}, s{base}")
        self.e(f"s_and_b32 s{d+1}, s{base+1}, 0xffff")
        self.e(f"s_mov_b32 s{d+2}, {nbytes}")
        self.e(f"s_mov_b32 s{d+3}, 0x20000")
    def srd_off(self, d, base, off, nbytes):
        self.e(f"s_add_u32 s{d}, s{base}, {off}")
        self.e(f"s_addc_u32 s{d+1}, s{base+1}, 0")
        self.e(f"s_and_b32 s{d+1}, s{d+1}, 0xffff")
        self.e(f"s_mov_b32 s{d+2}, {nbytes}")
        self.e(f"s_mov_b32 s{d+3}, 0x20000")
    def text(self):
        hdr = f".globl {self.name}\n.p2align 8\n.type {self.name},@function\n{self.name}:\n"
        return hdr + "\n".join(self.lines) + "\n"
    def desc(self, vgpr, sgpr, accum):
        return f""".p2align 6
.amdhsa_kernel {self.name}
  .amdhsa_next_free_vgpr {vgpr}
  .amdhsa_next_free_sgpr {sgpr}
  .amdhsa_accum_offset {accum}
  .amdhsa_group_segment_fixed_size 0
  .amdhsa_kernarg_size 80
  .amdhsa_user_sgpr_count 2
  .amdhsa_user_sgpr_kernarg_segment_ptr 1
  .amdhsa_system_sgpr_workgroup_id_x 1
.end_amdhsa_kernel
"""

import struct
def f2u(x):
    return struct.unpack("<I", struct.pack("<f", x))[0]
def fhex(x):
    return "0x%08x" % f2u(x)

def assemble_file(header_comment, launches, kerns):
    out = []
    out.append(header_comment.rstrip("\n"))
    for k, g, b, lds in launches:
        out.append(f"; @launch kernel={k.name} grid=({g},1,1) block=({b},1,1) lds={lds}")
    out.append('.amdgcn_target "amdgcn-amd-amdhsa--gfx950"')
    out.append(".text")
    for k, *_ in kerns:
        out.append(k.text())
    out.append('.section .rodata,"a"')
    for k, v, s, a in kerns:
        out.append(k.desc(v, s, a))
    return "\n".join(out)
```

```python
from dsl import *
from layout import *
import math

def stamp_begin(k, on):
    if on:
        k.e("s_memrealtime s[90:91]")
        k.e("s_memtime s[92:93]")
def stamp_mid(k, on, idx):
    if on: k.e(f"s_memtime s[{80+2*idx}:{81+2*idx}]")
def stamp_end(k, on, wsbase, kidx, wave_s, nmid):
    if not on: return
    e = k.e
    e("s_waitcnt vmcnt(0) lgkmcnt(0)")
    e("s_memtime s[94:95]")
    e("s_memrealtime s[96:97]")
    e("s_waitcnt lgkmcnt(0)")
    e("v_mov_b32 v8, s90")
    e("v_mov_b32 v9, s96")
    e("s_sub_u32 s94, s94, s92")
    e("v_mov_b32 v10, s94")
    for i in range(4):
        if i < nmid:
            e(f"s_sub_u32 s{80+2*i}, s{80+2*i}, s92")
            e(f"v_mov_b32 v{11+i}, s{80+2*i}")
        else: e(f"v_mov_b32 v{11+i}, 0")
    e("s_getreg_b32 s94, hwreg(HW_REG_XCC_ID)")
    e("v_mov_b32 v15, s94")
    e("s_lshl_b32 s94, s2, 3")
    e(f"s_add_u32 s94, s94, s{wave_s}")
    e("s_lshl_b32 s94, s94, 5")
    e(f"s_add_u32 s94, s94, {WS_END + kidx*131072}")
    e(f"s_mov_b32 s76, s{wsbase}")
    e(f"s_and_b32 s77, s{wsbase+1}, 0xffff")
    e(f"s_mov_b32 s78, {WS_END + (kidx+1)*131072}")
    e("s_mov_b32 s79, 0x20000")
    e("v_mov_b32 v16, 0")
    e("s_mov_b64 exec, 1")
    e("buffer_store_dwordx4 v[8:11], v16, s[76:79], s94 offen")
    e("buffer_store_dwordx4 v[12:15], v16, s[76:79], s94 offen offset:16")

MF32 = "v_mfma_f32_32x32x16_bf16"
def R(a, n): return f"v[{a}:{a+n-1}]"

def gen_k1(name="fwd_kernel", stamps=False):
    NMAIN, NWT = 192, 64
    k = Kern(name); e = k.e
    sW, sS2, sCT, sT0, sT1, sT2 = 20, 21, 22, 23, 24, 25
    e(f"s_cmp_ge_u32 s2, {NMAIN + NWT}")
    e(f"s_cbranch_scc1 L_{name}_end")
    stamp_begin(k, stamps)
    e(f"s_load_dwordx2 s[4:5], s[0:1], {KA_X}")
    e(f"s_load_dwordx4 s[28:31], s[0:1], {KA_WR}")
    e(f"s_load_dwordx2 s[6:7], s[0:1], {KA_WS}")
    e("v_lshrrev_b32 v1, 6, v0")
    e("s_nop 0")
    e(f"v_readfirstlane_b32 s{sW}, v1")
    e(f"s_cmp_ge_u32 s2, {NMAIN}")
    e(f"s_cbranch_scc1 L_{name}_wt")
    e("v_and_b32 v0, 63, v0")
    e(f"s_lshr_b32 s{sT0}, s2, 3")
    e(f"s_mul_hi_u32 s{sT1}, s{sT0}, 0x55555556")
    e(f"s_mul_i32 s{sCT}, s{sT1}, 3")
    e(f"s_sub_u32 s{sCT}, s{sT0}, s{sCT}")
    e(f"s_and_b32 s{sS2}, s2, 7")
    e(f"s_lshl_b32 s{sS2}, s{sS2}, 3")
    e(f"s_add_u32 s{sS2}, s{sS2}, s{sT1}")
    e("v_lshrrev_b32 v4, 3, v0")
    e("v_lshrrev_b32 v5, 4, v0")
    e("v_and_b32 v6, 7, v0")
    e("v_xor_b32 v6, v6, v5")
    e("v_lshlrev_b32 v6, 4, v6")
    e("v_mul_u32_u24 v2, 73728, v4")
    e("v_add_u32 v2, v2, v6")
    e("v_xor_b32 v3, 64, v2")
    e("s_waitcnt lgkmcnt(0)")
    k.srd(8, 4, S*D*2)
    k.srd(12, 6, WS_END)
    e(f"s_mul_i32 s{sT0}, s{sW}, 6")
    e(f"s_mul_i32 s{sT2}, s{sS2}, 1152")
    for i in range(6):
        e(f"s_add_u32 s26, s{sT0}, {i}")
        e("s_lshl_b32 m0, s26, 10")
        e("s_and_b32 s27, s26, 3")
        e(f"s_mul_i32 s27, s27, {8*73728}")
        e("s_lshr_b32 s26, s26, 2")
        e("s_lshl_b32 s26, s26, 7")
        e("s_add_u32 s27, s27, s26")
        e(f"s_add_u32 s27, s27, s{sT2}")
        k.vmem(f"buffer_load_dwordx4 v{2 + (i & 1)}, s[8:11], s27 offen lds", "x")
    vE = 40
    e(f"s_mul_i32 s{sT0}, s{sCT}, 6")
    e(f"s_add_u32 s{sT0}, s{sT0}, s{sW}")
    e(f"s_lshl_b32 s18, s{sT0}, 4")
    e("v_bfe_u32 v4, v0, 1, 4")
    e("v_add_u32 v4, s18, v4")
    e("v_add_u32 v4, 1, v4")
    e("v_lshrrev_b32 v5, 5, v0")
    e("v_and_b32 v6, 1, v0")
    e("v_cvt_f32_u32 v7, v4")
    e(f"v_mul_f32 v7, {fhex(1.0/576)}, v7")
    e("v_cvt_f32_u32 v8, v6")
    e("v_mul_f32 v8, 0x3e800000, v8")
    e("v_cvt_f32_u32 v9, v5")
    e("v_mul_f32 v9, 0x41000000, v9")
    e("v_fma_f32 v8, v9, v7, v8")
    for j in range(9):
        for t in range(8): e(f"v_fmamk_f32 v{10+t}, v7, {fhex(16*j+t)}, v8")
        for t in range(8): e(f"v_cos_f32 v{10+t}, v{10+t}")
        e("s_nop 0")
        for t in range(4): e(f"v_cvt_pk_bf16_f32 v{vE+4*j+t}, v{10+2*t}, v{11+2*t}")
    e("v_mov_b32 v30, 0")
    e("v_mov_b32 v31, 0x3f803f80")
    for r in range(36): e(f"v_dot2c_f32_bf16 v30, v{vE+r}, v31")
    e("v_and_b32 v10, 1, v4")
    e("v_lshlrev_b32 v10, 31, v10")
    e("v_or_b32 v32, 1.0, v10")
    e("v_bfe_u32 v11, v4, 1, 1")
    e("v_lshlrev_b32 v12, 31, v11")
    e("v_or_b32 v12, 1.0, v12")
    e("v_and_b32 v10, 1, v4")
    e("v_cmp_eq_u32 vcc, 0, v10")
    e("v_lshlrev_b32 v13, 31, v6")
    e("v_xor_b32 v13, v13, v12")
    e("v_cndmask_b32 v33, 0, v12, vcc")
    e("v_cndmask_b32 v34, v13, 0, vcc")
    e("v_mov_b32 v10, v30")
    e("v_and_b32 v11, 3, v4")
    e("v_cmp_eq_u32 vcc, 0, v11")
    e("v_permlane32_swap_b32 v30, v10")
    e("s_nop 1")
    e("v_add_f32 v30, v30, v10")
    e("v_mul_f32 v30, 4.0, v30")
    e("v_cndmask_b32 v30, 0, v30, vcc")
    vF = 76
    e("v_and_b32 v35, 31, v0")
    e("v_cvt_f32_u32 v10, v35")
    e(f"v_mul_f32 v11, {fhex(1.0/32)}, v10")
    e(f"v_cvt_f32_u32 v12, s{sS2}")
    e(f"v_mul_f32 v12, {fhex(1.0/64)}, v12")
    e("v_cvt_f32_u32 v13, v5")
    e("v_fma_f32 v12, v13, 4.0, v12")
    e("v_mul_f32 v12, v12, v11")
    for jj in range(2):
        for t in range(8):
            s1 = 16*jj + 8*(t >> 2) + (t & 3)
            e(f"v_fmamk_f32 v{14+t}, v11, {fhex(s1)}, v12")
        for t in range(8): e(f"v_cos_f32 v{22+t}, v{14+t}")
        for t in range(8): e(f"v_sin_f32 v{14+t}, -v{14+t}")
        e("s_nop 0")
        for t in range(4):
            e(f"v_cvt_pk_bf16_f32 v{vF+4*jj+t}, v{22+2*t}, v{23+2*t}")
            e(f"v_cvt_pk_bf16_f32 v{vF+8+4*jj+t}, v{14+2*t}, v{15+2*t}")
    e("v_bfe_u32 v10, v0, 1, 3")
    e("v_xor_b32 v10, v10, v5")
    e("v_lshlrev_b32 v10, 4, v10")
    e("v_lshl_add_u32 v36, v35, 7, v10")
    for q in range(1, 4): e(f"v_xor_b32 v{36+q}, {32*q}, v36")
    e(f"s_lshr_b32 s{sT1}, s{sW}, 1")
    e(f"s_add_u32 s{sT1}, s{sT1}, s{sW}")
    e(f"s_lshl_b32 s{sT1}, s{sT1}, 12")
    e(f"s_and_b32 s{sT2}, s{sW}, 1")
    e(f"s_mul_i32 s{sT1}, s{sW}, 12")
    e("v_mul_u32_u24 v10, 6, v5")
    e(f"v_add_u32 v10, s{sT1}, v10")
    e("v_bfe_u32 v13, v0, 1, 3")
    for i in range(6):
        e(f"v_add_u32 v11, {i}, v10")
        e("v_lshrrev_b32 v12, 3, v11")
        e("v_and_b32 v11, 7, v11")
        e("v_xor_b32 v11, v11, v13")
        e("v_lshlrev_b32 v11, 4, v11")
        e("v_lshl_add_u32 v11, v12, 12, v11")
        e(f"v_lshl_add_u32 v{14+i}, v35, 7, v11")
    stamp_mid(k, stamps, 0)
    k.wait(vm0=True)
    e("s_barrier")
    stamp_mid(k, stamps, 1)
    vX = 96
    for i in range(6): k.lds(f"ds_read_b128 {R(vX+4*i,4)}, v{14+i}", ("s", i))
    def xread(kk):
        k.lds(f"ds_read_b128 {R(vX+24+4*(kk%6),4)}, v{36+(kk&3)} offset:{(kk>>2)*4096}", ("x", kk))
    order = [9*q + j for j in range(9) for q in range(4)]
    for n in range(5):
        kk = order[n]
        k.lds(f"ds_read_b128 {R(vX+24+4*(n%6),4)}, v{36+(kk&3)} offset:{(kk>>2)*4096}", ("x", n))
    e("v_mov_b32 v10, 0"); e("v_mov_b32 v11, 0"); e("v_mov_b32 v12, 0"); e("v_mov_b32 v13, 0")
    for i in range(6):
        k.wait(lg=("s", i))
        for r in range(4):
            e(f"v_dot2c_f32_bf16 v{10+2*(r&1)}, v{vX+4*i+r}, v31")
            e(f"v_dot2c_f32_bf16 v{11+2*(r&1)}, v{vX+4*i+r}, v{vX+4*i+r}")
    e("s_nop 2")
    e("v_add_f32 v10, v10, v12")
    e("v_add_f32 v11, v11, v13")
    e(f"s_lshl_b32 s{sT1}, s{sW}, 9")
    e(f"s_add_u32 s{sT1}, s{sT1}, 36864")
    e(f"v_lshl_add_u32 v12, v0, 3, s{sT1}")
    k.lds("ds_write_b64 v12, v[10:11]", "sw")
    e("v_lshlrev_b32 v12, 3, v0")
    e(f"s_lshl_b32 s{sT1}, s{sW}, 8")
    e(f"s_add_u32 s{sT1}, s{sT1}, {36864+3072}")
    e(f"v_lshl_add_u32 v13, v0, 2, s{sT1}")
    e(f"v_lshl_add_u32 v14, v5, 4, s{sT1}")
    vP = 144
    fill = {}
    fill[6] = lambda: (k.wait(lg="sw"), e("s_barrier"))
    def f8():
        for i in range(6): k.lds(f"ds_read_b64 {R(16+2*i,2)}, v12 offset:{36864+512*i}", "sp")
    fill[7] = f8
    def f11():
        k.wait(lg="sp")
        for i in range(1, 6):
            e(f"v_add_f32 v16, v16, v{16+2*i}")
            e(f"v_add_f32 v17, v17, v{17+2*i}")
    fill[11] = f11
    def f13():
        e("v_mov_b32 v18, v16"); e("v_mov_b32 v19, v17"); e("s_nop 1")
        e("v_permlane32_swap_b32 v16, v18"); e("v_permlane32_swap_b32 v17, v19")
    fill[13] = f13
    def f14():
        e("v_add_f32 v16, v16, v18"); e("v_add_f32 v17, v17, v19")
        e(f"v_mul_f32 v16, {fhex(1.0/576)}, v16")
        e(f"v_mul_f32 v17, {fhex(1.0/576)}, v17")
        e("v_fma_f32 v17, -v16, v16, v17")
    fill[14] = f14
    def f15():
        e("v_max_f32 v17, 0, v17")
        e(f"v_add_f32 v17, {fhex(1e-5)}, v17")
        e("v_rsq_f32 v17, v17")
        e("v_cmp_gt_u32 vcc, 32, v0")
        e(f"v_mul_f32 v17, {fhex(2.0/(2048*576))}, v17")
    fill[15] = f15
    def f16():
        e("v_mul_f32 v18, v16, v17")
        e("v_cndmask_b32 v18, v18, v17, vcc")
        k.lds("ds_write_b32 v13, v18", "rw")
    fill[16] = f16
    def f18():
        k.wait(lg="rw")
        for g in range(4): k.lds(f"ds_read_b128 {R(208+4*g,4)}, v14 offset:{32*g}", "rr")
        for g in range(4): k.lds(f"ds_read_b128 {R(224+4*g,4)}, v14 offset:{128+32*g}", "rr")
    fill[18] = f18
    def f20():
        e(f"s_or_b32 s{sT1}, s{sCT}, s{sW}")
        e(f"s_cmp_lg_u32 s{sT1}, 0")
        e(f"s_cbranch_scc1 L_{name}_nomean")
        e(f"s_lshl_b32 s{sT1}, s{sS2}, 7")
        e(f"s_add_u32 s{sT1}, s{sT1}, {WS_MEAN}")
        e("v_lshlrev_b32 v19, 2, v35")
        e(f"buffer_store_dword v16, v19, s[12:15], s{sT1} offen")
        k.label(f"L_{name}_nomean")
    fill[20] = f20
    for n in range(36):
        kk = order[n]; q, j = divmod(kk, 9)
        k.wait(lg=("x", n))
        acc = R(vP+16*q, 16)
        e(f"{MF32} {acc}, {R(vX+24+4*(n%6),4)}, {R(vE+4*j,4)}, {'0' if j == 0 else acc}")
        if n + 5 < 36:
            kk2 = order[n+5]
            k.lds(f"ds_read_b128 {R(vX+24+4*((n+5)%6),4)}, v{36+(kk2&3)} offset:{(kk2>>2)*4096}", ("x", n+5))
        if n in fill: fill[n]()
    stamp_mid(k, stamps, 2)
    e(f"s_lshr_b32 s{sT1}, s{sS2}, 3")
    e(f"s_lshl_b32 s{sT1}, s{sT1}, 10")
    e(f"s_bfe_u32 s{sT2}, s{sS2}, 0x10001")
    e(f"s_lshl_b32 s{sT2}, s{sT2}, 9")
    e(f"s_add_u32 s{sT1}, s{sT1}, s{sT2}")
    e(f"s_bfe_u32 s{sT2}, s{sS2}, 0x10002")
    e(f"s_lshl_b32 s{sT2}, s{sT2}, 3")
    e(f"s_add_u32 s{sT1}, s{sT1}, s{sT2}")
    e(f"s_and_b32 s{sT2}, s{sS2}, 1")
    e(f"s_lshl_b32 s{sT2}, s{sT2}, 2")
    e(f"s_add_u32 s{sT1}, s{sT1}, s{sT2}")
    e(f"s_lshl_b32 s{sT2}, s18, 13")
    e(f"s_add_u32 s{sT1}, s{sT1}, s{sT2}")
    e(f"s_add_u32 s{sT1}, s{sT1}, {WS_Y}")
    e("v_lshlrev_b32 v10, 4, v35")
    e("v_lshl_add_u32 v10, v5, 14, v10")
    k.wait(lg="rr")
    for i in range(16): e(f"v_fmac_f32 v{vP+i}, v32, v{vP+32+i}")
    for i in range(16): e(f"v_fmac_f32 v{vP+16+i}, v32, v{vP+48+i}")
    for i in range(16): e(f"v_fmac_f32 v{vP+i}, v33, v{vP+16+i}")
    for i in range(16): e(f"v_fmac_f32_dpp v{vP+i}, v{vP+16+i}, v34 quad_perm:[1,0,3,2] row_mask:0xf bank_mask:0xf")
    for i in range(16): e(f"v_mul_f32 v{224+i}, v30, v{224+i}")
    for i in range(16): e(f"v_fma_f32 v{vP+i}, v{vP+i}, v{208+i}, -v{224+i}")
    for i in range(8): e(f"v_cvt_pk_bf16_f32 v{vP+16+i}, v{vP+2*i}, v{vP+2*i+1}")
    e("s_nop 1")
    Pq, Qq = R(vP+32, 16), R(vP+48, 16)
    e(f"{MF32} {Pq}, {R(vP+16,4)}, {R(vF,4)}, 0")
    e(f"{MF32} {Qq}, {R(vP+16,4)}, {R(vF+8,4)}, 0")
    e(f"{MF32} {Pq}, {R(vP+20,4)}, {R(vF+4,4)}, {Pq}")
    e(f"{MF32} {Qq}, {R(vP+20,4)}, {R(vF+12,4)}, {Qq}")
    e("s_nop 13")
    for i in range(0, 16, 2):
        e(f"v_sub_f32 v{vP+i}, v{vP+32+i}, v{vP+48+i+1}")
        e(f"v_add_f32 v{vP+i+1}, v{vP+48+i}, v{vP+32+i+1}")
    for i in range(8):
        e(f"v_cvt_pk_bf16_f32 v{vP+16+i}, v{vP+2*i}, v{vP+2*i+1}")
    for i in range(8):
        g, ee = i >> 1, i & 1
        e(f"s_add_u32 s{sT2}, s{sT1}, {(4*g+ee)*8192}")
        k.vmem(f"buffer_store_dword v{vP+16+i}, v10, s[12:15], s{sT2} offen", "st")
    stamp_end(k, stamps, 6, 0, sW, 3)
    e("s_endpgm")
    k.label(f"L_{name}_wt")
    e(f"s_sub_u32 s{sT0}, s2, {NMAIN}")
    e("s_waitcnt lgkmcnt(0)")
    k.srd(8, 28, 2048*289*2)
    k.srd(12, 30, 2048*289*2)
    k.srd(16, 6, WS_END)
    e("v_lshlrev_b32 v2, 4, v0")
    e(f"s_mul_i32 s{sT1}, s{sT0}, 18496")
    e(f"s_lshl_b32 s{sT2}, s{sW}, 10")
    for r in range(4):
        for mat in range(2):
            if r == 3:
                pass
            e(f"s_add_u32 m0, s{sT2}, {mat*24576 + r*6144}")
            e(f"s_add_u32 s26, s{sT1}, {r*6144}")
            e(f"buffer_load_dwordx4 v2, s[{8+4*mat}:{11+4*mat}], s26 offen lds")
    e("v_and_b32 v3, 31, v0")
    e("v_lshrrev_b32 v4, 5, v0")
    e("v_mul_u32_u24 v5, 578, v3")
    e("v_lshl_add_u32 v5, v4, 1, v5")
    e("v_lshlrev_b32 v6, 2, v3")
    e("v_lshl_add_u32 v6, v4, 13, v6")
    e(f"s_lshl_b32 s{sT1}, s{sT0}, 7")
    e(f"s_add_u32 s{sT1}, s{sT1}, {WS_WT}")
    e("s_waitcnt vmcnt(0)")
    e("s_barrier")
    for half in range(4):
        for i in range(6*half, 6*half+6):
            e(f"ds_read_u16 v{10+i}, v5 offset:{2+24*i}")
            e(f"ds_read_u16 v{40+i}, v5 offset:{24576+2+24*i}")
        e("s_waitcnt lgkmcnt(0)")
        for i in range(6*half, 6*half+6):
            e(f"v_lshl_or_b32 v{10+i}, v{40+i}, 16, v{10+i}")
            e(f"s_add_u32 s26, s{sT1}, {12*8192*i}")
            e(f"buffer_store_dword v{10+i}, v6, s[16:19], s26 offen")
    stamp_end(k, stamps, 6, 0, sW, 0)
    k.label(f"L_{name}_end")
    e("s_endpgm")
    return k, (240, 100, 240), (NMAIN + NWT, 384, 49152)

def gen_k2(name="col_kernel", stamps=False):
    NMAIN, NG = 288, 27
    k = Kern(name); e = k.e
    sW, sCol, sT0, sT1, sT2 = 20, 21, 23, 24, 25
    e(f"s_cmp_ge_u32 s2, {NMAIN + NG}")
    e(f"s_cbranch_scc1 L_{name}_end")
    stamp_begin(k, stamps)
    e(f"s_load_dwordx2 s[6:7], s[0:1], {KA_WS}")
    e("v_lshrrev_b32 v1, 6, v0")
    e("v_and_b32 v0, 63, v0")
    e(f"v_readfirstlane_b32 s{sW}, v1")
    e(f"s_cmp_ge_u32 s2, {NMAIN}")
    e(f"s_cbranch_scc1 L_{name}_g")
    e(f"s_lshr_b32 s{sT0}, s2, 5")
    e(f"s_lshl_b32 s{sT0}, s{sT0}, 3")
    e(f"s_and_b32 s{sT1}, s2, 7")
    e(f"s_add_u32 s{sT0}, s{sT0}, s{sT1}")
    e("s_bfe_u32 s26, s2, 0x20003")
    e(f"s_and_b32 s27, s{sT0}, 1")
    e(f"s_lshr_b32 s28, s{sT0}, 1")
    e(f"s_lshl_b32 s{sCol}, s28, 2")
    e(f"s_add_u32 s{sCol}, s{sCol}, s26")
    e(f"s_lshl_b32 s{sCol}, s{sCol}, 1")
    e(f"s_add_u32 s{sCol}, s{sCol}, s27")
    e("s_mul_i32 s29, s27, 18432")
    e("s_lshl_b32 s28, s28, 9")
    e("s_add_u32 s29, s29, s28")
    e("s_lshl_b32 s26, s26, 2")
    e("s_add_u32 s29, s29, s26")
    e(f"s_mul_i32 s26, s{sW}, {16*36864}")
    e("s_add_u32 s29, s29, s26")
    e(f"s_add_u32 s29, s29, {WS_V}")
    e("v_lshlrev_b32 v2, 4, v0")
    e("v_lshrrev_b32 v5, 5, v0")
    e("v_and_b32 v35, 31, v0")
    e("v_lshlrev_b32 v3, 2, v35")
    e("v_lshl_add_u32 v3, v5, 8, v3")
    e(f"s_lshl_b32 s{sT0}, s{sCol}, 13")
    e("s_waitcnt lgkmcnt(0)")
    k.srd(12, 6, WS_END)
    vY = 40
    e(f"s_add_u32 s{sT1}, s{sT0}, {WS_Y}")
    e(f"s_add_u32 s{sT2}, s{sT0}, {WS_Y + 4096}")
    for j in range(8):
        k.vmem(f"buffer_load_dwordx4 {R(vY+4*j,4)}, v2, s[12:15], s{sT1 if j < 4 else sT2} offen offset:{(j&3)*1024}", ("y", j))
    vWt = 72
    e(f"s_lshl_b32 s{sT1}, s{sW}, 11")
    e(f"s_add_u32 s{sT1}, s{sT1}, s{sT0}")
    e(f"s_add_u32 s{sT1}, s{sT1}, {WS_WT}")
    for i in range(8):
        k.vmem(f"buffer_load_dword v{vWt+i}, v3, s[12:15], s{sT1} offen offset:{(4*(i>>1)+(i&1))*128}", "w")
    vM = 80
    e("v_bfe_u32 v4, v0, 1, 4")
    e(f"s_lshl_b32 s{sT1}, s{sW}, 4")
    e(f"v_add_u32 v4, s{sT1}, v4")
    e("v_and_b32 v6, 1, v0")
    e("v_cvt_f32_u32 v7, v4")
    e(f"v_mul_f32 v8, {fhex(1.0/64)}, v7")
    e("v_cvt_f32_u32 v9, v6")
    e("v_mul_f32 v9, 0x3e800000, v9")
    e("v_cvt_f32_u32 v36, v5")
    e("v_add_f32 v10, v36, v36")
    e("v_fma_f32 v9, v10, v8, v9")
    for jp in range(2):
        for u in range(8):
            j, t = 2*jp + (u >> 2), u & 3
            e(f"v_fmamk_f32 v{12+u}, v8, {fhex(8*j + 4*(t>>1) + (t&1))}, v9")
        for u in range(8): e(f"v_cos_f32 v{20+u}, v{12+u}")
        for u in range(8): e(f"v_sin_f32 v{12+u}, v{12+u}")
        e("s_nop 0")
        for u in range(8): e(f"v_cvt_pk_bf16_f32 v{vM+8*jp+u}, v{20+u}, v{12+u}")
    e("v_and_b32 v10, 1, v4")
    e("v_mul_u32_u24 v10, 0x8000, v10")
    e("v_lshl_or_b32 v10, v10, 16, v10")
    for u in range(16): e(f"v_xor_b32 v{vM+16+u}, v10, v{vM+u}")
    e(f"v_mul_f32 v8, {fhex(1.0/2048)}, v7")
    e("v_lshlrev_b32 v10, 31, v6")
    e("v_xor_b32 v8, v8, v10")
    e("v_mul_f32 v9, 4.0, v36")
    e("v_mul_f32 v9, v9, v8")
    for i in range(16): e(f"v_fmamk_f32 v{128+i}, v8, {fhex(8*(i>>2) + (i&3))}, v9")
    for i in range(16): e(f"v_cos_f32 v{112+i}, v{128+i}")
    for i in range(16): e(f"v_sin_f32 v{128+i}, v{128+i}")
    vF = 144
    e("v_cvt_f32_u32 v10, v35")
    e(f"v_mul_f32 v11, {fhex(1.0/32)}, v10")
    e("v_mul_f32 v12, 4.0, v36")
    e("v_mul_f32 v12, v12, v11")
    for t in range(8): e(f"v_fmamk_f32 v{14+t}, v11, {fhex(8*(t>>2) + (t&3))}, v12")
    for t in range(8): e(f"v_cos_f32 v{22+t}, v{14+t}")
    for t in range(8): e(f"v_sin_f32 v{14+t}, -v{14+t}")
    e("v_and_b32 v10, 1, v0")
    e("v_mul_u32_u24 v10, 0x8000, v10")
    e("v_lshl_or_b32 v10, v10, 16, v10")
    for t in range(4):
        e(f"v_cvt_pk_bf16_f32 v{vF+t}, v{22+2*t}, v{23+2*t}")
        e(f"v_cvt_pk_bf16_f32 v{vF+8+t}, v{14+2*t}, v{15+2*t}")
    for t in range(4):
        e(f"v_xor_b32 v{vF+4+t}, v10, v{vF+t}")
        e(f"v_xor_b32 v{vF+12+t}, v10, v{vF+8+t}")
    e(f"s_lshl_b32 s{sT1}, s{sW}, 11")
    e(f"v_add_u32 v30, s{sT1}, v2")
    e("v_mul_u32_u24 v31, 73728, v5")
    e("v_lshl_add_u32 v31, v35, 4, v31")
    stamp_mid(k, stamps, 0)
    D2 = R(160, 16)
    for j in range(8):
        k.wait(vm=("y", j))
        e(f"{MF32} {D2}, {R(vM+4*j,4)}, {R(vY+4*j,4)}, {'0' if j == 0 else D2}")
    stamp_mid(k, stamps, 1)
    k.wait(vm="w")
    for i in range(8):
        e(f"v_lshlrev_b32 v{12+2*i}, 16, v{vWt+i}")
        e(f"v_and_b32 v{13+2*i}, 0xffff0000, v{vWt+i}")
    for i in range(8):
        xr, xi, wr, wi = 160+2*i, 161+2*i, 12+2*i, 13+2*i
        e(f"v_mul_f32 v{176+2*i}, v{xr}, v{wr}")
        e(f"v_mul_f32 v{177+2*i}, v{xr}, v{wi}")
    for i in range(8):
        xr, xi, wr, wi = 160+2*i, 161+2*i, 12+2*i, 13+2*i
        e(f"v_fma_f32 v{176+2*i}, -v{xi}, v{wi}, v{176+2*i}")
        e(f"v_fma_f32 v{177+2*i}, -v{xi}, v{wr}, -v{177+2*i}")
    for i in range(8): e(f"v_cvt_pk_bf16_f32 v{160+i}, v{176+2*i}, v{177+2*i}")
    k.lds(f"ds_write_b128 v30, {R(160,4)}")
    k.lds(f"ds_write_b128 v30, {R(164,4)} offset:1024")
    k.wait(lg0=True)
    e("s_barrier")
    for j in range(8): k.lds(f"ds_read_b128 {R(vY+4*j,4)}, v2 offset:{1024*j}", ("a", j))
    D3 = R(176, 16)
    for j in range(8):
        k.wait(lg=("a", j))
        e(f"{MF32} {D3}, {R(vY+4*j,4)}, {R(vM+4*j,4)}, {'0' if j == 0 else D3}")
    e("s_nop 13")
    for i in range(16): e(f"v_mul_f32 v{160+i}, v{176+i}, v{112+i}")
    for i in range(16): e(f"v_fmac_f32_dpp v{160+i}, v{176+i}, v{128+i} quad_perm:[1,0,3,2] row_mask:0xf bank_mask:0xf")
    for i in range(8): e(f"v_cvt_pk_bf16_f32 v{40+i}, v{160+2*i}, v{161+2*i}")
    e("s_nop 1")
    Pq, Qq = R(160, 16), R(176, 16)
    e(f"{MF32} {Pq}, {R(40,4)}, {R(vF,4)}, 0")
    e(f"{MF32} {Qq}, {R(40,4)}, {R(vF+8,4)}, 0")
    e(f"{MF32} {Pq}, {R(44,4)}, {R(vF+4,4)}, {Pq}")
    e(f"{MF32} {Qq}, {R(44,4)}, {R(vF+12,4)}, {Qq}")
    e("s_nop 13")
    for i in range(0, 16, 2):
        e(f"v_sub_f32 v{48+i}, v{160+i}, v{176+i+1}")
        e(f"v_add_f32 v{48+i+1}, v{176+i}, v{160+i+1}")
    for i in range(8): e(f"v_cvt_pk_bf16_f32 v{40+i}, v{48+2*i}, v{49+2*i}")
    for i in range(8):
        e(f"s_add_u32 s{sT2}, s29, {(4*(i>>1)+(i&1))*36864}")
        k.vmem(f"buffer_store_dword v{40+i}, v31, s[12:15], s{sT2} offen", "st")
    stamp_end(k, stamps, 6, 1, sW, 2)
    e("s_endpgm")
    k.label(f"L_{name}_g")
    e(f"s_sub_u32 s{sT0}, s2, {NMAIN}")
    e(f"s_mul_i32 s{sT0}, s{sT0}, 12")
    e(f"s_mul_i32 s{sT1}, s{sW}, 3")
    e(f"s_add_u32 s{sT0}, s{sT0}, s{sT1}")
    e(f"s_mul_hi_u32 s26, s{sT0}, 0x71c71c8")
    e("s_mul_i32 s27, s26, 36")
    e(f"s_sub_u32 s27, s{sT0}, s27")
    e("s_cmp_ge_u32 s27, 18")
    e("s_cselect_b32 s28, 1, 0")
    e("s_mul_i32 s29, s28, 18")
    e("s_sub_u32 s27, s27, s29")
    e("v_and_b32 v2, 0x13, v0")
    e("v_bfe_u32 v3, v0, 2, 1")
    e("v_lshl_add_u32 v2, v3, 3, v2")
    e("v_bfe_u32 v3, v0, 3, 1")
    e("v_lshl_add_u32 v2, v3, 2, v2")
    e("s_lshl_b32 s26, s26, 5")
    e("v_add_u32 v2, s26, v2")
    e("v_cvt_f32_u32 v2, v2")
    e("v_lshrrev_b32 v3, 5, v0")
    e("s_lshl_b32 s27, s27, 4")
    e("s_add_u32 s27, s27, s28")
    e("s_add_u32 s27, s27, 1")
    e("v_lshl_add_u32 v3, v3, 3, s27")
    e("v_cvt_f32_u32 v3, v3")
    e("v_lshlrev_b32 v4, 4, v0")
    e(f"s_lshl_b32 s{sT1}, s{sT0}, 10")
    e(f"s_add_u32 s{sT1}, s{sT1}, {WS_G}")
    e("s_waitcnt lgkmcnt(0)")
    k.srd(12, 6, WS_END)
    for i in range(3):
        for t in range(4):
            e(f"v_add_f32 v{10+t}, {fhex(16*i + 2*t)}, v3")
            e(f"v_cmp_eq_f32 vcc, {fhex(288.0)}, v{10+t}")
            e(f"v_mul_f32 v{10+t}, v{10+t}, v2")
            e(f"v_mul_f32 v{10+t}, {fhex(1.0/576)}, v{10+t}")
            e(f"v_cos_f32 v{14+t}, v{10+t}")
            e(f"v_sin_f32 v{10+t}, v{10+t}")
            e(f"v_cndmask_b32 v18, 1.0, 0.5, vcc")
            e(f"v_mul_f32 v{14+t}, v18, v{14+t}")
            e(f"v_cndmask_b32 v{10+t}, v{10+t}, 0, vcc")
            e(f"v_cvt_pk_bf16_f32 v{20+4*i+t}, v{14+t}, v{10+t}")
        e(f"buffer_store_dwordx4 {R(20+4*i,4)}, v4, s[12:15], s{sT1} offen offset:{1024*i}")
    stamp_end(k, stamps, 6, 1, sW, 0)
    k.label(f"L_{name}_end")
    e("s_endpgm")
    return k, (192, 100, 192), (NMAIN + NG, 256, 8192)

def gen_k3(name="inv_kernel", stamps=False, hc16=False):
    NMAIN = 192
    k = Kern(name); e = k.e
    sW, sRG, sT, sT0, sT1, sT2 = 20, 21, 22, 23, 24, 25
    e(f"s_cmp_ge_u32 s2, {NMAIN}")
    e(f"s_cbranch_scc1 L_{name}_end")
    stamp_begin(k, stamps)
    e(f"s_load_dwordx2 s[4:5], s[0:1], {KA_X}")
    e(f"s_load_dwordx2 s[6:7], s[0:1], {KA_WS}")
    e("v_lshrrev_b32 v1, 6, v0")
    e("v_and_b32 v0, 63, v0")
    e(f"v_readfirstlane_b32 s{sW}, v1")
    e(f"s_lshr_b32 s{sT0}, s2, 3")
    e(f"s_mul_hi_u32 s{sT1}, s{sT0}, 0x55555556")
    e(f"s_mul_i32 s{sT}, s{sT1}, 3")
    e(f"s_sub_u32 s{sT}, s{sT0}, s{sT}")
    e(f"s_mul_i32 s{sT}, s{sT}, 3")
    e(f"s_add_u32 s{sT}, s{sT}, s{sW}")
    e(f"s_and_b32 s{sRG}, s2, 7")
    e(f"s_lshl_b32 s{sRG}, s{sRG}, 3")
    e(f"s_add_u32 s{sRG}, s{sRG}, s{sT1}")
    e("v_lshlrev_b32 v2, 4, v0")
    e(f"s_mul_i32 s26, s{sRG}, 36864")
    e(f"s_add_u32 s27, s26, {WS_V}")
    e(f"s_mul_i32 s28, s{sT}, 36864")
    e(f"s_add_u32 s28, s28, {WS_G}")
    e("v_lshrrev_b32 v5, 5, v0")
    e("v_and_b32 v6, 31, v0")
    e("s_waitcnt lgkmcnt(0)")
    k.srd(8, 4, S*D*2)
    k.srd(12, 6, WS_END)
    order = [st for j in range(18) for st in (j, 18 + j)]
    def ld(st):
        e(f"s_add_u32 s{sT0}, s27, {(st>>2)*4096}")
        e(f"s_add_u32 s{sT1}, s28, {(st>>2)*4096}")
        k.vmem(f"buffer_load_dwordx4 a[{4*st}:{4*st+3}], v2, s[12:15], s{sT0} offen offset:{(st&3)*1024}", ("v", st))
        k.vmem(f"buffer_load_dwordx4 {R(100+4*st,4)}, v2, s[12:15], s{sT1} offen offset:{(st&3)*1024}", ("v", st))
    for st in order[:8]: ld(st)
    e("v_mul_u32_u24 v7, 73728, v6")
    e("v_lshl_add_u32 v7, v5, 4, v7")
    e(f"s_mul_i32 s{sT0}, s{sRG}, 1152")
    e(f"s_lshl_b32 s{sT1}, s{sT}, 6")
    e(f"s_add_u32 s{sT0}, s{sT0}, s{sT1}")
    for u in range(4):
        k.vmem(f"buffer_load_dwordx4 {R(16+4*u,4)}, v7, s[8:11], s{sT0} offen offset:{(u>>1)*576 + (u&1)*32}", "x")
    e("v_lshlrev_b32 v8, 2, v6")
    e(f"s_lshl_b32 s{sT0}, s{sRG}, 7")
    e(f"s_add_u32 s{sT0}, s{sT0}, {WS_MEAN}")
    k.vmem(f"buffer_load_dword v9, v8, s[12:15], s{sT0} offen", "x")
    for st in order[8:]: ld(st)
    stamp_mid(k, stamps, 0)
    O, E = 32, 48
    XM = 64
    for n, st in enumerate(order):
        k.wait(vm=("v", st))
        acc = R(O if st < 18 else E, 16)
        e(f"{MF32} {acc}, {R(100+4*st,4)}, a[{4*st}:{4*st+3}], {'0' if st in (0, 18) else acc}")
        if 10 <= n < 26:
            r = n - 10
            e(f"v_lshlrev_b32 v{XM+2*r}, 16, v{16+r}")
            e(f"v_and_b32 v{XM+2*r+1}, 0xffff0000, v{16+r}")
            e(f"v_sub_f32 v{XM+2*r}, v{XM+2*r}, v9")
            e(f"v_sub_f32 v{XM+2*r+1}, v{XM+2*r+1}, v9")
    stamp_mid(k, stamps, 1)
    if hc16:
        e("v_and_b32 v10, 15, v0")
        e("v_lshlrev_b32 v10, 4, v10")
        e("v_lshl_add_u32 v10, v5, 8, v10")
        e("v_bfe_u32 v11, v0, 4, 1")
        e("v_mul_u32_u24 v11, 18432, v11")
        e("v_add_u32 v10, v10, v11")
        e(f"s_lshl_b32 s{sT0}, s{sT}, 10")
        offs = [0, 512]; hi = 9*1024
    else:
        e("v_mov_b32 v10, v2")
        e(f"s_lshl_b32 s{sT0}, s{sT}, 11")
        offs = [0, 1024]; hi = 18*1024
    e(f"s_add_u32 s{sT0}, s{sT0}, s26")
    e(f"s_add_u32 s{sT0}, s{sT0}, {WS_HC}")
    e(f"s_add_u32 s{sT1}, s{sT0}, {hi}")
    e(f"s_mul_i32 s{sT2}, s{sRG}, 9")
    e(f"s_add_u32 s{sT2}, s{sT2}, s{sT}")
    e(f"s_lshl_b32 s{sT2}, s{sT2}, 8")
    e(f"s_add_u32 s{sT2}, s{sT2}, {WS_SS}")
    e("v_lshlrev_b32 v11, 2, v0")
    e("s_nop 4")
    for i in range(16):
        e(f"v_add_f32 v{XM+i}, v{XM+i}, v{O+i}")
        e(f"v_sub_f32 v{XM+16+i}, v{XM+16+i}, v{O+i}")
    for i in range(16):
        e(f"v_add_f32 v{XM+i}, v{XM+i}, v{E+i}")
        e(f"v_add_f32 v{XM+16+i}, v{XM+16+i}, v{E+i}")
    for i in range(16): e(f"v_cvt_pk_bf16_f32 v{16+i}, v{XM+2*i}, v{XM+2*i+1}")
    for u in range(4):
        k.vmem(f"buffer_store_dwordx4 {R(16+4*u,4)}, v10, s[12:15], s{sT0 if u < 2 else sT1} offen offset:{offs[u&1]}", "st")
    e("v_mov_b32 v12, 0"); e("v_mov_b32 v13, 0")
    for i in range(16): e(f"v_dot2c_f32_bf16 v{12+(i&1)}, v{16+i}, v{16+i}")
    e("s_nop 2")
    e("v_add_f32 v12, v12, v13")
    k.vmem(f"buffer_store_dword v12, v11, s[12:15], s{sT2} offen", "st")
    stamp_end(k, stamps, 6, 2, sW, 2)
    k.label(f"L_{name}_end")
    e("s_endpgm")
    return k, (256 + 144, 100, 256), (NMAIN, 192, 0)
```

```python
from dsl import *
from layout import *
import math

SLOT = 36864
def gen_k4(name="ffn_kernel", P=6, X=3, NF=10, waitevery=2, stamps=False, packed=False, dist=3, store_flags="", nodma=False, nogelu=False):
    k = Kern(name)
    e = k.e
    sWG, sWU, sWD, sWS = 4, 6, 8, 10
    SGU, SD, SW = 12, 16, 20
    sW, sMT, sFS, sRG = 24, 25, 26, 27
    sOff, sLB1, sLB2, sLB3 = 28, 29, 30, 31
    sColW, sColN, sRowW, sRowN = 32, 33, 34, 35
    sHC, sP, sT0, sT1 = 36, 37, 38, 39
    sStamp = 40
    vW, vN, vD = 1, 5, 9
    vA = 13
    vAN = 21
    vL16, vC1, vC2, vR = 23, 24, 25, 26
    vT = 28
    vH = 40
    ACC = [112, 176]
    aF = 144
    e("s_cmp_ge_u32 s2, 256")
    e(f"s_cbranch_scc1 L_{name}_end")
    e(f"s_load_dwordx4 s[4:7], s[0:1], {KA_WG}")
    e(f"s_load_dwordx2 s[8:9], s[0:1], {KA_WD}")
    e(f"s_load_dwordx2 s[10:11], s[0:1], {KA_WS}")
    if stamps:
        e(f"s_memtime s[{sStamp}:{sStamp+1}]")
        e("s_memrealtime s[52:53]")
    e("v_lshrrev_b32 v28, 6, v0")
    e("v_and_b32 v0, 63, v0")
    e(f"v_readfirstlane_b32 s{sW}, v28")
    e(f"s_and_b32 s{sT0}, s2, 7")
    e(f"s_lshl_b32 s{sT0}, s{sT0}, 1")
    e(f"s_bfe_u32 s{sT1}, s2, 0x10003")
    e(f"s_add_u32 s{sFS}, s{sT0}, s{sT1}")
    e(f"s_lshr_b32 s{sMT}, s2, 4")
    e(f"s_lshl_b32 s{sRG}, s{sMT}, 2")
    e(f"s_add_u32 s{sRG}, s{sRG}, s{sW}")
    e("v_lshrrev_b32 v28, 3, v0")
    e("v_and_b32 v29, 7, v0")
    e("v_lshrrev_b32 v30, 2, v0")
    e("v_and_b32 v31, 4, v30")
    e("v_xor_b32 v29, v29, v31")
    e("v_lshlrev_b32 v29, 4, v29")
    e(f"v_mul_u32_u24 v{vW}, 9216, v28")
    e(f"v_add_u32 v{vW}, v{vW}, v29")
    e(f"v_mul_u32_u24 v{vD}, 1152, v28")
    e(f"v_add_u32 v{vD}, v{vD}, v29")
    e(f"v_mul_u32_u24 v{vN}, 9216, v30")
    e("v_and_b32 v31, 3, v0")
    e("v_lshlrev_b32 v31, 4, v31")
    e(f"v_add_u32 v{vN}, v{vN}, v31")
    for i in range(1, 4):
        e(f"v_add_u32 v{vW+i}, {i*(8*9216-1024)}, v{vW}")
        e(f"v_add_u32 v{vN+i}, {i*(16*9216-1024)}, v{vN}")
        e(f"v_add_u32 v{vD+i}, {i*(8*1152-1024)}, v{vD}")
    e(f"v_lshlrev_b32 v{vL16}, 4, v0")
    e(f"s_and_b32 s{sT0}, s2, 7")
    e(f"s_mul_i32 s{sT0}, s{sT0}, 576")
    e(f"s_mul_i32 s{sColW}, s{sT1}, 320")
    e(f"s_add_u32 s{sColW}, s{sColW}, s{sT0}")
    e(f"s_mul_i32 s{sColN}, s{sT1}, 32")
    e(f"s_add_u32 s{sColN}, s{sColN}, s{sT0}")
    e(f"s_add_u32 s{sColN}, s{sColN}, 256")
    e(f"s_lshl_b32 s{sT0}, s{sW}, 6")
    e(f"s_add_u32 s{sRowW}, s{sColW}, s{sT0}")
    e(f"s_mul_i32 s{sRowW}, s{sRowW}, 1152")
    e(f"s_lshl_b32 s{sT0}, s{sW}, 3")
    e(f"s_add_u32 s{sRowN}, s{sColN}, s{sT0}")
    e(f"s_mul_i32 s{sRowN}, s{sRowN}, 1152")
    e(f"s_and_b32 s{sT0}, s{sW}, 1")
    e(f"s_mul_i32 s{sT1}, s{sT0}, {72*9216}")
    e(f"s_lshl_b32 s{sColW}, s{sColW}, 1")
    e(f"s_add_u32 s{sColW}, s{sColW}, s{sT1}")
    e(f"s_lshl_b32 s{sColN}, s{sColN}, 1")
    e(f"s_add_u32 s{sColN}, s{sColN}, s{sT1}")
    e(f"s_add_u32 s{sColN}, s{sColN}, s{sT1}")
    e(f"s_mul_i32 s{sLB1}, s{sW}, 9216")
    e(f"s_lshl_b32 s{sLB2}, s{sW}, 13")
    e(f"s_lshl_b32 s{sLB3}, s{sW}, 10")
    e(f"s_mul_i32 s{sHC}, s{sRG}, 36864")
    e(f"s_mul_i32 s{sP}, s{sFS}, {64*36864}")
    e(f"s_add_u32 s{sP}, s{sP}, s{sHC}")
    e(f"s_add_u32 s{sP}, s{sP}, {WS_P}")
    e(f"s_add_u32 s{sHC}, s{sHC}, {WS_HC}")
    e("s_waitcnt lgkmcnt(0)")
    e(f"s_cmp_lt_u32 s{sW}, 2")
    e(f"s_cselect_b32 s{SGU}, s{sWG}, s{sWU}")
    e(f"s_cselect_b32 s{SGU+1}, s{sWG+1}, s{sWU+1}")
    e(f"s_and_b32 s{SGU+1}, s{SGU+1}, 0xffff")
    e(f"s_mov_b32 s{SGU+2}, {D*F*2}")
    e(f"s_mov_b32 s{SGU+3}, 0x20000")
    k.srd(SD, sWD, D*F*2)
    k.srd(SW, sWS, WS_END)

    NCH = 27
    def dma_items(c):
        slot = c % 4
        items = []
        for i in range(9):
            pre = []
            grp, r = divmod(i, 4)
            if c < 16:
                b, q = divmod(c, 4)
                if r == 0:
                    pre.append(f"s_add_u32 m0, s{sLB1}, {slot*SLOT + 4096*grp}")
                    pre.append(f"s_add_u32 s{sOff}, s{sColW}, {128*b + (144*q + 32*grp)*9216}")
                ins = f"buffer_load_dwordx4 v{vW+r}, s[{SGU}:{SGU+3}], s{sOff} offen offset:{1024*r} lds"
            elif c < 18:
                q = c - 16
                if r == 0:
                    pre.append(f"s_add_u32 m0, s{sLB1}, {slot*SLOT + 4096*grp}")
                    pre.append(f"s_add_u32 s{sOff}, s{sColN}, {(288*q + 64*grp)*9216}")
                ins = f"buffer_load_dwordx4 v{vN+r}, s[{SGU}:{SGU+3}], s{sOff} offen offset:{1024*r} lds"
            else:
                db = c - 18
                if r == 0:
                    if grp < 2:
                        pre.append(f"s_add_u32 m0, s{sLB2}, {slot*SLOT + 4096*grp}")
                        pre.append(f"s_add_u32 s{sOff}, s{sRowW}, {128*db + 32*grp*1152}")
                    else:
                        pre.append(f"s_add_u32 m0, s{sLB3}, {slot*SLOT + 32768}")
                        pre.append(f"s_add_u32 s{sOff}, s{sRowN}, {128*db}")
                ins = f"buffer_load_dwordx4 v{vD+r}, s[{SD}:{SD+3}], s{sOff} offen offset:{1024*r} lds"
            items.append((pre, ins, ("dma", c)))
        return items
    def emit_dma(item):
        pre, ins, tag = item
        for p in pre: e(p)
        k.vmem(ins, tag)

    def hc_load(kk):
        if kk % 4 == 0:
            e(f"s_add_u32 s{sT0}, s{sHC}, {4096*(kk//4)}")
        k.vmem(f"buffer_load_dwordx4 a[{4*kk}:{4*kk+3}], v{vL16}, s[{SW}:{SW+3}], s{sT0} offen offset:{1024*(kk%4)}", ("hc", kk))

    for it in dma_items(0): emit_dma(it)
    for kk in range(0, 12): hc_load(kk)
    for it in dma_items(1): emit_dma(it)
    for kk in range(12, 20): hc_load(kk)
    if dist >= 3:
        for it in dma_items(2): emit_dma(it)
    for kk in range(20, 36): hc_load(kk)
    e("v_lshlrev_b32 v39, 2, v0")
    e(f"s_mul_i32 s{sT1}, s{sRG}, 2304")
    e(f"s_add_u32 s{sT1}, s{sT1}, {WS_SS}")
    for t in range(9):
        k.vmem(f"buffer_load_dword v{vH+t}, v39, s[{SW}:{SW+3}], s{sT1} offen offset:{256*t}", "ss")
    e("v_lshrrev_b32 v28, 5, v0")
    e("v_bfe_u32 v29, v0, 2, 2")
    e("v_lshl_add_u32 v30, v28, 3, v29")
    e("v_bfe_u32 v31, v0, 4, 1")
    e("v_lshlrev_b32 v31, 5, v31")
    e("v_and_b32 v32, 1, v0")
    e("v_lshl_add_u32 v31, v32, 4, v31")
    e("v_bfe_u32 v32, v0, 1, 1")
    e("v_lshl_add_u32 v31, v32, 3, v31")
    e(f"v_lshl_add_u32 v{vAN}, v30, 6, v31")
    e(f"v_add_u32 v{vAN+1}, {SLOT}, v{vAN}")
    e("v_lshrrev_b32 v32, 1, v29")
    e("v_lshl_add_u32 v31, v32, 6, v31")
    e(f"v_lshl_add_u32 v{vA}, v30, 7, v31")
    e(f"v_xor_b32 v{vA+1}, 64, v{vA}")
    for s in range(1, 4):
        e(f"v_add_u32 v{vA+2*s}, {s*SLOT}, v{vA}")
        e(f"v_add_u32 v{vA+2*s+1}, {s*SLOT}, v{vA+1}")
    if packed:
        for s in range(4):
            e(f"v_add_u32 v{vA+2*s}, {s*SLOT}, v{vL16}")

    mf = []
    for c in range(NCH):
        slot = c % 4
        idx = 0
        if c < 16:
            b, q = divmod(c, 4)
            acc = ACC[b % 2]
            for j in range(9):
                for (mat, t) in [(0, 0), (1, 0), (0, 1), (1, 1)]:
                    off = j*2048 + mat*18432
                    mf.append(dict(c=c, rd=[(vA+2*slot+t, off), (vA+2*slot+t, off+512)], B=f"a[{4*(9*q+j)}:{4*(9*q+j)+3}]",
                                   D=acc + 32*t + 16*mat, first=(q == 0 and j == 0), hc=9*q+j, i=idx)); idx += 1
        elif c < 18:
            q = c - 16
            acc = ACC[0]
            for j in range(18):
                for mat in (0, 1):
                    off = j*1024 + mat*18432
                    mf.append(dict(c=c, rd=[(vAN+slot, off), (vAN+slot, off+256)], B=f"a[{4*(18*q+j)}:{4*(18*q+j)+3}]",
                                   D=acc + 16*mat, first=(q == 0 and j == 0), hc=18*q+j, i=idx)); idx += 1
        else:
            db = c - 18
            acc = [ACC[0]+32, ACC[1], ACC[1]+32, ACC[0]][db % 4]
            for j in range(18):
                for t in (0, 1):
                    off = j*2048
                    mf.append(dict(c=c, rd=[(vA+2*slot+t, off), (vA+2*slot+t, off+512)], B=f"v[{vH+4*j}:{vH+4*j+3}]",
                                   D=acc + 16*t, first=(j == 0), hc=None, i=idx)); idx += 1
    NM = len(mf)
    assert NM == 972

    def emit_reads(n):
        m = mf[n]
        fr = aF + 4*(n % NF)
        if packed:
            k.lds(f"ds_read_b128 a[{fr}:{fr+3}], v{vA+2*(m['c']%4)} offset:{1024*m['i']}", ("f", n))
        else:
            for ei, (ar, off) in enumerate(m["rd"]):
                k.lds(f"ds_read_b64_tr_b16 a[{fr+2*ei}:{fr+2*ei+1}], v{ar} offset:{off}", ("f", n))

    def gelu_ops(G, U, Hbase):
        ops = []
        for g0 in range(0, 16, 4):
            T = [vT + (g0 // 4 % 2) * 4 + i for i in range(4)]
            els = [g0 + i for i in range(4)]
            for i, el in enumerate(els): ops.append(f"v_mul_f32 v{T[i]}, v{G+el}, v{G+el}")
            for i, el in enumerate(els): ops.append(f"v_fma_f32 v{T[i]}, v{T[i]}, v{vC2}, v{vC1}")
            for i, el in enumerate(els): ops.append(f"v_mul_f32 v{T[i]}, v{T[i]}, v{G+el}")
            for i, el in enumerate(els):
                ops.append(f"v_exp_f32 v{T[i]}, v{T[i]}")
                ops.append(f"v_mul_f32 v{G+el}, v{G+el}, v{U+el}")
            for i, el in enumerate(els): ops.append(f"v_fma_f32 v{T[i]}, v{T[i]}, v{vR}, v{vR}")
            for i, el in enumerate(els): ops.append(f"v_rcp_f32 v{T[i]}, v{T[i]}")
            for i, el in enumerate(els): ops.append(f"v_mul_f32 v{G+el}, v{G+el}, v{T[i]}")
            for i in (0, 2): ops.append(f"v_cvt_pk_bf16_f32 v{Hbase + (g0+i)//2}, v{G+g0+i}, v{G+g0+i+1}")
        return ops
    jobs = []
    for b in range(4):
        acc = ACC[b % 2]
        ops = gelu_ops(acc, acc+16, vH + 16*b) + gelu_ops(acc+32, acc+48, vH + 16*b + 8)
        st = 144*(b+1) + 3
        en = 144*(b+2) - 4 if b < 3 else 648 + 1
        jobs.append([st, en, ops])
    jobs.append([648 + 3, 648 + 30, gelu_ops(ACC[0], ACC[0]+16, vH + 64)])
    if nogelu: jobs = []
    c1 = -2.0 * math.log2(math.e) * math.sqrt(2.0 / math.pi)
    c2 = c1 * 0.044715
    sops = [("waitss",)]
    for t in range(1, 9): sops.append(f"v_add_f32 v{vH}, v{vH}, v{vH+t}")
    sops += [f"v_mov_b32 v{vH+1}, v{vH}", "s_nop 1", f"v_permlane32_swap_b32 v{vH}, v{vH+1}", "s_nop 1",
             f"v_add_f32 v{vH}, v{vH}, v{vH+1}",
             f"v_mov_b32 v{vH+2}, {fhex(1e-5)}",
             f"v_fmac_f32 v{vH+2}, {fhex(1.0/576)}, v{vH}",
             f"v_mov_b32 v{vR}, v{vH+2}",
             f"v_rsq_f32 v{vH+3}, v{vH+2}",
             "s_nop 0",
             f"v_mul_f32 v{vC1}, {fhex(c1)}, v{vH+3}",
             f"v_mul_f32 v{vH+4}, v{vH+3}, v{vH+3}",
             f"v_mul_f32 v{vH+4}, v{vH+4}, v{vH+3}",
             f"v_mul_f32 v{vC2}, {fhex(c2)}, v{vH+4}"]
    jobs.insert(0, [112, 140, sops])
    def epi_ops(db):
        acc = [ACC[0]+32, ACC[1], ACC[1]+32, ACC[0]][db % 4]
        ops = [f"s_add_u32 s{sT1}, s{sP}, {4096*db}"]
        for t in (0, 1):
            a = acc + 16*t
            for j in range(8): ops.append(f"v_cvt_pk_bf16_f32 v{a+j}, v{a+2*j}, v{a+2*j+1}")
            for ee in (0, 1):
                ops.append(("st", f"buffer_store_dwordx4 v[{a+4*ee}:{a+4*ee+3}], v{vL16}, s[{SW}:{SW+3}], s{sT1} offen offset:{1024*(2*t+ee)}{store_flags}"))
        return ops
    for db in range(8):
        st = 648 + 36*(db+1) + 4
        jobs.append([st, st + 24, epi_ops(db)])

    def emit_op(op):
        if isinstance(op, tuple):
            if op[0] == "st": k.vmem(op[1], "st")
            elif op[0] == "waitss": k.wait(vm="ss")
        else: e(op)

    def barrier(c):
        need = [("dma", c)]
        hcs = [("hc", m["hc"]) for m in mf if m["c"] == c and m["hc"] is not None]
        k.wait(vm=need + hcs, lg0=(c > 0))
        e("s_barrier")
    barrier(0)
    if stamps: e(f"s_memtime s[{sStamp+2}:{sStamp+3}]")
    next_read = 0
    bar_done = 0
    for n in range(P): emit_reads(n); next_read += 1
    dmaq = [] if nodma else list(dma_items(dist))
    for n in range(NM):
        m = mf[n]
        c = m["c"]
        if k._need(k.lg, k.lg_done, ("f", n)) is not None:
            tgt = min(n + waitevery - 1, next_read - 1)
            k.wait(lg=("f", tgt))
        fr = aF + 4*(n % NF)
        Dr = f"v[{m['D']}:{m['D']+15}]"
        e(f"v_mfma_f32_32x32x16_bf16 {Dr}, a[{fr}:{fr+3}], {m['B']}, {'0' if m['first'] else Dr}")
        if stamps and n == 647: e(f"s_memtime s[{sStamp+4}:{sStamp+5}]")
        E = 36*(c+1) - 1
        if c + 1 < NCH and n == E - P + X:
            barrier(c + 1); bar_done = c + 1
            assert not dmaq
            if c + 1 + dist < NCH and not nodma: dmaq = list(dma_items(c + 1 + dist))
        cnt = 0
        while next_read < NM and next_read <= n + P and mf[next_read]["c"] <= bar_done and cnt < 2:
            emit_reads(next_read); next_read += 1; cnt += 1
        if dmaq and (m["i"] % 3 == 1) and m["i"] < 36 - P + X and mf[n]["c"] == bar_done:
            emit_dma(dmaq.pop(0))
        for job in jobs:
            st, en, ops = job
            if n >= st and ops:
                rem = max(en - n, 1)
                cntv = -(-len(ops) // rem)
                for _ in range(cntv): emit_op(ops.pop(0))
                break
    for job in jobs: assert not job[2], job
    e("s_nop 15")
    for op in epi_ops(8): emit_op(op)
    if stamps:
        e(f"s_memtime s[{sStamp+6}:{sStamp+7}]")
        e("s_waitcnt vmcnt(0) lgkmcnt(0)")
        e(f"s_memtime s[{sStamp+8}:{sStamp+9}]")
        e("s_memrealtime s[54:55]")
        e("s_waitcnt lgkmcnt(0)")
        for i in range(1, 5):
            e(f"s_sub_u32 s{sStamp+2*i}, s{sStamp+2*i}, s{sStamp}")
            e(f"v_mov_b32 v{40+i}, s{sStamp+2*i}")
        e(f"v_mov_b32 v40, s{sStamp}")
        e("s_getreg_b32 s50, hwreg(HW_REG_XCC_ID)")
        e("v_mov_b32 v45, s50")
        e("v_mov_b32 v46, s52")
        e("v_mov_b32 v47, s54")
        e(f"s_lshl_b32 s{sT0}, s2, 2")
        e(f"s_add_u32 s{sT0}, s{sT0}, s{sW}")
        e(f"s_lshl_b32 s{sT0}, s{sT0}, 5")
        e(f"s_add_u32 s{sT0}, s{sT0}, {WS_END}")
        e(f"s_mov_b32 s{SW+2}, {WS_END + 65536}")
        e("v_mov_b32 v48, 0")
        e("s_mov_b64 exec, 1")
        e(f"buffer_store_dwordx4 v[40:43], v48, s[{SW}:{SW+3}], s{sT0} offen")
        e(f"buffer_store_dwordx4 v[44:47], v48, s[{SW}:{SW+3}], s{sT0} offen offset:16")
    k.label(f"L_{name}_end")
    e("s_endpgm")
    return k, (512, 64, 256), (256, 256, 4*SLOT)

def gen_k5(name="red_kernel"):
    k = Kern(name); e = k.e
    e("s_cmp_ge_u32 s2, 576")
    e(f"s_cbranch_scc1 L_{name}_end")
    e(f"s_load_dwordx2 s[4:5], s[0:1], {KA_OUT}")
    e(f"s_load_dwordx2 s[6:7], s[0:1], {KA_WS}")
    e("s_mul_hi_u32 s20, s2, 0x1c71c71d")
    e("s_mul_i32 s21, s20, 9")
    e("s_sub_u32 s21, s2, s21")
    e("v_lshlrev_b32 v1, 4, v0")
    e("s_lshl_b32 s22, s2, 12")
    e("s_waitcnt lgkmcnt(0)")
    k.srd(8, 4, S*D*2)
    k.srd(12, 6, WS_END)
    e(f"s_add_u32 s23, s22, {WS_P}")
    for p in range(16):
        k.vmem(f"buffer_load_dwordx4 v[{8+4*p}:{11+4*p}], v1, s[12:15], s23 offen", ("p", p))
        if p < 15: e(f"s_add_u32 s23, s23, {64*36864}")
    e(f"s_add_u32 s23, s22, {WS_HC}")
    k.vmem("buffer_load_dwordx4 v[72:75], v1, s[12:15], s23 offen", "hc")
    e("v_and_b32 v2, 31, v0")
    e("v_lshlrev_b32 v3, 2, v2")
    e("s_lshl_b32 s24, s20, 7")
    e(f"s_add_u32 s24, s24, {WS_MEAN}")
    k.vmem("buffer_load_dword v76, v3, s[12:15], s24 offen", "mean")
    e("v_mul_u32_u24 v4, 73728, v2")
    e("v_lshrrev_b32 v5, 5, v0")
    e("v_lshl_add_u32 v4, v5, 4, v4")
    e("s_mul_i32 s25, s20, 1152")
    e("s_lshl_b32 s26, s21, 7")
    e("s_add_u32 s25, s25, s26")
    for p in range(16):
        k.wait(vm=("p", p))
        for j in range(4):
            r = 8 + 4*p + j
            if p == 0:
                e(f"v_lshlrev_b32 v{80+2*j}, 16, v{r}")
                e(f"v_and_b32 v{81+2*j}, 0xffff0000, v{r}")
            else:
                e(f"v_lshlrev_b32 v6, 16, v{r}")
                e(f"v_and_b32 v7, 0xffff0000, v{r}")
                e(f"v_add_f32 v{80+2*j}, v{80+2*j}, v6")
                e(f"v_add_f32 v{81+2*j}, v{81+2*j}, v7")
    k.wait(vm="mean")
    for j in range(4):
        e(f"v_lshlrev_b32 v6, 16, v{72+j}")
        e(f"v_and_b32 v7, 0xffff0000, v{72+j}")
        e(f"v_add_f32 v6, v6, v76")
        e(f"v_add_f32 v7, v7, v76")
        e(f"v_add_f32 v{80+2*j}, v{80+2*j}, v6")
        e(f"v_add_f32 v{81+2*j}, v{81+2*j}, v7")
        e(f"v_cvt_pk_bf16_f32 v{72+j}, v{80+2*j}, v{81+2*j}")
    e("buffer_store_dwordx4 v[72:75], v4, s[8:11], s25 offen")
    k.label(f"L_{name}_end")
    e("s_endpgm")
    return k, (88, 32, 88), (576, 256, 0)

if __name__ == "__main__":
    import sys, json
    opts = json.loads(sys.argv[2]) if len(sys.argv) > 2 else {}
    k4, r4, l4 = gen_k4(**opts)
    k5, r5, l5 = gen_k5()
    txt = assemble_file("; dev build", [(k4, *l4), (k5, *l5)], [(k4, *r4), (k5, *r5)])
    open(sys.argv[1], "w").write(txt)
```

```python
S, D, F = 2048, 576, 4608
SZ = S * D * 2
WS_Y    = 0
WS_V    = WS_Y + SZ
WS_HC   = WS_V + SZ
WS_WT   = WS_HC + SZ
WS_G    = WS_WT + SZ
WS_MEAN = WS_G + 9 * 36 * 1024
WS_SS   = WS_MEAN + 8192
WS_P    = (WS_SS + 64 * 9 * 256 + 4095) // 4096 * 4096
P_BYTES = 16 * 64 * 36 * 1024
WS_END  = WS_P + P_BYTES
KA_X, KA_WR, KA_WI, KA_BX, KA_WG, KA_WU, KA_WD, KA_OUT, KA_DBG, KA_WS = [8 * i for i in range(10)]
```

```python
import sys, json
from dsl import *
from k123 import *
from k4 import *
HDR = open("sequential_preLN__spectral_gfnet__geglu_ffn__prompt.s.ref").read().split("; Override launch geometry")[0]
def build(path, stamps=False, k4opts=None):
    ks = [gen_k1(stamps=stamps), gen_k2(stamps=stamps), gen_k3(stamps=stamps), gen_k4(**(k4opts or {})), gen_k5()]
    txt = assemble_file(HDR, [(k, *l) for k, r, l in ks], [(k, *r) for k, r, l in ks])
    open(path, "w").write(txt)
if __name__ == "__main__":
    opts = json.loads(sys.argv[2]) if len(sys.argv) > 2 else {}
    build(sys.argv[1], **opts)
```

```python
import sys
from build import *
def nullk():
    k = Kern("nul_kernel"); k.e("s_endpgm"); return k, (8, 16, 8), (256, 64, 0)
n = int(sys.argv[2])
ks = [gen_k1(), gen_k2(), gen_k3(), gen_k4(), gen_k5()]
nk = nullk()
launches = [(k, *l) for k, r, l in ks]
launches = launches[:1] + [(nk[0], *nk[2])] * n + launches[1:]
txt = assemble_file(HDR, launches, [(k, *r) for k, r, l in ks + [nk]])
open(sys.argv[1], "w").write(txt)
```

```python
from dsl import *
from layout import *
from k123 import stamp_begin, stamp_mid, stamp_end, R
import math

SLOT = 36864
MF16 = "v_mfma_f32_16x16x32_bf16"

def p1_frag_order(NL):
    chunks = []
    ks = 18 // NL
    for c in range(NL):
        fr = []
        for kk in range(c * ks, (c + 1) * ks):
            for t in range(NL):
                for mat in (0, 1): fr.append((t, kk, mat))
        chunks.append(fr)
    for t in range(NL, 18):
        chunks.append([(t, kk, mat) for kk in range(18) for mat in (0, 1)])
    return chunks

def wg_map(e, mapping, sFS, sMT, t0, t1):
    b = mapping
    lb = {2: 1, 4: 2, 8: 3, 16: 4}[b]
    nfh = 16 // b; lfh = 4 - lb
    e(f"s_lshr_b32 s{t0}, s2, 3")
    e(f"s_and_b32 s{sFS}, s{t0}, {b-1}")
    e(f"s_lshr_b32 s{sMT}, s{t0}, {lb}")
    e(f"s_and_b32 s{t0}, s2, 7")
    e(f"s_and_b32 s{t1}, s{t0}, {nfh-1}")
    e(f"s_lshl_b32 s{t1}, s{t1}, {lb}")
    e(f"s_add_u32 s{sFS}, s{sFS}, s{t1}")
    e(f"s_lshr_b32 s{t0}, s{t0}, {lfh}")
    e(f"s_lshl_b32 s{t0}, s{t0}, {5-lb}")
    e(f"s_add_u32 s{sMT}, s{sMT}, s{t0}")

def gen_k4b(name="ffn_kernel", P=6, X=3, NF=12, NL=3, stamps=False, dist=3, store_flags="", mapping=2, kidx=3, nogelu=False, nodma=False, hcrate=2):
    k = Kern(name); e = k.e
    sWS = 10; SW = 12
    sW, sMT, sFS, sRG = 20, 21, 22, 23
    sOff, sLB, sWP, sHC, sP, sT0, sT1, sHo = 24, 25, 26, 27, 28, 29, 30, 31
    vD = 1
    vA = 4
    vL16 = 8
    vC = 10
    vT = 16
    vH = 32
    vACC = 104
    NSET = 8
    aF = 144
    e("s_cmp_ge_u32 s2, 256")
    e(f"s_cbranch_scc1 L_{name}_end")
    stamp_begin(k, stamps)
    e(f"s_load_dwordx2 s[10:11], s[0:1], {KA_WS}")
    e("v_lshrrev_b32 v16, 6, v0")
    e("v_and_b32 v0, 63, v0")
    e(f"v_readfirstlane_b32 s{sW}, v16")
    wg_map(e, mapping, sFS, sMT, sT0, sT1)
    e(f"s_lshl_b32 s{sRG}, s{sMT}, 2")
    e(f"s_add_u32 s{sRG}, s{sRG}, s{sW}")
    e(f"v_lshlrev_b32 v{vL16}, 4, v0")
    e(f"s_mul_i32 s{sLB}, s{sW}, 9216")
    e(f"v_add_u32 v{vD}, s{sLB}, v{vL16}")
    e(f"v_add_u32 v{vD+1}, 4096, v{vD}")
    e(f"v_add_u32 v{vD+2}, 8192, v{vD}")
    e(f"s_mul_i32 s{sWP}, s{sFS}, {SLICE_B}")
    e(f"s_add_u32 s{sWP}, s{sWP}, {WS_WP}")
    e(f"s_mul_i32 s{sHC}, s{sRG}, 36864")
    e(f"s_mul_i32 s{sP}, s{sFS}, {64*36864}")
    e(f"s_add_u32 s{sP}, s{sP}, s{sHC}")
    e(f"s_add_u32 s{sP}, s{sP}, {WS_P}")
    e(f"s_add_u32 s{sHC}, s{sHC}, {WS_HC}")
    e("s_waitcnt lgkmcnt(0)")
    k.srd(SW, sWS, WS_END)
    SR = f"s[{SW}:{SW+3}]"
    NCH = 27

    def dma_items(c):
        slot = c % 4
        it = [("s", f"s_add_u32 s{sOff}, s{sWP}, {c*SLOT}")]
        for i in range(9):
            grp, r = divmod(i, 4)
            if r == 0: it.append(("s", f"s_add_u32 m0, s{sLB}, {slot*SLOT + 4096*grp}"))
            it.append(("m", f"buffer_load_dwordx4 v{vD+grp}, {SR}, s{sOff} offen offset:{1024*r} lds", ("dma", c)))
        return it
    def hc_items(kks):
        it = []
        for kk in kks:
            for hf in (0, 1):
                idx = hf*18 + kk
                it.append(("s", f"s_add_u32 s{sHo}, s{sHC}, {idx*1024}"))
                a = 4*(2*kk+hf)
                it.append(("m", f"buffer_load_dwordx4 a[{a}:{a+3}], v{vL16}, {SR}, s{sHo} offen", ("hc", kk)))
        return it
    def emit_item(it):
        if it[0] == "s": e(it[1])
        else: k.vmem(it[1], it[2])
    def emit_block(items):
        prev_m0 = False
        for it in items:
            if it[0] == "m" and prev_m0: e("s_nop 0")
            emit_item(it)
            prev_m0 = it[0] == "s" and " m0," in it[1]

    ks0 = 18 // NL
    emit_block(dma_items(0))
    emit_block(hc_items(range(0, ks0)))
    emit_block(dma_items(1))
    for s in range(4): e(f"v_add_u32 v{vA+s}, {s*SLOT}, v{vL16}")
    e("v_lshlrev_b32 v9, 2, v0")
    e(f"s_mul_i32 s{sT1}, s{sRG}, 2304")
    e(f"s_add_u32 s{sT1}, s{sT1}, {WS_SS}")
    lead = []
    if NL > 1: lead += hc_items(range(ks0, 2*ks0))
    lead += dma_items(2)
    for c in range(2, NL): lead += hc_items(range(c*ks0, (c+1)*ks0))
    lead += [("m", f"buffer_load_dword v{vH+t}, v9, {SR}, s{sT1} offen offset:{256*t}", "ss") for t in range(9)]

    frags = []
    p1 = p1_frag_order(NL)
    def accset(t): return vACC + 16*(t % NSET)
    for c, fr in enumerate(p1):
        for i, (t, kk, mat) in enumerate(fr):
            uses = [(accset(t) + 8*mat + 4*hf, f"a[{4*(2*kk+hf)}:{4*(2*kk+hf)+3}]", kk == 0) for hf in (0, 1)]
            frags.append(dict(c=c, i=i, uses=uses, hc=kk, tile=t))
    def acc2(db):
        return [accset(18 + 2*db), accset(19 + 2*db)]
    for db in range(9):
        a2 = acc2(db)
        i = 0
        for p in range(9):
            for dt in range(4):
                uses = [(a2[dt >> 1] + 8*hf + 4*(dt & 1), R(vH + 8*p + 4*hf, 4), p == 0) for hf in (0, 1)]
                frags.append(dict(c=18+db, i=i, uses=uses, hc=None, tile=None)); i += 1
    NFR = len(frags); assert NFR == 972
    NM = 2*NFR
    last_m = {}
    for n, f in enumerate(frags):
        if f["tile"] is not None: last_m[f["tile"]] = 2*n + 1

    class Op:
        __slots__ = ("txt", "kind", "deps", "ready", "done_gap", "done_pos", "prio", "min_gap", "tag", "fn")
        def __init__(s, txt, kind="v", deps=(), min_gap=0, prio=0, tag=None):
            s.txt, s.kind, s.deps, s.min_gap, s.prio, s.tag = txt, kind, list(deps), min_gap, prio, tag
            s.done_gap = None
    ops = []
    tfree = {}
    tcount = [0]
    hdone = {}
    c1 = -2.0 * math.log2(math.e) * math.sqrt(2.0 / math.pi); c2 = c1 * 0.044715
    sgap = 2*36*(NL-1) + 40 if NL > 1 else 56
    chain = [("w", "ss")]
    for t in range(1, 9): chain.append(f"v_add_f32 v{vH}, v{vH}, v{vH+t}")
    chain += [f"v_mov_b32 v{vH+1}, v{vH}", None, f"v_permlane32_swap_b32 v{vH}, v{vH+1}", None,
              f"v_add_f32 v{vH}, v{vH}, v{vH+1}",
              f"v_mov_b32 v{vC+4}, {fhex(1e-5)}",
              f"v_fmac_f32 v{vC+4}, {fhex(1.0/576)}, v{vH}",
              f"v_mov_b32 v{vC+5}, v{vC+4}", None,
              f"v_permlane16_swap_b32 v{vC+4}, v{vC+5}", None]
    for hf in (0, 1):
        chain += [("x", f"v_rsq_f32 v{vH+2+hf}, v{vC+4+hf}"), None,
                  f"v_mul_f32 v{vC+hf}, {fhex(c1)}, v{vH+2+hf}",
                  f"v_mul_f32 v{vH+4}, v{vH+2+hf}, v{vH+2+hf}",
                  f"v_mul_f32 v{vH+4}, v{vH+4}, v{vH+2+hf}",
                  f"v_mul_f32 v{vC+2+hf}, {fhex(c2)}, v{vH+4}"]
    prev = None; skip = 1
    for it in chain:
        if it is None: skip = 2; continue
        if isinstance(it, tuple) and it[0] == "w": o = Op(None, "vmwait", tag=it[1], min_gap=sgap)
        elif isinstance(it, tuple): o = Op(it[1], "x", min_gap=sgap)
        else: o = Op(it, "v", min_gap=sgap)
        if prev is not None: o.deps = [(prev, skip)]
        o.prio = -1
        ops.append(o); prev = o; skip = 1
    stats_last = prev
    NT = 16
    def gelu(t):
        A = accset(t)
        mg = last_m[t] + 5
        res = {}
        for hf in (0, 1):
            for i in range(4):
                G, U = A + 4*hf + i, A + 8 + 4*hf + i
                T = vT + tcount[0] % NT; tcount[0] += 1
                pr = t*8 + hf*4 + i
                d0 = [(stats_last, 1)]
                if T in tfree: d0.append((tfree[T], 0))
                m1 = Op(f"v_mul_f32 v{T}, v{G}, v{G}", deps=d0, min_gap=mg, prio=pr)
                f1 = Op(f"v_fma_f32 v{T}, v{T}, v{vC+2+hf}, v{vC+hf}", deps=[(m1, 0)], prio=pr)
                m2 = Op(f"v_mul_f32 v{T}, v{T}, v{G}", deps=[(f1, 0)], prio=pr)
                ex = Op(f"v_exp_f32 v{T}, v{T}", "x", deps=[(m2, 1)], prio=pr)
                f2 = Op(f"v_fma_f32 v{T}, v{T}, v{vC+4+hf}, v{vC+4+hf}", deps=[(ex, 1)], prio=pr)
                rc = Op(f"v_rcp_f32 v{T}, v{T}", "x", deps=[(f2, 1)], prio=pr)
                m3 = Op(f"v_mul_f32 v{U}, v{G}, v{U}", min_gap=mg, prio=pr + 0.5)
                m4 = Op(f"v_mul_f32 v{U}, v{U}, v{T}", deps=[(rc, 1), (m3, 0)], prio=pr)
                tfree[T] = m4
                ops.extend([m1, f1, m2, ex, f2, rc, m3, m4]); res[(hf, i)] = m4
            for i in (0, 2):
                U = A + 8 + 4*hf + i
                H = vH + 8*(t >> 1) + 4*hf + 2*(t & 1) + (i >> 1)
                cv = Op(f"v_cvt_pk_bf16_f32 v{H}, v{U}, v{U+1}", deps=[(res[(hf, i)], 0), (res[(hf, i+1)], 0), (stats_last, 1)], prio=t*8 + hf*4 + i + 1)
                ops.append(cv); hdone[H] = cv
    tile_ops = {}
    if not nogelu:
        for t in range(18):
            n0 = len(ops); gelu(t); tile_ops[t] = ops[n0:]
    epi = {}
    for db in range(9):
        mg = 2*(648 + 36*(db+1)) + 4
        lst = []
        for Tp in (0, 1):
            for hf in (0, 1):
                a = acc2(db)[Tp] + 8*hf
                cvs = []
                for j in range(4):
                    o = Op(f"v_cvt_pk_bf16_f32 v{a+j}, v{a+2*j}, v{a+2*j+1}", min_gap=mg, prio=1000 + db*100 + Tp*20 + hf*8 + j,
                           deps=[(cvs[-1], 0)] if cvs else [])
                    cvs.append(o); lst.append(o)
                idx = hf*18 + 2*db + Tp
                so = Op(f"s_add_u32 s{sT1 if (2*Tp+hf) & 1 else sT0}, s{sP}, {idx*1024}", "s", min_gap=mg, prio=1000 + db*100 + Tp*20 + hf*8)
                st = Op(f"buffer_store_dwordx4 {R(a,4)}, v{vL16}, {SR}, s{sT1 if (2*Tp+hf) & 1 else sT0} offen{store_flags}", "m",
                        deps=[(cvs[-1], 1), (so, 0)], prio=1000 + db*100 + Tp*20 + hf*8 + 5, tag=("st", db))
                lst += [so, st]
        sos = [o for o in lst if o.kind == "s"]; sts = [o for o in lst if o.kind == "m"]
        sos[2].deps.append((sts[0], 0)); sos[3].deps.append((sts[1], 0))
        if db > 0:
            pst = [o for o in epi[db-1] if o.kind == "m"]
            sos[0].deps.append((pst[2], 0)); sos[1].deps.append((pst[3], 0))
        epi[db] = lst
        ops.extend(lst)
    pending = sorted(ops, key=lambda o: o.prio)

    def ready(o, g):
        if g < o.min_gap: return False
        for d, lat in o.deps:
            if d.done_gap is None or g < d.done_gap + lat: return False
        return True
    def take(kinds, g):
        for idx, o in enumerate(pending[:80]):
            if o.kind in kinds and ready(o, g):
                pending.pop(idx); o.done_gap = g
                return o
        return None
    def emit_op(o):
        if o.kind == "vmwait": k.wait(vm=o.tag)
        elif o.kind == "m": k.vmem(o.txt, o.tag)
        else: e(o.txt)

    def emit_read(n):
        f = frags[n]; fr = aF + 4*(n % NF)
        k.lds(f"ds_read_b128 a[{fr}:{fr+3}], v{vA + f['c'] % 4} offset:{1024*f['i']}", ("f", n))
    def barrier(c):
        assert nodma or k.vm.count(("dma", c)) == 9, c
        k.wait(vm=[("dma", c)], lg0=(c > 0))
        e("s_barrier")
    stamp_mid(k, stamps, 0)
    barrier(0)
    next_read = 0; bar_done = 0
    for n in range(P): emit_read(n); next_read += 1
    vq = list(lead) + ([] if nodma else dma_items(3))
    m0_gap = -5
    overflow = 0
    k.wait(lg=("f", 0), vm=("hc", 0))
    for g in range(NM):
        n, hf = divmod(g, 2)
        f = frags[n]; c = f["c"]
        Dd, B, first = f["uses"][hf]
        fr = aF + 4*(n % NF)
        assert k._need(k.lg, k.lg_done, ("f", n)) is None, n
        if f["hc"] is not None: assert k._need(k.vm, k.vm_done, ("hc", f["hc"])) is None and ("hc", f["hc"]) in k.vm, (n, f["hc"])
        if f["tile"] is None and not nogelu:
            h0 = int(B[2:B.index(":")])
            forced = False
            while any(hdone[r].done_gap is None for r in range(h0, h0+4)):
                o = take(("v", "x"), g + 1)
                assert o is not None
                o.done_gap = g - 1
                e("s_nop 0"); emit_op(o); overflow += 2; forced = True
            if forced or any(hdone[r].done_gap >= g - 1 for r in range(h0, h0+4)):
                e("s_nop 1"); overflow += 2
        if first:
            owner = f["tile"] if f["tile"] is not None else 18 + 2*(c-18) + ((f["i"] % 4) >> 1)
            po = owner - NSET
            if po >= 0:
                lst = tile_ops.get(po, []) if po < 18 else epi[(po-18)//2]
                for o in lst: assert o.done_gap is not None and o.done_gap < g - 1, (g, owner)
        Dr = R(Dd, 4)
        e(f"{MF16} {Dr}, a[{fr}:{fr+3}], {B}, {'0' if first else Dr}")
        if stamps and g == 2*648 - 1: stamp_mid(k, stamps, 2)
        if stamps and g == 2*36*NL - 1: stamp_mid(k, stamps, 1)
        free_first = True
        slots = 2
        E = 36*(c+1) - 1
        if hf == 1:
            if c + 1 < NCH and n == E - P + X:
                barrier(c + 1); bar_done = c + 1; free_first = False; slots -= 1
                if c + 1 + dist < NCH and not nodma: vq += dma_items(c + 1 + dist)
            if n + 1 < NFR:
                nf = frags[n+1]
                vmt = ("hc", nf["hc"]) if nf["hc"] is not None else None
                if vmt is not None and vmt not in k.vm:
                    while vmt not in k.vm or (vq and vq[0][0] == "m" and vq[0][2] == vmt) or (len(vq) > 1 and vq[1][0] == "m" and vq[1][2] == vmt):
                        it = vq.pop(0)
                        if it[0] == "m" and " lds" in it[1]: e("s_nop 0")
                        emit_item(it); overflow += 1
                if k.wait(lg=("f", n+1), vm=vmt):
                    if not free_first: slots -= 1
                    free_first = False
        if free_first:
            if vq and vq[0][0] == "s":
                it = vq.pop(0); emit_item(it)
                if " m0," in it[1]: m0_gap = g
                free_first = False
            else:
                o = take(("s", "vmwait"), g)
                if o: emit_op(o); free_first = False
        can_read = next_read < NFR and frags[next_read]["c"] <= bar_done and next_read <= n + P
        did_mem = False
        if slots > 0 and can_read and (hf == 0 or next_read < n + P):
            emit_read(next_read); next_read += 1; slots -= 1; did_mem = True
        elif slots > 0:
            inlead = c < NL
            rate_ok = (g % hcrate == 1 % hcrate) if inlead else (g % 6 == 1)
            if vq and vq[0][0] == "m" and (rate_ok or len(vq) > 20) and not (" lds" in vq[0][1] and m0_gap == g):
                emit_item(vq.pop(0)); slots -= 1; did_mem = True
            else:
                o = take(("m",), g)
                if o: emit_op(o); slots -= 1; did_mem = True
        if slots == 2:
            o = take(("x",), g)
            if o: emit_op(o); slots = 0
        while slots > 0:
            o = take(("v",), g)
            if not o: break
            emit_op(o); slots -= 1
    assert not vq, vq
    e("s_nop 7")
    g = NM + 10
    while pending:
        o = take(("v", "x", "s", "m", "vmwait"), g); g += 1
        if o: emit_op(o)
    stamp_mid(k, stamps, 3)
    stamp_end(k, stamps, sWS, kidx, sW, 4)
    k.label(f"L_{name}_end")
    e("s_endpgm")
    k.overflow = overflow
    return k, (512, 100, 256), (256, 256, 4*SLOT)

def gen_k5b(name="red_kernel", stamps=False, kidx=4):
    k = Kern(name); e = k.e
    e("s_cmp_ge_u32 s2, 576")
    e(f"s_cbranch_scc1 L_{name}_end")
    stamp_begin(k, stamps)
    e(f"s_load_dwordx2 s[4:5], s[0:1], {KA_OUT}")
    e(f"s_load_dwordx2 s[6:7], s[0:1], {KA_WS}")
    e("v_lshrrev_b32 v2, 6, v0")
    e("v_lshlrev_b32 v1, 4, v0")
    e("v_readfirstlane_b32 s27, v2")
    e("s_mul_hi_u32 s20, s2, 0x1c71c71d")
    e("s_mul_i32 s21, s20, 9")
    e("s_sub_u32 s21, s2, s21")
    e("s_lshl_b32 s22, s2, 12")
    e("s_waitcnt lgkmcnt(0)")
    k.srd(8, 4, S*D*2)
    k.srd(12, 6, WS_END)
    e(f"s_add_u32 s23, s22, {WS_P}")
    for p in range(16):
        k.vmem(f"buffer_load_dwordx4 v[{8+4*p}:{11+4*p}], v1, s[12:15], s23 offen", ("p", p))
        if p < 15: e(f"s_add_u32 s23, s23, {64*36864}")
    e(f"s_add_u32 s23, s22, {WS_HC}")
    k.vmem("buffer_load_dwordx4 v[72:75], v1, s[12:15], s23 offen", "hc")
    e("s_lshl_b32 s21, s21, 2")
    e("s_add_u32 s21, s21, s27")
    e("s_cmp_ge_u32 s21, 18")
    e("s_cselect_b32 s28, 16, 0")
    e("s_cselect_b32 s29, 18, 0")
    e("s_sub_u32 s21, s21, s29")
    e("v_and_b32 v2, 15, v0")
    e("v_add_u32 v2, s28, v2")
    e("v_lshlrev_b32 v3, 2, v2")
    e("s_lshl_b32 s24, s20, 7")
    e(f"s_add_u32 s24, s24, {WS_MEAN}")
    k.vmem("buffer_load_dword v76, v3, s[12:15], s24 offen", "mean")
    e("v_mul_u32_u24 v4, 73728, v2")
    e("v_bfe_u32 v5, v0, 4, 2")
    e("v_lshl_add_u32 v4, v5, 4, v4")
    e("s_mul_i32 s25, s20, 1152")
    e("s_lshl_b32 s26, s21, 6")
    e("s_add_u32 s25, s25, s26")
    for p in range(16):
        k.wait(vm=("p", p))
        for j in range(4):
            r = 8 + 4*p + j
            if p == 0:
                e(f"v_lshlrev_b32 v{80+2*j}, 16, v{r}")
                e(f"v_and_b32 v{81+2*j}, 0xffff0000, v{r}")
            else:
                e(f"v_lshlrev_b32 v6, 16, v{r}")
                e(f"v_and_b32 v7, 0xffff0000, v{r}")
                e(f"v_add_f32 v{80+2*j}, v{80+2*j}, v6")
                e(f"v_add_f32 v{81+2*j}, v{81+2*j}, v7")
    k.wait(vm="mean")
    for j in range(4):
        e(f"v_lshlrev_b32 v6, 16, v{72+j}")
        e(f"v_and_b32 v7, 0xffff0000, v{72+j}")
        e(f"v_add_f32 v6, v6, v76")
        e(f"v_add_f32 v7, v7, v76")
        e(f"v_add_f32 v{80+2*j}, v{80+2*j}, v6")
        e(f"v_add_f32 v{81+2*j}, v{81+2*j}, v7")
        e(f"v_cvt_pk_bf16_f32 v{72+j}, v{80+2*j}, v{81+2*j}")
    e("buffer_store_dwordx4 v[72:75], v4, s[8:11], s25 offen")
    if stamps:
        e("s_cmp_ge_u32 s2, 512")
        e(f"s_cbranch_scc1 L_{name}_end")
    stamp_end(k, stamps, 6, kidx, 27, 0)
    k.label(f"L_{name}_end")
    e("s_endpgm")
    return k, (88, 100, 88), (576, 256, 0)


def emit_pack_job(k, NL, sP8, sJob, sLds, s0=40, v0=2, lane="v0", ld_flags=""):
    e = k.e
    sPtr = s0
    SS, SD = s0 + 8, s0 + 12
    sMat, sCb, sKg, sA, sB, sRS, sSrc = s0+16, s0+17, s0+18, s0+19, s0+20, s0+21, s0+22
    sBase, sStep = s0 + 24, s0 + 28
    e(f"s_load_dwordx4 s[{sPtr}:{sPtr+3}], s[0:1], {KA_WG}")
    e(f"s_load_dwordx2 s[{sPtr+4}:{sPtr+5}], s[0:1], {KA_WD}")
    e(f"s_load_dwordx2 s[{sPtr+6}:{sPtr+7}], s[0:1], {KA_WS}")
    e(f"s_mul_hi_u32 s{sMat}, s{sJob}, {(2**32 + 53)//54}")
    e(f"s_mul_i32 s{sA}, s{sMat}, 54")
    e(f"s_sub_u32 s{sA}, s{sJob}, s{sA}")
    e(f"s_mul_hi_u32 s{sCb}, s{sA}, {(2**32 + 5)//6}")
    e(f"s_mul_i32 s{sB}, s{sCb}, 6")
    e(f"s_sub_u32 s{sKg}, s{sA}, s{sB}")
    lab = f"L_{k.name}_pk{k.nlabel}"; k.nlabel += 1
    e(f"s_cmp_eq_u32 s{sMat}, 2")
    e(f"s_cbranch_scc1 {lab}_d")
    e(f"s_mov_b32 s{sRS}, 9216")
    e(f"s_mul_i32 s{sSrc}, s{sKg}, {96*9216}")
    e(f"s_mul_i32 s{sA}, s{sP8}, 9")
    e(f"s_add_u32 s{sA}, s{sA}, s{sCb}")
    e(f"s_lshl_b32 s{sA}, s{sA}, 7")
    e(f"s_add_u32 s{sSrc}, s{sSrc}, s{sA}")
    for cb in (0, 1):
        e(f"s_lshl_b32 s{sA}, s{sCb}, 1")
        if cb: e(f"s_add_u32 s{sA}, s{sA}, 1")
        e(f"s_cmp_ge_u32 s{sA}, 9")
        e(f"s_cselect_b32 s{sB}, 9, 0")
        e(f"s_sub_u32 s{sA}, s{sA}, s{sB}")
        e(f"s_mul_i32 s{sB}, s{sB}, {972//9}")
        for a in (0, 1):
            i = 2*cb + a
            e(f"s_lshl_b32 s{sBase+i}, s{sA}, 1")
            if a: e(f"s_add_u32 s{sBase+i}, s{sBase+i}, 1")
            e(f"s_cmp_lt_u32 s{sBase+i}, {NL}")
            e(f"s_cselect_b32 s{sStep+i}, 2, 36")
            e(f"s_mul_i32 s{sBase+i}, s{sBase+i}, s{sStep+i}")
            e(f"s_cselect_b32 s{sStep+i}, {2*NL}, 2")
            e(f"s_add_u32 s{sBase+i}, s{sBase+i}, s{sMat}")
            e(f"s_add_u32 s{sBase+i}, s{sBase+i}, s{sB}")
    e(f"s_mul_i32 s{sKg}, s{sKg}, 3")
    e(f"s_branch {lab}_j")
    k.label(f"{lab}_d")
    e(f"s_mov_b32 s{sRS}, 1152")
    e(f"s_mul_i32 s{sA}, s{sP8}, 6")
    e(f"s_add_u32 s{sA}, s{sA}, s{sKg}")
    e(f"s_mul_i32 s{sSrc}, s{sA}, {96*1152}")
    e(f"s_lshl_b32 s{sA}, s{sCb}, 7")
    e(f"s_add_u32 s{sSrc}, s{sSrc}, s{sA}")
    e(f"s_cmp_ge_u32 s{sKg}, 3")
    e(f"s_cselect_b32 s{sB}, 3, 0")
    e(f"s_sub_u32 s{sKg}, s{sKg}, s{sB}")
    e(f"s_mul_i32 s{sKg}, s{sKg}, 3")
    e(f"s_mul_i32 s{sB}, s{sB}, {972//3}")
    e(f"s_mul_i32 s{sA}, s{sCb}, 36")
    e(f"s_add_u32 s{sA}, s{sA}, s{sB}")
    for i in range(4):
        e(f"s_add_u32 s{sBase+i}, s{sA}, {648 + i}")
        e(f"s_mov_b32 s{sStep+i}, 4")
    k.label(f"{lab}_j")
    e(f"s_mul_i32 s{sB}, s{sP8}, {2*SLICE_B}")
    e(f"s_add_u32 s{sB}, s{sB}, {WS_WP}")
    for i in range(4):
        e(f"s_mul_i32 s{sA}, s{sKg}, s{sStep+i}")
        e(f"s_add_u32 s{sBase+i}, s{sBase+i}, s{sA}")
        e(f"s_lshl_b32 s{sBase+i}, s{sBase+i}, 10")
        e(f"s_add_u32 s{sBase+i}, s{sBase+i}, s{sB}")
        e(f"s_lshl_b32 s{sStep+i}, s{sStep+i}, 10")
    e(f"v_lshrrev_b32 v{v0}, 3, {lane}")
    e(f"v_mul_lo_u32 v{v0}, v{v0}, s{sRS}")
    e(f"v_and_b32 v{v0+1}, 7, {lane}")
    e(f"v_lshl_add_u32 v{v0}, v{v0+1}, 4, v{v0}")
    e(f"s_lshl_b32 s{sRS}, s{sRS}, 3")
    e("s_waitcnt lgkmcnt(0)")
    e(f"s_cmp_eq_u32 s{sMat}, 1")
    e(f"s_cselect_b32 s{SS}, s{sPtr+2}, s{sPtr}")
    e(f"s_cselect_b32 s{SS+1}, s{sPtr+3}, s{sPtr+1}")
    e(f"s_cmp_eq_u32 s{sMat}, 2")
    e(f"s_cselect_b32 s{SS}, s{sPtr+4}, s{SS}")
    e(f"s_cselect_b32 s{SS+1}, s{sPtr+5}, s{SS+1}")
    e(f"s_and_b32 s{SS+1}, s{SS+1}, 0xffff")
    e(f"s_mov_b32 s{SS+2}, {D*F*2}")
    e(f"s_mov_b32 s{SS+3}, 0x20000")
    k.srd(SD, sPtr+6, WS_END)
    for i in range(12):
        e(f"s_add_u32 m0, s{sLds}, {1024*i}")
        if i: e(f"s_add_u32 s{sSrc}, s{sSrc}, s{sRS}")
        else: e("s_nop 0")
        e(f"buffer_load_dwordx4 v{v0}, s[{SS}:{SS+3}], s{sSrc} offen lds{ld_flags}")
    e(f"v_lshrrev_b32 v{v0+1}, 4, {lane}")
    e(f"v_bfe_u32 v{v0+2}, {lane}, 2, 2")
    e(f"v_lshl_add_u32 v{v0+1}, v{v0+1}, 3, v{v0+2}")
    e(f"v_and_b32 v{v0+2}, 3, {lane}")
    e(f"v_lshlrev_b32 v{v0+2}, 4, v{v0+2}")
    e(f"v_lshl_add_u32 v{v0+1}, v{v0+1}, 7, v{v0+2}")
    e(f"v_add_u32 v{v0+1}, s{sLds}, v{v0+1}")
    e(f"v_lshlrev_b32 v{v0+2}, 4, {lane}")
    vb = (v0 + 3 + 3) // 4 * 4
    for u in range(3):
        e(f"s_waitcnt vmcnt({8 - 4*u + 4*u})" if False else f"s_waitcnt vmcnt({(2-u)*4 + 4*u})")
        for i in range(4):
            cb, a = i >> 1, i & 1
            for ee in (0, 1):
                r = vb + 16*u + 4*i + 2*ee
                e(f"ds_read_b64_tr_b16 v[{r}:{r+1}], v{v0+1} offset:{4096*u + 512*ee + 64*cb + 8*a}")
        for i in range(4):
            e(f"s_waitcnt lgkmcnt({6 - 2*i})")
            r = vb + 16*u + 4*i
            e(f"buffer_store_dwordx4 v[{r}:{r+3}], v{v0+2}, s[{SD}:{SD+3}], s{sBase+i} offen")
            e(f"s_add_u32 s{sBase+i}, s{sBase+i}, s{sStep+i}")

def gen_pack(name="pack_kernel", NL=3, stamps=False, kidx=5):
    k = Kern(name); e = k.e
    e("s_cmp_ge_u32 s2, 328")
    e(f"s_cbranch_scc1 L_{name}_end")
    stamp_begin(k, stamps)
    e("v_lshrrev_b32 v1, 6, v0")
    e("v_and_b32 v0, 63, v0")
    e("v_readfirstlane_b32 s20, v1")
    e("s_and_b32 s21, s2, 7")
    e("s_lshr_b32 s22, s2, 3")
    e("s_lshl_b32 s22, s22, 2")
    e("s_add_u32 s22, s22, s20")
    e("s_cmp_ge_u32 s22, 162")
    e(f"s_cbranch_scc1 L_{name}_end")
    e("s_mul_i32 s23, s20, 12288")
    emit_pack_job(k, NL, 21, 22, 23)
    stamp_end(k, stamps, 46, kidx, 20, 0)
    k.label(f"L_{name}_end")
    e("s_endpgm")
    return k, (64, 100, 64), (328, 256, 49152)
```

```python
S, D, F = 2048, 576, 4608
SZ = S * D * 2
WS_Y    = 0
WS_V    = WS_Y + SZ
WS_HC   = WS_V + SZ
WS_WT   = WS_HC + SZ
WS_G    = WS_WT + SZ
WS_MEAN = WS_G + 9 * 36 * 1024
WS_SS   = WS_MEAN + 8192
WS_P    = (WS_SS + 64 * 9 * 256 + 4095) // 4096 * 4096
P_BYTES = 16 * 64 * 36 * 1024
WS_WP   = WS_P + P_BYTES
SLICE_B = 27 * 36864
WS_FLAG = WS_WP + 16 * SLICE_B
WS_END  = WS_FLAG + 65536
KA_X, KA_WR, KA_WI, KA_BX, KA_WG, KA_WU, KA_WD, KA_OUT, KA_DBG, KA_WS = [8 * i for i in range(10)]
```

```python
import sys, json
from dsl import *
from k123 import *
from k4b import *
HDR = open("sequential_preLN__spectral_gfnet__geglu_ffn__prompt.s.ref").read().split("; Override launch geometry")[0]
def build(path, stamps=False, k4=None):
    k4 = dict(k4 or {})
    NL = k4.get("NL", 3)
    ks = [gen_k1(stamps=stamps), gen_k2(stamps=stamps), gen_k3(stamps=stamps, hc16=True), gen_pack(NL=NL, stamps=stamps, kidx=3),
          gen_k4b(stamps=stamps, kidx=4, **k4), gen_k5b(stamps=stamps, kidx=5)]
    txt = assemble_file(HDR, [(k, *l) for k, r, l in ks], [(k, *r) for k, r, l in ks])
    open(path, "w").write(txt)
if __name__ == "__main__":
    opts = json.loads(sys.argv[2]) if len(sys.argv) > 2 else {}
    build(sys.argv[1], **opts)
```

```python
class Kern:
    def __init__(self, name):
        self.name = name
        self.lines = []
        self.vm = []
        self.vm_done = 0
        self.lg = []
        self.lg_done = 0
        self.nlabel = 0
    def e(self, s):
        self.lines.append("    " + s)
    def c(self, s):
        self.lines.append("    ; " + s)
    def label(self, s):
        self.lines.append(s + ":")
    def vmem(self, s, tag=None):
        self.e(s); self.vm.append(tag)
    def lds(self, s, tag=None):
        self.e(s); self.lg.append(tag)
    def _need(self, lst, done, tags):
        if not isinstance(tags, (list, set)): tags = [tags]
        idx = -1
        for i in range(len(lst) - 1, -1, -1):
            if lst[i] in tags:
                idx = i; break
        if idx < done: return None
        return idx
    def wait(self, vm=None, lg=None, lg0=False, vm0=False):
        parts = []
        if vm0:
            if self.vm_done < len(self.vm):
                parts.append("vmcnt(0)"); self.vm_done = len(self.vm)
        elif vm is not None:
            idx = self._need(self.vm, self.vm_done, vm)
            if idx is not None:
                n = len(self.vm) - 1 - idx
                if n > 63:
                    n = 63
                parts.append(f"vmcnt({n})"); self.vm_done = len(self.vm) - n
        if lg0:
            if self.lg_done < len(self.lg):
                parts.append("lgkmcnt(0)"); self.lg_done = len(self.lg)
        elif lg is not None:
            idx = self._need(self.lg, self.lg_done, lg)
            if idx is not None:
                n = len(self.lg) - 1 - idx
                if n > 15: n = 15
                parts.append(f"lgkmcnt({n})"); self.lg_done = len(self.lg) - n
        if parts:
            self.e("s_waitcnt " + " ".join(parts))
            return True
        return False
    def srd(self, d, base, nbytes):
        self.e(f"s_mov_b32 s{d}, s{base}")
        self.e(f"s_and_b32 s{d+1}, s{base+1}, 0xffff")
        self.e(f"s_mov_b32 s{d+2}, {nbytes}")
        self.e(f"s_mov_b32 s{d+3}, 0x20000")
    def srd_off(self, d, base, off, nbytes):
        self.e(f"s_add_u32 s{d}, s{base}, {off}")
        self.e(f"s_addc_u32 s{d+1}, s{base+1}, 0")
        self.e(f"s_and_b32 s{d+1}, s{d+1}, 0xffff")
        self.e(f"s_mov_b32 s{d+2}, {nbytes}")
        self.e(f"s_mov_b32 s{d+3}, 0x20000")
    def prefetch_code(self, lo, hi, sreg, vaddr, vdst, nload, lane="v0", part=None):
        e = self.e
        lab = f"L_{self.name}_pc{self.nlabel}"; self.nlabel += 1
        e(f"s_getpc_b64 s[{sreg}:{sreg+1}]")
        self.label(lab)
        e(f"s_add_u32 s{sreg}, s{sreg}, {lo}-{lab}")
        e(f"s_addc_u32 s{sreg+1}, s{sreg+1}, ({lo}-{lab})>>32")
        e(f"s_and_b32 s{sreg+1}, s{sreg+1}, 0xffff")
        e(f"s_mov_b32 s{sreg+2}, {hi}-{lo}")
        e(f"s_mov_b32 s{sreg+3}, 0x20000")
        e(f"v_lshlrev_b32 v{vaddr}, 7, {lane}")
        if part: e(f"s_mul_i32 s{sreg+4}, s{part[0]}, {part[1]}")
        else: e(f"s_mov_b32 s{sreg+4}, 0")
        for i in range(nload):
            self.vmem(f"buffer_load_dword v{vdst}, v{vaddr}, s[{sreg}:{sreg+3}], s{sreg+4} offen", "pf")
            if i + 1 < nload: e(f"s_add_u32 s{sreg+4}, s{sreg+4}, 8192")
    def text(self):
        hdr = f".globl {self.name}\n.p2align 8\n.type {self.name},@function\n{self.name}:\n"
        return hdr + "\n".join(self.lines) + "\n"
    def desc(self, vgpr, sgpr, accum):
        return f""".p2align 6
.amdhsa_kernel {self.name}
  .amdhsa_next_free_vgpr {vgpr}
  .amdhsa_next_free_sgpr {sgpr}
  .amdhsa_accum_offset {accum}
  .amdhsa_group_segment_fixed_size 0
  .amdhsa_kernarg_size 80
  .amdhsa_user_sgpr_count 2
  .amdhsa_user_sgpr_kernarg_segment_ptr 1
  .amdhsa_system_sgpr_workgroup_id_x 1
.end_amdhsa_kernel
"""

import struct
def f2u(x):
    return struct.unpack("<I", struct.pack("<f", x))[0]
def fhex(x):
    return "0x%08x" % f2u(x)

def assemble_file(header_comment, launches, kerns, data=''):
    out = []
    out.append(header_comment.rstrip("\n"))
    for k, g, b, lds in launches:
        out.append(f"; @launch kernel={k.name} grid=({g},1,1) block=({b},1,1) lds={lds}")
    out.append('.amdgcn_target "amdgcn-amd-amdhsa--gfx950"')
    out.append(".text")
    out.append("L_text_begin:")
    for k, *_ in kerns:
        out.append(k.text())
    out.append("L_text_end:")
    out.append(data)
    out.append('.section .rodata,"a"')
    for k, v, s, a in kerns:
        out.append(k.desc(v, s, a))
    return "\n".join(out)
```

```python
from dsl import *
from layout import *
import math

def stamp_begin(k, on):
    if on:
        k.e("s_memrealtime s[88:89]")
        k.e("s_memtime s[92:93]")
def stamp_mid(k, on, idx):
    if on: k.e(f"s_memtime s[{80+2*idx}:{81+2*idx}]")
def stamp_end(k, on, wsbase, kidx, wave_s, nmid):
    if not on: return
    e = k.e
    e("s_waitcnt vmcnt(0) lgkmcnt(0)")
    e("s_memtime s[94:95]")
    e("s_memrealtime s[90:91]")
    e("s_waitcnt lgkmcnt(0)")
    e("v_mov_b32 v8, s88")
    e("v_mov_b32 v9, s90")
    e("s_sub_u32 s94, s94, s92")
    e("v_mov_b32 v10, s94")
    for i in range(4):
        if i < nmid:
            e(f"s_sub_u32 s{80+2*i}, s{80+2*i}, s92")
            e(f"v_mov_b32 v{11+i}, s{80+2*i}")
        else: e(f"v_mov_b32 v{11+i}, 0")
    e("s_getreg_b32 s94, hwreg(HW_REG_XCC_ID)")
    e("v_mov_b32 v15, s94")
    e("s_lshl_b32 s94, s2, 3")
    e(f"s_add_u32 s94, s94, s{wave_s}")
    e("s_lshl_b32 s94, s94, 5")
    e(f"s_add_u32 s94, s94, {WS_END + kidx*131072}")
    e(f"s_mov_b32 s76, s{wsbase}")
    e(f"s_and_b32 s77, s{wsbase+1}, 0xffff")
    e(f"s_mov_b32 s78, {WS_END + (kidx+1)*131072}")
    e("s_mov_b32 s79, 0x20000")
    e("v_mov_b32 v16, 0")
    e("s_mov_b64 exec, 1")
    e("buffer_store_dwordx4 v[8:11], v16, s[76:79], s94 offen")
    e("buffer_store_dwordx4 v[12:15], v16, s[76:79], s94 offen offset:16")


def emit_wprefetch(k, sW, nw, lane, v0, vd, s0, mode):
    e = k.e
    lab = f"L_{k.name}_wp{k.nlabel}"; k.nlabel += 1
    e(f"s_load_dwordx4 s[{s0}:{s0+3}], s[0:1], {KA_WG}")
    e(f"s_lshr_b32 s{s0+6}, s2, 3")
    e(f"s_mul_i32 s{s0+6}, s{s0+6}, {nw}")
    e(f"s_add_u32 s{s0+6}, s{s0+6}, s{sW}")
    e(f"s_cmp_ge_u32 s{s0+6}, 72")
    e(f"s_cbranch_scc1 {lab}_x")
    if mode == "l4":
        e(f"s_and_b32 s{s0+7}, s2, 3")
        e(f"s_mul_i32 s{s0+7}, s{s0+7}, 2304")
        lo, hi = 640, 1152
    else:
        e(f"s_and_b32 s{s0+7}, s2, 7")
        e(f"s_mul_i32 s{s0+7}, s{s0+7}, 1152")
        lo, hi = 128, 640
    e(f"s_lshr_b32 s{s0+5}, s{s0+6}, 1")
    e(f"s_mul_i32 s{s0+5}, s{s0+5}, {16*9216}")
    e(f"s_add_u32 s{s0+7}, s{s0+7}, s{s0+5}")
    e(f"v_lshrrev_b32 v{v0}, 2, {lane}")
    e(f"v_mul_u32_u24 v{v0}, 9216, v{v0}")
    e(f"v_and_b32 v{v0+1}, 1, {lane}")
    e(f"v_mul_u32_u24 v{v0+1}, {lo}, v{v0+1}")
    e(f"v_add_u32 v{v0}, v{v0}, v{v0+1}")
    e(f"v_bfe_u32 v{v0+1}, {lane}, 1, 1")
    e(f"v_mul_u32_u24 v{v0+1}, {hi}, v{v0+1}")
    e(f"v_add_u32 v{v0}, v{v0}, v{v0+1}")
    e("s_waitcnt lgkmcnt(0)")
    e(f"s_bitcmp1_b32 s{s0+6}, 0")
    e(f"s_cselect_b32 s{s0+8}, s{s0+2}, s{s0}")
    e(f"s_cselect_b32 s{s0+9}, s{s0+3}, s{s0+1}")
    e(f"s_and_b32 s{s0+9}, s{s0+9}, 0xffff")
    e(f"s_mov_b32 s{s0+10}, {D*F*2}")
    e(f"s_mov_b32 s{s0+11}, 0x20000")
    e(f"buffer_load_dword v{vd}, v{v0}, s[{s0+8}:{s0+11}], s{s0+7} offen")
    k.label(f"{lab}_x")
    e("s_waitcnt lgkmcnt(0)")

def emit_touch_wg(k, sW, nw, id0, kind, nper=2, vb=2, lane="v0"):
    e = k.e
    e(f"s_load_dwordx4 s[44:47], s[0:1], {KA_WG}")
    e(f"s_load_dwordx2 s[48:49], s[0:1], {KA_WD}")
    e(f"s_sub_u32 s50, s2, {id0}")
    e(f"s_mul_i32 s50, s50, {nw}")
    e(f"s_add_u32 s50, s50, s{sW}")
    a, b_, c_, d_, f_ = vb, vb+1, vb+2, vb+3, vb+4
    if kind == "d":
        e(f"v_lshlrev_b32 v{a}, 7, {lane}")
        e(f"s_mul_i32 s50, s50, {8192*nper}")
        e("s_waitcnt lgkmcnt(0)")
        k.srd(52, 48, D*F*2)
        for i in range(nper):
            e(f"buffer_load_dword v{b_}, v{a}, s[52:55], s50 offen")
            e("s_add_u32 s50, s50, 8192")
    else:
        e("s_lshl_b32 s50, s50, 6")
        e(f"v_add_u32 v{a}, s50, {lane}")
        e(f"v_mul_u32_u24 v{b_}, 52429, v{a}")
        e(f"v_lshrrev_b32 v{b_}, 21, v{b_}")
        e(f"v_mul_u32_u24 v{c_}, 40, v{b_}")
        e(f"v_sub_u32 v{c_}, v{a}, v{c_}")
        e(f"v_mul_u32_u24 v{d_}, 205, v{c_}")
        e(f"v_lshrrev_b32 v{d_}, 10, v{d_}")
        e(f"v_mul_u32_u24 v{f_}, 5, v{d_}")
        e(f"v_sub_u32 v{f_}, v{c_}, v{f_}")
        e(f"v_cmp_le_u32 vcc, 3, v{f_}")
        e(f"v_mul_u32_u24 v{a}, 9216, v{b_}")
        e(f"v_mul_u32_u24 v{d_}, 1152, v{d_}")
        e(f"v_cndmask_b32 v{c_}, 2, 4, vcc")
        e(f"v_add_u32 v{f_}, v{f_}, v{c_}")
        e(f"v_add_u32 v{a}, v{a}, v{d_}")
        e(f"v_lshl_add_u32 v{a}, v{f_}, 7, v{a}")
        e("s_waitcnt lgkmcnt(0)")
        k.srd(52, 44, D*F*2)
        k.srd(56, 46, D*F*2)
        e(f"buffer_load_dword v{b_}, v{a}, s[52:55], 0 offen")
        e(f"buffer_load_dword v{c_}, v{a}, s[56:59], 0 offen")

MF32 = "v_mfma_f32_32x32x16_bf16"
def R(a, n): return f"v[{a}:{a+n-1}]"

def gen_k1(name="fwd_kernel", stamps=False, pf=True, pack=None, wpf=None, wtt=None):
    NMAIN, NWT = 192, 64
    k = Kern(name); e = k.e
    sW, sS2, sCT, sT0, sT1, sT2 = 20, 21, 22, 23, 24, 25
    e(f"s_cmp_ge_u32 s2, {NMAIN + NWT}")
    e(f"s_cbranch_scc1 L_{name}_end")
    stamp_begin(k, stamps)
    e(f"s_load_dwordx2 s[4:5], s[0:1], {KA_X}")
    e(f"s_load_dwordx4 s[28:31], s[0:1], {KA_WR}")
    e(f"s_load_dwordx2 s[6:7], s[0:1], {KA_WS}")
    e("v_lshrrev_b32 v1, 6, v0")
    e("s_nop 0")
    e(f"v_readfirstlane_b32 s{sW}, v1")
    if pf:
        e("v_and_b32 v2, 63, v0")
        e("s_bfe_u32 s40, s2, 0x10003")
        e("s_mul_i32 s40, s40, 6")
        e(f"s_add_u32 s40, s40, s{sW}")
        k.prefetch_code("L_text_begin", "L_text_end", 32, 3, 239, 1, lane="v2", part=(40, 8192))
    if pack:
        e(f"s_cmp_ge_u32 s{sW}, 6")
        e(f"s_cbranch_scc1 L_{name}_pack")
    e(f"s_cmp_ge_u32 s2, {NMAIN}")
    e(f"s_cbranch_scc1 L_{name}_wt")
    e("v_and_b32 v0, 63, v0")
    e(f"s_lshr_b32 s{sT0}, s2, 3")
    e(f"s_mul_hi_u32 s{sT1}, s{sT0}, 0x55555556")
    e(f"s_mul_i32 s{sCT}, s{sT1}, 3")
    e(f"s_sub_u32 s{sCT}, s{sT0}, s{sCT}")
    e(f"s_and_b32 s{sS2}, s2, 7")
    e(f"s_lshl_b32 s{sS2}, s{sS2}, 3")
    e(f"s_add_u32 s{sS2}, s{sS2}, s{sT1}")
    e("v_lshrrev_b32 v4, 3, v0")
    e("v_lshrrev_b32 v5, 4, v0")
    e("v_and_b32 v6, 7, v0")
    e("v_xor_b32 v6, v6, v5")
    e("v_lshlrev_b32 v6, 4, v6")
    e("v_mul_u32_u24 v2, 73728, v4")
    e("v_add_u32 v2, v2, v6")
    e("v_xor_b32 v3, 64, v2")
    e("s_waitcnt lgkmcnt(0)")
    k.srd(8, 4, S*D*2)
    k.srd(12, 6, WS_END)
    e(f"s_mul_i32 s{sT0}, s{sW}, 6")
    e(f"s_mul_i32 s{sT2}, s{sS2}, 1152")
    for i in range(6):
        e(f"s_add_u32 s26, s{sT0}, {i}")
        e("s_lshl_b32 m0, s26, 10")
        e("s_and_b32 s27, s26, 3")
        e(f"s_mul_i32 s27, s27, {8*73728}")
        e("s_lshr_b32 s26, s26, 2")
        e("s_lshl_b32 s26, s26, 7")
        e("s_add_u32 s27, s27, s26")
        e(f"s_add_u32 s27, s27, s{sT2}")
        k.vmem(f"buffer_load_dwordx4 v{2 + (i & 1)}, s[8:11], s27 offen lds", "x")
    vE = 40
    e(f"s_mul_i32 s{sT0}, s{sCT}, 6")
    e(f"s_add_u32 s{sT0}, s{sT0}, s{sW}")
    e(f"s_lshl_b32 s18, s{sT0}, 4")
    e("v_bfe_u32 v4, v0, 1, 4")
    e("v_add_u32 v4, s18, v4")
    e("v_add_u32 v4, 1, v4")
    e("v_lshrrev_b32 v5, 5, v0")
    e("v_and_b32 v6, 1, v0")
    e("v_cvt_f32_u32 v7, v4")
    e(f"v_mul_f32 v7, {fhex(1.0/576)}, v7")
    e("v_cvt_f32_u32 v8, v6")
    e("v_mul_f32 v8, 0x3e800000, v8")
    e("v_cvt_f32_u32 v9, v5")
    e("v_mul_f32 v9, 0x41000000, v9")
    e("v_fma_f32 v8, v9, v7, v8")
    for j in range(9):
        for t in range(8): e(f"v_fmamk_f32 v{10+t}, v7, {fhex(16*j+t)}, v8")
        for t in range(8): e(f"v_cos_f32 v{10+t}, v{10+t}")
        e("s_nop 0")
        for t in range(4): e(f"v_cvt_pk_bf16_f32 v{vE+4*j+t}, v{10+2*t}, v{11+2*t}")
    e("v_mov_b32 v30, 0")
    e("v_mov_b32 v31, 0x3f803f80")
    for r in range(36): e(f"v_dot2c_f32_bf16 v30, v{vE+r}, v31")
    e("v_and_b32 v10, 1, v4")
    e("v_lshlrev_b32 v10, 31, v10")
    e("v_or_b32 v32, 1.0, v10")
    e("v_bfe_u32 v11, v4, 1, 1")
    e("v_lshlrev_b32 v12, 31, v11")
    e("v_or_b32 v12, 1.0, v12")
    e("v_and_b32 v10, 1, v4")
    e("v_cmp_eq_u32 vcc, 0, v10")
    e("v_lshlrev_b32 v13, 31, v6")
    e("v_xor_b32 v13, v13, v12")
    e("v_cndmask_b32 v33, 0, v12, vcc")
    e("v_cndmask_b32 v34, v13, 0, vcc")
    e("v_mov_b32 v10, v30")
    e("v_and_b32 v11, 3, v4")
    e("v_cmp_eq_u32 vcc, 0, v11")
    e("v_permlane32_swap_b32 v30, v10")
    e("s_nop 1")
    e("v_add_f32 v30, v30, v10")
    e("v_mul_f32 v30, 4.0, v30")
    e("v_cndmask_b32 v30, 0, v30, vcc")
    vF = 76
    e("v_and_b32 v35, 31, v0")
    e("v_cvt_f32_u32 v10, v35")
    e(f"v_mul_f32 v11, {fhex(1.0/32)}, v10")
    e(f"v_cvt_f32_u32 v12, s{sS2}")
    e(f"v_mul_f32 v12, {fhex(1.0/64)}, v12")
    e("v_cvt_f32_u32 v13, v5")
    e("v_fma_f32 v12, v13, 4.0, v12")
    e("v_mul_f32 v12, v12, v11")
    for jj in range(2):
        for t in range(8):
            s1 = 16*jj + 8*(t >> 2) + (t & 3)
            e(f"v_fmamk_f32 v{14+t}, v11, {fhex(s1)}, v12")
        for t in range(8): e(f"v_cos_f32 v{22+t}, v{14+t}")
        for t in range(8): e(f"v_sin_f32 v{14+t}, -v{14+t}")
        e("s_nop 0")
        for t in range(4):
            e(f"v_cvt_pk_bf16_f32 v{vF+4*jj+t}, v{22+2*t}, v{23+2*t}")
            e(f"v_cvt_pk_bf16_f32 v{vF+8+4*jj+t}, v{14+2*t}, v{15+2*t}")
    e("v_bfe_u32 v10, v0, 1, 3")
    e("v_xor_b32 v10, v10, v5")
    e("v_lshlrev_b32 v10, 4, v10")
    e("v_lshl_add_u32 v36, v35, 7, v10")
    for q in range(1, 4): e(f"v_xor_b32 v{36+q}, {32*q}, v36")
    e(f"s_lshr_b32 s{sT1}, s{sW}, 1")
    e(f"s_add_u32 s{sT1}, s{sT1}, s{sW}")
    e(f"s_lshl_b32 s{sT1}, s{sT1}, 12")
    e(f"s_and_b32 s{sT2}, s{sW}, 1")
    e(f"s_mul_i32 s{sT1}, s{sW}, 12")
    e("v_mul_u32_u24 v10, 6, v5")
    e(f"v_add_u32 v10, s{sT1}, v10")
    e("v_bfe_u32 v13, v0, 1, 3")
    for i in range(6):
        e(f"v_add_u32 v11, {i}, v10")
        e("v_lshrrev_b32 v12, 3, v11")
        e("v_and_b32 v11, 7, v11")
        e("v_xor_b32 v11, v11, v13")
        e("v_lshlrev_b32 v11, 4, v11")
        e("v_lshl_add_u32 v11, v12, 12, v11")
        e(f"v_lshl_add_u32 v{14+i}, v35, 7, v11")
    stamp_mid(k, stamps, 0)
    e("s_waitcnt vmcnt(0)")
    e("s_barrier")
    if wpf: emit_wprefetch(k, sW, 6, "v0", 2, 1, 44, wpf)
    stamp_mid(k, stamps, 1)
    vX = 96
    for i in range(6): k.lds(f"ds_read_b128 {R(vX+4*i,4)}, v{14+i}", ("s", i))
    def xread(kk):
        k.lds(f"ds_read_b128 {R(vX+24+4*(kk%6),4)}, v{36+(kk&3)} offset:{(kk>>2)*4096}", ("x", kk))
    order = [9*q + j for j in range(9) for q in range(4)]
    for n in range(5):
        kk = order[n]
        k.lds(f"ds_read_b128 {R(vX+24+4*(n%6),4)}, v{36+(kk&3)} offset:{(kk>>2)*4096}", ("x", n))
    e("v_mov_b32 v10, 0"); e("v_mov_b32 v11, 0"); e("v_mov_b32 v12, 0"); e("v_mov_b32 v13, 0")
    for i in range(6):
        k.wait(lg=("s", i))
        for r in range(4):
            e(f"v_dot2c_f32_bf16 v{10+2*(r&1)}, v{vX+4*i+r}, v31")
            e(f"v_dot2c_f32_bf16 v{11+2*(r&1)}, v{vX+4*i+r}, v{vX+4*i+r}")
    e("s_nop 2")
    e("v_add_f32 v10, v10, v12")
    e("v_add_f32 v11, v11, v13")
    e(f"s_lshl_b32 s{sT1}, s{sW}, 9")
    e(f"s_add_u32 s{sT1}, s{sT1}, 36864")
    e(f"v_lshl_add_u32 v12, v0, 3, s{sT1}")
    k.lds("ds_write_b64 v12, v[10:11]", "sw")
    e("v_lshlrev_b32 v12, 3, v0")
    e(f"s_lshl_b32 s{sT1}, s{sW}, 8")
    e(f"s_add_u32 s{sT1}, s{sT1}, {36864+3072}")
    e(f"v_lshl_add_u32 v13, v0, 2, s{sT1}")
    e(f"v_lshl_add_u32 v14, v5, 4, s{sT1}")
    vP = 144
    fill = {}
    fill[6] = lambda: (k.wait(lg="sw"), e("s_barrier"))
    def f8():
        for i in range(6): k.lds(f"ds_read_b64 {R(16+2*i,2)}, v12 offset:{36864+512*i}", "sp")
    fill[7] = f8
    def f11():
        k.wait(lg="sp")
        for i in range(1, 6):
            e(f"v_add_f32 v16, v16, v{16+2*i}")
            e(f"v_add_f32 v17, v17, v{17+2*i}")
    fill[11] = f11
    def f13():
        e("v_mov_b32 v18, v16"); e("v_mov_b32 v19, v17"); e("s_nop 1")
        e("v_permlane32_swap_b32 v16, v18"); e("v_permlane32_swap_b32 v17, v19")
    fill[13] = f13
    def f14():
        e("v_add_f32 v16, v16, v18"); e("v_add_f32 v17, v17, v19")
        e(f"v_mul_f32 v16, {fhex(1.0/576)}, v16")
        e(f"v_mul_f32 v17, {fhex(1.0/576)}, v17")
        e("v_fma_f32 v17, -v16, v16, v17")
    fill[14] = f14
    def f15():
        e("v_max_f32 v17, 0, v17")
        e(f"v_add_f32 v17, {fhex(1e-5)}, v17")
        e("v_rsq_f32 v17, v17")
        e("v_cmp_gt_u32 vcc, 32, v0")
        e(f"v_mul_f32 v17, {fhex(2.0/(2048*576))}, v17")
    fill[15] = f15
    def f16():
        e("v_mul_f32 v18, v16, v17")
        e("v_cndmask_b32 v18, v18, v17, vcc")
        k.lds("ds_write_b32 v13, v18", "rw")
    fill[16] = f16
    def f18():
        k.wait(lg="rw")
        for g in range(4): k.lds(f"ds_read_b128 {R(208+4*g,4)}, v14 offset:{32*g}", "rr")
        for g in range(4): k.lds(f"ds_read_b128 {R(224+4*g,4)}, v14 offset:{128+32*g}", "rr")
    fill[18] = f18
    def f20():
        e(f"s_or_b32 s{sT1}, s{sCT}, s{sW}")
        e(f"s_cmp_lg_u32 s{sT1}, 0")
        e(f"s_cbranch_scc1 L_{name}_nomean")
        e(f"s_lshl_b32 s{sT1}, s{sS2}, 7")
        e(f"s_add_u32 s{sT1}, s{sT1}, {WS_MEAN}")
        e("v_lshlrev_b32 v19, 2, v35")
        e(f"buffer_store_dword v16, v19, s[12:15], s{sT1} offen")
        k.label(f"L_{name}_nomean")
    fill[20] = f20
    for n in range(36):
        kk = order[n]; q, j = divmod(kk, 9)
        k.wait(lg=("x", n))
        acc = R(vP+16*q, 16)
        e(f"{MF32} {acc}, {R(vX+24+4*(n%6),4)}, {R(vE+4*j,4)}, {'0' if j == 0 else acc}")
        if n + 5 < 36:
            kk2 = order[n+5]
            k.lds(f"ds_read_b128 {R(vX+24+4*((n+5)%6),4)}, v{36+(kk2&3)} offset:{(kk2>>2)*4096}", ("x", n+5))
        if n in fill: fill[n]()
    stamp_mid(k, stamps, 2)
    e(f"s_lshr_b32 s{sT1}, s{sS2}, 3")
    e(f"s_lshl_b32 s{sT1}, s{sT1}, 10")
    e(f"s_bfe_u32 s{sT2}, s{sS2}, 0x10001")
    e(f"s_lshl_b32 s{sT2}, s{sT2}, 9")
    e(f"s_add_u32 s{sT1}, s{sT1}, s{sT2}")
    e(f"s_bfe_u32 s{sT2}, s{sS2}, 0x10002")
    e(f"s_lshl_b32 s{sT2}, s{sT2}, 3")
    e(f"s_add_u32 s{sT1}, s{sT1}, s{sT2}")
    e(f"s_and_b32 s{sT2}, s{sS2}, 1")
    e(f"s_lshl_b32 s{sT2}, s{sT2}, 2")
    e(f"s_add_u32 s{sT1}, s{sT1}, s{sT2}")
    e(f"s_lshl_b32 s{sT2}, s18, 13")
    e(f"s_add_u32 s{sT1}, s{sT1}, s{sT2}")
    e(f"s_add_u32 s{sT1}, s{sT1}, {WS_Y}")
    e("v_lshlrev_b32 v10, 4, v35")
    e("v_lshl_add_u32 v10, v5, 14, v10")
    k.wait(lg="rr")
    for i in range(16): e(f"v_fmac_f32 v{vP+i}, v32, v{vP+32+i}")
    for i in range(16): e(f"v_fmac_f32 v{vP+16+i}, v32, v{vP+48+i}")
    for i in range(16): e(f"v_fmac_f32 v{vP+i}, v33, v{vP+16+i}")
    for i in range(16): e(f"v_fmac_f32_dpp v{vP+i}, v{vP+16+i}, v34 quad_perm:[1,0,3,2] row_mask:0xf bank_mask:0xf")
    for i in range(16): e(f"v_mul_f32 v{224+i}, v30, v{224+i}")
    for i in range(16): e(f"v_fma_f32 v{vP+i}, v{vP+i}, v{208+i}, -v{224+i}")
    for i in range(8): e(f"v_cvt_pk_bf16_f32 v{vP+16+i}, v{vP+2*i}, v{vP+2*i+1}")
    e("s_nop 1")
    Pq, Qq = R(vP+32, 16), R(vP+48, 16)
    e(f"{MF32} {Pq}, {R(vP+16,4)}, {R(vF,4)}, 0")
    e(f"{MF32} {Qq}, {R(vP+16,4)}, {R(vF+8,4)}, 0")
    e(f"{MF32} {Pq}, {R(vP+20,4)}, {R(vF+4,4)}, {Pq}")
    e(f"{MF32} {Qq}, {R(vP+20,4)}, {R(vF+12,4)}, {Qq}")
    e("s_nop 13")
    for i in range(0, 16, 2):
        e(f"v_sub_f32 v{vP+i}, v{vP+32+i}, v{vP+48+i+1}")
        e(f"v_add_f32 v{vP+i+1}, v{vP+48+i}, v{vP+32+i+1}")
    for i in range(8):
        e(f"v_cvt_pk_bf16_f32 v{vP+16+i}, v{vP+2*i}, v{vP+2*i+1}")
    for i in range(8):
        g, ee = i >> 1, i & 1
        e(f"s_add_u32 s{sT2}, s{sT1}, {(4*g+ee)*8192}")
        k.vmem(f"buffer_store_dword v{vP+16+i}, v10, s[12:15], s{sT2} offen", "st")
    stamp_end(k, stamps, 6, 0, sW, 3)
    e("s_endpgm")
    k.label(f"L_{name}_wt")
    e(f"s_sub_u32 s{sT0}, s2, {NMAIN}")
    e("s_waitcnt lgkmcnt(0)")
    k.srd(8, 28, 2048*289*2)
    k.srd(12, 30, 2048*289*2)
    k.srd(16, 6, WS_END)
    e("v_lshlrev_b32 v2, 4, v0")
    e(f"s_mul_i32 s{sT1}, s{sT0}, 18496")
    e(f"s_lshl_b32 s{sT2}, s{sW}, 10")
    for r in range(4):
        for mat in range(2):
            if r == 3:
                pass
            e(f"s_add_u32 m0, s{sT2}, {mat*24576 + r*6144}")
            e(f"s_add_u32 s26, s{sT1}, {r*6144}")
            e(f"buffer_load_dwordx4 v2, s[{8+4*mat}:{11+4*mat}], s26 offen lds")
    e("v_and_b32 v3, 31, v0")
    e("v_lshrrev_b32 v4, 5, v0")
    e("v_mul_u32_u24 v5, 578, v3")
    e("v_lshl_add_u32 v5, v4, 1, v5")
    e("v_lshlrev_b32 v6, 2, v3")
    e("v_lshl_add_u32 v6, v4, 13, v6")
    e(f"s_lshl_b32 s{sT1}, s{sT0}, 7")
    e(f"s_add_u32 s{sT1}, s{sT1}, {WS_WT}")
    for r in range(8, 12): e(f"v_mov_b32 v{r}, 0")
    e("v_lshrrev_b32 v7, 2, v0")
    e("v_lshlrev_b32 v7, 7, v7")
    e("v_and_b32 v12, 3, v0")
    e("v_lshl_add_u32 v7, v12, 4, v7")
    e(f"s_mul_i32 s26, s{sT0}, {FLAG_STRIDE}")
    e(f"s_add_u32 s26, s26, {WS_FLAG}")
    e("buffer_store_dwordx4 v[8:11], v7, s[16:19], s26 offen")
    e("s_waitcnt vmcnt(0)")
    e("s_barrier")
    for half in range(4):
        for i in range(6*half, 6*half+6):
            e(f"ds_read_u16 v{10+i}, v5 offset:{2+24*i}")
            e(f"ds_read_u16 v{40+i}, v5 offset:{24576+2+24*i}")
        e("s_waitcnt lgkmcnt(0)")
        for i in range(6*half, 6*half+6):
            e(f"v_lshl_or_b32 v{10+i}, v{40+i}, 16, v{10+i}")
            e(f"s_add_u32 s26, s{sT1}, {12*8192*i}")
            e(f"buffer_store_dword v{10+i}, v6, s[16:19], s26 offen")
    if wtt:
        e("v_and_b32 v70, 63, v0")
        emit_touch_wg(k, sW, 6, NMAIN, wtt, vb=72, lane="v70")
    stamp_end(k, stamps, 6, 0, sW, 0)
    if pack:
        e("s_endpgm")
        k.label(f"L_{name}_pack")
        e("v_and_b32 v0, 63, v0")
        e("s_and_b32 s21, s2, 7")
        e("s_lshr_b32 s22, s2, 3")
        e("s_lshl_b32 s22, s22, 1")
        e(f"s_add_u32 s22, s22, s{sW}")
        e("s_sub_u32 s22, s22, 6")
        e(f"s_mul_i32 s23, s{sW}, 12288")
        e(f"s_sub_u32 s23, s23, {6*12288 - 49152}")
        def mid():
            e("s_barrier")
            e(f"s_cmp_ge_u32 s2, {NMAIN}")
            e(f"s_cbranch_scc1 L_{name}_pk1b")
            e("s_barrier")
            k.label(f"L_{name}_pk1b")
        pack(k, 21, 22, 23, mid)
        stamp_end(k, stamps, 46, 0, sW, 0)
    k.label(f"L_{name}_end")
    e("s_endpgm")
    if pack: return k, (240, 100, 240), (NMAIN + NWT, 512, 49152 + 24576)
    return k, (240, 100, 240), (NMAIN + NWT, 384, 49152)

def gen_k2(name="col_kernel", stamps=False, pack=None, job0=64, njob=0, wpf=None, touch=None):
    NMAIN, NG = 288, 32
    NP = 8 * ((njob + 3) // 4)
    if touch: NP = 90 if touch == 'gu' else 81
    k = Kern(name); e = k.e
    sW, sCol, sT0, sT1, sT2 = 20, 21, 23, 24, 25
    e(f"s_cmp_ge_u32 s2, {NMAIN + NG + NP}")
    e(f"s_cbranch_scc1 L_{name}_end")
    stamp_begin(k, stamps)
    e(f"s_load_dwordx2 s[6:7], s[0:1], {KA_WS}")
    e("v_lshrrev_b32 v1, 6, v0")
    e("v_and_b32 v0, 63, v0")
    e(f"v_readfirstlane_b32 s{sW}, v1")
    e(f"s_cmp_ge_u32 s2, {NMAIN}")
    e(f"s_cbranch_scc1 L_{name}_g")
    e(f"s_lshr_b32 s{sT0}, s2, 5")
    e(f"s_lshl_b32 s{sT0}, s{sT0}, 3")
    e(f"s_and_b32 s{sT1}, s2, 7")
    e(f"s_add_u32 s{sT0}, s{sT0}, s{sT1}")
    e("s_bfe_u32 s26, s2, 0x20003")
    e(f"s_and_b32 s27, s{sT0}, 1")
    e(f"s_lshr_b32 s28, s{sT0}, 1")
    e(f"s_lshl_b32 s{sCol}, s28, 2")
    e(f"s_add_u32 s{sCol}, s{sCol}, s26")
    e(f"s_lshl_b32 s{sCol}, s{sCol}, 1")
    e(f"s_add_u32 s{sCol}, s{sCol}, s27")
    e("s_mul_i32 s29, s27, 18432")
    e("s_lshl_b32 s28, s28, 9")
    e("s_add_u32 s29, s29, s28")
    e("s_lshl_b32 s26, s26, 2")
    e("s_add_u32 s29, s29, s26")
    e(f"s_mul_i32 s26, s{sW}, {16*36864}")
    e("s_add_u32 s29, s29, s26")
    e(f"s_add_u32 s29, s29, {WS_V}")
    e("v_lshlrev_b32 v2, 4, v0")
    e("v_lshrrev_b32 v5, 5, v0")
    e("v_and_b32 v35, 31, v0")
    e("v_lshlrev_b32 v3, 2, v35")
    e("v_lshl_add_u32 v3, v5, 8, v3")
    e(f"s_lshl_b32 s{sT0}, s{sCol}, 13")
    e("s_waitcnt lgkmcnt(0)")
    k.srd(12, 6, WS_END)
    vY = 40
    e(f"s_add_u32 s{sT1}, s{sT0}, {WS_Y}")
    e(f"s_add_u32 s{sT2}, s{sT0}, {WS_Y + 4096}")
    for j in range(8):
        k.vmem(f"buffer_load_dwordx4 {R(vY+4*j,4)}, v2, s[12:15], s{sT1 if j < 4 else sT2} offen offset:{(j&3)*1024}", ("y", j))
    vWt = 72
    e(f"s_lshl_b32 s{sT1}, s{sW}, 11")
    e(f"s_add_u32 s{sT1}, s{sT1}, s{sT0}")
    e(f"s_add_u32 s{sT1}, s{sT1}, {WS_WT}")
    for i in range(8):
        k.vmem(f"buffer_load_dword v{vWt+i}, v3, s[12:15], s{sT1} offen offset:{(4*(i>>1)+(i&1))*128}", "w")
    vM = 80
    e("v_bfe_u32 v4, v0, 1, 4")
    e(f"s_lshl_b32 s{sT1}, s{sW}, 4")
    e(f"v_add_u32 v4, s{sT1}, v4")
    e("v_and_b32 v6, 1, v0")
    e("v_cvt_f32_u32 v7, v4")
    e(f"v_mul_f32 v8, {fhex(1.0/64)}, v7")
    e("v_cvt_f32_u32 v9, v6")
    e("v_mul_f32 v9, 0x3e800000, v9")
    e("v_cvt_f32_u32 v36, v5")
    e("v_add_f32 v10, v36, v36")
    e("v_fma_f32 v9, v10, v8, v9")
    for jp in range(2):
        for u in range(8):
            j, t = 2*jp + (u >> 2), u & 3
            e(f"v_fmamk_f32 v{12+u}, v8, {fhex(8*j + 4*(t>>1) + (t&1))}, v9")
        for u in range(8): e(f"v_cos_f32 v{20+u}, v{12+u}")
        for u in range(8): e(f"v_sin_f32 v{12+u}, v{12+u}")
        e("s_nop 0")
        for u in range(8): e(f"v_cvt_pk_bf16_f32 v{vM+8*jp+u}, v{20+u}, v{12+u}")
    e("v_and_b32 v10, 1, v4")
    e("v_mul_u32_u24 v10, 0x8000, v10")
    e("v_lshl_or_b32 v10, v10, 16, v10")
    for u in range(16): e(f"v_xor_b32 v{vM+16+u}, v10, v{vM+u}")
    e(f"v_mul_f32 v8, {fhex(1.0/2048)}, v7")
    e("v_lshlrev_b32 v10, 31, v6")
    e("v_xor_b32 v8, v8, v10")
    e("v_mul_f32 v9, 4.0, v36")
    e("v_mul_f32 v9, v9, v8")
    for i in range(16): e(f"v_fmamk_f32 v{128+i}, v8, {fhex(8*(i>>2) + (i&3))}, v9")
    for i in range(16): e(f"v_cos_f32 v{112+i}, v{128+i}")
    for i in range(16): e(f"v_sin_f32 v{128+i}, v{128+i}")
    vF = 144
    e("v_cvt_f32_u32 v10, v35")
    e(f"v_mul_f32 v11, {fhex(1.0/32)}, v10")
    e("v_mul_f32 v12, 4.0, v36")
    e("v_mul_f32 v12, v12, v11")
    for t in range(8): e(f"v_fmamk_f32 v{14+t}, v11, {fhex(8*(t>>2) + (t&3))}, v12")
    for t in range(8): e(f"v_cos_f32 v{22+t}, v{14+t}")
    for t in range(8): e(f"v_sin_f32 v{14+t}, -v{14+t}")
    e("v_and_b32 v10, 1, v0")
    e("v_mul_u32_u24 v10, 0x8000, v10")
    e("v_lshl_or_b32 v10, v10, 16, v10")
    for t in range(4):
        e(f"v_cvt_pk_bf16_f32 v{vF+t}, v{22+2*t}, v{23+2*t}")
        e(f"v_cvt_pk_bf16_f32 v{vF+8+t}, v{14+2*t}, v{15+2*t}")
    for t in range(4):
        e(f"v_xor_b32 v{vF+4+t}, v10, v{vF+t}")
        e(f"v_xor_b32 v{vF+12+t}, v10, v{vF+8+t}")
    e(f"s_lshl_b32 s{sT1}, s{sW}, 11")
    e(f"v_add_u32 v30, s{sT1}, v2")
    e("v_mul_u32_u24 v31, 73728, v5")
    e("v_lshl_add_u32 v31, v35, 4, v31")
    stamp_mid(k, stamps, 0)
    D2 = R(160, 16)
    for j in range(8):
        k.wait(vm=("y", j))
        e(f"{MF32} {D2}, {R(vM+4*j,4)}, {R(vY+4*j,4)}, {'0' if j == 0 else D2}")
    stamp_mid(k, stamps, 1)
    k.wait(vm="w")
    if wpf: emit_wprefetch(k, sW, 4, "v0", 8, 1, 44, wpf)
    for i in range(8):
        e(f"v_lshlrev_b32 v{12+2*i}, 16, v{vWt+i}")
        e(f"v_and_b32 v{13+2*i}, 0xffff0000, v{vWt+i}")
    for i in range(8):
        xr, xi, wr, wi = 160+2*i, 161+2*i, 12+2*i, 13+2*i
        e(f"v_mul_f32 v{176+2*i}, v{xr}, v{wr}")
        e(f"v_mul_f32 v{177+2*i}, v{xr}, v{wi}")
    for i in range(8):
        xr, xi, wr, wi = 160+2*i, 161+2*i, 12+2*i, 13+2*i
        e(f"v_fma_f32 v{176+2*i}, -v{xi}, v{wi}, v{176+2*i}")
        e(f"v_fma_f32 v{177+2*i}, -v{xi}, v{wr}, -v{177+2*i}")
    for i in range(8): e(f"v_cvt_pk_bf16_f32 v{160+i}, v{176+2*i}, v{177+2*i}")
    k.lds(f"ds_write_b128 v30, {R(160,4)}")
    k.lds(f"ds_write_b128 v30, {R(164,4)} offset:1024")
    k.wait(lg0=True)
    e("s_barrier")
    for j in range(8): k.lds(f"ds_read_b128 {R(vY+4*j,4)}, v2 offset:{1024*j}", ("a", j))
    D3 = R(176, 16)
    for j in range(8):
        k.wait(lg=("a", j))
        e(f"{MF32} {D3}, {R(vY+4*j,4)}, {R(vM+4*j,4)}, {'0' if j == 0 else D3}")
    e("s_nop 13")
    for i in range(16): e(f"v_mul_f32 v{160+i}, v{176+i}, v{112+i}")
    for i in range(16): e(f"v_fmac_f32_dpp v{160+i}, v{176+i}, v{128+i} quad_perm:[1,0,3,2] row_mask:0xf bank_mask:0xf")
    for i in range(8): e(f"v_cvt_pk_bf16_f32 v{40+i}, v{160+2*i}, v{161+2*i}")
    e("s_nop 1")
    Pq, Qq = R(160, 16), R(176, 16)
    e(f"{MF32} {Pq}, {R(40,4)}, {R(vF,4)}, 0")
    e(f"{MF32} {Qq}, {R(40,4)}, {R(vF+8,4)}, 0")
    e(f"{MF32} {Pq}, {R(44,4)}, {R(vF+4,4)}, {Pq}")
    e(f"{MF32} {Qq}, {R(44,4)}, {R(vF+12,4)}, {Qq}")
    e("s_nop 13")
    for i in range(0, 16, 2):
        e(f"v_sub_f32 v{48+i}, v{160+i}, v{176+i+1}")
        e(f"v_add_f32 v{48+i+1}, v{176+i}, v{160+i+1}")
    for i in range(8): e(f"v_cvt_pk_bf16_f32 v{40+i}, v{48+2*i}, v{49+2*i}")
    for i in range(8):
        e(f"s_add_u32 s{sT2}, s29, {(4*(i>>1)+(i&1))*36864}")
        k.vmem(f"buffer_store_dword v{40+i}, v31, s[12:15], s{sT2} offen", "st")
    stamp_end(k, stamps, 6, 1, sW, 2)
    e("s_endpgm")
    k.label(f"L_{name}_g")
    if NP:
        e(f"s_cmp_ge_u32 s2, {NMAIN + NG}")
        e(f"s_cbranch_scc1 L_{name}_pack")
    e(f"s_cmp_ge_u32 s2, {NMAIN + 27}")
    e(f"s_cbranch_scc1 L_{name}_end")
    e(f"s_sub_u32 s{sT0}, s2, {NMAIN}")
    e(f"s_mul_i32 s{sT0}, s{sT0}, 12")
    e(f"s_mul_i32 s{sT1}, s{sW}, 3")
    e(f"s_add_u32 s{sT0}, s{sT0}, s{sT1}")
    e(f"s_mul_hi_u32 s26, s{sT0}, 0x71c71c8")
    e("s_mul_i32 s27, s26, 36")
    e(f"s_sub_u32 s27, s{sT0}, s27")
    e("s_cmp_ge_u32 s27, 18")
    e("s_cselect_b32 s28, 1, 0")
    e("s_mul_i32 s29, s28, 18")
    e("s_sub_u32 s27, s27, s29")
    e("v_and_b32 v2, 0x13, v0")
    e("v_bfe_u32 v3, v0, 2, 1")
    e("v_lshl_add_u32 v2, v3, 3, v2")
    e("v_bfe_u32 v3, v0, 3, 1")
    e("v_lshl_add_u32 v2, v3, 2, v2")
    e("s_lshl_b32 s26, s26, 5")
    e("v_add_u32 v2, s26, v2")
    e("v_cvt_f32_u32 v2, v2")
    e("v_lshrrev_b32 v3, 5, v0")
    e("s_lshl_b32 s27, s27, 4")
    e("s_add_u32 s27, s27, s28")
    e("s_add_u32 s27, s27, 1")
    e("v_lshl_add_u32 v3, v3, 3, s27")
    e("v_cvt_f32_u32 v3, v3")
    e("v_lshlrev_b32 v4, 4, v0")
    e(f"s_lshl_b32 s{sT1}, s{sT0}, 10")
    e(f"s_add_u32 s{sT1}, s{sT1}, {WS_G}")
    e("s_waitcnt lgkmcnt(0)")
    k.srd(12, 6, WS_END)
    for i in range(3):
        for t in range(4):
            e(f"v_add_f32 v{10+t}, {fhex(16*i + 2*t)}, v3")
            e(f"v_cmp_eq_f32 vcc, {fhex(288.0)}, v{10+t}")
            e(f"v_mul_f32 v{10+t}, v{10+t}, v2")
            e(f"v_mul_f32 v{10+t}, {fhex(1.0/576)}, v{10+t}")
            e(f"v_cos_f32 v{14+t}, v{10+t}")
            e(f"v_sin_f32 v{10+t}, v{10+t}")
            e(f"v_cndmask_b32 v18, 1.0, 0.5, vcc")
            e(f"v_mul_f32 v{14+t}, v18, v{14+t}")
            e(f"v_cndmask_b32 v{10+t}, v{10+t}, 0, vcc")
            e(f"v_cvt_pk_bf16_f32 v{20+4*i+t}, v{14+t}, v{10+t}")
        e(f"buffer_store_dwordx4 {R(20+4*i,4)}, v4, s[12:15], s{sT1} offen offset:{1024*i}")
    stamp_end(k, stamps, 6, 1, sW, 0)
    if NP:
        e("s_endpgm")
        k.label(f"L_{name}_pack")
    if touch:
        emit_touch_wg(k, sW, 4, NMAIN + NG, touch)
        stamp_end(k, stamps, 6, 1, sW, 0)
    elif NP:
        e("s_and_b32 s21, s2, 7")
        e(f"s_sub_u32 s22, s2, {NMAIN + NG}")
        e("s_lshr_b32 s22, s22, 3")
        e("s_lshl_b32 s22, s22, 2")
        e(f"s_add_u32 s22, s22, s{sW}")
        e(f"s_cmp_ge_u32 s22, {njob}")
        e(f"s_cbranch_scc1 L_{name}_end")
        e(f"s_add_u32 s22, s22, {job0}")
        e(f"s_mul_i32 s23, s{sW}, 12288")
        pack(k, 21, 22, 23, None)
        stamp_end(k, stamps, 46, 1, sW, 0)
    k.label(f"L_{name}_end")
    e("s_endpgm")
    return k, (192, 100, 192), (NMAIN + NG + NP, 256, 49152 if (NP and not touch) else 8192)

def gen_k3(name="inv_kernel", stamps=False, hc16=True, pack=None, job0=0, njob=0, wpf=None, touch=None):
    NMAIN = 192
    NP = 8 * ((njob + 2) // 3)
    if touch: NP = 120 if touch == 'gu' else 54
    k = Kern(name); e = k.e
    sW, sRG, sT, sT0, sT1, sT2 = 20, 21, 22, 23, 24, 25
    e(f"s_cmp_ge_u32 s2, {NMAIN + NP}")
    e(f"s_cbranch_scc1 L_{name}_end")
    stamp_begin(k, stamps)
    e(f"s_load_dwordx2 s[4:5], s[0:1], {KA_X}")
    e(f"s_load_dwordx2 s[6:7], s[0:1], {KA_WS}")
    e("v_lshrrev_b32 v1, 6, v0")
    e("v_and_b32 v0, 63, v0")
    e(f"v_readfirstlane_b32 s{sW}, v1")
    if NP:
        e(f"s_cmp_ge_u32 s2, {NMAIN}")
        e(f"s_cbranch_scc1 L_{name}_pack")
    e(f"s_lshr_b32 s{sT0}, s2, 3")
    e(f"s_mul_hi_u32 s{sT1}, s{sT0}, 0x55555556")
    e(f"s_mul_i32 s{sT}, s{sT1}, 3")
    e(f"s_sub_u32 s{sT}, s{sT0}, s{sT}")
    e(f"s_mul_i32 s{sT}, s{sT}, 3")
    e(f"s_add_u32 s{sT}, s{sT}, s{sW}")
    e(f"s_and_b32 s{sRG}, s2, 7")
    e(f"s_lshl_b32 s{sRG}, s{sRG}, 3")
    e(f"s_add_u32 s{sRG}, s{sRG}, s{sT1}")
    e("v_lshlrev_b32 v2, 4, v0")
    e(f"s_mul_i32 s26, s{sRG}, 36864")
    e(f"s_add_u32 s27, s26, {WS_V}")
    e(f"s_mul_i32 s28, s{sT}, 36864")
    e(f"s_add_u32 s28, s28, {WS_G}")
    e("v_lshrrev_b32 v5, 5, v0")
    e("v_and_b32 v6, 31, v0")
    e("s_waitcnt lgkmcnt(0)")
    k.srd(8, 4, S*D*2)
    k.srd(12, 6, WS_END)
    order = [st for j in range(18) for st in (j, 18 + j)]
    e(f"s_mul_i32 s29, s{sW}, 12288")
    e("s_add_u32 s27, s27, s29")
    for i in range(12):
        if i % 4 == 0:
            e(f"s_add_u32 m0, s29, {1024*i}")
            e(f"s_add_u32 s{sT0}, s27, {1024*i}")
        k.vmem(f"buffer_load_dwordx4 v2, s[12:15], s{sT0} offen offset:{(i&3)*1024} lds", "V")
    def ld(st):
        e(f"s_add_u32 s{sT1}, s28, {(st>>2)*4096}")
        k.vmem(f"buffer_load_dwordx4 {R(100+4*st,4)}, v2, s[12:15], s{sT1} offen offset:{(st&3)*1024}", ("v", st))
    for st in order[:8]: ld(st)
    e("v_mul_u32_u24 v7, 73728, v6")
    e("v_lshl_add_u32 v7, v5, 4, v7")
    e(f"s_mul_i32 s{sT0}, s{sRG}, 1152")
    e(f"s_lshl_b32 s{sT1}, s{sT}, 6")
    e(f"s_add_u32 s{sT0}, s{sT0}, s{sT1}")
    for u in range(4):
        k.vmem(f"buffer_load_dwordx4 {R(16+4*u,4)}, v7, s[8:11], s{sT0} offen offset:{(u>>1)*576 + (u&1)*32}", "x")
    e("v_lshlrev_b32 v8, 2, v6")
    e(f"s_lshl_b32 s{sT0}, s{sRG}, 7")
    e(f"s_add_u32 s{sT0}, s{sT0}, {WS_MEAN}")
    k.vmem(f"buffer_load_dword v9, v8, s[12:15], s{sT0} offen", "x")
    for st in order[8:]: ld(st)
    if wpf: emit_wprefetch(k, sW, 3, "v0", 3, 1, 44, wpf)
    stamp_mid(k, stamps, 0)
    k.wait(vm="V")
    e("s_barrier")
    O, E = 32, 48
    XM = 64
    RING = [96, 244, 248, 252, 12]
    def rd(n): k.lds(f"ds_read_b128 {R(RING[n % 5],4)}, v2 offset:{1024*order[n]}", ("b", n))
    for n in range(4): rd(n)
    for n, st in enumerate(order):
        k.wait(vm=("v", st), lg=("b", n))
        acc = R(O if st < 18 else E, 16)
        e(f"{MF32} {acc}, {R(100+4*st,4)}, {R(RING[n % 5],4)}, {'0' if st in (0, 18) else acc}")
        if n + 4 < 36: rd(n + 4)
        if 10 <= n < 26:
            r = n - 10
            e(f"v_lshlrev_b32 v{XM+2*r}, 16, v{16+r}")
            e(f"v_and_b32 v{XM+2*r+1}, 0xffff0000, v{16+r}")
            e(f"v_sub_f32 v{XM+2*r}, v{XM+2*r}, v9")
            e(f"v_sub_f32 v{XM+2*r+1}, v{XM+2*r+1}, v9")
    stamp_mid(k, stamps, 1)
    if hc16:
        e("v_and_b32 v10, 15, v0")
        e("v_lshlrev_b32 v10, 4, v10")
        e("v_lshl_add_u32 v10, v5, 8, v10")
        e("v_bfe_u32 v11, v0, 4, 1")
        e("v_mul_u32_u24 v11, 18432, v11")
        e("v_add_u32 v10, v10, v11")
        e(f"s_lshl_b32 s{sT0}, s{sT}, 10")
        offs = [0, 512]; hi = 9*1024
    else:
        e("v_mov_b32 v10, v2")
        e(f"s_lshl_b32 s{sT0}, s{sT}, 11")
        offs = [0, 1024]; hi = 18*1024
    e(f"s_add_u32 s{sT0}, s{sT0}, s26")
    e(f"s_add_u32 s{sT0}, s{sT0}, {WS_HC}")
    e(f"s_add_u32 s{sT1}, s{sT0}, {hi}")
    e(f"s_mul_i32 s{sT2}, s{sRG}, 9")
    e(f"s_add_u32 s{sT2}, s{sT2}, s{sT}")
    e(f"s_lshl_b32 s{sT2}, s{sT2}, 8")
    e(f"s_add_u32 s{sT2}, s{sT2}, {WS_SS}")
    e("v_lshlrev_b32 v11, 2, v0")
    e("s_nop 4")
    for i in range(16):
        e(f"v_add_f32 v{XM+i}, v{XM+i}, v{O+i}")
        e(f"v_sub_f32 v{XM+16+i}, v{XM+16+i}, v{O+i}")
    for i in range(16):
        e(f"v_add_f32 v{XM+i}, v{XM+i}, v{E+i}")
        e(f"v_add_f32 v{XM+16+i}, v{XM+16+i}, v{E+i}")
    for i in range(16): e(f"v_cvt_pk_bf16_f32 v{16+i}, v{XM+2*i}, v{XM+2*i+1}")
    for u in range(4):
        k.vmem(f"buffer_store_dwordx4 {R(16+4*u,4)}, v10, s[12:15], s{sT0 if u < 2 else sT1} offen offset:{offs[u&1]}", "st")
    e("v_mov_b32 v12, 0"); e("v_mov_b32 v13, 0")
    for i in range(16): e(f"v_dot2c_f32_bf16 v{12+(i&1)}, v{16+i}, v{16+i}")
    e("s_nop 2")
    e("v_add_f32 v12, v12, v13")
    k.vmem(f"buffer_store_dword v12, v11, s[12:15], s{sT2} offen", "st")
    stamp_end(k, stamps, 6, 2, sW, 2)
    if NP:
        e("s_endpgm")
        k.label(f"L_{name}_pack")
    if touch:
        emit_touch_wg(k, sW, 3, NMAIN, touch, nper=4)
        stamp_end(k, stamps, 6, 2, sW, 0)
    elif NP:
        e("s_and_b32 s21, s2, 7")
        e(f"s_sub_u32 s22, s2, {NMAIN}")
        e("s_lshr_b32 s22, s22, 3")
        e("s_mul_i32 s22, s22, 3")
        e(f"s_add_u32 s22, s22, s{sW}")
        e(f"s_cmp_ge_u32 s22, {njob}")
        e(f"s_cbranch_scc1 L_{name}_end")
        e(f"s_add_u32 s22, s22, {job0}")
        e(f"s_mul_i32 s23, s{sW}, 12288")
        pack(k, 21, 22, 23, None)
        stamp_end(k, stamps, 46, 2, sW, 0)
    k.label(f"L_{name}_end")
    e("s_endpgm")
    return k, (256, 100, 256), (NMAIN + NP, 192, 36864)
```

```python
from dsl import *
from layout import *
from k123 import stamp_begin, stamp_mid, stamp_end, R
import math

SLOT = 36864
MF16 = "v_mfma_f32_16x16x32_bf16"

def p1_frag_order(NL):
    chunks = []
    ks = 18 // NL
    for c in range(NL):
        fr = []
        for kk in range(c * ks, (c + 1) * ks):
            for t in range(NL):
                for mat in (0, 1): fr.append((t, kk, mat))
        chunks.append(fr)
    for t in range(NL, 18):
        chunks.append([(t, kk, mat) for kk in range(18) for mat in (0, 1)])
    return chunks

def wg_map(e, mapping, sFS, sMT, t0, t1):
    b = mapping
    lb = {2: 1, 4: 2, 8: 3, 16: 4}[b]
    nfh = 16 // b; lfh = 4 - lb
    e(f"s_lshr_b32 s{t0}, s2, 3")
    e(f"s_and_b32 s{sFS}, s{t0}, {b-1}")
    e(f"s_lshr_b32 s{sMT}, s{t0}, {lb}")
    e(f"s_and_b32 s{t0}, s2, 7")
    e(f"s_and_b32 s{t1}, s{t0}, {nfh-1}")
    e(f"s_lshl_b32 s{t1}, s{t1}, {lb}")
    e(f"s_add_u32 s{sFS}, s{sFS}, s{t1}")
    e(f"s_lshr_b32 s{t0}, s{t0}, {lfh}")
    e(f"s_lshl_b32 s{t0}, s{t0}, {5-lb}")
    e(f"s_add_u32 s{sMT}, s{sMT}, s{t0}")

def gen_k4b(name="ffn_kernel", P=6, X=3, NF=12, NL=3, stamps=False, dist=3, store_flags="", mapping=2, kidx=3, nogelu=False, nodma=False, hcrate=2, nostore=False, smallp=False, poff=0, pf=True, trsim=False):
    k = Kern(name); e = k.e
    sWS = 10; SW = 12
    sW, sMT, sFS, sRG = 20, 21, 22, 23
    sOff, sLB, sWP, sHC, sP, sT0, sT1, sHo = 24, 25, 26, 27, 28, 29, 30, 31
    vD = 1
    vA = 4
    vL16 = 8
    vC = 10
    vT = 16
    vH = 32
    vACC = 104
    NSET = 8
    aF = 144
    e("s_cmp_ge_u32 s2, 256")
    e(f"s_cbranch_scc1 L_{name}_end")
    stamp_begin(k, stamps)
    e(f"s_load_dwordx2 s[10:11], s[0:1], {KA_WS}")
    e("v_lshrrev_b32 v16, 6, v0")
    e("v_and_b32 v0, 63, v0")
    e(f"v_readfirstlane_b32 s{sW}, v16")
    if pf:
        e("s_bfe_u32 s40, s2, 0x10003")
        e("s_lshl_b32 s40, s40, 2")
        e(f"s_add_u32 s40, s40, s{sW}")
        k.prefetch_code(name, f"L_{name}_end", 32, 17, 250, 1, part=(40, 8192))
    wg_map(e, mapping, sFS, sMT, sT0, sT1)
    e(f"s_lshl_b32 s{sRG}, s{sMT}, 2")
    e(f"s_add_u32 s{sRG}, s{sRG}, s{sW}")
    e(f"v_lshlrev_b32 v{vL16}, 4, v0")
    e(f"s_mul_i32 s{sLB}, s{sW}, 9216")
    e(f"v_add_u32 v{vD}, s{sLB}, v{vL16}")
    e(f"v_add_u32 v{vD+1}, 4096, v{vD}")
    e(f"v_add_u32 v{vD+2}, 8192, v{vD}")
    e(f"s_mul_i32 s{sWP}, s{sFS}, {SLICE_B}")
    e(f"s_add_u32 s{sWP}, s{sWP}, {WS_WP}")
    e(f"s_mul_i32 s{sHC}, s{sRG}, 36864")
    e(f"s_mul_i32 s{sP}, s{sFS}, {0 if smallp else 64*36864}")
    e(f"s_add_u32 s{sP}, s{sP}, s{sHC}")
    e(f"s_add_u32 s{sP}, s{sP}, {WS_P}")
    e(f"s_add_u32 s{sHC}, s{sHC}, {WS_HC}")
    e("s_waitcnt lgkmcnt(0)")
    k.srd(SW, sWS, WS_END)
    SR = f"s[{SW}:{SW+3}]"
    NCH = 27

    def dma_items(c):
        slot = c % 4
        it = [("s", f"s_add_u32 s{sOff}, s{sWP}, {c*SLOT}")]
        for i in range(9):
            grp, r = divmod(i, 4)
            if r == 0: it.append(("s", f"s_add_u32 m0, s{sLB}, {slot*SLOT + 4096*grp}"))
            it.append(("m", f"buffer_load_dwordx4 v{vD+grp}, {SR}, s{sOff} offen offset:{1024*r} lds", ("dma", c)))
        return it
    def hc_items(kks):
        it = []
        for kk in kks:
            for hf in (0, 1):
                idx = hf*18 + kk
                it.append(("s", f"s_add_u32 s{sHo}, s{sHC}, {idx*1024}"))
                a = 4*(2*kk+hf)
                it.append(("m", f"buffer_load_dwordx4 a[{a}:{a+3}], v{vL16}, {SR}, s{sHo} offen", ("hc", kk)))
        return it
    def emit_item(it):
        if it[0] == "s": e(it[1])
        else: k.vmem(it[1], it[2])
    def emit_block(items):
        prev_m0 = False
        for it in items:
            if it[0] == "m" and prev_m0: e("s_nop 0")
            emit_item(it)
            prev_m0 = it[0] == "s" and " m0," in it[1]

    ks0 = 18 // NL
    emit_block(dma_items(0))
    emit_block(hc_items(range(0, ks0)))
    emit_block(dma_items(1))
    for s in range(4): e(f"v_add_u32 v{vA+s}, {s*SLOT}, v{vL16}")
    if trsim:
        e("v_lshlrev_b32 v9, 3, v0")
        for s in range(4): e(f"v_add_u32 v{vA+s}, {s*SLOT}, v9")
    e("v_lshlrev_b32 v9, 2, v0")
    e(f"s_mul_i32 s{sT1}, s{sRG}, 2304")
    e(f"s_add_u32 s{sT1}, s{sT1}, {WS_SS}")
    lead = []
    if NL > 1: lead += hc_items(range(ks0, 2*ks0))
    lead += dma_items(2)
    for c in range(2, NL): lead += hc_items(range(c*ks0, (c+1)*ks0))
    lead += [("m", f"buffer_load_dword v{vH+t}, v9, {SR}, s{sT1} offen offset:{256*t}", "ss") for t in range(9)]

    frags = []
    p1 = p1_frag_order(NL)
    def accset(t): return vACC + 16*(t % NSET)
    for c, fr in enumerate(p1):
        for i, (t, kk, mat) in enumerate(fr):
            uses = [(accset(t) + 8*mat + 4*hf, f"a[{4*(2*kk+hf)}:{4*(2*kk+hf)+3}]", kk == 0) for hf in (0, 1)]
            frags.append(dict(c=c, i=i, uses=uses, hc=kk, tile=t))
    def acc2(db):
        return [accset(18 + 2*db), accset(19 + 2*db)]
    for db in range(9):
        a2 = acc2(db)
        i = 0
        for p in range(9):
            for dt in range(4):
                uses = [(a2[dt >> 1] + 8*hf + 4*(dt & 1), R(vH + 8*p + 4*hf, 4), p == 0) for hf in (0, 1)]
                frags.append(dict(c=18+db, i=i, uses=uses, hc=None, tile=None)); i += 1
    NFR = len(frags); assert NFR == 972
    NM = 2*NFR
    last_m = {}
    for n, f in enumerate(frags):
        if f["tile"] is not None: last_m[f["tile"]] = 2*n + 1

    class Op:
        __slots__ = ("txt", "kind", "deps", "ready", "done_gap", "done_pos", "prio", "min_gap", "tag", "fn")
        def __init__(s, txt, kind="v", deps=(), min_gap=0, prio=0, tag=None):
            s.txt, s.kind, s.deps, s.min_gap, s.prio, s.tag = txt, kind, list(deps), min_gap, prio, tag
            s.done_gap = None
    ops = []
    tfree = {}
    tcount = [0]
    hdone = {}
    c1 = -2.0 * math.log2(math.e) * math.sqrt(2.0 / math.pi); c2 = c1 * 0.044715
    sgap = 2*36*(NL-1) + 40 if NL > 1 else 56
    chain = [("w", "ss")]
    for t in range(1, 9): chain.append(f"v_add_f32 v{vH}, v{vH}, v{vH+t}")
    chain += [f"v_mov_b32 v{vH+1}, v{vH}", None, f"v_permlane32_swap_b32 v{vH}, v{vH+1}", None,
              f"v_add_f32 v{vH}, v{vH}, v{vH+1}",
              f"v_mov_b32 v{vC+4}, {fhex(1e-5)}",
              f"v_fmac_f32 v{vC+4}, {fhex(1.0/576)}, v{vH}",
              f"v_mov_b32 v{vC+5}, v{vC+4}", None,
              f"v_permlane16_swap_b32 v{vC+4}, v{vC+5}", None]
    for hf in (0, 1):
        chain += [("x", f"v_rsq_f32 v{vH+2+hf}, v{vC+4+hf}"), None,
                  f"v_mul_f32 v{vC+hf}, {fhex(c1)}, v{vH+2+hf}",
                  f"v_mul_f32 v{vH+4}, v{vH+2+hf}, v{vH+2+hf}",
                  f"v_mul_f32 v{vH+4}, v{vH+4}, v{vH+2+hf}",
                  f"v_mul_f32 v{vC+2+hf}, {fhex(c2)}, v{vH+4}"]
    prev = None; skip = 1
    for it in chain:
        if it is None: skip = 2; continue
        if isinstance(it, tuple) and it[0] == "w": o = Op(None, "vmwait", tag=it[1], min_gap=sgap)
        elif isinstance(it, tuple): o = Op(it[1], "x", min_gap=sgap)
        else: o = Op(it, "v", min_gap=sgap)
        if prev is not None: o.deps = [(prev, skip)]
        o.prio = -1
        ops.append(o); prev = o; skip = 1
    stats_last = prev
    NT = 16
    def gelu(t):
        A = accset(t)
        mg = last_m[t] + 5
        res = {}
        for hf in (0, 1):
            for i in range(4):
                G, U = A + 4*hf + i, A + 8 + 4*hf + i
                T = vT + tcount[0] % NT; tcount[0] += 1
                pr = t*8 + hf*4 + i
                d0 = [(stats_last, 1)]
                if T in tfree: d0.append((tfree[T], 0))
                m1 = Op(f"v_mul_f32 v{T}, v{G}, v{G}", deps=d0, min_gap=mg, prio=pr)
                f1 = Op(f"v_fma_f32 v{T}, v{T}, v{vC+2+hf}, v{vC+hf}", deps=[(m1, 0)], prio=pr)
                m2 = Op(f"v_mul_f32 v{T}, v{T}, v{G}", deps=[(f1, 0)], prio=pr)
                ex = Op(f"v_exp_f32 v{T}, v{T}", "x", deps=[(m2, 1)], prio=pr)
                f2 = Op(f"v_fma_f32 v{T}, v{T}, v{vC+4+hf}, v{vC+4+hf}", deps=[(ex, 1)], prio=pr)
                rc = Op(f"v_rcp_f32 v{T}, v{T}", "x", deps=[(f2, 1)], prio=pr)
                m3 = Op(f"v_mul_f32 v{U}, v{G}, v{U}", min_gap=mg, prio=pr + 0.5)
                m4 = Op(f"v_mul_f32 v{U}, v{U}, v{T}", deps=[(rc, 1), (m3, 0)], prio=pr)
                tfree[T] = m4
                ops.extend([m1, f1, m2, ex, f2, rc, m3, m4]); res[(hf, i)] = m4
            for i in (0, 2):
                U = A + 8 + 4*hf + i
                H = vH + 8*(t >> 1) + 4*hf + 2*(t & 1) + (i >> 1)
                cv = Op(f"v_cvt_pk_bf16_f32 v{H}, v{U}, v{U+1}", deps=[(res[(hf, i)], 0), (res[(hf, i+1)], 0), (stats_last, 1)], prio=t*8 + hf*4 + i + 1)
                ops.append(cv); hdone[H] = cv
    tile_ops = {}
    if not nogelu:
        for t in range(18):
            n0 = len(ops); gelu(t); tile_ops[t] = ops[n0:]
    epi = {}
    for db in range(9):
        mg = 2*(648 + 36*(db+1)) + 4
        lst = []
        for Tp in (0, 1):
            for hf in (0, 1):
                a = acc2(db)[Tp] + 8*hf
                cvs = []
                for j in range(4):
                    o = Op(f"v_cvt_pk_bf16_f32 v{a+j}, v{a+2*j}, v{a+2*j+1}", min_gap=mg, prio=1000 + db*100 + Tp*20 + hf*8 + j,
                           deps=[(cvs[-1], 0)] if cvs else [])
                    cvs.append(o); lst.append(o)
                idx = hf*18 + 2*db + Tp
                so = Op(f"s_add_u32 s{sT1 if (2*Tp+hf) & 1 else sT0}, s{sP}, {idx*1024}", "s", min_gap=mg, prio=1000 + db*100 + Tp*20 + hf*8)
                st = Op(f"buffer_store_dwordx4 {R(a,4)}, v{vL16}, {SR}, s{sT1 if (2*Tp+hf) & 1 else sT0} offen{store_flags}", "m",
                        deps=[(cvs[-1], 1), (so, 0)], prio=1000 + db*100 + Tp*20 + hf*8 + 5, tag=("st", db))
                lst += [so, st]
        sos = [o for o in lst if o.kind == "s"]; sts = [o for o in lst if o.kind == "m"]
        sos[2].deps.append((sts[0], 0)); sos[3].deps.append((sts[1], 0))
        if db > 0:
            pst = [o for o in epi[db-1] if o.kind == "m"]
            sos[0].deps.append((pst[2], 0)); sos[1].deps.append((pst[3], 0))
        epi[db] = lst
        ops.extend(lst)
    pending = sorted(ops, key=lambda o: o.prio)

    def ready(o, g):
        if g < o.min_gap: return False
        for d, lat in o.deps:
            if d.done_gap is None or g < d.done_gap + lat: return False
        return True
    def take(kinds, g):
        for idx, o in enumerate(pending[:80]):
            if o.kind in kinds and ready(o, g):
                pending.pop(idx); o.done_gap = g
                return o
        return None
    def emit_op(o):
        if o.kind == "vmwait": k.wait(vm=o.tag)
        elif o.kind == "m":
            if not nostore: k.vmem(o.txt, o.tag)
        else: e(o.txt)

    def emit_read(n, half=None):
        f = frags[n]; fr = aF + 4*(n % NF)
        if trsim:
            for hh in ((0, 1) if half is None else (half,)):
                k.lds(f"ds_read_b64_tr_b16 a[{fr+2*hh}:{fr+2*hh+1}], v{vA + f['c'] % 4} offset:{1024*f['i'] + 512*hh}", ("f", n))
        else:
            k.lds(f"ds_read_b128 a[{fr}:{fr+3}], v{vA + f['c'] % 4} offset:{1024*f['i']}", ("f", n))
    def barrier(c):
        assert nodma or k.vm.count(("dma", c)) == 9, c
        k.wait(vm=[("dma", c)], lg0=(c > 0))
        e("s_barrier")
    stamp_mid(k, stamps, 0)
    barrier(0)
    next_read = 0; bar_done = 0
    for n in range(P): emit_read(n); next_read += 1
    vq = list(lead) + ([] if nodma else dma_items(3))
    m0_gap = -5
    rh = [2*P]; XTRA = 4
    overflow = 0
    k.wait(lg=("f", 0), vm=("hc", 0))
    for g in range(NM):
        n, hf = divmod(g, 2)
        f = frags[n]; c = f["c"]
        Dd, B, first = f["uses"][hf]
        fr = aF + 4*(n % NF)
        assert k._need(k.lg, k.lg_done, ("f", n)) is None, n
        if f["hc"] is not None: assert k._need(k.vm, k.vm_done, ("hc", f["hc"])) is None and ("hc", f["hc"]) in k.vm, (n, f["hc"])
        if f["tile"] is None and not nogelu:
            h0 = int(B[2:B.index(":")])
            forced = False
            while any(hdone[r].done_gap is None for r in range(h0, h0+4)):
                o = take(("v", "x"), g + 1)
                assert o is not None
                o.done_gap = g - 1
                e("s_nop 0"); emit_op(o); overflow += 2; forced = True
            if forced or any(hdone[r].done_gap >= g - 1 for r in range(h0, h0+4)):
                e("s_nop 1"); overflow += 2
        if first:
            owner = f["tile"] if f["tile"] is not None else 18 + 2*(c-18) + ((f["i"] % 4) >> 1)
            po = owner - NSET
            if po >= 0:
                lst = tile_ops.get(po, []) if po < 18 else epi[(po-18)//2]
                for o in lst: assert o.done_gap is not None and o.done_gap < g - 1, (g, owner)
        Dr = R(Dd, 4)
        e(f"{MF16} {Dr}, a[{fr}:{fr+3}], {B}, {'0' if first else Dr}")
        if stamps and g == 2*648 - 1: stamp_mid(k, stamps, 2)
        if stamps and g == 2*36*NL - 1: stamp_mid(k, stamps, 1)
        free_first = True
        slots = 2
        E = 36*(c+1) - 1
        if hf == 1:
            if c + 1 < NCH and n == E - P + X:
                barrier(c + 1); bar_done = c + 1; free_first = False; slots -= 1
                if c + 1 + dist < NCH and not nodma: vq += dma_items(c + 1 + dist)
            if n + 1 < NFR:
                nf = frags[n+1]
                vmt = ("hc", nf["hc"]) if nf["hc"] is not None else None
                if vmt is not None and vmt not in k.vm:
                    while vmt not in k.vm or (vq and vq[0][0] == "m" and vq[0][2] == vmt) or (len(vq) > 1 and vq[1][0] == "m" and vq[1][2] == vmt):
                        it = vq.pop(0)
                        if it[0] == "m" and " lds" in it[1]: e("s_nop 0")
                        emit_item(it); overflow += 1
                if k.wait(lg=("f", n+1), vm=vmt):
                    if not free_first: slots -= 1
                    free_first = False
        if free_first:
            if vq and vq[0][0] == "s":
                it = vq.pop(0); emit_item(it)
                if " m0," in it[1]: m0_gap = g
                free_first = False
            else:
                o = take(("s", "vmwait"), g)
                if o: emit_op(o); free_first = False
        if trsim:
            def can_half(): return rh[0] < 2*NFR and frags[rh[0]//2]["c"] <= bar_done and rh[0] <= g + 2*P
            nrd = 0
            while can_half() and nrd < (2 if rh[0] < g + 2*P else 1):
                emit_read(rh[0]//2, rh[0] & 1); rh[0] += 1; slots -= 1; nrd += 1
            inlead = c < NL
            rate_ok = (g % hcrate == 1 % hcrate) if inlead else (g % 6 == 1)
            if slots > 0:
                if vq and vq[0][0] == "m" and (rate_ok or len(vq) > 20) and not (" lds" in vq[0][1] and m0_gap == g):
                    emit_item(vq.pop(0)); slots -= 1
                else:
                    o = take(("m",), g)
                    if o: emit_op(o); slots -= 1
            if slots >= 1:
                o = take(("x",), g) if (g % 2 == 0) else None
                if o: emit_op(o); slots = 0
            if g % XTRA == 3: slots += 1
            while slots > 0:
                o = take(("v",), g)
                if not o: break
                emit_op(o); slots -= 1
            continue
        can_read = next_read < NFR and frags[next_read]["c"] <= bar_done and next_read <= n + P
        did_mem = False
        if slots > 0 and can_read and (hf == 0 or next_read < n + P):
            emit_read(next_read); next_read += 1; slots -= 1; did_mem = True
        elif slots > 0:
            inlead = c < NL
            rate_ok = (g % hcrate == 1 % hcrate) if inlead else (g % 6 == 1)
            if vq and vq[0][0] == "m" and (rate_ok or len(vq) > 20) and not (" lds" in vq[0][1] and m0_gap == g):
                emit_item(vq.pop(0)); slots -= 1; did_mem = True
            else:
                o = take(("m",), g)
                if o: emit_op(o); slots -= 1; did_mem = True
        if slots == 2:
            o = take(("x",), g)
            if o: emit_op(o); slots = 0
        while slots > 0:
            o = take(("v",), g)
            if not o: break
            emit_op(o); slots -= 1
    assert not vq, vq
    e("s_nop 7")
    g = NM + 10
    while pending:
        o = take(("v", "x", "s", "m", "vmwait"), g); g += 1
        if o: emit_op(o)
    stamp_mid(k, stamps, 3)
    stamp_end(k, stamps, sWS, kidx, sW, 4)
    k.label(f"L_{name}_end")
    e("s_endpgm")
    k.overflow = overflow
    return k, (512, 100, 256), (256, 256, 4*SLOT)

def gen_k5b(name="red_kernel", stamps=False, kidx=4):
    k = Kern(name); e = k.e
    e("s_cmp_ge_u32 s2, 576")
    e(f"s_cbranch_scc1 L_{name}_end")
    stamp_begin(k, stamps)
    e(f"s_load_dwordx2 s[4:5], s[0:1], {KA_OUT}")
    e(f"s_load_dwordx2 s[6:7], s[0:1], {KA_WS}")
    e("v_lshrrev_b32 v2, 6, v0")
    e("v_lshlrev_b32 v1, 4, v0")
    e("v_readfirstlane_b32 s27, v2")
    e("s_mul_hi_u32 s20, s2, 0x1c71c71d")
    e("s_mul_i32 s21, s20, 9")
    e("s_sub_u32 s21, s2, s21")
    e("s_lshl_b32 s22, s2, 12")
    e("s_waitcnt lgkmcnt(0)")
    k.srd(8, 4, S*D*2)
    k.srd(12, 6, WS_END)
    e(f"s_add_u32 s23, s22, {WS_P}")
    for p in range(16):
        k.vmem(f"buffer_load_dwordx4 v[{8+4*p}:{11+4*p}], v1, s[12:15], s23 offen", ("p", p))
        if p < 15: e(f"s_add_u32 s23, s23, {64*36864}")
    e(f"s_add_u32 s23, s22, {WS_HC}")
    k.vmem("buffer_load_dwordx4 v[72:75], v1, s[12:15], s23 offen", "hc")
    e("s_lshl_b32 s21, s21, 2")
    e("s_add_u32 s21, s21, s27")
    e("s_cmp_ge_u32 s21, 18")
    e("s_cselect_b32 s28, 16, 0")
    e("s_cselect_b32 s29, 18, 0")
    e("s_sub_u32 s21, s21, s29")
    e("v_and_b32 v2, 15, v0")
    e("v_add_u32 v2, s28, v2")
    e("v_lshlrev_b32 v3, 2, v2")
    e("s_lshl_b32 s24, s20, 7")
    e(f"s_add_u32 s24, s24, {WS_MEAN}")
    k.vmem("buffer_load_dword v76, v3, s[12:15], s24 offen", "mean")
    e("v_mul_u32_u24 v4, 73728, v2")
    e("v_bfe_u32 v5, v0, 4, 2")
    e("v_lshl_add_u32 v4, v5, 4, v4")
    e("s_mul_i32 s25, s20, 1152")
    e("s_lshl_b32 s26, s21, 6")
    e("s_add_u32 s25, s25, s26")
    for p in range(16):
        k.wait(vm=("p", p))
        for j in range(4):
            r = 8 + 4*p + j
            if p == 0:
                e(f"v_lshlrev_b32 v{80+2*j}, 16, v{r}")
                e(f"v_and_b32 v{81+2*j}, 0xffff0000, v{r}")
            else:
                e(f"v_lshlrev_b32 v6, 16, v{r}")
                e(f"v_and_b32 v7, 0xffff0000, v{r}")
                e(f"v_add_f32 v{80+2*j}, v{80+2*j}, v6")
                e(f"v_add_f32 v{81+2*j}, v{81+2*j}, v7")
    k.wait(vm="mean")
    for j in range(4):
        e(f"v_lshlrev_b32 v6, 16, v{72+j}")
        e(f"v_and_b32 v7, 0xffff0000, v{72+j}")
        e(f"v_add_f32 v6, v6, v76")
        e(f"v_add_f32 v7, v7, v76")
        e(f"v_add_f32 v{80+2*j}, v{80+2*j}, v6")
        e(f"v_add_f32 v{81+2*j}, v{81+2*j}, v7")
        e(f"v_cvt_pk_bf16_f32 v{72+j}, v{80+2*j}, v{81+2*j}")
    e("buffer_store_dwordx4 v[72:75], v4, s[8:11], s25 offen")
    if stamps:
        e("s_cmp_ge_u32 s2, 512")
        e(f"s_cbranch_scc1 L_{name}_end")
    stamp_end(k, stamps, 6, kidx, 27, 0)
    k.label(f"L_{name}_end")
    e("s_endpgm")
    return k, (88, 100, 88), (576, 256, 0)


def emit_pack_job(k, NL, sP8, sJob, sLds, s0=40, v0=2, lane="v0", ld_flags="", st_flags="", mid=None):
    e = k.e
    sPtr = s0
    SS, SD = s0 + 8, s0 + 12
    sMat, sCb, sKg, sA, sB, sRS, sSrc = s0+16, s0+17, s0+18, s0+19, s0+20, s0+21, s0+22
    sBase, sStep = s0 + 24, s0 + 28
    e(f"s_load_dwordx4 s[{sPtr}:{sPtr+3}], s[0:1], {KA_WG}")
    e(f"s_load_dwordx2 s[{sPtr+4}:{sPtr+5}], s[0:1], {KA_WD}")
    e(f"s_load_dwordx2 s[{sPtr+6}:{sPtr+7}], s[0:1], {KA_WS}")
    e(f"s_mul_hi_u32 s{sMat}, s{sJob}, {(2**32 + 53)//54}")
    e(f"s_mul_i32 s{sA}, s{sMat}, 54")
    e(f"s_sub_u32 s{sA}, s{sJob}, s{sA}")
    e(f"s_mul_hi_u32 s{sCb}, s{sA}, {(2**32 + 5)//6}")
    e(f"s_mul_i32 s{sB}, s{sCb}, 6")
    e(f"s_sub_u32 s{sKg}, s{sA}, s{sB}")
    lab = f"L_{k.name}_pk{k.nlabel}"; k.nlabel += 1
    e(f"s_cmp_eq_u32 s{sMat}, 2")
    e(f"s_cbranch_scc1 {lab}_d")
    e(f"s_mov_b32 s{sRS}, 9216")
    e(f"s_mul_i32 s{sSrc}, s{sKg}, {96*9216}")
    e(f"s_mul_i32 s{sA}, s{sP8}, 9")
    e(f"s_add_u32 s{sA}, s{sA}, s{sCb}")
    e(f"s_lshl_b32 s{sA}, s{sA}, 7")
    e(f"s_add_u32 s{sSrc}, s{sSrc}, s{sA}")
    for cb in (0, 1):
        e(f"s_lshl_b32 s{sA}, s{sCb}, 1")
        if cb: e(f"s_add_u32 s{sA}, s{sA}, 1")
        e(f"s_cmp_ge_u32 s{sA}, 9")
        e(f"s_cselect_b32 s{sB}, 9, 0")
        e(f"s_sub_u32 s{sA}, s{sA}, s{sB}")
        e(f"s_mul_i32 s{sB}, s{sB}, {972//9}")
        for a in (0, 1):
            i = 2*cb + a
            e(f"s_lshl_b32 s{sBase+i}, s{sA}, 1")
            if a: e(f"s_add_u32 s{sBase+i}, s{sBase+i}, 1")
            e(f"s_cmp_lt_u32 s{sBase+i}, {NL}")
            e(f"s_cselect_b32 s{sStep+i}, 2, 36")
            e(f"s_mul_i32 s{sBase+i}, s{sBase+i}, s{sStep+i}")
            e(f"s_cselect_b32 s{sStep+i}, {2*NL}, 2")
            e(f"s_add_u32 s{sBase+i}, s{sBase+i}, s{sMat}")
            e(f"s_add_u32 s{sBase+i}, s{sBase+i}, s{sB}")
    e(f"s_mul_i32 s{sKg}, s{sKg}, 3")
    e(f"s_branch {lab}_j")
    k.label(f"{lab}_d")
    e(f"s_mov_b32 s{sRS}, 1152")
    e(f"s_mul_i32 s{sA}, s{sP8}, 6")
    e(f"s_add_u32 s{sA}, s{sA}, s{sKg}")
    e(f"s_mul_i32 s{sSrc}, s{sA}, {96*1152}")
    e(f"s_lshl_b32 s{sA}, s{sCb}, 7")
    e(f"s_add_u32 s{sSrc}, s{sSrc}, s{sA}")
    e(f"s_cmp_ge_u32 s{sKg}, 3")
    e(f"s_cselect_b32 s{sB}, 3, 0")
    e(f"s_sub_u32 s{sKg}, s{sKg}, s{sB}")
    e(f"s_mul_i32 s{sKg}, s{sKg}, 3")
    e(f"s_mul_i32 s{sB}, s{sB}, {972//3}")
    e(f"s_mul_i32 s{sA}, s{sCb}, 36")
    e(f"s_add_u32 s{sA}, s{sA}, s{sB}")
    for i in range(4):
        e(f"s_add_u32 s{sBase+i}, s{sA}, {648 + i}")
        e(f"s_mov_b32 s{sStep+i}, 4")
    k.label(f"{lab}_j")
    e(f"s_mul_i32 s{sB}, s{sP8}, {2*SLICE_B}")
    e(f"s_add_u32 s{sB}, s{sB}, {WS_WP}")
    for i in range(4):
        e(f"s_mul_i32 s{sA}, s{sKg}, s{sStep+i}")
        e(f"s_add_u32 s{sBase+i}, s{sBase+i}, s{sA}")
        e(f"s_lshl_b32 s{sBase+i}, s{sBase+i}, 10")
        e(f"s_add_u32 s{sBase+i}, s{sBase+i}, s{sB}")
        e(f"s_lshl_b32 s{sStep+i}, s{sStep+i}, 10")
    e(f"v_lshrrev_b32 v{v0}, 3, {lane}")
    e(f"v_mul_lo_u32 v{v0}, v{v0}, s{sRS}")
    e(f"v_and_b32 v{v0+1}, 7, {lane}")
    e(f"v_lshl_add_u32 v{v0}, v{v0+1}, 4, v{v0}")
    e(f"s_lshl_b32 s{sRS}, s{sRS}, 3")
    e("s_waitcnt lgkmcnt(0)")
    e(f"s_cmp_eq_u32 s{sMat}, 1")
    e(f"s_cselect_b32 s{SS}, s{sPtr+2}, s{sPtr}")
    e(f"s_cselect_b32 s{SS+1}, s{sPtr+3}, s{sPtr+1}")
    e(f"s_cmp_eq_u32 s{sMat}, 2")
    e(f"s_cselect_b32 s{SS}, s{sPtr+4}, s{SS}")
    e(f"s_cselect_b32 s{SS+1}, s{sPtr+5}, s{SS+1}")
    e(f"s_and_b32 s{SS+1}, s{SS+1}, 0xffff")
    e(f"s_mov_b32 s{SS+2}, {D*F*2}")
    e(f"s_mov_b32 s{SS+3}, 0x20000")
    k.srd(SD, sPtr+6, WS_END)
    for i in range(12):
        e(f"s_add_u32 m0, s{sLds}, {1024*i}")
        if i: e(f"s_add_u32 s{sSrc}, s{sSrc}, s{sRS}")
        else: e("s_nop 0")
        e(f"buffer_load_dwordx4 v{v0}, s[{SS}:{SS+3}], s{sSrc} offen{ld_flags} lds")
    e(f"v_lshrrev_b32 v{v0+1}, 4, {lane}")
    e(f"v_bfe_u32 v{v0+2}, {lane}, 2, 2")
    e(f"v_lshl_add_u32 v{v0+1}, v{v0+1}, 3, v{v0+2}")
    e(f"v_and_b32 v{v0+2}, 3, {lane}")
    e(f"v_lshlrev_b32 v{v0+2}, 4, v{v0+2}")
    e(f"v_lshl_add_u32 v{v0+1}, v{v0+1}, 7, v{v0+2}")
    e(f"v_add_u32 v{v0+1}, s{sLds}, v{v0+1}")
    e(f"v_lshlrev_b32 v{v0+2}, 4, {lane}")
    vb = (v0 + 3 + 3) // 4 * 4
    if mid: mid()
    for u in range(3):
        e(f"s_waitcnt vmcnt({8 - 4*u + 4*u})" if False else f"s_waitcnt vmcnt({(2-u)*4 + 4*u})")
        for i in range(4):
            cb, a = i >> 1, i & 1
            for ee in (0, 1):
                r = vb + 16*u + 4*i + 2*ee
                e(f"ds_read_b64_tr_b16 v[{r}:{r+1}], v{v0+1} offset:{4096*u + 512*ee + 64*cb + 8*a}")
        for i in range(4):
            e(f"s_waitcnt lgkmcnt({6 - 2*i})")
            r = vb + 16*u + 4*i
            e(f"buffer_store_dwordx4 v[{r}:{r+3}], v{v0+2}, s[{SD}:{SD+3}], s{sBase+i} offen{st_flags}")
            e(f"s_add_u32 s{sBase+i}, s{sBase+i}, s{sStep+i}")

def gen_pack(name="pack_kernel", NL=3, stamps=False, kidx=5):
    k = Kern(name); e = k.e
    e("s_cmp_ge_u32 s2, 328")
    e(f"s_cbranch_scc1 L_{name}_end")
    stamp_begin(k, stamps)
    e("v_lshrrev_b32 v1, 6, v0")
    e("v_and_b32 v0, 63, v0")
    e("v_readfirstlane_b32 s20, v1")
    e("s_and_b32 s21, s2, 7")
    e("s_lshr_b32 s22, s2, 3")
    e("s_lshl_b32 s22, s22, 2")
    e("s_add_u32 s22, s22, s20")
    e("s_cmp_ge_u32 s22, 162")
    e(f"s_cbranch_scc1 L_{name}_end")
    e("s_mul_i32 s23, s20, 12288")
    emit_pack_job(k, NL, 21, 22, 23)
    stamp_end(k, stamps, 46, kidx, 20, 0)
    k.label(f"L_{name}_end")
    e("s_endpgm")
    return k, (64, 100, 64), (328, 256, 49152)
```

```python
from dsl import *
from layout import *
from k123 import stamp_begin, stamp_mid, stamp_end, R
from k4b import wg_map
import math

SLOT = 36864
MF32 = "v_mfma_f32_32x32x16_bf16"
MF16 = "v_mfma_f32_16x16x32_bf16"
P2ORDER = ["A0", "A1", "A2", "B0", "B1", "B2", "A3", "B3", "N"]

def gen_k4e(name="ffn_kernel", P=5, X=2, NF=9, stamps=False, dist=3, mapping=2, kidx=3, budget=22, pf=True,
            pub_d=40, poll_d=30, chk_d=24, hpub_d=40, hpoll_d=24, hchk_d=24, st_sp=5, spin_max=200000, trace=False, leadrate=1, order=None, dmar=3, hot_lo=0, hot_hi=0, hot_bud=32, xdma=False, xhx=False, lin=False, wev=2, hc0=12, rpoll=(905, 915, 950), tch=(100, 170, 240, 300, 360, 420), trlead=False):
    order = order or P2ORDER
    k = Kern(name); e = k.e
    SGU, SD, SW, SO, SU = 12, 16, 20, 24, 4
    P1 = [(0, 0, 0), (0, 1, 0), (0, 0, 1), (0, 1, 1)] + [(b, m_, hf) for b in (1, 2, 3) for m_ in (0, 1) for hf in (0, 1)] + [(4, 0, 0), (4, 1, 0)]
    sW, sMT, sFS, sRG = 28, 29, 30, 31
    sOff, sLB1, sLB2, sLB3, sLBN, sLBN3 = 32, 33, 34, 35, 36, 37
    sColW, sColN = 38, 39
    sRow = 40
    sRowN = 44
    sHC, sP, sPR, sT0, sT1, sHo, sSp = 46, 47, 48, 49, 50, 51, 52
    sFH, sFHp, sFR, sFRo, sHXo, sHXp, sHR, sOut, sMn, sSpin = 53, 54, 55, 56, 57, 60, 61, 62, 63, 64
    vW, vN, vD, vDN = 1, 5, 9, 240
    vA = 13
    vAN = 21
    vL16, vC1, vC2, vR = 23, 24, 25, 26
    vAN2 = 27
    vT = 28
    NT = 12
    vH = 40
    ACC = [112, 176]
    vSt, vFl, vPo, vPoll, vFv, vHo, vOo, vMo = 244, 245, 246, 247, 248, 249, 250, 252
    aHP = 144
    aF = 216
    assert aF + 4*NF <= 256
    e("s_cmp_ge_u32 s2, 256")
    e(f"s_cbranch_scc1 L_{name}_end")
    stamp_begin(k, stamps)
    e(f"s_load_dwordx4 s[4:7], s[0:1], {KA_WG}")
    e(f"s_load_dwordx4 s[8:11], s[0:1], {KA_WD}")
    e(f"s_load_dwordx2 s[66:67], s[0:1], {KA_WS}")
    e("v_lshrrev_b32 v28, 6, v0")
    e("v_and_b32 v0, 63, v0")
    e(f"v_readfirstlane_b32 s{sW}, v28")
    wg_map(e, mapping, sFS, sMT, sT0, sT1)
    e(f"s_lshl_b32 s{sRG}, s{sMT}, 2")
    e(f"s_add_u32 s{sRG}, s{sRG}, s{sW}")
    e("v_lshrrev_b32 v28, 3, v0")
    e("v_and_b32 v29, 7, v0")
    e("v_lshrrev_b32 v30, 2, v0")
    e("v_and_b32 v31, 4, v30")
    e("v_xor_b32 v29, v29, v31")
    e("v_lshlrev_b32 v29, 4, v29")
    e(f"v_mul_u32_u24 v{vW}, 9216, v28")
    e(f"v_add_u32 v{vW}, v{vW}, v29")
    if lin: e(f"v_lshlrev_b32 v{vW}, 4, v0")
    for i in range(1, 4): e(f"v_add_u32 v{vW+i}, {i*(8*9216-1024)}, v{vW}")
    e(f"v_lshlrev_b32 v{vL16}, 4, v0")
    e(f"s_lshr_b32 s68, s{sFS}, 1")
    e(f"s_and_b32 s69, s{sFS}, 1")
    e("s_mul_i32 s70, s68, 576")
    e("s_mul_i32 s71, s69, 320")
    e("s_add_u32 s71, s71, s70")
    e(f"s_and_b32 s{sT0}, s{sW}, 1")
    e(f"s_mul_i32 s{sT1}, s{sW}, {72*9216}")
    e(f"s_lshl_b32 s{sColW}, s71, 1")
    e(f"s_add_u32 s{sColW}, s{sColW}, s{sT1}")
    e(f"s_mul_i32 s{sLB1}, s{sW}, 9216")
    e(f"s_mul_i32 s{sHC}, s{sRG}, 36864")
    e(f"s_add_u32 s{sHC}, s{sHC}, {WS_HC}")
    e("s_waitcnt lgkmcnt(0)")
    k.srd(SGU, 4, D*F*2)
    k.srd(SU, 6, D*F*2)
    k.srd(SW, 66, WS_END)
    SR = f"s[{SW}:{SW+3}]"
    NCH = 27
    k.tr = []
    def tr(label):
        if not trace or len(k.tr) >= 64: return
        if trlead and not (label.startswith("L") or label == "end"): return
        if not trlead and label.startswith("L"): return
        e("s_memtime s[58:59]")
        e("s_waitcnt lgkmcnt(0)")
        e("s_sub_u32 s58, s58, s92")
        e(f"v_writelane_b32 v251, s58, {len(k.tr)}")
        k.tr.append(label)

    def dma_items(c):
        slot = c % 4
        it = []
        for i in range(9):
            grp, r = divmod(i, 4)
            if c < 16:
                b, mat, hf = P1[c]
                m0, so = (sLB1, slot*SLOT + 4096*grp), (sColW, 128*b + (288*hf + 32*grp)*9216)
                v, srd = vW, (SU if mat else SGU)
            elif c < 18:
                m0, so = (sLB1, slot*SLOT + 4096*grp), (sColN, 64*grp*9216)
                v, srd = vN, (SU if P1[c][1] else SGU)
            else:
                nm = order[c-18]
                srd = SD
                if nm == "N":
                    v = vDN
                    if grp < 2: m0, so = (sLBN, slot*SLOT + 4096*grp), (sRowN, 64*grp*1152)
                    else: m0, so = (sLBN3, slot*SLOT), (sRowN+1, 0)
                else:
                    v = vD; side = 2*(nm[0] == "B"); db = int(nm[1])
                    if grp < 2: m0, so = (sLB2, slot*SLOT + 4096*grp), (sRow+side, 128*db + 32*grp*1152)
                    else: m0, so = (sLB3, slot*SLOT + 32768), (sRow+side+1, 128*db)
            if r == 0:
                it.append(("s", f"s_add_u32 m0, s{m0[0]}, {m0[1]}"))
                it.append(("s", f"s_add_u32 s{sOff}, s{so[0]}, {so[1]}"))
            it.append(("m", f"buffer_load_dwordx4 v{v+r}, s[{srd}:{srd+3}], s{sOff} offen offset:{1024*r} lds", ("dma", c)))
        return it
    def hc_items(kks):
        it = []
        for n_, kk in enumerate(kks):
            if n_ == 0 or kk % 4 == 0: it.append(("s", f"s_add_u32 s{sHo}, s{sHC}, {4096*(kk//4)}"))
            it.append(("m", f"buffer_load_dwordx4 a[{4*kk}:{4*kk+3}], v{vL16}, {SR}, s{sHo} offen offset:{1024*(kk%4)}", ("hc", kk)))
        return it
    def emit_item(it):
        if it[0] == "s": e(it[1])
        elif xdma and " lds" in it[1] and it[2][1] > 3: k.vm.append(it[2]); k.vm_done = len(k.vm)
        else: k.vmem(it[1], it[2])
    tr("L-karg")
    for it in dma_items(0): emit_item(it)
    tr("L-dma0")
    for it in hc_items(range(0, hc0)): emit_item(it)
    tr("L-hc0")
    if pf:
        e("s_bfe_u32 s77, s2, 0x10003")
        e("s_lshl_b32 s77, s77, 2")
        e(f"s_add_u32 s77, s77, s{sW}")
        k.prefetch_code(name, f"L_{name}_fin", 72, 39, 253, 1, part=(77, 8192))
    k.srd(SD, 8, D*F*2)
    k.srd(SO, 10, S*D*2)
    e(f"v_mul_u32_u24 v{vD}, 1152, v28")
    e(f"v_add_u32 v{vD}, v{vD}, v29")
    e("v_and_b32 v31, 3, v0")
    e("v_lshlrev_b32 v31, 4, v31")
    e(f"v_mul_u32_u24 v{vN}, 9216, v30")
    e(f"v_add_u32 v{vN}, v{vN}, v31")
    e(f"v_mul_u32_u24 v{vDN}, 1152, v30")
    e(f"v_add_u32 v{vDN}, v{vDN}, v31")
    for i in range(1, 4):
        e(f"v_add_u32 v{vN+i}, {i*(16*9216-1024)}, v{vN}")
        e(f"v_add_u32 v{vD+i}, {i*(8*1152-1024)}, v{vD}")
        e(f"v_add_u32 v{vDN+i}, {i*(16*1152-1024)}, v{vDN}")
    e("s_lshl_b32 s72, s69, 5")
    e("s_add_u32 s72, s72, s70")
    e("s_add_u32 s72, s72, 256")
    e("s_xor_b32 s65, s69, 1")
    e("s_mul_i32 s73, s65, 320")
    e("s_add_u32 s73, s73, s70")
    e("s_lshl_b32 s74, s65, 5")
    e("s_add_u32 s74, s74, s70")
    e("s_add_u32 s74, s74, 256")
    e(f"s_lshl_b32 s{sColN}, s72, 1")
    e(f"s_add_u32 s{sColN}, s{sColN}, s{sT1}")
    e(f"s_add_u32 s{sColN}, s{sColN}, s{sT1}")
    e("s_mul_i32 s75, s69, 640")
    e("s_lshl_b32 s76, s69, 6")
    e("s_add_u32 s76, s76, 512")
    for i, (f, sh) in enumerate([(71, 6), (72, 3), (73, 6), (74, 3)]):
        e(f"s_lshl_b32 s{sRow+i}, s{sW}, {sh}")
        e(f"s_add_u32 s{sRow+i}, s{sRow+i}, s{f}")
        e(f"s_mul_i32 s{sRow+i}, s{sRow+i}, 1152")
        e(f"s_add_u32 s{sRow+i}, s{sRow+i}, s75")
    e(f"s_cmp_lt_u32 s{sW}, 2")
    e(f"s_cselect_b32 s{sRowN}, s71, s73")
    e(f"s_cselect_b32 s{sRowN+1}, s72, s74")
    e(f"s_cselect_b32 s{sLBN}, 0, 18432")
    for i, sh in ((0, 7), (1, 4)):
        e(f"s_lshl_b32 s65, s{sT0}, {sh}")
        e(f"s_add_u32 s{sRowN+i}, s{sRowN+i}, s65")
        e(f"s_mul_i32 s{sRowN+i}, s{sRowN+i}, 1152")
        e(f"s_add_u32 s{sRowN+i}, s{sRowN+i}, s76")
    e(f"s_lshl_b32 s65, s{sT0}, 10")
    e(f"s_add_u32 s{sLBN3}, s{sLBN}, s65")
    e(f"s_add_u32 s{sLBN3}, s{sLBN3}, 16384")
    e(f"s_lshl_b32 s65, s{sT0}, 13")
    e(f"s_add_u32 s{sLBN}, s{sLBN}, s65")
    e(f"s_lshl_b32 s{sLB2}, s{sW}, 13")
    e(f"s_lshl_b32 s{sLB3}, s{sW}, 10")
    e(f"s_lshl_b32 s{sPR}, s{sRG}, 1")
    e(f"s_add_u32 s{sPR}, s{sPR}, s69")
    e(f"s_mul_i32 s{sPR}, s{sPR}, {9*16384}")
    e(f"s_add_u32 s{sPR}, s{sPR}, {WS_P}")
    e(f"s_lshl_b32 s{sP}, s68, 8")
    e(f"s_add_u32 s{sP}, s{sP}, s{sPR}")
    e("s_lshl_b32 s65, s68, 11")
    e(f"s_add_u32 s{sPR}, s{sPR}, s65")
    e(f"s_mul_i32 s65, s{sRG}, {FLAG_STRIDE}")
    e(f"s_add_u32 s65, s65, {WS_FLAG}")
    e(f"s_mul_i32 s{sFH}, s{sFS}, 640")
    e(f"s_add_u32 s{sFH}, s{sFH}, s65")
    e(f"s_xor_b32 s{sFHp}, s{sFS}, 1")
    e(f"s_mul_i32 s{sHXp}, s{sFHp}, 18432")
    e(f"s_mul_i32 s{sFHp}, s{sFHp}, 640")
    e(f"s_add_u32 s{sFHp}, s{sFHp}, s65")
    e(f"s_add_u32 s{sFR}, s65, s75")
    e(f"s_add_u32 s{sFR}, s{sFR}, {80*128}")
    e(f"s_lshl_b32 s{sFRo}, s68, 2")
    e(f"s_add_u32 s{sFRo}, s{sFRo}, s{sFR}")
    e(f"s_mul_i32 s65, s{sRG}, {16*18432}")
    e(f"s_add_u32 s65, s65, {WS_HX}")
    e(f"s_add_u32 s{sHXp}, s{sHXp}, s65")
    e(f"s_mul_i32 s{sHXo}, s{sFS}, 18432")
    e(f"s_add_u32 s{sHXo}, s{sHXo}, s65")
    e(f"s_lshl_b32 s{sHR}, s68, 8")
    e(f"s_add_u32 s{sHR}, s{sHR}, s{sHC}")
    e("s_and_b32 s65, s68, 1")
    e(f"s_mul_i32 s{sOut}, s65, {16*73728}")
    e(f"s_lshl_b32 s{sMn}, s65, 6")
    e("s_lshr_b32 s65, s68, 1")
    e("s_lshl_b32 s65, s65, 4")
    e(f"s_add_u32 s{sOut}, s{sOut}, s65")
    e(f"s_mul_i32 s65, s{sRG}, 1152")
    e(f"s_add_u32 s{sOut}, s{sOut}, s65")
    e(f"s_lshl_b32 s65, s{sRG}, 7")
    e(f"s_add_u32 s{sMn}, s{sMn}, s65")
    e(f"s_add_u32 s{sMn}, s{sMn}, {WS_MEAN}")
    e("v_lshrrev_b32 v32, 5, v0")
    e("v_bfe_u32 v33, v0, 2, 2")
    e("v_lshl_add_u32 v34, v32, 3, v33")
    e("v_bfe_u32 v35, v0, 4, 1")
    e("v_lshlrev_b32 v35, 5, v35")
    e("v_and_b32 v36, 1, v0")
    e("v_lshl_add_u32 v35, v36, 4, v35")
    e("v_bfe_u32 v36, v0, 1, 1")
    e("v_lshl_add_u32 v35, v36, 3, v35")
    e(f"v_lshl_add_u32 v{vAN}, v34, 6, v35")
    e(f"v_add_u32 v{vAN+1}, {SLOT}, v{vAN}")
    e(f"v_add_u32 v{vAN2}, {((18 + order.index('N')) % 4)*SLOT}, v{vAN}")
    e("v_lshrrev_b32 v36, 1, v33")
    e("v_lshl_add_u32 v35, v36, 6, v35")
    e(f"v_lshl_add_u32 v{vA}, v34, 7, v35")
    e(f"v_xor_b32 v{vA+1}, 64, v{vA}")
    for s in range(1, 4):
        e(f"v_add_u32 v{vA+2*s}, {s*SLOT}, v{vA}")
        e(f"v_add_u32 v{vA+2*s+1}, {s*SLOT}, v{vA+1}")
    e("v_and_b32 v32, 15, v0")
    e("v_lshrrev_b32 v33, 4, v0")
    e("v_and_b32 v34, 1, v33")
    e("v_lshrrev_b32 v35, 1, v33")
    e(f"v_lshlrev_b32 v{vSt}, 4, v32")
    e(f"v_lshl_add_u32 v{vHo}, v34, 3, v{vSt}")
    e(f"v_lshl_add_u32 v{vHo}, v35, 11, v{vHo}")
    e(f"v_lshl_add_u32 v{vSt}, v33, 11, v{vSt}")
    e(f"v_mul_u32_u24 v{vOo}, 73728, v32")
    e(f"v_lshl_add_u32 v{vOo}, v34, 3, v{vOo}")
    e(f"v_lshl_add_u32 v{vMo}, v35, 30, v{vOo}")
    e(f"v_lshl_add_u32 v{vOo}, v35, 6, v{vOo}")
    e("v_and_b32 v36, 7, v0")
    e(f"v_lshlrev_b32 v{vPo}, 2, v36")
    e("v_cmp_eq_u32 vcc, 0, v0")
    e("v_bfrev_b32 v36, 1")
    e(f"v_mov_b32 v{vFv}, 1")
    e(f"v_cndmask_b32 v{vFl}, v36, 0, vcc")
    vTch, vTcg, sTch, STG = (251 if not trace else 255), 254, 96, 8
    e(f"s_lshl_b32 s78, s{sMT}, 1")
    e("s_add_u32 s78, s78, s69")
    e("s_lshl_b32 s78, s78, 2")
    e(f"s_add_u32 s78, s78, s{sW}")
    e("s_bitcmp1_b32 s78, 0")
    e(f"s_cselect_b32 s{STG}, s{SU}, s{SGU}")
    e(f"s_cselect_b32 s{STG+1}, s{SU+1}, s{SGU+1}")
    e(f"s_mov_b32 s{STG+2}, {D*F*2}")
    e(f"s_mov_b32 s{STG+3}, 0x20000")
    e("s_mul_i32 s79, s68, 1152")
    for i, (u0, cnt_, col) in enumerate([(0, 36, 2), (36, 36, 3), (72, 18, 4)]):
        e(f"s_sub_u32 s65, s78, {u0}")
        e("s_lshr_b32 s77, s65, 1")
        e("s_cmp_ge_u32 s77, 9")
        e(f"s_cselect_b32 s{sTch+i}, {640 - 9*64*9216}, 0")
        e(f"s_mul_i32 s77, s77, {64*9216}")
        e(f"s_add_u32 s{sTch+i}, s{sTch+i}, s77")
        e(f"s_add_u32 s{sTch+i}, s{sTch+i}, s79")
        e(f"s_add_u32 s{sTch+i}, s{sTch+i}, {128*col}")
        e(f"s_cmp_lt_u32 s65, {cnt_}")
        e(f"s_cselect_b32 s{sTch+i}, s{sTch+i}, 0x40000000")
    e(f"s_mul_i32 s79, s68, {576*1152}")
    for i in range(3):
        e(f"s_sub_u32 s65, s78, {90 - 27*i if i == 0 else 27*(i-1)}")
        e(f"s_add_u32 s77, s65, {27*i}")
        e("s_lshl_b32 s77, s77, 13")
        e(f"s_add_u32 s{sTch+3+i}, s77, s79")
        e("s_cmp_lt_u32 s65, 27")
        e(f"s_cselect_b32 s{sTch+3+i}, s{sTch+3+i}, 0x40000000")
    e(f"v_lshlrev_b32 v{vTch}, 7, v0")
    e(f"v_mul_u32_u24 v{vTcg}, 9216, v0")
    e("v_lshlrev_b32 v39, 2, v0")
    e(f"s_mul_i32 s{sT1}, s{sRG}, 2304")
    e(f"s_add_u32 s{sT1}, s{sT1}, {WS_SS}")
    lead = hc_items(range(hc0, 18)) + dma_items(1) + dma_items(2) + hc_items(range(18, 36)) + dma_items(3)
    lead += [("m", f"buffer_load_dword v{vH+t}, v39, {SR}, s{sT1} offen offset:{256*t}", "ss") for t in range(9)]

    mf = []
    Q = [112, 144, 176, 208]
    def accP1(b, mat):
        if b == 4: return Q[0] + 16*mat
        return Q[3 - b % 2] if mat else Q[b % 2]
    acc2 = {0: Q[3], 1: Q[1], 2: Q[2], 3: Q[0], 4: Q[3]}
    last_m = {}
    for c in range(NCH):
        slot = c % 4
        if c < 16:
            b, mat, hf = P1[c]
            for j in range(18):
                for t in (0, 1):
                    off = j*2048
                    last_m[("gu"[mat], b, t)] = len(mf)
                    mf.append(dict(c=c, rd=[(vA+2*slot+t, off), (vA+2*slot+t, off+512)], B=("hc", 18*hf+j), D=accP1(b, mat) + 16*t, first=(hf == 0 and j == 0), own=("g", b)))
        elif c < 18:
            mat = P1[c][1]
            for j in range(36):
                off = j*1024
                last_m[("gu"[mat], 4, 0)] = len(mf)
                mf.append(dict(c=c, rd=[(vAN+slot, off), (vAN+slot, off+256)], B=("hc", j), D=accP1(4, mat), first=(j == 0), own=("g", 4)))
        else:
            nm = order[c-18]
            if nm == "N":
                for side in (0, 1):
                    for j in range(18):
                        off = side*18432 + j*1024
                        last_m[("o", 4, 0)] = len(mf)
                        mf.append(dict(c=c, rd=[(vAN2, off), (vAN2, off+256)], B=("hp" if side else "h", j), D=acc2[4], first=(side == 0 and j == 0), own=("o", 4)))
            else:
                db = int(nm[1]); isB = nm[0] == "B"
                seq = [(j, t) for j in range(18) for t in (0, 1)]
                if isB and nm != "B0": seq = [(j, t) for t in (0, 1) for j in range(18)]
                for (j, t) in seq:
                    off = j*2048
                    last_m[("o", db, t)] = len(mf)
                    mf.append(dict(c=c, rd=[(vA+2*slot+t, off), (vA+2*slot+t, off+512)], B=("hp" if isB else "h", j), D=acc2[db] + 16*t, first=(not isB and j == 0), own=("o", db)))
    NM = len(mf); assert NM == 972
    def breg(B):
        kind, j = B
        if kind == "hc": return f"a[{4*j}:{4*j+3}]"
        if kind == "hp": return f"a[{aHP+4*j}:{aHP+4*j+3}]"
        return R(vH + 4*j, 4)

    class Op:
        __slots__ = ("txt", "kind", "deps", "done", "prio", "min_gap", "tag", "cost", "soft")
        def __init__(s, txt, kind="v", deps=(), min_gap=0, prio=0, tag=None):
            s.txt, s.kind, s.deps, s.min_gap, s.prio, s.tag = txt, kind, list(deps), min_gap, prio, tag
            s.done = None; s.soft = 0
            s.cost = 8 if kind == "x" else (5 if kind == "m" or (kind == "v" and (txt.startswith("v_fma_") or txt.startswith("v_cvt_pk") or "0x" in txt)) else 4)
    ops = []
    c1 = -2.0 * math.log2(math.e) * math.sqrt(2.0 / math.pi); c2 = c1 * 0.044715
    chain = [("w", "ss")] + [f"v_add_f32 v{vH}, v{vH}, v{vH+t}" for t in range(1, 9)]
    chain += [f"v_mov_b32 v{vH+1}, v{vH}", None, f"v_permlane32_swap_b32 v{vH}, v{vH+1}", None,
              f"v_add_f32 v{vH}, v{vH}, v{vH+1}", f"v_mov_b32 v{vR}, {fhex(1e-5)}", f"v_fmac_f32 v{vR}, {fhex(1.0/576)}, v{vH}", None,
              ("x", f"v_rsq_f32 v{vH+3}, v{vR}"), None,
              f"v_mul_f32 v{vC1}, {fhex(c1)}, v{vH+3}", f"v_mul_f32 v{vH+4}, v{vH+3}, v{vH+3}",
              f"v_mul_f32 v{vH+4}, v{vH+4}, v{vH+3}", f"v_mul_f32 v{vC2}, {fhex(c2)}, v{vH+4}"]
    prev = None; skip = 0
    for it in chain:
        if it is None: skip = 1; continue
        if isinstance(it, tuple) and it[0] == "w": o = Op(None, "vmwait", tag=it[1], min_gap=92)
        elif isinstance(it, tuple): o = Op(it[1], "x")
        else: o = Op(it, "v")
        if prev is not None: o.deps = [(prev, skip)]
        o.prio = -1; ops.append(o); prev = o; skip = 0
    stats_last = prev
    tfree = {}; tc = [0]; hdone = {}; owner_ops = {}
    def gelu(b, t, pr0):
        AG, AU = accP1(b, 0) + 16*t, accP1(b, 1) + 16*t
        mg = last_m[("g", b, t)] + 4; mu = last_m[("u", b, t)] + 4
        Hb = vH + 16*b + 8*t
        lst = []; res = []
        for i in range(16):
            G, U = AG + i, AU + i
            T = vT + tc[0] % NT; tc[0] += 1
            pr = pr0 + i
            d0 = [(stats_last, 1)] + ([(tfree[T], 0)] if T in tfree else [])
            m1 = Op(f"v_mul_f32 v{T}, v{G}, v{G}", deps=d0, min_gap=mg, prio=pr)
            f1 = Op(f"v_fma_f32 v{T}, v{T}, v{vC2}, v{vC1}", deps=[(m1, 0)], prio=pr)
            m2 = Op(f"v_mul_f32 v{T}, v{T}, v{G}", deps=[(f1, 0)], prio=pr)
            ex = Op(f"v_exp_f32 v{T}, v{T}", "x", deps=[(m2, 0)], prio=pr)
            f2 = Op(f"v_fma_f32 v{T}, v{T}, v{vR}, v{vR}", deps=[(ex, 1)], prio=pr)
            rc = Op(f"v_rcp_f32 v{T}, v{T}", "x", deps=[(f2, 0)], prio=pr)
            m3 = Op(f"v_mul_f32 v{G}, v{G}, v{T}", deps=[(rc, 1)], prio=pr)
            m4 = Op(f"v_mul_f32 v{U}, v{U}, v{G}", deps=[(m3, 0)], min_gap=mu, prio=pr)
            tfree[T] = m3; lst += [m1, f1, m2, ex, f2, rc, m3, m4]; res.append(m4)
            if i & 1:
                cv = Op(f"v_cvt_pk_bf16_f32 v{Hb + i//2}, v{U-1}, v{U}", deps=[(res[i-1], 0), (res[i], 0), (stats_last, 1)], prio=pr + 0.7)
                lst.append(cv); hdone[Hb + i//2] = cv
        return lst
    spins = []
    def flag_ops(last_st, sttag, pub_txt, poll_fn, reg, ident, loads, d, prio, after=None, poll_at=0):
        w = Op(None, "vmwait", deps=[(last_st, d[0])], tag=sttag, prio=prio)
        pb = Op(pub_txt, "m", deps=[(w, 0)], prio=prio, tag=("pub", ident))
        pl = Op(poll_fn(reg), "m", deps=[(pb, d[1])] + ([(regfree[reg], 0)] if reg in regfree else []), prio=prio, tag=("poll", ident))
        pl.soft = poll_at
        w2 = Op(None, "vmwait", deps=[(pl, d[2])] + ([(after, 0)] if after else []), tag=("poll", ident), prio=prio)
        cm = Op(f"v_cmp_eq_u32 vcc, 0, v{reg}", deps=[(w2, 0)], prio=prio)
        regfree[reg] = cm
        br = Op((ident, poll_fn(vSpin)), "chk", deps=[(cm, 1)], prio=prio)
        lst = [w, pb, pl, w2, cm, br]; pv = br
        for kind, txt, tag in loads:
            o = Op(txt, kind, deps=[(pv, 1)], prio=prio, tag=tag); lst.append(o); pv = o
        return lst
    regfree = {}
    vSpin = 253
    PREG = [vPoll, 254, 255]
    lastchk = None
    prev_hst = None
    for b in range(5):
        lst = []
        for t in ((0, 1) if b < 4 else (0,)): lst += gelu(b, t, b*40 + t*16)
        owner_ops[("g", b)] = lst; ops += lst
        nfr = 4 if b < 4 else 2
        so = Op(f"s_add_u32 s{sT0}, s{sHXo}, {4096*b}", "s", deps=[(prev_hst, 0)] if prev_hst else [], prio=b*40, min_gap=144)
        ops.append(so)
        for j in range(nfr):
            fr = 4*b + j
            st = Op(f"buffer_store_dwordx4 {R(vH+4*fr,4)}, v{vL16}, {SR}, s{sT0} offen offset:{1024*j} sc1", "m",
                    deps=[(hdone[vH+4*fr+r], 1) for r in range(4)] + [(so, 0)] + ([(prev_hst, 1)] if prev_hst else []), prio=b*40 + 8*j + 8, tag=("hst", b))
            ops.append(st); prev_hst = st
        loads = [("s", f"s_add_u32 s{sSp}, s{sHXp}, {4096*b}", None)]
        loads += [("m", f"buffer_load_dwordx4 a[{aHP+16*b+4*j}:{aHP+16*b+4*j+3}], v{vL16}, {SR}, s{sSp} offen offset:{1024*j} sc1", ("hp", 4*b+j)) for j in range(nfr)]
        dd = (hpub_d, hpoll_d if b >= 3 else 2*hpoll_d, hchk_d)
        fl = flag_ops(prev_hst, ("hst", b), f"buffer_store_dword v{vFv}, v{vFl}, {SR}, s{sFH} offen offset:{128*b} sc1",
                      (lambda r, b=b: f"buffer_load_dword v{r}, off, {SR}, s{sFHp} offset:{128*b} sc1"), PREG[b % 2], f"h{b}", loads, dd, b*40 + 39, after=lastchk)
        ops += fl; lastchk = fl[-1]
    comp = sorted(range(5), key=lambda db: last_m[("o", db, 0 if db == 4 else 1)])
    prev_st = prev_hst
    tail_blocks = []
    stlast = {}
    def red_pub(db): return f"buffer_store_dword v{vFv}, v{vFl}, {SR}, s{sFRo} offen offset:{128*db} sc1"
    def red_poll(db, reg=vPoll): return f"buffer_load_dword v{reg}, v{vPo}, {SR}, s{sFR} offen offset:{128*db} sc1"
    def red_loads(db):
        l = []
        for t in ((0, 1) if db < 4 else (0,)):
            T = 2*db + t
            l.append(("s", f"s_add_u32 s{sSp}, s{sPR}, {T*16384}", None))
            l += [("m", f"buffer_load_dwordx4 a[{8*T+4*j}:{8*T+4*j+3}], v{vL16}, {SR}, s{sSp} offen offset:{1024*j} sc1", ("rl", db)) for j in range(2)]
        return l
    state = {}; pollreg = {}
    for ci, db in enumerate(comp):
        lst = []
        for t in ((0, 1) if db < 4 else (0,)):
            a = acc2[db] + 16*t; mg = last_m[("o", db, t)] + 4
            pr = 1000 + ci*100 + t*40
            pv = None
            for ee in (0, 1):
                cvs = []
                for j in range(4*ee, 4*ee+4):
                    o = Op(f"v_cvt_pk_bf16_f32 v{a+j}, v{a+2*j}, v{a+2*j+1}", min_gap=mg, prio=pr + j, deps=[(pv, 0)] if pv else [])
                    lst.append(o); pv = o
                so = Op(f"s_add_u32 s{sT0}, s{sP}, {(2*db+t)*16384 + ee*8192}", "s", deps=[(prev_st, 0)], min_gap=mg, prio=pr + 4*ee)
                st = Op(f"buffer_store_dwordx4 {R(a+4*ee,4)}, v{vSt}, {SR}, s{sT0} offen sc1", "m", deps=[(pv, 1), (so, 0), (prev_st, st_sp)], prio=pr + 4*ee + 4, tag=("st", db))
                lst += [so, st]; prev_st = st
        owner_ops[("o", db)] = lst; ops += lst
        est = last_m[("o", db, 0 if db == 4 else 1)] + 8 + st_sp
        pat = rpoll[ci] if ci < len(rpoll) else 5000
        fl = flag_ops(prev_st, ("st", db), red_pub(db), (lambda r, db=db: red_poll(db, r)), PREG[ci % 3], f"r{db}", red_loads(db), (pub_d, poll_d, chk_d), 900 + ci, after=lastchk, poll_at=pat)
        tp = max(est + pub_d + poll_d, pat)
        if tp + chk_d < NM - 12: ops += fl; lastchk = fl[-1]; state[db] = "done"
        elif tp < NM - 3: ops += fl[:3]; state[db] = "polled"; pollreg[db] = PREG[ci % 3]
        elif est + pub_d < NM - 3: ops += fl[:2]; state[db] = "pub"
        else: state[db] = "none"
    glast = [(o, 1) for o in owner_ops[("g", 4)]]
    pv = None
    for j in range(5):
        if j < 4:
            s1 = Op(f"s_lshl_b32 s{sHo}, s75, 5", "s", deps=glast + ([(pv, 0)] if pv else []), prio=890)
        else:
            s1 = Op(f"s_lshl_b32 s{sHo}, s76, 5", "s", deps=[(pv, 0)], prio=890)
        s2_ = Op(f"s_add_u32 s{sHo}, s{sHo}, s{sHR}", "s", deps=[(s1, 0)], prio=890)
        lst = [s1, s2_]; pv = s2_
        if 0 < j < 4:
            s3 = Op(f"s_add_u32 s{sHo}, s{sHo}, {4096*j}", "s", deps=[(s2_, 0)], prio=890); lst.append(s3); pv = s3
        ld = Op(f"buffer_load_dwordx2 v[{vT+2*j}:{vT+2*j+1}], v{vHo}, {SR}, s{sHo} offen", "m", deps=[(pv, 0)], prio=890, tag="res")
        ops += lst + [ld]; pv = ld
    mo = Op(f"v_and_b32 v{vT+11}, 60, v39", deps=glast, prio=890) if False else None
    m1_ = Op(f"v_lshrrev_b32 v{vT+11}, 2, v{vL16}", deps=glast, prio=889)
    m2_ = Op(f"v_and_b32 v{vT+11}, 60, v{vT+11}", deps=[(m1_, 0)], prio=889)
    ops += [m1_, m2_, Op(f"buffer_load_dword v{vT+10}, v{vT+11}, {SR}, s{sMn} offen", "m", deps=[(pv, 1), (m2_, 1)], prio=890, tag="res")]
    for i, gp in enumerate(tch):
        if gp is None: continue
        srd, va = (STG, vTcg) if i < 3 else (SD, vTch)
        ops.append(Op(f"buffer_load_dword v{vSpin}, v{va}, s[{srd}:{srd+3}], s{sTch+i} offen", "m", min_gap=gp, prio=-2, tag="touch"))
    pending = sorted(ops, key=lambda o: o.prio)

    def ready(o, g):
        if g < o.min_gap or g < o.soft: return False
        for d, lat in o.deps:
            if d.done is None or g < d.done + lat: return False
        return True
    def take(kinds, g, maxcost=99):
        for idx, o in enumerate(pending[:260]):
            if o.kind in kinds and o.cost <= maxcost and ready(o, g):
                pending.pop(idx); o.done = g
                return o
        return None
    nforced = [0]
    def force(o, g):
        if o.done is not None: return
        for d, lat in o.deps: force(d, g)
        assert g >= o.min_gap, (o.txt, g, o.min_gap)
        pending.remove(o); o.done = g - 1
        e("s_nop 1"); emit_op(o); nforced[0] += 1
    def emit_check(ident, poll_txt):
        e(f"s_cbranch_vccnz L_{name}_spin{ident}")
        k.label(f"L_{name}_ret{ident}")
        spins.append((ident, poll_txt))
    def emit_op(o):
        if o.kind == "vmwait":
            if o.tag != "ss": tr(f"pre-wait{o.tag}")
            k.wait(vm=o.tag)
            if o.tag != "ss": tr(f"post-wait{o.tag}")
        elif o.kind == "chk":
            emit_check(*o.txt); tr(f"post-chk{o.txt[0]}")
        elif o.kind == "m":
            if xhx and "sc1" in o.txt and "store_dwordx4" in o.txt and o.tag[0] == "hst": k.vmem("buffer_load_dword v253, off, s[20:23], s46", o.tag)
            else: k.vmem(o.txt, o.tag)
        else: e(o.txt)
    def emit_reads(n):
        fr = aF + 4*(n % NF)
        for ei, (ar, off) in enumerate(mf[n]["rd"]):
            k.lds(f"ds_read_b64_tr_b16 a[{fr+2*ei}:{fr+2*ei+1}], v{ar} offset:{off}", ("f", n))
    def barrier(c):
        assert k.vm.count(("dma", c)) == 9, c
        if c > 17: tr(f"pre-bar{c}")
        if c < 9: tr(f"L-pre-bar{c}")
        k.wait(vm=[("dma", c)], lg0=(c > 0))
        if c < 9: tr(f"L-waited{c}")
        e("s_barrier")
        if c < 9: tr(f"L-post-bar{c}")
    stamp_mid(k, stamps, 0)
    barrier(0)
    next_read = 0; bar_done = 0
    for n in range(P): emit_reads(n); next_read += 1
    vq = list(lead)
    forced = 0
    k.wait(lg=("f", 0), vm=("hc", 0))
    firstseen = {}
    for g in range(NM):
        m = mf[g]; c = m["c"]
        assert k._need(k.lg, k.lg_done, ("f", g)) is None
        B = m["B"]
        if B[0] in ("hc", "hp"): assert B in k.vm and k._need(k.vm, k.vm_done, B) is None, (g, B)
        if B[0] == "h":
            regs = range(vH + 4*B[1], vH + 4*B[1] + 4)
            for r in regs: force(hdone[r], g - 1)
            if any(hdone[r].done >= g - 2 for r in regs): e("s_nop 1")
        if m["first"]:
            for own, lst in owner_ops.items():
                if own == m["own"] or own not in firstseen: continue
                if any(abs(x - m["D"]) < 16 for x in firstseen[own]):
                    for o in lst: force(o, g - 1)
                    if any(o.done >= g - 2 for o in lst): e("s_nop 1")
            firstseen.setdefault(m["own"], []).append(m["D"])
        fr = aF + 4*(g % NF); Dr = R(m["D"], 16)
        e(f"{MF32} {Dr}, a[{fr}:{fr+3}], {breg(B)}, {'0' if m['first'] else Dr}")
        if g < 144 and g % 6 == 0: tr(f"L-g{g}")
        if g == 143: stamp_mid(k, stamps, 1)
        if g == 647: stamp_mid(k, stamps, 2)
        bud = budget; cnt = 5; free_first = True
        hot = hot_lo <= g < hot_hi
        if hot: bud = hot_bud; cnt = 8
        E = 36*(c+1) - 1
        if c + 1 < NCH and g == E - P + X:
            while k.vm.count(("dma", c+1)) < 9: emit_item(vq.pop(0)); forced += 1
            barrier(c + 1); bar_done = c + 1; free_first = False; bud -= 4; cnt -= 1
            if c + 1 + dist < NCH: vq += dma_items(c + 1 + dist)
        if g + 1 < NM:
            nb = mf[g+1]["B"]
            vmt = nb if nb[0] in ("hc", "hp") else None
            if vmt is not None and vmt not in k.vm:
                if vmt[0] == "hc":
                    while vmt not in k.vm: emit_item(vq.pop(0)); forced += 1
                else:
                    force([o for o in ops if o.tag == vmt and o.kind == "m"][0], g)
            need_lg = k._need(k.lg, k.lg_done, ("f", g+1)) is not None
            tgt = ("f", min(g + wev, next_read - 1)) if need_lg else None
            if k.wait(lg=tgt, vm=vmt):
                if not free_first: bud -= 4; cnt -= 1
                free_first = False
        if free_first:
            if vq and vq[0][0] == "s": emit_item(vq.pop(0))
            else:
                o = take(("s", "vmwait", "chk"), g)
                if o: emit_op(o)
        nrd = 0
        while next_read < NM and next_read <= g + P and mf[next_read]["c"] <= bar_done and nrd < 2:
            emit_reads(next_read); next_read += 1; nrd += 1; bud -= 8; cnt -= 2
        if cnt > 0 and bud >= 5:
            inlead = c < 4
            if inlead and vq and vq[0][0] == "s":
                emit_item(vq.pop(0)); bud -= 4; cnt -= 1
            if vq and vq[0][0] == "m" and ((g % leadrate == 0) if inlead else (g % dmar == 1 or len(vq) > 16)):
                emit_item(vq.pop(0)); bud -= 5; cnt -= 1
            else:
                o = take(("m",), g)
                if o: emit_op(o); bud -= 5; cnt -= 1
        if hot and bud >= 20:
            o = take(("x",), g)
            if o: emit_op(o); bud -= 8; cnt -= 1
        xo = take(("x",), g) if (bud >= 8 and cnt > 0) else None
        if xo: bud -= 8; cnt -= 1; xo.done = None
        while cnt > 0:
            o = take(("v",), g, bud)
            if not o: break
            emit_op(o); bud -= o.cost; cnt -= 1
        if xo: xo.done = g; emit_op(xo)
        elif cnt > 0 and bud >= 8:
            xo = take(("x",), g)
            if xo: emit_op(xo)
    assert not vq
    e("s_nop 11")
    g = NM + 10
    while pending:
        o = take(("v", "x", "s", "m", "vmwait", "chk"), g); g += 1
        if o: emit_op(o)
    stamp_mid(k, stamps, 3)
    vDo = vH; vTp = vH + 24; vA0 = vH + 32
    def publish(db):
        k.wait(vm=("st", db)); k.vmem(red_pub(db), ("pub", db))
    def consume(db, reg):
        e(f"v_cmp_eq_u32 vcc, 0, v{reg}")
        ld = red_loads(db)
        e(ld[0][1])
        emit_check(f"r{db}", red_poll(db, vSpin))
        tr(f"tail-chk{db}")
        for kind, txt, tag in ld[1:]:
            if kind == "s": e(txt)
            else: k.vmem(txt, tag)
    def reduce_blk(db):
        Dr = R(vDo + 4*db, 4)
        k.wait(vm=("rl", db))
        for t in ((0, 1) if db < 4 else (0,)):
            for j in range(2):
                a = 8*(2*db+t) + 4*j
                e(f"{MF16} {Dr}, {R(vA0 + 4*t, 4)}, a[{a}:{a+3}], {Dr}")
    lastb = comp[-1]
    for db in comp[:-1]:
        if state[db] == "none": publish(db); state[db] = "pub"
    for db in comp:
        if state[db] == "polled":
            k.wait(vm=("poll", f"r{db}")); consume(db, pollreg[db]); state[db] = "late"
    e(f"v_and_b32 v{vTp+6}, 1, v0")
    e(f"v_lshlrev_b32 v{vTp+6}, 4, v{vTp+6}")
    e(f"v_mov_b32 v{vTp+7}, 0x3f80")
    e(f"v_lshlrev_b32 v{vTp+7}, v{vTp+6}, v{vTp+7}")
    e(f"v_bfe_u32 v{vTp+6}, v0, 1, 3")
    for r in range(8):
        e(f"v_cmp_eq_u32 vcc, {r}, v{vTp+6}")
        e("s_nop 1")
        e(f"v_cndmask_b32 v{vA0+r}, 0, v{vTp+7}, vcc")
    k.wait(vm="res")
    for j in range(5):
        for u in range(2):
            e(f"v_lshlrev_b32 v{vDo+4*j+2*u}, 16, v{vT+2*j+u}")
            e(f"v_and_b32 v{vDo+4*j+2*u+1}, 0xffff0000, v{vT+2*j+u}")
        for u in range(4): e(f"v_add_f32 v{vDo+4*j+u}, v{vDo+4*j+u}, v{vT+10}")
    e("s_nop 1")
    for db in comp:
        if state[db] == "done": reduce_blk(db)
    tr("tail-prepub")
    publish(lastb)
    tr("tail-pub")
    rest = [db for db in comp[:-1] if state[db] == "pub"]
    for db in rest: k.vmem(red_poll(db, vTp + db), ("tp", db))
    for db in rest:
        k.wait(vm=("tp", db)); consume(db, vTp + db)
    k.vmem(red_poll(lastb, vTp + lastb), ("tp", lastb))
    for db in comp:
        if state[db] == "late": reduce_blk(db)
    k.wait(vm=("tp", lastb)); consume(lastb, vTp + lastb)
    for db in rest + [lastb]: reduce_blk(db)
    e(f"s_add_u32 s{sT0}, s{sOut}, s75")
    e(f"s_add_u32 s{sT1}, s{sOut}, s76")
    e("s_nop 5")
    for j in range(5):
        a = vDo + 4*j
        e(f"v_cvt_pk_bf16_f32 v{a}, v{a}, v{a+1}")
        e(f"v_cvt_pk_bf16_f32 v{a+1}, v{a+2}, v{a+3}")
        if j < 4: k.vmem(f"buffer_store_dwordx2 v[{a}:{a+1}], v{vOo}, s[{SO}:{SO+3}], s{sT0} offen offset:{128*j}", "out")
        else: k.vmem(f"buffer_store_dwordx2 v[{a}:{a+1}], v{vMo}, s[{SO}:{SO+3}], s{sT1} offen", "out")
    if trace:
        tr("end")
        e("s_lshl_b32 s58, s2, 2")
        e(f"s_add_u32 s58, s58, s{sW}")
        e("s_lshl_b32 s58, s58, 8")
        e(f"s_add_u32 s58, s58, {WS_END + 8*131072}")
        e(f"s_mov_b32 s{SW+2}, {WS_END + 12*131072}")
        e("v_lshlrev_b32 v252, 2, v0")
        e(f"buffer_store_dword v251, v252, {SR}, s58 offen")
        open("trace_labels.txt", "w").write("\n".join(k.tr))
    stamp_end(k, stamps, 66, kidx, sW, 4)
    k.label(f"L_{name}_end")
    e("s_endpgm")
    for ident, ptxt in spins:
        k.label(f"L_{name}_spin{ident}")
        e(f"s_mov_b32 s{sSpin}, {spin_max}")
        k.label(f"L_{name}_spinl{ident}")
        e(ptxt)
        e(f"s_sub_u32 s{sSpin}, s{sSpin}, 1")
        e("s_waitcnt vmcnt(0)")
        e(f"v_cmp_eq_u32 vcc, 0, v{vSpin}")
        e(f"s_cmp_eq_u32 s{sSpin}, 0")
        e(f"s_cbranch_scc1 L_{name}_ret{ident}")
        e(f"s_cbranch_vccnz L_{name}_spinl{ident}")
        e(f"s_branch L_{name}_ret{ident}")
    k.label(f"L_{name}_fin")
    k.info = (forced, nforced[0], dict(state))
    return k, (512, 102, 256), (256, 256, 4*SLOT)
```

```python
S, D, F = 2048, 576, 4608
SZ = S * D * 2
WS_Y    = 0
WS_V    = WS_Y + SZ
WS_HC   = WS_V + SZ
WS_WT   = WS_HC + SZ
WS_G    = WS_WT + SZ
WS_MEAN = WS_G + 9 * 36 * 1024
WS_SS   = WS_MEAN + 8192
WS_P    = (WS_SS + 64 * 9 * 256 + 4095) // 4096 * 4096
P_BYTES = 16 * 64 * 36 * 1024
WS_WP   = WS_P + P_BYTES
SLICE_B = 27 * 36864
WS_HX   = WS_WP + 16 * SLICE_B
WS_FLAG = WS_HX + 64 * 16 * 18 * 1024
import os
FLAG_STRIDE = int(os.environ.get('FLAG_STRIDE', 12288))
WS_END  = WS_FLAG + 64 * 12288
KA_X, KA_WR, KA_WI, KA_BX, KA_WG, KA_WU, KA_WD, KA_OUT, KA_DBG, KA_WS = [8 * i for i in range(10)]
```

```python
import sys, json
from dsl import *
from k123 import *
from k4e import *
HDR = open("sequential_preLN__spectral_gfnet__geglu_ffn__prompt.s.ref").read().split("; Override launch geometry")[0]
def build(path, stamps=False, k4=None, k1=None, k2=None, k3=None):
    ks = [gen_k1(stamps=stamps, **(k1 or {})), gen_k2(stamps=stamps, **(k2 or {})), gen_k3(stamps=stamps, hc16=False, **(k3 or {})), gen_k4e(stamps=stamps, kidx=3, **(k4 or {}))]
    print(path, ks[-1][0].info)
    txt = assemble_file(HDR, [(k, *l) for k, r, l in ks], [(k, *r) for k, r, l in ks])
    open(path, "w").write(txt)
if __name__ == "__main__":
    opts = json.loads(sys.argv[2]) if len(sys.argv) > 2 else {}
    build(sys.argv[1], **opts)
```

```python
import sys, json
from build6 import *
def probe(a, b, G, fa=0, fb=0):
    k = Kern("probe_kernel"); e = k.e
    e("s_memrealtime s[10:11]")
    e("s_cmp_ge_u32 s2, 1")
    e("s_cbranch_scc1 L_probe_end")
    e(f"s_load_dwordx2 s[6:7], s[0:1], {KA_WS}")
    e("s_waitcnt lgkmcnt(0)")
    k.srd(12, 6, WS_END + 8*131072)
    e(f"s_mov_b32 s20, {WS_END + a*131072 + 4*fa}")
    e(f"s_mov_b32 s21, {WS_END + min(b,3)*131072 + 4*fb}")
    e("buffer_load_dword v1, off, s[12:15], s20")
    e("buffer_load_dword v2, off, s[12:15], s21")
    e("s_waitcnt vmcnt(0)")
    e("v_readfirstlane_b32 s22, v1")
    e("v_readfirstlane_b32 s23, v2")
    if b == 4: e("s_mov_b32 s23, s10")
    e("s_sub_u32 s24, s23, s22")
    e("s_min_u32 s24, s24, 10000")
    e(f"s_mul_i32 s24, s24, {G}")
    k.label("L_probe_l")
    e("s_memrealtime s[26:27]")
    e("s_waitcnt lgkmcnt(0)")
    e("s_sub_u32 s26, s26, s10")
    e("s_cmp_lt_u32 s26, s24")
    e("s_cbranch_scc1 L_probe_l")
    k.label("L_probe_end")
    e("s_endpgm")
    return k, (8, 40, 8), (1, 64, 0)
def buildp(path, pr, k4=None, k1=None, k2=None, k3=None):
    ks = [gen_k1(stamps=True, **(k1 or {})), gen_k2(stamps=True, **(k2 or {})), gen_k3(stamps=True, hc16=False, **(k3 or {})), gen_k4e(stamps=True, kidx=3, **(k4 or {})), probe(*pr)]
    open(path, "w").write(assemble_file(HDR, [(k, *l) for k, r, l in ks], [(k, *r) for k, r, l in ks]))
opts = json.loads(sys.argv[1])
for nm, pr in [("p0", (0, 1, 0)), ("p01", (0, 1, 4)), ("p12", (1, 2, 4)), ("p23", (2, 3, 4)), ("p34", (3, 4, 4)), ("p33", (3, 3, 4, 0, 1))]:
    buildp(f"../dev/{nm}.s", pr, **opts)
```

```python
from dsl import *
from layout import *
from k123 import stamp_begin, stamp_mid, stamp_end, R
from k4b import wg_map
import math

SLOT = 36864
MF32 = "v_mfma_f32_32x32x16_bf16"
MF16 = "v_mfma_f32_16x16x32_bf16"
P2ORDER = ["A0", "A1", "A2", "B0", "B1", "B2", "A3", "B3", "N"]

def gen_k4f(name="ffn_kernel", P=5, X=2, NF=9, stamps=False, dist=3, mapping=2, kidx=3, budget=22, pf=True,
            pub_d=40, poll_d=30, chk_d=24, hpub_d=40, hpoll_d=24, hchk_d=24, st_sp=5, spin_max=200000, trace=False, leadrate=1, order=None, dmar=3, hot_lo=0, hot_hi=0, hot_bud=32, xdma=False, xhx=False, lin=False, wev=2, hc0=18, rpoll=(905, 915, 950), tch=(100, 170, 240, 300, 360, 420), trlead=False, fast=0, ssg=100, outf=''):
    order = order or P2ORDER
    k = Kern(name); e = k.e
    SGU, SD, SW, SO, SU = 12, 16, 20, 24, 4
    P1 = [(0, 0, 0), (0, 1, 0), (0, 0, 1), (0, 1, 1)] + [(b, m_, hf) for b in (1, 2, 3) for m_ in (0, 1) for hf in (0, 1)] + [(4, 0, 0), (4, 1, 0)]
    sW, sMT, sFS, sRG = 28, 29, 30, 31
    sOff, sLB1, sLB2, sLB3, sLBN, sLBN3 = 32, 33, 34, 35, 36, 37
    sColW, sColN = 38, 39
    sRow = 40
    sRowN = 44
    sHC, sP, sPR, sT0, sT1, sHo, sSp = 46, 47, 48, 49, 50, 51, 52
    sFH, sFHp, sFR, sFRo, sHXo, sHXp, sHR, sOut, sMn, sSpin = 53, 54, 55, 56, 57, 60, 61, 62, 63, 64
    vW, vN, vD, vDN = 1, 5, 9, 240
    vA = 13
    vAN = 21
    vL16, vC1, vC2, vR = 23, 24, 25, 26
    vAN2 = 27
    vT = 28
    NT = 12
    vH = 40
    ACC = [112, 176]
    vSt, vFl, vPo, vPoll, vFv, vHo, vOo, vMo = 244, 245, 246, 247, 248, 249, 250, 252
    aHP = 144
    aF = 216
    assert aF + 4*NF <= 256
    e("s_cmp_ge_u32 s2, 256")
    e(f"s_cbranch_scc1 L_{name}_end")
    stamp_begin(k, stamps)
    e(f"s_load_dwordx4 s[4:7], s[0:1], {KA_WG}")
    e(f"s_load_dwordx4 s[8:11], s[0:1], {KA_WD}")
    e(f"s_load_dwordx2 s[66:67], s[0:1], {KA_WS}")
    e("v_lshrrev_b32 v28, 6, v0")
    e("v_and_b32 v0, 63, v0")
    e(f"v_readfirstlane_b32 s{sW}, v28")
    wg_map(e, mapping, sFS, sMT, sT0, sT1)
    e(f"s_lshl_b32 s{sRG}, s{sMT}, 2")
    e(f"s_add_u32 s{sRG}, s{sRG}, s{sW}")
    e("v_lshrrev_b32 v28, 3, v0")
    e("v_and_b32 v29, 7, v0")
    e("v_lshrrev_b32 v30, 2, v0")
    e("v_and_b32 v31, 4, v30")
    e("v_xor_b32 v29, v29, v31")
    e("v_lshlrev_b32 v29, 4, v29")
    e(f"v_mul_u32_u24 v{vW}, 9216, v28")
    e(f"v_add_u32 v{vW}, v{vW}, v29")
    if lin: e(f"v_lshlrev_b32 v{vW}, 4, v0")
    for i in range(1, 4): e(f"v_add_u32 v{vW+i}, {i*(8*9216-1024)}, v{vW}")
    e(f"v_lshlrev_b32 v{vL16}, 4, v0")
    e(f"s_lshr_b32 s68, s{sFS}, 1")
    e(f"s_and_b32 s69, s{sFS}, 1")
    e("s_mul_i32 s70, s68, 576")
    e("s_mul_i32 s71, s69, 320")
    e("s_add_u32 s71, s71, s70")
    e(f"s_and_b32 s{sT0}, s{sW}, 1")
    e(f"s_mul_i32 s{sT1}, s{sW}, {72*9216}")
    e(f"s_lshl_b32 s{sColW}, s71, 1")
    e(f"s_add_u32 s{sColW}, s{sColW}, s{sT1}")
    e(f"s_mul_i32 s{sLB1}, s{sW}, 9216")
    e(f"s_mul_i32 s{sHC}, s{sRG}, 36864")
    e(f"s_add_u32 s{sHC}, s{sHC}, {WS_HC}")
    e("v_lshrrev_b32 v32, 5, v0")
    e("v_bfe_u32 v33, v0, 2, 2")
    e("v_lshl_add_u32 v34, v32, 3, v33")
    e("v_bfe_u32 v35, v0, 4, 1")
    e("v_lshlrev_b32 v35, 5, v35")
    e("v_and_b32 v36, 1, v0")
    e("v_lshl_add_u32 v35, v36, 4, v35")
    e("v_bfe_u32 v36, v0, 1, 1")
    e("v_lshl_add_u32 v35, v36, 3, v35")
    e(f"v_lshl_add_u32 v{vAN}, v34, 6, v35")
    e(f"v_add_u32 v{vAN+1}, {SLOT}, v{vAN}")
    e(f"v_add_u32 v{vAN2}, {((18 + order.index('N')) % 4)*SLOT}, v{vAN}")
    e("v_lshrrev_b32 v36, 1, v33")
    e("v_lshl_add_u32 v35, v36, 6, v35")
    e(f"v_lshl_add_u32 v{vA}, v34, 7, v35")
    e(f"v_xor_b32 v{vA+1}, 64, v{vA}")
    for s in range(1, 4):
        e(f"v_add_u32 v{vA+2*s}, {s*SLOT}, v{vA}")
        e(f"v_add_u32 v{vA+2*s+1}, {s*SLOT}, v{vA+1}")
    e("s_waitcnt lgkmcnt(0)")
    k.srd(SGU, 4, D*F*2)
    k.srd(SW, 66, WS_END)
    SR = f"s[{SW}:{SW+3}]"
    NCH = 27
    k.tr = []
    def tr(label):
        if not trace or len(k.tr) >= 64: return
        if trlead and not (label.startswith("L") or label == "end"): return
        if not trlead and label.startswith("L"): return
        e("s_memtime s[58:59]")
        e("s_waitcnt lgkmcnt(0)")
        e("s_sub_u32 s58, s58, s92")
        e(f"v_writelane_b32 v251, s58, {len(k.tr)}")
        k.tr.append(label)

    def dma_items(c):
        slot = c % 4
        it = []
        for i in range(9):
            grp, r = divmod(i, 4)
            if c < 16:
                b, mat, hf = P1[c]
                m0, so = (sLB1, slot*SLOT + 4096*grp), (sColW, 128*b + (288*hf + 32*grp)*9216)
                v, srd = vW, (SU if mat else SGU)
            elif c < 18:
                m0, so = (sLB1, slot*SLOT + 4096*grp), (sColN, 64*grp*9216)
                v, srd = vN, (SU if P1[c][1] else SGU)
            else:
                nm = order[c-18]
                srd = SD
                if nm == "N":
                    v = vDN
                    if grp < 2: m0, so = (sLBN, slot*SLOT + 4096*grp), (sRowN, 64*grp*1152)
                    else: m0, so = (sLBN3, slot*SLOT), (sRowN+1, 0)
                else:
                    v = vD; side = 2*(nm[0] == "B"); db = int(nm[1])
                    if grp < 2: m0, so = (sLB2, slot*SLOT + 4096*grp), (sRow+side, 128*db + 32*grp*1152)
                    else: m0, so = (sLB3, slot*SLOT + 32768), (sRow+side+1, 128*db)
            if r == 0:
                it.append(("s", f"s_add_u32 m0, s{m0[0]}, {m0[1]}"))
                it.append(("s", f"s_add_u32 s{sOff}, s{so[0]}, {so[1]}"))
            it.append(("m", f"buffer_load_dwordx4 v{v+r}, s[{srd}:{srd+3}], s{sOff} offen offset:{1024*r} lds", ("dma", c)))
        return it
    def hc_items(kks):
        it = []
        for n_, kk in enumerate(kks):
            if n_ == 0 or kk % 4 == 0: it.append(("s", f"s_add_u32 s{sHo}, s{sHC}, {4096*(kk//4)}"))
            it.append(("m", f"buffer_load_dwordx4 a[{4*kk}:{4*kk+3}], v{vL16}, {SR}, s{sHo} offen offset:{1024*(kk%4)}", ("hc", kk)))
        return it
    def emit_item(it):
        if it[0] == "s": e(it[1])
        elif xdma and " lds" in it[1] and it[2][1] > 3: k.vm.append(it[2]); k.vm_done = len(k.vm)
        else: k.vmem(it[1], it[2])
    tr("L-karg")
    for it in dma_items(0): emit_item(it)
    tr("L-dma0")
    for it in hc_items(range(0, hc0)): emit_item(it)
    tr("L-hc0")
    if pf:
        e("s_bfe_u32 s77, s2, 0x10003")
        e("s_lshl_b32 s77, s77, 2")
        e(f"s_add_u32 s77, s77, s{sW}")
        k.prefetch_code(name, f"L_{name}_fin", 72, 39, 253, 1, part=(77, 8192))
    k.srd(SU, 6, D*F*2)
    e("v_lshlrev_b32 v39, 2, v0")
    e(f"s_mul_i32 s{sSpin}, s{sRG}, 2304")
    e(f"s_add_u32 s{sSpin}, s{sSpin}, {WS_SS}")
    real_lines = k.lines; k.lines = []
    k.srd(SD, 8, D*F*2)
    k.srd(SO, 10, S*D*2)
    e(f"v_mul_u32_u24 v{vD}, 1152, v28")
    e(f"v_add_u32 v{vD}, v{vD}, v29")
    e("v_and_b32 v31, 3, v0")
    e("v_lshlrev_b32 v31, 4, v31")
    e(f"v_mul_u32_u24 v{vN}, 9216, v30")
    e(f"v_add_u32 v{vN}, v{vN}, v31")
    e(f"v_mul_u32_u24 v{vDN}, 1152, v30")
    e(f"v_add_u32 v{vDN}, v{vDN}, v31")
    for i in range(1, 4):
        e(f"v_add_u32 v{vN+i}, {i*(16*9216-1024)}, v{vN}")
        e(f"v_add_u32 v{vD+i}, {i*(8*1152-1024)}, v{vD}")
        e(f"v_add_u32 v{vDN+i}, {i*(16*1152-1024)}, v{vDN}")
    e("s_lshl_b32 s72, s69, 5")
    e("s_add_u32 s72, s72, s70")
    e("s_add_u32 s72, s72, 256")
    e("s_xor_b32 s65, s69, 1")
    e("s_mul_i32 s73, s65, 320")
    e("s_add_u32 s73, s73, s70")
    e("s_lshl_b32 s74, s65, 5")
    e("s_add_u32 s74, s74, s70")
    e("s_add_u32 s74, s74, 256")
    e(f"s_lshl_b32 s{sColN}, s72, 1")
    e(f"s_add_u32 s{sColN}, s{sColN}, s{sT1}")
    e(f"s_add_u32 s{sColN}, s{sColN}, s{sT1}")
    e("s_mul_i32 s75, s69, 640")
    e("s_lshl_b32 s76, s69, 6")
    e("s_add_u32 s76, s76, 512")
    for i, (f, sh) in enumerate([(71, 6), (72, 3), (73, 6), (74, 3)]):
        e(f"s_lshl_b32 s{sRow+i}, s{sW}, {sh}")
        e(f"s_add_u32 s{sRow+i}, s{sRow+i}, s{f}")
        e(f"s_mul_i32 s{sRow+i}, s{sRow+i}, 1152")
        e(f"s_add_u32 s{sRow+i}, s{sRow+i}, s75")
    e(f"s_cmp_lt_u32 s{sW}, 2")
    e(f"s_cselect_b32 s{sRowN}, s71, s73")
    e(f"s_cselect_b32 s{sRowN+1}, s72, s74")
    e(f"s_cselect_b32 s{sLBN}, 0, 18432")
    for i, sh in ((0, 7), (1, 4)):
        e(f"s_lshl_b32 s65, s{sT0}, {sh}")
        e(f"s_add_u32 s{sRowN+i}, s{sRowN+i}, s65")
        e(f"s_mul_i32 s{sRowN+i}, s{sRowN+i}, 1152")
        e(f"s_add_u32 s{sRowN+i}, s{sRowN+i}, s76")
    e(f"s_lshl_b32 s65, s{sT0}, 10")
    e(f"s_add_u32 s{sLBN3}, s{sLBN}, s65")
    e(f"s_add_u32 s{sLBN3}, s{sLBN3}, 16384")
    e(f"s_lshl_b32 s65, s{sT0}, 13")
    e(f"s_add_u32 s{sLBN}, s{sLBN}, s65")
    e(f"s_lshl_b32 s{sLB2}, s{sW}, 13")
    e(f"s_lshl_b32 s{sLB3}, s{sW}, 10")
    e(f"s_lshl_b32 s{sPR}, s{sRG}, 1")
    e(f"s_add_u32 s{sPR}, s{sPR}, s69")
    e(f"s_mul_i32 s{sPR}, s{sPR}, {9*16384}")
    e(f"s_add_u32 s{sPR}, s{sPR}, {WS_P}")
    e(f"s_lshl_b32 s{sP}, s68, 8")
    e(f"s_add_u32 s{sP}, s{sP}, s{sPR}")
    e("s_lshl_b32 s65, s68, 11")
    e(f"s_add_u32 s{sPR}, s{sPR}, s65")
    e(f"s_mul_i32 s65, s{sRG}, {FLAG_STRIDE}")
    e(f"s_add_u32 s65, s65, {WS_FLAG}")
    e(f"s_mul_i32 s{sFH}, s{sFS}, 640")
    e(f"s_add_u32 s{sFH}, s{sFH}, s65")
    e(f"s_xor_b32 s{sFHp}, s{sFS}, 1")
    e(f"s_mul_i32 s{sHXp}, s{sFHp}, 18432")
    e(f"s_mul_i32 s{sFHp}, s{sFHp}, 640")
    e(f"s_add_u32 s{sFHp}, s{sFHp}, s65")
    e(f"s_add_u32 s{sFR}, s65, s75")
    e(f"s_add_u32 s{sFR}, s{sFR}, {80*128}")
    e(f"s_lshl_b32 s{sFRo}, s68, 2")
    e(f"s_add_u32 s{sFRo}, s{sFRo}, s{sFR}")
    e(f"s_mul_i32 s65, s{sRG}, {16*18432}")
    e(f"s_add_u32 s65, s65, {WS_HX}")
    e(f"s_add_u32 s{sHXp}, s{sHXp}, s65")
    e(f"s_mul_i32 s{sHXo}, s{sFS}, 18432")
    e(f"s_add_u32 s{sHXo}, s{sHXo}, s65")
    e(f"s_lshl_b32 s{sHR}, s68, 6")
    e(f"s_add_u32 s{sHR}, s{sHR}, s{sHC}")
    e(f"s_mul_i32 s{sOut}, s68, {4*73728}")
    e(f"s_mul_i32 s65, s{sRG}, 1152")
    e(f"s_add_u32 s{sOut}, s{sOut}, s65")
    e(f"s_lshl_b32 s{sMn}, s68, 4")
    e(f"s_lshl_b32 s65, s{sRG}, 7")
    e(f"s_add_u32 s{sMn}, s{sMn}, s65")
    e(f"s_add_u32 s{sMn}, s{sMn}, {WS_MEAN}")
    e("v_and_b32 v32, 3, v0")
    e("v_bfe_u32 v33, v0, 2, 2")
    e("v_bfe_u32 v34, v0, 4, 1")
    e("v_lshrrev_b32 v35, 5, v0")
    e(f"v_lshlrev_b32 v{vSt}, 4, v32")
    e(f"v_lshl_add_u32 v{vHo}, v33, 9, v{vSt}")
    e(f"v_lshl_add_u32 v{vHo}, v34, 3, v{vHo}")
    e(f"v_lshl_add_u32 v{vHo}, v35, 11, v{vHo}")
    e(f"v_lshl_add_u32 v{vSt}, v35, 6, v{vSt}")
    e("v_bfe_u32 v36, v0, 2, 3")
    e(f"v_lshl_add_u32 v{vSt}, v36, 11, v{vSt}")
    e(f"v_mul_u32_u24 v{vOo}, 73728, v32")
    e(f"v_lshl_add_u32 v{vOo}, v33, 4, v{vOo}")
    e(f"v_lshl_add_u32 v{vOo}, v34, 3, v{vOo}")
    e(f"v_lshl_add_u32 v{vMo}, v35, 30, v{vOo}")
    e(f"v_lshl_add_u32 v{vOo}, v35, 6, v{vOo}")
    e("v_and_b32 v36, 7, v0")
    e(f"v_lshlrev_b32 v{vPo}, 2, v36")
    e("v_cmp_eq_u32 vcc, 0, v0")
    e("v_bfrev_b32 v36, 1")
    e(f"v_mov_b32 v{vFv}, 1")
    e(f"v_cndmask_b32 v{vFl}, v36, 0, vcc")
    vTch, vTcg, sTch, STG = (251 if not trace else 255), 254, 96, 8
    if any(x is not None for x in tch):
        e(f"s_lshl_b32 s78, s{sMT}, 1")
        e("s_add_u32 s78, s78, s69")
        e("s_lshl_b32 s78, s78, 2")
        e(f"s_add_u32 s78, s78, s{sW}")
        e("s_bitcmp1_b32 s78, 0")
        e(f"s_cselect_b32 s{STG}, s{SU}, s{SGU}")
        e(f"s_cselect_b32 s{STG+1}, s{SU+1}, s{SGU+1}")
        e(f"s_mov_b32 s{STG+2}, {D*F*2}")
        e(f"s_mov_b32 s{STG+3}, 0x20000")
        e("s_mul_i32 s79, s68, 1152")
        for i, (u0, cnt_, col) in enumerate([(0, 36, 2), (36, 36, 3), (72, 18, 4)]):
            e(f"s_sub_u32 s65, s78, {u0}")
            e("s_lshr_b32 s77, s65, 1")
            e("s_cmp_ge_u32 s77, 9")
            e(f"s_cselect_b32 s{sTch+i}, {640 - 9*64*9216}, 0")
            e(f"s_mul_i32 s77, s77, {64*9216}")
            e(f"s_add_u32 s{sTch+i}, s{sTch+i}, s77")
            e(f"s_add_u32 s{sTch+i}, s{sTch+i}, s79")
            e(f"s_add_u32 s{sTch+i}, s{sTch+i}, {128*col}")
            e(f"s_cmp_lt_u32 s65, {cnt_}")
            e(f"s_cselect_b32 s{sTch+i}, s{sTch+i}, 0x40000000")
        e(f"s_mul_i32 s79, s68, {576*1152}")
        for i in range(3):
            e(f"s_sub_u32 s65, s78, {90 - 27*i if i == 0 else 27*(i-1)}")
            e(f"s_add_u32 s77, s65, {27*i}")
            e("s_lshl_b32 s77, s77, 13")
            e(f"s_add_u32 s{sTch+3+i}, s77, s79")
            e("s_cmp_lt_u32 s65, 27")
            e(f"s_cselect_b32 s{sTch+3+i}, s{sTch+3+i}, 0x40000000")
        e(f"v_lshlrev_b32 v{vTch}, 7, v0")
        e(f"v_mul_u32_u24 v{vTcg}, 9216, v0")
    dl = [x.strip() for x in k.lines]; k.lines = real_lines
    defer = []
    i_ = 0
    while i_ < len(dl):
        grp = [dl[i_]]; i_ += 1
        if grp[0].startswith(("s_cmp", "s_bitcmp")):
            while i_ < len(dl) and dl[i_].startswith("s_cselect"): grp.append(dl[i_]); i_ += 1
        defer.append(grp)
    lead = hc_items(range(hc0, 18)) + dma_items(1) + dma_items(2) + hc_items(range(18, 36))
    lead += [("m", f"buffer_load_dword v{vH+t}, v39, {SR}, s{sSpin} offen offset:{256*t}", "ss") for t in range(9)]
    lead += dma_items(3)

    mf = []
    Q = [112, 144, 176, 208]
    def accP1(b, mat):
        if b == 4: return Q[0] + 16*mat
        return Q[3 - b % 2] if mat else Q[b % 2]
    acc2 = {0: Q[3], 1: Q[1], 2: Q[2], 3: Q[0], 4: Q[3]}
    last_m = {}
    for c in range(NCH):
        slot = c % 4
        if c < 16:
            b, mat, hf = P1[c]
            for j in range(18):
                for t in (0, 1):
                    off = j*2048
                    last_m[("gu"[mat], b, t)] = len(mf)
                    mf.append(dict(c=c, rd=[(vA+2*slot+t, off), (vA+2*slot+t, off+512)], B=("hc", 18*hf+j), D=accP1(b, mat) + 16*t, first=(hf == 0 and j == 0), own=("g", b)))
        elif c < 18:
            mat = P1[c][1]
            for j in range(36):
                off = j*1024
                last_m[("gu"[mat], 4, 0)] = len(mf)
                mf.append(dict(c=c, rd=[(vAN+slot, off), (vAN+slot, off+256)], B=("hc", j), D=accP1(4, mat), first=(j == 0), own=("g", 4)))
        else:
            nm = order[c-18]
            if nm == "N":
                for side in (0, 1):
                    for j in range(18):
                        off = side*18432 + j*1024
                        last_m[("o", 4, 0)] = len(mf)
                        mf.append(dict(c=c, rd=[(vAN2, off), (vAN2, off+256)], B=("hp" if side else "h", j), D=acc2[4], first=(side == 0 and j == 0), own=("o", 4)))
            else:
                db = int(nm[1]); isB = nm[0] == "B"
                seq = [(j, t) for j in range(18) for t in (0, 1)]
                if isB and nm != "B0": seq = [(j, t) for t in (0, 1) for j in range(18)]
                for (j, t) in seq:
                    off = j*2048
                    last_m[("o", db, t)] = len(mf)
                    mf.append(dict(c=c, rd=[(vA+2*slot+t, off), (vA+2*slot+t, off+512)], B=("hp" if isB else "h", j), D=acc2[db] + 16*t, first=(not isB and j == 0), own=("o", db)))
    NM = len(mf); assert NM == 972
    def breg(B):
        kind, j = B
        if kind == "hc": return f"a[{4*j}:{4*j+3}]"
        if kind == "hp": return f"a[{aHP+4*j}:{aHP+4*j+3}]"
        return R(vH + 4*j, 4)

    class Op:
        __slots__ = ("txt", "kind", "deps", "done", "prio", "min_gap", "tag", "cost", "soft")
        def __init__(s, txt, kind="v", deps=(), min_gap=0, prio=0, tag=None):
            s.txt, s.kind, s.deps, s.min_gap, s.prio, s.tag = txt, kind, list(deps), min_gap, prio, tag
            s.done = None; s.soft = 0
            s.cost = 8 if kind == "x" else (5 if kind == "m" or (kind == "v" and (txt.startswith("v_fma_") or txt.startswith("v_cvt_pk") or "0x" in txt)) else 4)
    ops = []
    c1 = -2.0 * math.log2(math.e) * math.sqrt(2.0 / math.pi); c2 = c1 * 0.044715
    chain = [("w", "ss")] + [f"v_add_f32 v{vH}, v{vH}, v{vH+t}" for t in range(1, 9)]
    chain += [f"v_mov_b32 v{vH+1}, v{vH}", None, f"v_permlane32_swap_b32 v{vH}, v{vH+1}", None,
              f"v_add_f32 v{vH}, v{vH}, v{vH+1}", f"v_mov_b32 v{vR}, {fhex(1e-5)}", f"v_fmac_f32 v{vR}, {fhex(1.0/576)}, v{vH}", None,
              ("x", f"v_rsq_f32 v{vH+3}, v{vR}"), None,
              f"v_mul_f32 v{vC1}, {fhex(c1)}, v{vH+3}", f"v_mul_f32 v{vH+4}, v{vH+3}, v{vH+3}",
              f"v_mul_f32 v{vH+4}, v{vH+4}, v{vH+3}", f"v_mul_f32 v{vC2}, {fhex(c2)}, v{vH+4}"]
    prev = None; skip = 0
    for it in chain:
        if it is None: skip = 1; continue
        if isinstance(it, tuple) and it[0] == "w": o = Op(None, "vmwait", tag=it[1], min_gap=ssg)
        elif isinstance(it, tuple): o = Op(it[1], "x")
        else: o = Op(it, "v")
        if prev is not None: o.deps = [(prev, skip)]
        o.prio = -1; ops.append(o); prev = o; skip = 0
    stats_last = prev
    tfree = {}; tc = [0]; hdone = {}; owner_ops = {}
    def gelu(b, t, pr0):
        AG, AU = accP1(b, 0) + 16*t, accP1(b, 1) + 16*t
        mg = last_m[("g", b, t)] + 4; mu = last_m[("u", b, t)] + 4
        Hb = vH + 16*b + 8*t
        lst = []; res = []
        for i in range(16):
            G, U = AG + i, AU + i
            T = vT + tc[0] % NT; tc[0] += 1
            pr = pr0 + i
            d0 = [(stats_last, 1)] + ([(tfree[T], 0)] if T in tfree else [])
            m1 = Op(f"v_mul_f32 v{T}, v{G}, v{G}", deps=d0, min_gap=mg, prio=pr)
            f1 = Op(f"v_fma_f32 v{T}, v{T}, v{vC2}, v{vC1}", deps=[(m1, 0)], prio=pr)
            m2 = Op(f"v_mul_f32 v{T}, v{T}, v{G}", deps=[(f1, 0)], prio=pr)
            ex = Op(f"v_exp_f32 v{T}, v{T}", "x", deps=[(m2, 0)], prio=pr)
            f2 = Op(f"v_fma_f32 v{T}, v{T}, v{vR}, v{vR}", deps=[(ex, 1)], prio=pr)
            rc = Op(f"v_rcp_f32 v{T}, v{T}", "x", deps=[(f2, 0)], prio=pr)
            m3 = Op(f"v_mul_f32 v{G}, v{G}, v{T}", deps=[(rc, 1)], prio=pr)
            m4 = Op(f"v_mul_f32 v{U}, v{U}, v{G}", deps=[(m3, 0)], min_gap=mu, prio=pr)
            tfree[T] = m3; lst += [m1, f1, m2, ex, f2, rc, m3, m4]; res.append(m4)
            if i & 1:
                cv = Op(f"v_cvt_pk_bf16_f32 v{Hb + i//2}, v{U-1}, v{U}", deps=[(res[i-1], 0), (res[i], 0), (stats_last, 1)], prio=pr + 0.7)
                lst.append(cv); hdone[Hb + i//2] = cv
        return lst
    spins = []
    def flag_ops(last_st, sttag, pub_txt, poll_fn, reg, ident, loads, d, prio, after=None, poll_at=0):
        w = Op(None, "vmwait", deps=[(last_st, d[0])], tag=sttag, prio=prio)
        pb = Op(pub_txt, "m", deps=[(w, 0)], prio=prio, tag=("pub", ident))
        pl = Op(poll_fn(reg), "m", deps=[(pb, d[1])] + ([(regfree[reg], 0)] if reg in regfree else []), prio=prio, tag=("poll", ident))
        pl.soft = poll_at
        w2 = Op(None, "vmwait", deps=[(pl, d[2])] + ([(after, 0)] if after else []), tag=("poll", ident), prio=prio)
        cm = Op(f"v_cmp_eq_u32 vcc, 0, v{reg}", deps=[(w2, 0)], prio=prio)
        regfree[reg] = cm
        br = Op((ident, poll_fn(vSpin)), "chk", deps=[(cm, 1)], prio=prio)
        lst = [w, pb, pl, w2, cm, br]; pv = br
        for kind, txt, tag in loads:
            o = Op(txt, kind, deps=[(pv, 1)], prio=prio, tag=tag); lst.append(o); pv = o
        return lst
    regfree = {}
    vSpin = 253
    PREG = [vPoll, 254, 255]
    lastchk = None
    prev_hst = None
    for b in range(5):
        lst = []
        for t in ((0, 1) if b < 4 else (0,)): lst += gelu(b, t, b*40 + t*16)
        owner_ops[("g", b)] = lst; ops += lst
        nfr = 4 if b < 4 else 2
        so = Op(f"s_add_u32 s{sT0}, s{sHXo}, {4096*b}", "s", deps=[(prev_hst, 0)] if prev_hst else [], prio=b*40, min_gap=144)
        ops.append(so)
        for j in range(nfr):
            fr = 4*b + j
            st = Op(f"buffer_store_dwordx4 {R(vH+4*fr,4)}, v{vL16}, {SR}, s{sT0} offen offset:{1024*j} sc1", "m",
                    deps=[(hdone[vH+4*fr+r], 1) for r in range(4)] + [(so, 0)] + ([(prev_hst, 1)] if prev_hst else []), prio=b*40 + 8*j + 8, tag=("hst", b))
            ops.append(st); prev_hst = st
        loads = [("s", f"s_add_u32 s{sSp}, s{sHXp}, {4096*b}", None)]
        loads += [("m", f"buffer_load_dwordx4 a[{aHP+16*b+4*j}:{aHP+16*b+4*j+3}], v{vL16}, {SR}, s{sSp} offen offset:{1024*j} sc1", ("hp", 4*b+j)) for j in range(nfr)]
        dd = (hpub_d, hpoll_d if b >= 3 else 2*hpoll_d, hchk_d)
        fl = flag_ops(prev_hst, ("hst", b), f"buffer_store_dword v{vFv}, v{vFl}, {SR}, s{sFH} offen offset:{128*b} sc1",
                      (lambda r, b=b: f"buffer_load_dword v{r}, off, {SR}, s{sFHp} offset:{128*b} sc1"), PREG[b % 2], f"h{b}", loads, dd, b*40 + 39, after=lastchk)
        ops += fl; lastchk = fl[-1]
    comp = sorted(range(5), key=lambda db: last_m[("o", db, 0 if db == 4 else 1)])
    prev_st = prev_hst
    tail_blocks = []
    stlast = {}
    def red_pub(db): return f"buffer_store_dword v{vFv}, v{vFl}, {SR}, s{sFRo} offen offset:{128*db} sc1"
    def red_poll(db, reg=vPoll): return f"buffer_load_dword v{reg}, v{vPo}, {SR}, s{sFR} offen offset:{128*db} sc1"
    def red_loads(db):
        l = []
        for t in ((0, 1) if db < 4 else (0,)):
            T = 2*db + t
            l.append(("s", f"s_add_u32 s{sSp}, s{sPR}, {T*16384}", None))
            l += [("m", f"buffer_load_dwordx4 a[{8*T+4*j}:{8*T+4*j+3}], v{vL16}, {SR}, s{sSp} offen offset:{1024*j} sc1", ("rl", db)) for j in range(2)]
        return l
    state = {}; pollreg = {}
    for ci, db in enumerate(comp):
        lst = []
        for t in ((0, 1) if db < 4 else (0,)):
            a = acc2[db] + 16*t; mg = last_m[("o", db, t)] + 4
            pr = 1000 + ci*100 + t*40
            pv = None
            for ee in (0, 1):
                cvs = []
                for j in range(4*ee, 4*ee+4):
                    o = Op(f"v_cvt_pk_bf16_f32 v{a+j}, v{a+2*j}, v{a+2*j+1}", min_gap=mg, prio=pr + j, deps=[(pv, 0)] if pv else [])
                    lst.append(o); pv = o
                so = Op(f"s_add_u32 s{sT0}, s{sP}, {(2*db+t)*16384 + ee*128}", "s", deps=[(prev_st, 0)], min_gap=mg, prio=pr + 4*ee)
                st = Op(f"buffer_store_dwordx4 {R(a+4*ee,4)}, v{vSt}, {SR}, s{sT0} offen sc1", "m", deps=[(pv, 1), (so, 0), (prev_st, st_sp)], prio=pr + 4*ee + 4, tag=("st", db))
                lst += [so, st]; prev_st = st
        owner_ops[("o", db)] = lst; ops += lst
        est = last_m[("o", db, 0 if db == 4 else 1)] + 8 + st_sp
        pat = rpoll[ci] if ci < len(rpoll) else 5000
        fl = flag_ops(prev_st, ("st", db), red_pub(db), (lambda r, db=db: red_poll(db, r)), PREG[ci % 3], f"r{db}", red_loads(db), (pub_d, poll_d, chk_d), 900 + ci, after=lastchk, poll_at=pat)
        tp = max(est + pub_d + poll_d, pat)
        if tp + chk_d < NM - 12: ops += fl; lastchk = fl[-1]; state[db] = "done"
        elif tp < NM - 3: ops += fl[:3]; state[db] = "polled"; pollreg[db] = PREG[ci % 3]
        elif est + pub_d < NM - 3: ops += fl[:2]; state[db] = "pub"
        else: state[db] = "none"
    glast = [(o, 1) for o in owner_ops[("g", 4)]]
    pv = None
    for j in range(5):
        if j < 4:
            s1 = Op(f"s_lshl_b32 s{sHo}, s75, 5", "s", deps=glast + ([(pv, 0)] if pv else []), prio=890)
        else:
            s1 = Op(f"s_lshl_b32 s{sHo}, s76, 5", "s", deps=[(pv, 0)], prio=890)
        s2_ = Op(f"s_add_u32 s{sHo}, s{sHo}, s{sHR}", "s", deps=[(s1, 0)], prio=890)
        lst = [s1, s2_]; pv = s2_
        if 0 < j < 4:
            s3 = Op(f"s_add_u32 s{sHo}, s{sHo}, {4096*j}", "s", deps=[(s2_, 0)], prio=890); lst.append(s3); pv = s3
        ld = Op(f"buffer_load_dwordx2 v[{vT+2*j}:{vT+2*j+1}], v{vHo}, {SR}, s{sHo} offen", "m", deps=[(pv, 0)], prio=890, tag="res")
        ops += lst + [ld]; pv = ld
    mo = Op(f"v_and_b32 v{vT+11}, 60, v39", deps=glast, prio=890) if False else None
    m1_ = Op(f"v_lshrrev_b32 v{vT+11}, 2, v{vL16}", deps=glast, prio=889)
    m2_ = Op(f"v_and_b32 v{vT+11}, 12, v{vT+11}", deps=[(m1_, 0)], prio=889)
    ops += [m1_, m2_, Op(f"buffer_load_dword v{vT+10}, v{vT+11}, {SR}, s{sMn} offen", "m", deps=[(pv, 1), (m2_, 1)], prio=890, tag="res")]
    for i, gp in enumerate(tch):
        if gp is None: continue
        srd, va = (STG, vTcg) if i < 3 else (SD, vTch)
        ops.append(Op(f"buffer_load_dword v{vSpin}, v{va}, s[{srd}:{srd+3}], s{sTch+i} offen", "m", min_gap=gp, prio=-2, tag="touch"))
    pending = sorted(ops, key=lambda o: o.prio)

    def ready(o, g):
        if g < o.min_gap or g < o.soft: return False
        for d, lat in o.deps:
            if d.done is None or g < d.done + lat: return False
        return True
    def take(kinds, g, maxcost=99):
        for idx, o in enumerate(pending[:260]):
            if o.kind in kinds and o.cost <= maxcost and ready(o, g):
                pending.pop(idx); o.done = g
                return o
        return None
    nforced = [0]
    def force(o, g):
        if o.done is not None: return
        for d, lat in o.deps: force(d, g)
        assert g >= o.min_gap, (o.txt, g, o.min_gap)
        pending.remove(o); o.done = g - 1
        e("s_nop 1"); emit_op(o); nforced[0] += 1
    def emit_check(ident, poll_txt):
        e(f"s_cbranch_vccnz L_{name}_spin{ident}")
        k.label(f"L_{name}_ret{ident}")
        spins.append((ident, poll_txt))
    def emit_op(o):
        if o.kind == "vmwait":
            if o.tag == "ss": assert k.vm.count("ss") == 9 and not defer
            if o.tag != "ss": tr(f"pre-wait{o.tag}")
            k.wait(vm=o.tag)
            if o.tag != "ss": tr(f"post-wait{o.tag}")
        elif o.kind == "chk":
            emit_check(*o.txt); tr(f"post-chk{o.txt[0]}")
        elif o.kind == "m":
            if xhx and "sc1" in o.txt and "store_dwordx4" in o.txt and o.tag[0] == "hst": k.vmem("buffer_load_dword v253, off, s[20:23], s46", o.tag)
            else: k.vmem(o.txt, o.tag)
        else: e(o.txt)
    def emit_reads(n):
        fr = aF + 4*(n % NF)
        for ei, (ar, off) in enumerate(mf[n]["rd"]):
            k.lds(f"ds_read_b64_tr_b16 a[{fr+2*ei}:{fr+2*ei+1}], v{ar} offset:{off}", ("f", n))
    def barrier(c):
        assert k.vm.count(("dma", c)) == 9, c
        if c > 17: tr(f"pre-bar{c}")
        if trlead == 2 or c < 9: tr(f"L-pre-bar{c}")
        k.wait(vm=[("dma", c)], lg0=(c > 0))
        if trlead == 2 or c < 9: tr(f"L-waited{c}")
        e("s_barrier")
        if trlead != 2 and c < 9: tr(f"L-post-bar{c}")
    stamp_mid(k, stamps, 0)
    barrier(0)
    next_read = 0; bar_done = 0
    for n in range(P): emit_reads(n); next_read += 1
    vq = list(lead)
    forced = 0
    k.wait(lg=("f", 0), vm=("hc", 0))
    firstseen = {}; last_vm = [-9]
    for g in range(NM):
        m = mf[g]; c = m["c"]
        assert k._need(k.lg, k.lg_done, ("f", g)) is None
        B = m["B"]
        if B[0] in ("hc", "hp"): assert B in k.vm and k._need(k.vm, k.vm_done, B) is None, (g, B)
        if B[0] == "h":
            regs = range(vH + 4*B[1], vH + 4*B[1] + 4)
            for r in regs: force(hdone[r], g - 1)
            if any(hdone[r].done >= g - 2 for r in regs): e("s_nop 1")
        if m["first"]:
            for own, lst in owner_ops.items():
                if own == m["own"] or own not in firstseen: continue
                if any(abs(x - m["D"]) < 16 for x in firstseen[own]):
                    for o in lst: force(o, g - 1)
                    if any(o.done >= g - 2 for o in lst): e("s_nop 1")
            firstseen.setdefault(m["own"], []).append(m["D"])
        fr = aF + 4*(g % NF); Dr = R(m["D"], 16)
        e(f"{MF32} {Dr}, a[{fr}:{fr+3}], {breg(B)}, {'0' if m['first'] else Dr}")
        if trlead != 2 and g < 144 and g % 6 == 0: tr(f"L-g{g}")
        if g == 143: stamp_mid(k, stamps, 1)
        if g == 647: stamp_mid(k, stamps, 2)
        bud = budget; cnt = 5; free_first = True
        hot = hot_lo <= g < hot_hi
        if hot: bud = hot_bud; cnt = 8
        E = 36*(c+1) - 1
        if c + 1 < NCH and g == E - P + X:
            while k.vm.count(("dma", c+1)) < 9: emit_item(vq.pop(0)); forced += 1
            barrier(c + 1); bar_done = c + 1; free_first = False; bud -= 4; cnt -= 1
            if c + 1 + dist < NCH: vq += dma_items(c + 1 + dist)
        if g + 1 < NM:
            nb = mf[g+1]["B"]
            vmt = nb if nb[0] in ("hc", "hp") else None
            if vmt is not None and vmt not in k.vm:
                if vmt[0] == "hc":
                    while vmt not in k.vm: emit_item(vq.pop(0)); forced += 1
                else:
                    force([o for o in ops if o.tag == vmt and o.kind == "m"][0], g)
            need_lg = k._need(k.lg, k.lg_done, ("f", g+1)) is not None
            tgt = ("f", min(g + wev, next_read - 1)) if need_lg else None
            if k.wait(lg=tgt, vm=vmt):
                if not free_first: bud -= 4; cnt -= 1
                free_first = False
        if free_first:
            if vq and vq[0][0] == "s": emit_item(vq.pop(0))
            else:
                o = take(("s", "vmwait", "chk"), g)
                if o: emit_op(o)
        nrd = 0
        while next_read < NM and next_read <= g + P and mf[next_read]["c"] <= bar_done and nrd < 2:
            emit_reads(next_read); next_read += 1; nrd += 1; bud -= 8; cnt -= 2
        if cnt > 0 and bud >= 5:
            inlead = c < 4
            if inlead and vq and vq[0][0] == "s":
                emit_item(vq.pop(0)); bud -= 4; cnt -= 1
                if vq and vq[0][0] == "s": emit_item(vq.pop(0)); bud -= 4; cnt -= 1
            nm_ = sum(1 for x in vq if x[0] == "m")
            if vq and vq[0][0] == "m" and vq[0][2] == "ss": go = True
            elif g < fast: go = True
            elif nm_ > 9 or inlead: go = g - last_vm[0] >= 2
            else: go = g - last_vm[0] >= dmar
            if vq and vq[0][0] == "m" and go:
                emit_item(vq.pop(0)); bud -= 5; cnt -= 1; last_vm[0] = g
            else:
                o = take(("m",), g)
                if o: emit_op(o); bud -= 5; cnt -= 1
        then = 0
        while defer and (bud >= 4 or then == 0) and then < 3:
            for x in defer.pop(0): e(x); bud -= 5; cnt -= 1; then += 1
        if hot and bud >= 20:
            o = take(("x",), g)
            if o: emit_op(o); bud -= 8; cnt -= 1
        xo = take(("x",), g) if (bud >= 8 and cnt > 0) else None
        if xo: bud -= 8; cnt -= 1; xo.done = None
        while cnt > 0:
            o = take(("v",), g, bud)
            if not o: break
            emit_op(o); bud -= o.cost; cnt -= 1
        if xo: xo.done = g; emit_op(xo)
        elif cnt > 0 and bud >= 8:
            xo = take(("x",), g)
            if xo: emit_op(xo)
    assert not vq
    e("s_nop 11")
    g = NM + 10
    while pending:
        o = take(("v", "x", "s", "m", "vmwait", "chk"), g); g += 1
        if o: emit_op(o)
    stamp_mid(k, stamps, 3)
    vDo = vH; vTp = vH + 24; vA0 = vH + 32
    def publish(db):
        k.wait(vm=("st", db)); k.vmem(red_pub(db), ("pub", db))
    def consume(db, reg):
        e(f"v_cmp_eq_u32 vcc, 0, v{reg}")
        ld = red_loads(db)
        e(ld[0][1])
        emit_check(f"r{db}", red_poll(db, vSpin))
        tr(f"tail-chk{db}")
        for kind, txt, tag in ld[1:]:
            if kind == "s": e(txt)
            else: k.vmem(txt, tag)
    def reduce_blk(db):
        Dr = R(vDo + 4*db, 4)
        k.wait(vm=("rl", db))
        for t in ((0, 1) if db < 4 else (0,)):
            for j in range(2):
                a = 8*(2*db+t) + 4*j
                e(f"{MF16} {Dr}, {R(vA0 + 4*t, 4)}, a[{a}:{a+3}], {Dr}")
    lastb = comp[-1]
    for db in comp[:-1]:
        if state[db] == "none": publish(db); state[db] = "pub"
    for db in comp:
        if state[db] == "polled":
            k.wait(vm=("poll", f"r{db}")); consume(db, pollreg[db]); state[db] = "late"
    e(f"v_and_b32 v{vTp+6}, 1, v0")
    e(f"v_lshlrev_b32 v{vTp+6}, 4, v{vTp+6}")
    e(f"v_mov_b32 v{vTp+7}, 0x3f80")
    e(f"v_lshlrev_b32 v{vTp+7}, v{vTp+6}, v{vTp+7}")
    e(f"v_bfe_u32 v{vTp+6}, v0, 1, 3")
    for r in range(8):
        e(f"v_cmp_eq_u32 vcc, {r}, v{vTp+6}")
        e("s_nop 1")
        e(f"v_cndmask_b32 v{vA0+r}, 0, v{vTp+7}, vcc")
    k.wait(vm="res")
    for j in range(5):
        for u in range(2):
            e(f"v_lshlrev_b32 v{vDo+4*j+2*u}, 16, v{vT+2*j+u}")
            e(f"v_and_b32 v{vDo+4*j+2*u+1}, 0xffff0000, v{vT+2*j+u}")
        for u in range(4): e(f"v_add_f32 v{vDo+4*j+u}, v{vDo+4*j+u}, v{vT+10}")
    e("s_nop 1")
    for db in comp:
        if state[db] == "done": reduce_blk(db)
    tr("tail-prepub")
    publish(lastb)
    tr("tail-pub")
    rest = [db for db in comp[:-1] if state[db] == "pub"]
    for db in rest: k.vmem(red_poll(db, vTp + db), ("tp", db))
    for db in rest:
        k.wait(vm=("tp", db)); consume(db, vTp + db)
    k.vmem(red_poll(lastb, vTp + lastb), ("tp", lastb))
    for db in comp:
        if state[db] == "late": reduce_blk(db)
    k.wait(vm=("tp", lastb)); consume(lastb, vTp + lastb)
    for db in rest + [lastb]: reduce_blk(db)
    e(f"s_add_u32 s{sT0}, s{sOut}, s75")
    e(f"s_add_u32 s{sT1}, s{sOut}, s76")
    e("s_nop 5")
    for j in range(5):
        a = vDo + 4*j
        e(f"v_cvt_pk_bf16_f32 v{a}, v{a}, v{a+1}")
        e(f"v_cvt_pk_bf16_f32 v{a+1}, v{a+2}, v{a+3}")
        if j < 4: k.vmem(f"buffer_store_dwordx2 v[{a}:{a+1}], v{vOo}, s[{SO}:{SO+3}], s{sT0} offen offset:{128*j}{outf}", "out")
        else: k.vmem(f"buffer_store_dwordx2 v[{a}:{a+1}], v{vMo}, s[{SO}:{SO+3}], s{sT1} offen{outf}", "out")
    if trace:
        tr("end")
        e("s_lshl_b32 s58, s2, 2")
        e(f"s_add_u32 s58, s58, s{sW}")
        e("s_lshl_b32 s58, s58, 8")
        e(f"s_add_u32 s58, s58, {WS_END + 8*131072}")
        e(f"s_mov_b32 s{SW+2}, {WS_END + 12*131072}")
        e("v_lshlrev_b32 v252, 2, v0")
        e(f"buffer_store_dword v251, v252, {SR}, s58 offen")
        open("trace_labels.txt", "w").write("\n".join(k.tr))
    stamp_end(k, stamps, 66, kidx, sW, 4)
    k.label(f"L_{name}_end")
    e("s_endpgm")
    for ident, ptxt in spins:
        k.label(f"L_{name}_spin{ident}")
        e(f"s_mov_b32 s{sSpin}, {spin_max}")
        k.label(f"L_{name}_spinl{ident}")
        e(ptxt)
        e(f"s_sub_u32 s{sSpin}, s{sSpin}, 1")
        e("s_waitcnt vmcnt(0)")
        e(f"v_cmp_eq_u32 vcc, 0, v{vSpin}")
        e(f"s_cmp_eq_u32 s{sSpin}, 0")
        e(f"s_cbranch_scc1 L_{name}_ret{ident}")
        e(f"s_cbranch_vccnz L_{name}_spinl{ident}")
        e(f"s_branch L_{name}_ret{ident}")
    k.label(f"L_{name}_fin")
    k.info = (forced, nforced[0], dict(state))
    return k, (512, 102, 256), (256, 256, 4*SLOT)
```

```python
import sys, json
from dsl import *
from k123 import *
from k4f import *
HDR = open("sequential_preLN__spectral_gfnet__geglu_ffn__prompt.s.ref").read().split("; Override launch geometry")[0]
def build(path, stamps=False, k4=None, k1=None, k2=None, k3=None):
    ks = [gen_k1(stamps=stamps, **(k1 or {})), gen_k2(stamps=stamps, **(k2 or {})), gen_k3(stamps=stamps, hc16=False, **(k3 or {})), gen_k4f(stamps=stamps, kidx=3, **(k4 or {}))]
    print(path, ks[-1][0].info)
    txt = assemble_file(HDR, [(k, *l) for k, r, l in ks], [(k, *r) for k, r, l in ks])
    open(path, "w").write(txt)
if __name__ == "__main__":
    opts = json.loads(sys.argv[2]) if len(sys.argv) > 2 else {}
    build(sys.argv[1], **opts)
```

```python
from dsl import *
from layout import *
import math

def stamp_begin(k, on):
    if on:
        k.e("s_memrealtime s[88:89]")
        k.e("s_memtime s[92:93]")
def stamp_mid(k, on, idx):
    if on: k.e(f"s_memtime s[{80+2*idx}:{81+2*idx}]")
def stamp_end(k, on, wsbase, kidx, wave_s, nmid):
    if not on: return
    e = k.e
    e("s_waitcnt vmcnt(0) lgkmcnt(0)")
    e("s_memtime s[94:95]")
    e("s_memrealtime s[90:91]")
    e("s_waitcnt lgkmcnt(0)")
    e("v_mov_b32 v8, s88")
    e("v_mov_b32 v9, s90")
    e("s_sub_u32 s94, s94, s92")
    e("v_mov_b32 v10, s94")
    for i in range(4):
        if i < nmid:
            e(f"s_sub_u32 s{80+2*i}, s{80+2*i}, s92")
            e(f"v_mov_b32 v{11+i}, s{80+2*i}")
        else: e(f"v_mov_b32 v{11+i}, 0")
    e("s_getreg_b32 s94, hwreg(HW_REG_XCC_ID)")
    e("v_mov_b32 v15, s94")
    e("s_lshl_b32 s94, s2, 3")
    e(f"s_add_u32 s94, s94, s{wave_s}")
    e("s_lshl_b32 s94, s94, 5")
    e(f"s_add_u32 s94, s94, {WS_END + kidx*131072}")
    e(f"s_mov_b32 s76, s{wsbase}")
    e(f"s_and_b32 s77, s{wsbase+1}, 0xffff")
    e(f"s_mov_b32 s78, {WS_END + (kidx+1)*131072}")
    e("s_mov_b32 s79, 0x20000")
    e("v_mov_b32 v16, 0")
    e("s_mov_b64 exec, 1")
    e("buffer_store_dwordx4 v[8:11], v16, s[76:79], s94 offen")
    e("buffer_store_dwordx4 v[12:15], v16, s[76:79], s94 offen offset:16")


TOUCHF = os.environ.get('TOUCHF', '')
class Tracer:
    def __init__(self, k, on, vreg):
        self.k, self.on, self.v, self.labels = k, on, vreg, []
    def __call__(self, label):
        if not self.on or len(self.labels) >= 64: return
        e = self.k.e
        e("s_memtime s[98:99]")
        e("s_waitcnt lgkmcnt(0)")
        e("s_sub_u32 s98, s98, s92")
        e(f"v_writelane_b32 v{self.v}, s98, {len(self.labels)}")
        self.labels.append(label)
    def dump(self, wsbase, sW, vtmp):
        if not self.on: return
        e = self.k.e
        e("s_waitcnt vmcnt(0)")
        self("drained")
        e("s_lshl_b32 s98, s2, 3")
        e(f"s_add_u32 s98, s98, s{sW}")
        e("s_lshl_b32 s98, s98, 8")
        e(f"s_add_u32 s98, s98, {WS_END + 8*131072}")
        e(f"s_mov_b32 s76, s{wsbase}")
        e(f"s_and_b32 s77, s{wsbase+1}, 0xffff")
        e(f"s_mov_b32 s78, {WS_END + 16*131072}")
        e("s_mov_b32 s79, 0x20000")
        e(f"v_lshlrev_b32 v{vtmp}, 2, v0")
        e(f"buffer_store_dword v{self.v}, v{vtmp}, s[76:79], s98 offen")
        open("trace_labels.txt", "w").write("\n".join(self.labels))

def emit_wprefetch(k, sW, nw, lane, v0, vd, s0, mode, skip3=False):
    e = k.e
    lab = f"L_{k.name}_wp{k.nlabel}"; k.nlabel += 1
    e(f"s_load_dwordx4 s[{s0}:{s0+3}], s[0:1], {KA_WG}")
    e(f"s_lshr_b32 s{s0+6}, s2, 3")
    e(f"s_mul_i32 s{s0+6}, s{s0+6}, {3 if skip3 else nw}")
    e(f"s_add_u32 s{s0+6}, s{s0+6}, s{sW}")
    if skip3:
        e("s_nop 7")
        e(f"s_cmp_ge_u32 s{sW}, 3")
    else: e(f"s_cmp_ge_u32 s{s0+6}, 72")
    e(f"s_cbranch_scc1 {lab}_x")
    if mode == "l4":
        e(f"s_and_b32 s{s0+7}, s2, 3")
        e(f"s_mul_i32 s{s0+7}, s{s0+7}, 2304")
        lo, hi = 640, 1152
    else:
        e(f"s_and_b32 s{s0+7}, s2, 7")
        e(f"s_mul_i32 s{s0+7}, s{s0+7}, 1152")
        lo, hi = 128, 640
    e(f"s_lshr_b32 s{s0+5}, s{s0+6}, 1")
    e(f"s_mul_i32 s{s0+5}, s{s0+5}, {16*9216}")
    e(f"s_add_u32 s{s0+7}, s{s0+7}, s{s0+5}")
    e(f"v_lshrrev_b32 v{v0}, 2, {lane}")
    e(f"v_mul_u32_u24 v{v0}, 9216, v{v0}")
    e(f"v_and_b32 v{v0+1}, 1, {lane}")
    e(f"v_mul_u32_u24 v{v0+1}, {lo}, v{v0+1}")
    e(f"v_add_u32 v{v0}, v{v0}, v{v0+1}")
    e(f"v_bfe_u32 v{v0+1}, {lane}, 1, 1")
    e(f"v_mul_u32_u24 v{v0+1}, {hi}, v{v0+1}")
    e(f"v_add_u32 v{v0}, v{v0}, v{v0+1}")
    e("s_waitcnt lgkmcnt(0)")
    e(f"s_bitcmp1_b32 s{s0+6}, 0")
    e(f"s_cselect_b32 s{s0+8}, s{s0+2}, s{s0}")
    e(f"s_cselect_b32 s{s0+9}, s{s0+3}, s{s0+1}")
    e(f"s_and_b32 s{s0+9}, s{s0+9}, 0xffff")
    e(f"s_mov_b32 s{s0+10}, {D*F*2}")
    e(f"s_mov_b32 s{s0+11}, 0x20000")
    e(f"buffer_load_dword v{vd}, v{v0}, s[{s0+8}:{s0+11}], s{s0+7} offen{TOUCHF}")
    k.label(f"{lab}_x")
    e("s_waitcnt lgkmcnt(0)")

def emit_touch_wg(k, sW, nw, id0, kind, nper=2, vb=2, lane="v0"):
    e = k.e
    e(f"s_load_dwordx4 s[44:47], s[0:1], {KA_WG}")
    e(f"s_load_dwordx2 s[48:49], s[0:1], {KA_WD}")
    e(f"s_sub_u32 s50, s2, {id0}")
    e(f"s_mul_i32 s50, s50, {nw}")
    e(f"s_add_u32 s50, s50, s{sW}")
    a, b_, c_, d_, f_ = vb, vb+1, vb+2, vb+3, vb+4
    if kind == "d":
        e(f"v_lshlrev_b32 v{a}, 7, {lane}")
        e(f"s_mul_i32 s50, s50, {8192*nper}")
        e("s_waitcnt lgkmcnt(0)")
        k.srd(52, 48, D*F*2)
        for i in range(nper):
            e(f"buffer_load_dword v{b_}, v{a}, s[52:55], s50 offen{TOUCHF}")
            e("s_add_u32 s50, s50, 8192")
    else:
        e("s_lshl_b32 s50, s50, 6")
        e(f"v_add_u32 v{a}, s50, {lane}")
        e(f"v_mul_u32_u24 v{b_}, 52429, v{a}")
        e(f"v_lshrrev_b32 v{b_}, 21, v{b_}")
        e(f"v_mul_u32_u24 v{c_}, 40, v{b_}")
        e(f"v_sub_u32 v{c_}, v{a}, v{c_}")
        e(f"v_mul_u32_u24 v{d_}, 205, v{c_}")
        e(f"v_lshrrev_b32 v{d_}, 10, v{d_}")
        e(f"v_mul_u32_u24 v{f_}, 5, v{d_}")
        e(f"v_sub_u32 v{f_}, v{c_}, v{f_}")
        e(f"v_cmp_le_u32 vcc, 3, v{f_}")
        e(f"v_mul_u32_u24 v{a}, 9216, v{b_}")
        e(f"v_mul_u32_u24 v{d_}, 1152, v{d_}")
        e(f"v_cndmask_b32 v{c_}, 2, 4, vcc")
        e(f"v_add_u32 v{f_}, v{f_}, v{c_}")
        e(f"v_add_u32 v{a}, v{a}, v{d_}")
        e(f"v_lshl_add_u32 v{a}, v{f_}, 7, v{a}")
        e("s_waitcnt lgkmcnt(0)")
        k.srd(52, 44, D*F*2)
        k.srd(56, 46, D*F*2)
        e(f"buffer_load_dword v{b_}, v{a}, s[52:55], 0 offen{TOUCHF}")
        e(f"buffer_load_dword v{c_}, v{a}, s[56:59], 0 offen{TOUCHF}")

MF32 = "v_mfma_f32_32x32x16_bf16"
def R(a, n): return f"v[{a}:{a+n-1}]"

def gen_k1(name="fwd_kernel", stamps=False, pf=True, pack=None, wpf=None, wtt=None, trace=False):
    NMAIN, NWT = 192, 64
    k = Kern(name); e = k.e
    sW, sS2, sCT, sT0, sT1, sT2 = 20, 21, 22, 23, 24, 25
    tr = Tracer(k, trace, 95)
    e(f"s_cmp_ge_u32 s2, {NMAIN + NWT}")
    e(f"s_cbranch_scc1 L_{name}_end")
    stamp_begin(k, stamps)
    e(f"s_load_dwordx2 s[4:5], s[0:1], {KA_X}")
    e(f"s_load_dwordx4 s[28:31], s[0:1], {KA_WR}")
    e(f"s_load_dwordx2 s[6:7], s[0:1], {KA_WS}")
    e("v_lshrrev_b32 v1, 6, v0")
    e("s_nop 0")
    e(f"v_readfirstlane_b32 s{sW}, v1")
    if pf:
        e("v_and_b32 v2, 63, v0")
        e("s_bfe_u32 s40, s2, 0x10003")
        e("s_mul_i32 s40, s40, 6")
        e(f"s_add_u32 s40, s40, s{sW}")
        k.prefetch_code("L_text_begin", "L_text_end", 32, 3, 239, 1, lane="v2", part=(40, 8192))
    if pack:
        e(f"s_cmp_ge_u32 s{sW}, 6")
        e(f"s_cbranch_scc1 L_{name}_pack")
    e(f"s_cmp_ge_u32 s2, {NMAIN}")
    e(f"s_cbranch_scc1 L_{name}_wt")
    e("v_and_b32 v0, 63, v0")
    e(f"s_lshr_b32 s{sT0}, s2, 3")
    e(f"s_mul_hi_u32 s{sT1}, s{sT0}, 0x55555556")
    e(f"s_mul_i32 s{sCT}, s{sT1}, 3")
    e(f"s_sub_u32 s{sCT}, s{sT0}, s{sCT}")
    e(f"s_and_b32 s{sS2}, s2, 7")
    e(f"s_lshl_b32 s{sS2}, s{sS2}, 3")
    e(f"s_add_u32 s{sS2}, s{sS2}, s{sT1}")
    e("v_lshrrev_b32 v4, 3, v0")
    e("v_lshrrev_b32 v5, 4, v0")
    e("v_and_b32 v6, 7, v0")
    e("v_xor_b32 v6, v6, v5")
    e("v_lshlrev_b32 v6, 4, v6")
    e("v_mul_u32_u24 v2, 73728, v4")
    e("v_add_u32 v2, v2, v6")
    e("v_xor_b32 v3, 64, v2")
    e("s_waitcnt lgkmcnt(0)")
    tr("karg")
    k.srd(8, 4, S*D*2)
    k.srd(12, 6, WS_END)
    e(f"s_mul_i32 s{sT0}, s{sW}, 6")
    e(f"s_mul_i32 s{sT2}, s{sS2}, 1152")
    for i in range(6):
        e(f"s_add_u32 s26, s{sT0}, {i}")
        e("s_lshl_b32 m0, s26, 10")
        e("s_and_b32 s27, s26, 3")
        e(f"s_mul_i32 s27, s27, {8*73728}")
        e("s_lshr_b32 s26, s26, 2")
        e("s_lshl_b32 s26, s26, 7")
        e("s_add_u32 s27, s27, s26")
        e(f"s_add_u32 s27, s27, s{sT2}")
        k.vmem(f"buffer_load_dwordx4 v{2 + (i & 1)}, s[8:11], s27 offen lds", "x")
    tr("issued")
    vE = 40
    e(f"s_mul_i32 s{sT0}, s{sCT}, 6")
    e(f"s_add_u32 s{sT0}, s{sT0}, s{sW}")
    e(f"s_lshl_b32 s18, s{sT0}, 4")
    e("v_bfe_u32 v4, v0, 1, 4")
    e("v_add_u32 v4, s18, v4")
    e("v_add_u32 v4, 1, v4")
    e("v_lshrrev_b32 v5, 5, v0")
    e("v_and_b32 v6, 1, v0")
    e("v_cvt_f32_u32 v7, v4")
    e(f"v_mul_f32 v7, {fhex(1.0/576)}, v7")
    e("v_cvt_f32_u32 v8, v6")
    e("v_mul_f32 v8, 0x3e800000, v8")
    e("v_cvt_f32_u32 v9, v5")
    e("v_mul_f32 v9, 0x41000000, v9")
    e("v_fma_f32 v8, v9, v7, v8")
    for j in range(9):
        for t in range(8): e(f"v_fmamk_f32 v{10+t}, v7, {fhex(16*j+t)}, v8")
        for t in range(8): e(f"v_cos_f32 v{10+t}, v{10+t}")
        e("s_nop 0")
        for t in range(4): e(f"v_cvt_pk_bf16_f32 v{vE+4*j+t}, v{10+2*t}, v{11+2*t}")
    e("v_mov_b32 v30, 0")
    e("v_mov_b32 v31, 0x3f803f80")
    for r in range(36): e(f"v_dot2c_f32_bf16 v30, v{vE+r}, v31")
    e("v_and_b32 v10, 1, v4")
    e("v_lshlrev_b32 v10, 31, v10")
    e("v_or_b32 v32, 1.0, v10")
    e("v_bfe_u32 v11, v4, 1, 1")
    e("v_lshlrev_b32 v12, 31, v11")
    e("v_or_b32 v12, 1.0, v12")
    e("v_and_b32 v10, 1, v4")
    e("v_cmp_eq_u32 vcc, 0, v10")
    e("v_lshlrev_b32 v13, 31, v6")
    e("v_xor_b32 v13, v13, v12")
    e("v_cndmask_b32 v33, 0, v12, vcc")
    e("v_cndmask_b32 v34, v13, 0, vcc")
    e("v_mov_b32 v10, v30")
    e("v_and_b32 v11, 3, v4")
    e("v_cmp_eq_u32 vcc, 0, v11")
    e("v_permlane32_swap_b32 v30, v10")
    e("s_nop 1")
    e("v_add_f32 v30, v30, v10")
    e("v_mul_f32 v30, 4.0, v30")
    e("v_cndmask_b32 v30, 0, v30, vcc")
    vF = 76
    e("v_and_b32 v35, 31, v0")
    e("v_cvt_f32_u32 v10, v35")
    e(f"v_mul_f32 v11, {fhex(1.0/32)}, v10")
    e(f"v_cvt_f32_u32 v12, s{sS2}")
    e(f"v_mul_f32 v12, {fhex(1.0/64)}, v12")
    e("v_cvt_f32_u32 v13, v5")
    e("v_fma_f32 v12, v13, 4.0, v12")
    e("v_mul_f32 v12, v12, v11")
    for jj in range(2):
        for t in range(8):
            s1 = 16*jj + 8*(t >> 2) + (t & 3)
            e(f"v_fmamk_f32 v{14+t}, v11, {fhex(s1)}, v12")
        for t in range(8): e(f"v_cos_f32 v{22+t}, v{14+t}")
        for t in range(8): e(f"v_sin_f32 v{14+t}, -v{14+t}")
        e("s_nop 0")
        for t in range(4):
            e(f"v_cvt_pk_bf16_f32 v{vF+4*jj+t}, v{22+2*t}, v{23+2*t}")
            e(f"v_cvt_pk_bf16_f32 v{vF+8+4*jj+t}, v{14+2*t}, v{15+2*t}")
    e("v_bfe_u32 v10, v0, 1, 3")
    e("v_xor_b32 v10, v10, v5")
    e("v_lshlrev_b32 v10, 4, v10")
    e("v_lshl_add_u32 v36, v35, 7, v10")
    for q in range(1, 4): e(f"v_xor_b32 v{36+q}, {32*q}, v36")
    e(f"s_lshr_b32 s{sT1}, s{sW}, 1")
    e(f"s_add_u32 s{sT1}, s{sT1}, s{sW}")
    e(f"s_lshl_b32 s{sT1}, s{sT1}, 12")
    e(f"s_and_b32 s{sT2}, s{sW}, 1")
    e(f"s_mul_i32 s{sT1}, s{sW}, 12")
    e("v_mul_u32_u24 v10, 6, v5")
    e(f"v_add_u32 v10, s{sT1}, v10")
    e("v_bfe_u32 v13, v0, 1, 3")
    for i in range(6):
        e(f"v_add_u32 v11, {i}, v10")
        e("v_lshrrev_b32 v12, 3, v11")
        e("v_and_b32 v11, 7, v11")
        e("v_xor_b32 v11, v11, v13")
        e("v_lshlrev_b32 v11, 4, v11")
        e("v_lshl_add_u32 v11, v12, 12, v11")
        e(f"v_lshl_add_u32 v{14+i}, v35, 7, v11")
    stamp_mid(k, stamps, 0)
    tr("gen")
    e("s_waitcnt vmcnt(0)")
    tr("xarr")
    e("s_barrier")
    tr("bar")
    if wpf: emit_wprefetch(k, sW, 6, "v0", 2, 1, 44, wpf)
    stamp_mid(k, stamps, 1)
    vX = 96
    for i in range(6): k.lds(f"ds_read_b128 {R(vX+4*i,4)}, v{14+i}", ("s", i))
    def xread(kk):
        k.lds(f"ds_read_b128 {R(vX+24+4*(kk%6),4)}, v{36+(kk&3)} offset:{(kk>>2)*4096}", ("x", kk))
    order = [9*q + j for j in range(9) for q in range(4)]
    for n in range(5):
        kk = order[n]
        k.lds(f"ds_read_b128 {R(vX+24+4*(n%6),4)}, v{36+(kk&3)} offset:{(kk>>2)*4096}", ("x", n))
    e("v_mov_b32 v10, 0"); e("v_mov_b32 v11, 0"); e("v_mov_b32 v12, 0"); e("v_mov_b32 v13, 0")
    for i in range(6):
        k.wait(lg=("s", i))
        for r in range(4):
            e(f"v_dot2c_f32_bf16 v{10+2*(r&1)}, v{vX+4*i+r}, v31")
            e(f"v_dot2c_f32_bf16 v{11+2*(r&1)}, v{vX+4*i+r}, v{vX+4*i+r}")
    e("s_nop 2")
    e("v_add_f32 v10, v10, v12")
    e("v_add_f32 v11, v11, v13")
    e(f"s_lshl_b32 s{sT1}, s{sW}, 9")
    e(f"s_add_u32 s{sT1}, s{sT1}, 36864")
    e(f"v_lshl_add_u32 v12, v0, 3, s{sT1}")
    k.lds("ds_write_b64 v12, v[10:11]", "sw")
    e("v_lshlrev_b32 v12, 3, v0")
    e(f"s_lshl_b32 s{sT1}, s{sW}, 8")
    e(f"s_add_u32 s{sT1}, s{sT1}, {36864+3072}")
    e(f"v_lshl_add_u32 v13, v0, 2, s{sT1}")
    e(f"v_lshl_add_u32 v14, v5, 4, s{sT1}")
    tr("stats")
    vP = 144
    fill = {}
    fill[6] = lambda: (k.wait(lg="sw"), e("s_barrier"))
    def f8():
        for i in range(6): k.lds(f"ds_read_b64 {R(16+2*i,2)}, v12 offset:{36864+512*i}", "sp")
    fill[7] = f8
    def f11():
        k.wait(lg="sp")
        for i in range(1, 6):
            e(f"v_add_f32 v16, v16, v{16+2*i}")
            e(f"v_add_f32 v17, v17, v{17+2*i}")
    fill[11] = f11
    def f13():
        e("v_mov_b32 v18, v16"); e("v_mov_b32 v19, v17"); e("s_nop 1")
        e("v_permlane32_swap_b32 v16, v18"); e("v_permlane32_swap_b32 v17, v19")
    fill[13] = f13
    def f14():
        e("v_add_f32 v16, v16, v18"); e("v_add_f32 v17, v17, v19")
        e(f"v_mul_f32 v16, {fhex(1.0/576)}, v16")
        e(f"v_mul_f32 v17, {fhex(1.0/576)}, v17")
        e("v_fma_f32 v17, -v16, v16, v17")
    fill[14] = f14
    def f15():
        e("v_max_f32 v17, 0, v17")
        e(f"v_add_f32 v17, {fhex(1e-5)}, v17")
        e("v_rsq_f32 v17, v17")
        e("v_cmp_gt_u32 vcc, 32, v0")
        e(f"v_mul_f32 v17, {fhex(2.0/(2048*576))}, v17")
    fill[15] = f15
    def f16():
        e("v_mul_f32 v18, v16, v17")
        e("v_cndmask_b32 v18, v18, v17, vcc")
        k.lds("ds_write_b32 v13, v18", "rw")
    fill[16] = f16
    def f18():
        k.wait(lg="rw")
        for g in range(4): k.lds(f"ds_read_b128 {R(208+4*g,4)}, v14 offset:{32*g}", "rr")
        for g in range(4): k.lds(f"ds_read_b128 {R(224+4*g,4)}, v14 offset:{128+32*g}", "rr")
    fill[18] = f18
    def f20():
        e(f"s_or_b32 s{sT1}, s{sCT}, s{sW}")
        e(f"s_cmp_lg_u32 s{sT1}, 0")
        e(f"s_cbranch_scc1 L_{name}_nomean")
        e(f"s_lshl_b32 s{sT1}, s{sS2}, 7")
        e(f"s_add_u32 s{sT1}, s{sT1}, {WS_MEAN}")
        e("v_lshlrev_b32 v19, 2, v35")
        e(f"buffer_store_dword v16, v19, s[12:15], s{sT1} offen")
        k.label(f"L_{name}_nomean")
    fill[20] = f20
    for n in range(36):
        kk = order[n]; q, j = divmod(kk, 9)
        k.wait(lg=("x", n))
        acc = R(vP+16*q, 16)
        e(f"{MF32} {acc}, {R(vX+24+4*(n%6),4)}, {R(vE+4*j,4)}, {'0' if j == 0 else acc}")
        if n + 5 < 36:
            kk2 = order[n+5]
            k.lds(f"ds_read_b128 {R(vX+24+4*((n+5)%6),4)}, v{36+(kk2&3)} offset:{(kk2>>2)*4096}", ("x", n+5))
        if n in fill: fill[n]()
    stamp_mid(k, stamps, 2)
    tr("mfma")
    e(f"s_lshr_b32 s{sT1}, s{sS2}, 3")
    e(f"s_lshl_b32 s{sT1}, s{sT1}, 10")
    e(f"s_bfe_u32 s{sT2}, s{sS2}, 0x10001")
    e(f"s_lshl_b32 s{sT2}, s{sT2}, 9")
    e(f"s_add_u32 s{sT1}, s{sT1}, s{sT2}")
    e(f"s_bfe_u32 s{sT2}, s{sS2}, 0x10002")
    e(f"s_lshl_b32 s{sT2}, s{sT2}, 3")
    e(f"s_add_u32 s{sT1}, s{sT1}, s{sT2}")
    e(f"s_and_b32 s{sT2}, s{sS2}, 1")
    e(f"s_lshl_b32 s{sT2}, s{sT2}, 2")
    e(f"s_add_u32 s{sT1}, s{sT1}, s{sT2}")
    e(f"s_lshl_b32 s{sT2}, s18, 13")
    e(f"s_add_u32 s{sT1}, s{sT1}, s{sT2}")
    e(f"s_add_u32 s{sT1}, s{sT1}, {WS_Y}")
    e("v_lshlrev_b32 v10, 4, v35")
    e("v_lshl_add_u32 v10, v5, 14, v10")
    k.wait(lg="rr")
    for i in range(16): e(f"v_fmac_f32 v{vP+i}, v32, v{vP+32+i}")
    for i in range(16): e(f"v_fmac_f32 v{vP+16+i}, v32, v{vP+48+i}")
    for i in range(16): e(f"v_fmac_f32 v{vP+i}, v33, v{vP+16+i}")
    for i in range(16): e(f"v_fmac_f32_dpp v{vP+i}, v{vP+16+i}, v34 quad_perm:[1,0,3,2] row_mask:0xf bank_mask:0xf")
    for i in range(16): e(f"v_mul_f32 v{224+i}, v30, v{224+i}")
    for i in range(16): e(f"v_fma_f32 v{vP+i}, v{vP+i}, v{208+i}, -v{224+i}")
    for i in range(8): e(f"v_cvt_pk_bf16_f32 v{vP+16+i}, v{vP+2*i}, v{vP+2*i+1}")
    e("s_nop 1")
    tr("comb")
    Pq, Qq = R(vP+32, 16), R(vP+48, 16)
    e(f"{MF32} {Pq}, {R(vP+16,4)}, {R(vF,4)}, 0")
    e(f"{MF32} {Qq}, {R(vP+16,4)}, {R(vF+8,4)}, 0")
    e(f"{MF32} {Pq}, {R(vP+20,4)}, {R(vF+4,4)}, {Pq}")
    e(f"{MF32} {Qq}, {R(vP+20,4)}, {R(vF+12,4)}, {Qq}")
    e("s_nop 13")
    for i in range(0, 16, 2):
        e(f"v_sub_f32 v{vP+i}, v{vP+32+i}, v{vP+48+i+1}")
        e(f"v_add_f32 v{vP+i+1}, v{vP+48+i}, v{vP+32+i+1}")
    for i in range(8):
        e(f"v_cvt_pk_bf16_f32 v{vP+16+i}, v{vP+2*i}, v{vP+2*i+1}")
    tr("prest")
    for i in range(8):
        g, ee = i >> 1, i & 1
        e(f"s_add_u32 s{sT2}, s{sT1}, {(4*g+ee)*8192}")
        k.vmem(f"buffer_store_dword v{vP+16+i}, v10, s[12:15], s{sT2} offen", "st")
    tr("stored")
    tr.dump(6, sW, 94)
    stamp_end(k, stamps, 6, 0, sW, 3)
    e("s_endpgm")
    k.label(f"L_{name}_wt")
    e(f"s_sub_u32 s{sT0}, s2, {NMAIN}")
    e("s_waitcnt lgkmcnt(0)")
    k.srd(8, 28, 2048*289*2)
    k.srd(12, 30, 2048*289*2)
    k.srd(16, 6, WS_END)
    e("v_lshlrev_b32 v2, 4, v0")
    e(f"s_mul_i32 s{sT1}, s{sT0}, 18496")
    e(f"s_lshl_b32 s{sT2}, s{sW}, 10")
    for r in range(4):
        for mat in range(2):
            if r == 3:
                pass
            e(f"s_add_u32 m0, s{sT2}, {mat*24576 + r*6144}")
            e(f"s_add_u32 s26, s{sT1}, {r*6144}")
            e(f"buffer_load_dwordx4 v2, s[{8+4*mat}:{11+4*mat}], s26 offen lds")
    e("v_and_b32 v3, 31, v0")
    e("v_lshrrev_b32 v4, 5, v0")
    e("v_mul_u32_u24 v5, 578, v3")
    e("v_lshl_add_u32 v5, v4, 1, v5")
    e("v_lshlrev_b32 v6, 2, v3")
    e("v_lshl_add_u32 v6, v4, 13, v6")
    e(f"s_lshl_b32 s{sT1}, s{sT0}, 7")
    e(f"s_add_u32 s{sT1}, s{sT1}, {WS_WT}")
    for r in range(8, 12): e(f"v_mov_b32 v{r}, 0")
    e("v_lshrrev_b32 v7, 2, v0")
    e("v_lshlrev_b32 v7, 7, v7")
    e("v_and_b32 v12, 3, v0")
    e("v_lshl_add_u32 v7, v12, 4, v7")
    e(f"s_mul_i32 s26, s{sT0}, {FLAG_STRIDE}")
    e(f"s_add_u32 s26, s26, {WS_FLAG}")
    e("buffer_store_dwordx4 v[8:11], v7, s[16:19], s26 offen")
    e("s_waitcnt vmcnt(0)")
    e("s_barrier")
    for half in range(4):
        for i in range(6*half, 6*half+6):
            e(f"ds_read_u16 v{10+i}, v5 offset:{2+24*i}")
            e(f"ds_read_u16 v{40+i}, v5 offset:{24576+2+24*i}")
        e("s_waitcnt lgkmcnt(0)")
        for i in range(6*half, 6*half+6):
            e(f"v_lshl_or_b32 v{10+i}, v{40+i}, 16, v{10+i}")
            e(f"s_add_u32 s26, s{sT1}, {12*8192*i}")
            e(f"buffer_store_dword v{10+i}, v6, s[16:19], s26 offen")
    if wtt:
        e("v_and_b32 v70, 63, v0")
        emit_touch_wg(k, sW, 6, NMAIN, wtt, vb=72, lane="v70")
    stamp_end(k, stamps, 6, 0, sW, 0)
    if pack:
        e("s_endpgm")
        k.label(f"L_{name}_pack")
        e("v_and_b32 v0, 63, v0")
        e("s_and_b32 s21, s2, 7")
        e("s_lshr_b32 s22, s2, 3")
        e("s_lshl_b32 s22, s22, 1")
        e(f"s_add_u32 s22, s22, s{sW}")
        e("s_sub_u32 s22, s22, 6")
        e(f"s_mul_i32 s23, s{sW}, 12288")
        e(f"s_sub_u32 s23, s23, {6*12288 - 49152}")
        def mid():
            e("s_barrier")
            e(f"s_cmp_ge_u32 s2, {NMAIN}")
            e(f"s_cbranch_scc1 L_{name}_pk1b")
            e("s_barrier")
            k.label(f"L_{name}_pk1b")
        pack(k, 21, 22, 23, mid)
        stamp_end(k, stamps, 46, 0, sW, 0)
    k.label(f"L_{name}_end")
    e("s_endpgm")
    if pack: return k, (240, 100, 240), (NMAIN + NWT, 512, 49152 + 24576)
    return k, (240, 100, 240), (NMAIN + NWT, 384, 49152)

def gen_k2(name="col_kernel", stamps=False, pack=None, job0=64, njob=0, wpf=None, touch=None, trace=False):
    NMAIN, NG = 288, 32
    NP = 8 * ((njob + 3) // 4)
    if touch: NP = 90 if touch == 'gu' else 81
    k = Kern(name); e = k.e
    sW, sCol, sT0, sT1, sT2 = 20, 21, 23, 24, 25
    tr = Tracer(k, trace, 38)
    e(f"s_cmp_ge_u32 s2, {NMAIN + NG + NP}")
    e(f"s_cbranch_scc1 L_{name}_end")
    stamp_begin(k, stamps)
    e(f"s_load_dwordx2 s[6:7], s[0:1], {KA_WS}")
    e("v_lshrrev_b32 v1, 6, v0")
    e("v_and_b32 v0, 63, v0")
    e(f"v_readfirstlane_b32 s{sW}, v1")
    e(f"s_cmp_ge_u32 s2, {NMAIN}")
    e(f"s_cbranch_scc1 L_{name}_g")
    e(f"s_lshr_b32 s{sT0}, s2, 5")
    e(f"s_lshl_b32 s{sT0}, s{sT0}, 3")
    e(f"s_and_b32 s{sT1}, s2, 7")
    e(f"s_add_u32 s{sT0}, s{sT0}, s{sT1}")
    e("s_bfe_u32 s26, s2, 0x20003")
    e(f"s_and_b32 s27, s{sT0}, 1")
    e(f"s_lshr_b32 s28, s{sT0}, 1")
    e(f"s_lshl_b32 s{sCol}, s28, 2")
    e(f"s_add_u32 s{sCol}, s{sCol}, s26")
    e(f"s_lshl_b32 s{sCol}, s{sCol}, 1")
    e(f"s_add_u32 s{sCol}, s{sCol}, s27")
    e("s_mul_i32 s29, s27, 18432")
    e("s_lshl_b32 s28, s28, 9")
    e("s_add_u32 s29, s29, s28")
    e("s_lshl_b32 s26, s26, 2")
    e("s_add_u32 s29, s29, s26")
    e(f"s_mul_i32 s26, s{sW}, {16*36864}")
    e("s_add_u32 s29, s29, s26")
    e(f"s_add_u32 s29, s29, {WS_V}")
    e("v_lshlrev_b32 v2, 4, v0")
    e("v_lshrrev_b32 v5, 5, v0")
    e("v_and_b32 v35, 31, v0")
    e("v_lshlrev_b32 v3, 2, v35")
    e("v_lshl_add_u32 v3, v5, 8, v3")
    e(f"s_lshl_b32 s{sT0}, s{sCol}, 13")
    e("s_waitcnt lgkmcnt(0)")
    tr("karg")
    k.srd(12, 6, WS_END)
    vY = 40
    e(f"s_add_u32 s{sT1}, s{sT0}, {WS_Y}")
    e(f"s_add_u32 s{sT2}, s{sT0}, {WS_Y + 4096}")
    for j in range(8):
        k.vmem(f"buffer_load_dwordx4 {R(vY+4*j,4)}, v2, s[12:15], s{sT1 if j < 4 else sT2} offen offset:{(j&3)*1024}", ("y", j))
    vWt = 72
    e(f"s_lshl_b32 s{sT1}, s{sW}, 11")
    e(f"s_add_u32 s{sT1}, s{sT1}, s{sT0}")
    e(f"s_add_u32 s{sT1}, s{sT1}, {WS_WT}")
    for i in range(8):
        k.vmem(f"buffer_load_dword v{vWt+i}, v3, s[12:15], s{sT1} offen offset:{(4*(i>>1)+(i&1))*128}", "w")
    tr("issued")
    vM = 80
    e("v_bfe_u32 v4, v0, 1, 4")
    e(f"s_lshl_b32 s{sT1}, s{sW}, 4")
    e(f"v_add_u32 v4, s{sT1}, v4")
    e("v_and_b32 v6, 1, v0")
    e("v_cvt_f32_u32 v7, v4")
    e(f"v_mul_f32 v8, {fhex(1.0/64)}, v7")
    e("v_cvt_f32_u32 v9, v6")
    e("v_mul_f32 v9, 0x3e800000, v9")
    e("v_cvt_f32_u32 v36, v5")
    e("v_add_f32 v10, v36, v36")
    e("v_fma_f32 v9, v10, v8, v9")
    for jp in range(2):
        for u in range(8):
            j, t = 2*jp + (u >> 2), u & 3
            e(f"v_fmamk_f32 v{12+u}, v8, {fhex(8*j + 4*(t>>1) + (t&1))}, v9")
        for u in range(8): e(f"v_cos_f32 v{20+u}, v{12+u}")
        for u in range(8): e(f"v_sin_f32 v{12+u}, v{12+u}")
        e("s_nop 0")
        for u in range(8): e(f"v_cvt_pk_bf16_f32 v{vM+8*jp+u}, v{20+u}, v{12+u}")
    e("v_and_b32 v10, 1, v4")
    e("v_mul_u32_u24 v10, 0x8000, v10")
    e("v_lshl_or_b32 v10, v10, 16, v10")
    for u in range(16): e(f"v_xor_b32 v{vM+16+u}, v10, v{vM+u}")
    tr("M1")
    if trace: e("s_waitcnt vmcnt(8)"); tr("Yarr"); e("s_waitcnt vmcnt(0)"); tr("Warr")
    e(f"v_mul_f32 v8, {fhex(1.0/2048)}, v7")
    e("v_lshlrev_b32 v10, 31, v6")
    e("v_xor_b32 v8, v8, v10")
    e("v_mul_f32 v9, 4.0, v36")
    e("v_mul_f32 v9, v9, v8")
    for i in range(16): e(f"v_fmamk_f32 v{128+i}, v8, {fhex(8*(i>>2) + (i&3))}, v9")
    for i in range(16): e(f"v_cos_f32 v{112+i}, v{128+i}")
    for i in range(16): e(f"v_sin_f32 v{128+i}, v{128+i}")
    vF = 144
    e("v_cvt_f32_u32 v10, v35")
    e(f"v_mul_f32 v11, {fhex(1.0/32)}, v10")
    e("v_mul_f32 v12, 4.0, v36")
    e("v_mul_f32 v12, v12, v11")
    for t in range(8): e(f"v_fmamk_f32 v{14+t}, v11, {fhex(8*(t>>2) + (t&3))}, v12")
    for t in range(8): e(f"v_cos_f32 v{22+t}, v{14+t}")
    for t in range(8): e(f"v_sin_f32 v{14+t}, -v{14+t}")
    e("v_and_b32 v10, 1, v0")
    e("v_mul_u32_u24 v10, 0x8000, v10")
    e("v_lshl_or_b32 v10, v10, 16, v10")
    for t in range(4):
        e(f"v_cvt_pk_bf16_f32 v{vF+t}, v{22+2*t}, v{23+2*t}")
        e(f"v_cvt_pk_bf16_f32 v{vF+8+t}, v{14+2*t}, v{15+2*t}")
    for t in range(4):
        e(f"v_xor_b32 v{vF+4+t}, v10, v{vF+t}")
        e(f"v_xor_b32 v{vF+12+t}, v10, v{vF+8+t}")
    e(f"s_lshl_b32 s{sT1}, s{sW}, 11")
    e(f"v_add_u32 v30, s{sT1}, v2")
    e("v_mul_u32_u24 v31, 73728, v5")
    e("v_lshl_add_u32 v31, v35, 4, v31")
    stamp_mid(k, stamps, 0)
    tr("gen")
    D2 = R(160, 16)
    for j in range(8):
        k.wait(vm=("y", j))
        e(f"{MF32} {D2}, {R(vM+4*j,4)}, {R(vY+4*j,4)}, {'0' if j == 0 else D2}")
    stamp_mid(k, stamps, 1)
    k.wait(vm="w")
    if wpf: emit_wprefetch(k, sW, 4, "v0", 8, 1, 44, wpf)
    for i in range(8):
        e(f"v_lshlrev_b32 v{12+2*i}, 16, v{vWt+i}")
        e(f"v_and_b32 v{13+2*i}, 0xffff0000, v{vWt+i}")
    for i in range(8):
        xr, xi, wr, wi = 160+2*i, 161+2*i, 12+2*i, 13+2*i
        e(f"v_mul_f32 v{176+2*i}, v{xr}, v{wr}")
        e(f"v_mul_f32 v{177+2*i}, v{xr}, v{wi}")
    for i in range(8):
        xr, xi, wr, wi = 160+2*i, 161+2*i, 12+2*i, 13+2*i
        e(f"v_fma_f32 v{176+2*i}, -v{xi}, v{wi}, v{176+2*i}")
        e(f"v_fma_f32 v{177+2*i}, -v{xi}, v{wr}, -v{177+2*i}")
    for i in range(8): e(f"v_cvt_pk_bf16_f32 v{160+i}, v{176+2*i}, v{177+2*i}")
    tr("wmul")
    k.lds(f"ds_write_b128 v30, {R(160,4)}")
    k.lds(f"ds_write_b128 v30, {R(164,4)} offset:1024")
    k.wait(lg0=True)
    e("s_barrier")
    for j in range(8): k.lds(f"ds_read_b128 {R(vY+4*j,4)}, v2 offset:{1024*j}", ("a", j))
    tr("xchg")
    D3 = R(176, 16)
    for j in range(8):
        k.wait(lg=("a", j))
        e(f"{MF32} {D3}, {R(vY+4*j,4)}, {R(vM+4*j,4)}, {'0' if j == 0 else D3}")
    e("s_nop 13")
    for i in range(16): e(f"v_mul_f32 v{160+i}, v{176+i}, v{112+i}")
    for i in range(16): e(f"v_fmac_f32_dpp v{160+i}, v{176+i}, v{128+i} quad_perm:[1,0,3,2] row_mask:0xf bank_mask:0xf")
    for i in range(8): e(f"v_cvt_pk_bf16_f32 v{40+i}, v{160+2*i}, v{161+2*i}")
    e("s_nop 1")
    tr("twid")
    Pq, Qq = R(160, 16), R(176, 16)
    e(f"{MF32} {Pq}, {R(40,4)}, {R(vF,4)}, 0")
    e(f"{MF32} {Qq}, {R(40,4)}, {R(vF+8,4)}, 0")
    e(f"{MF32} {Pq}, {R(44,4)}, {R(vF+4,4)}, {Pq}")
    e(f"{MF32} {Qq}, {R(44,4)}, {R(vF+12,4)}, {Qq}")
    e("s_nop 13")
    for i in range(0, 16, 2):
        e(f"v_sub_f32 v{48+i}, v{160+i}, v{176+i+1}")
        e(f"v_add_f32 v{48+i+1}, v{176+i}, v{160+i+1}")
    for i in range(8): e(f"v_cvt_pk_bf16_f32 v{40+i}, v{48+2*i}, v{49+2*i}")
    tr("prest")
    for i in range(8):
        e(f"s_add_u32 s{sT2}, s29, {(4*(i>>1)+(i&1))*36864}")
        k.vmem(f"buffer_store_dword v{40+i}, v31, s[12:15], s{sT2} offen", "st")
    tr("stored")
    tr.dump(6, sW, 39)
    stamp_end(k, stamps, 6, 1, sW, 2)
    e("s_endpgm")
    k.label(f"L_{name}_g")
    if NP:
        e(f"s_cmp_ge_u32 s2, {NMAIN + NG}")
        e(f"s_cbranch_scc1 L_{name}_pack")
    e(f"s_cmp_ge_u32 s2, {NMAIN + 27}")
    e(f"s_cbranch_scc1 L_{name}_end")
    e(f"s_sub_u32 s{sT0}, s2, {NMAIN}")
    e(f"s_mul_i32 s{sT0}, s{sT0}, 12")
    e(f"s_mul_i32 s{sT1}, s{sW}, 3")
    e(f"s_add_u32 s{sT0}, s{sT0}, s{sT1}")
    e(f"s_mul_hi_u32 s26, s{sT0}, 0x71c71c8")
    e("s_mul_i32 s27, s26, 36")
    e(f"s_sub_u32 s27, s{sT0}, s27")
    e("s_cmp_ge_u32 s27, 18")
    e("s_cselect_b32 s28, 1, 0")
    e("s_mul_i32 s29, s28, 18")
    e("s_sub_u32 s27, s27, s29")
    e("v_and_b32 v2, 0x13, v0")
    e("v_bfe_u32 v3, v0, 2, 1")
    e("v_lshl_add_u32 v2, v3, 3, v2")
    e("v_bfe_u32 v3, v0, 3, 1")
    e("v_lshl_add_u32 v2, v3, 2, v2")
    e("s_lshl_b32 s26, s26, 5")
    e("v_add_u32 v2, s26, v2")
    e("v_cvt_f32_u32 v2, v2")
    e("v_lshrrev_b32 v3, 5, v0")
    e("s_lshl_b32 s27, s27, 4")
    e("s_add_u32 s27, s27, s28")
    e("s_add_u32 s27, s27, 1")
    e("v_lshl_add_u32 v3, v3, 3, s27")
    e("v_cvt_f32_u32 v3, v3")
    e("v_lshlrev_b32 v4, 4, v0")
    e(f"s_lshl_b32 s{sT1}, s{sT0}, 10")
    e(f"s_add_u32 s{sT1}, s{sT1}, {WS_G}")
    e("s_waitcnt lgkmcnt(0)")
    k.srd(12, 6, WS_END)
    for i in range(3):
        for t in range(4):
            e(f"v_add_f32 v{10+t}, {fhex(16*i + 2*t)}, v3")
            e(f"v_cmp_eq_f32 vcc, {fhex(288.0)}, v{10+t}")
            e(f"v_mul_f32 v{10+t}, v{10+t}, v2")
            e(f"v_mul_f32 v{10+t}, {fhex(1.0/576)}, v{10+t}")
            e(f"v_cos_f32 v{14+t}, v{10+t}")
            e(f"v_sin_f32 v{10+t}, v{10+t}")
            e(f"v_cndmask_b32 v18, 1.0, 0.5, vcc")
            e(f"v_mul_f32 v{14+t}, v18, v{14+t}")
            e(f"v_cndmask_b32 v{10+t}, v{10+t}, 0, vcc")
            e(f"v_cvt_pk_bf16_f32 v{20+4*i+t}, v{14+t}, v{10+t}")
        e(f"buffer_store_dwordx4 {R(20+4*i,4)}, v4, s[12:15], s{sT1} offen offset:{1024*i}")
    stamp_end(k, stamps, 6, 1, sW, 0)
    if NP:
        e("s_endpgm")
        k.label(f"L_{name}_pack")
    if touch:
        emit_touch_wg(k, sW, 4, NMAIN + NG, touch)
        stamp_end(k, stamps, 6, 1, sW, 0)
    elif NP:
        e("s_and_b32 s21, s2, 7")
        e(f"s_sub_u32 s22, s2, {NMAIN + NG}")
        e("s_lshr_b32 s22, s22, 3")
        e("s_lshl_b32 s22, s22, 2")
        e(f"s_add_u32 s22, s22, s{sW}")
        e(f"s_cmp_ge_u32 s22, {njob}")
        e(f"s_cbranch_scc1 L_{name}_end")
        e(f"s_add_u32 s22, s22, {job0}")
        e(f"s_mul_i32 s23, s{sW}, 12288")
        pack(k, 21, 22, 23, None)
        stamp_end(k, stamps, 46, 1, sW, 0)
    k.label(f"L_{name}_end")
    e("s_endpgm")
    return k, (192, 100, 192), (NMAIN + NG + NP, 256, 49152 if (NP and not touch) else 8192)

def gen_k3(name="inv_kernel", stamps=False, hc16=True, pack=None, job0=0, njob=0, wpf=None, touch=None):
    NMAIN = 192
    NP = 8 * ((njob + 2) // 3)
    if touch: NP = 120 if touch == 'gu' else 54
    k = Kern(name); e = k.e
    sW, sRG, sT, sT0, sT1, sT2 = 20, 21, 22, 23, 24, 25
    e(f"s_cmp_ge_u32 s2, {NMAIN + NP}")
    e(f"s_cbranch_scc1 L_{name}_end")
    stamp_begin(k, stamps)
    e(f"s_load_dwordx2 s[4:5], s[0:1], {KA_X}")
    e(f"s_load_dwordx2 s[6:7], s[0:1], {KA_WS}")
    e("v_lshrrev_b32 v1, 6, v0")
    e("v_and_b32 v0, 63, v0")
    e(f"v_readfirstlane_b32 s{sW}, v1")
    if NP:
        e(f"s_cmp_ge_u32 s2, {NMAIN}")
        e(f"s_cbranch_scc1 L_{name}_pack")
    e(f"s_lshr_b32 s{sT0}, s2, 3")
    e(f"s_mul_hi_u32 s{sT1}, s{sT0}, 0x55555556")
    e(f"s_mul_i32 s{sT}, s{sT1}, 3")
    e(f"s_sub_u32 s{sT}, s{sT0}, s{sT}")
    e(f"s_mul_i32 s{sT}, s{sT}, 3")
    e(f"s_add_u32 s{sT}, s{sT}, s{sW}")
    e(f"s_and_b32 s{sRG}, s2, 7")
    e(f"s_lshl_b32 s{sRG}, s{sRG}, 3")
    e(f"s_add_u32 s{sRG}, s{sRG}, s{sT1}")
    e("v_lshlrev_b32 v2, 4, v0")
    e(f"s_mul_i32 s26, s{sRG}, 36864")
    e(f"s_add_u32 s27, s26, {WS_V}")
    e(f"s_mul_i32 s28, s{sT}, 36864")
    e(f"s_add_u32 s28, s28, {WS_G}")
    e("v_lshrrev_b32 v5, 5, v0")
    e("v_and_b32 v6, 31, v0")
    e("s_waitcnt lgkmcnt(0)")
    k.srd(8, 4, S*D*2)
    k.srd(12, 6, WS_END)
    order = [st for j in range(18) for st in (j, 18 + j)]
    e(f"s_mul_i32 s29, s{sW}, 12288")
    e("s_add_u32 s27, s27, s29")
    for i in range(12):
        if i % 4 == 0:
            e(f"s_add_u32 m0, s29, {1024*i}")
            e(f"s_add_u32 s{sT0}, s27, {1024*i}")
        k.vmem(f"buffer_load_dwordx4 v2, s[12:15], s{sT0} offen offset:{(i&3)*1024} lds", "V")
    def ld(st):
        e(f"s_add_u32 s{sT1}, s28, {(st>>2)*4096}")
        k.vmem(f"buffer_load_dwordx4 {R(100+4*st,4)}, v2, s[12:15], s{sT1} offen offset:{(st&3)*1024}", ("v", st))
    for st in order[:8]: ld(st)
    e("v_mul_u32_u24 v7, 73728, v6")
    e("v_lshl_add_u32 v7, v5, 4, v7")
    e(f"s_mul_i32 s{sT0}, s{sRG}, 1152")
    e(f"s_lshl_b32 s{sT1}, s{sT}, 6")
    e(f"s_add_u32 s{sT0}, s{sT0}, s{sT1}")
    for u in range(4):
        k.vmem(f"buffer_load_dwordx4 {R(16+4*u,4)}, v7, s[8:11], s{sT0} offen offset:{(u>>1)*576 + (u&1)*32}", "x")
    e("v_lshlrev_b32 v8, 2, v6")
    e(f"s_lshl_b32 s{sT0}, s{sRG}, 7")
    e(f"s_add_u32 s{sT0}, s{sT0}, {WS_MEAN}")
    k.vmem(f"buffer_load_dword v9, v8, s[12:15], s{sT0} offen", "x")
    for st in order[8:]: ld(st)
    if wpf: emit_wprefetch(k, sW, 3, "v0", 3, 1, 44, wpf)
    stamp_mid(k, stamps, 0)
    k.wait(vm="V")
    e("s_barrier")
    O, E = 32, 48
    XM = 64
    RING = [96, 244, 248, 252, 12]
    def rd(n): k.lds(f"ds_read_b128 {R(RING[n % 5],4)}, v2 offset:{1024*order[n]}", ("b", n))
    for n in range(4): rd(n)
    for n, st in enumerate(order):
        k.wait(vm=("v", st), lg=("b", n))
        acc = R(O if st < 18 else E, 16)
        e(f"{MF32} {acc}, {R(100+4*st,4)}, {R(RING[n % 5],4)}, {'0' if st in (0, 18) else acc}")
        if n + 4 < 36: rd(n + 4)
        if 10 <= n < 26:
            r = n - 10
            e(f"v_lshlrev_b32 v{XM+2*r}, 16, v{16+r}")
            e(f"v_and_b32 v{XM+2*r+1}, 0xffff0000, v{16+r}")
            e(f"v_sub_f32 v{XM+2*r}, v{XM+2*r}, v9")
            e(f"v_sub_f32 v{XM+2*r+1}, v{XM+2*r+1}, v9")
    stamp_mid(k, stamps, 1)
    if hc16:
        e("v_and_b32 v10, 15, v0")
        e("v_lshlrev_b32 v10, 4, v10")
        e("v_lshl_add_u32 v10, v5, 8, v10")
        e("v_bfe_u32 v11, v0, 4, 1")
        e("v_mul_u32_u24 v11, 18432, v11")
        e("v_add_u32 v10, v10, v11")
        e(f"s_lshl_b32 s{sT0}, s{sT}, 10")
        offs = [0, 512]; hi = 9*1024
    else:
        e("v_mov_b32 v10, v2")
        e(f"s_lshl_b32 s{sT0}, s{sT}, 11")
        offs = [0, 1024]; hi = 18*1024
    e(f"s_add_u32 s{sT0}, s{sT0}, s26")
    e(f"s_add_u32 s{sT0}, s{sT0}, {WS_HC}")
    e(f"s_add_u32 s{sT1}, s{sT0}, {hi}")
    e(f"s_mul_i32 s{sT2}, s{sRG}, 9")
    e(f"s_add_u32 s{sT2}, s{sT2}, s{sT}")
    e(f"s_lshl_b32 s{sT2}, s{sT2}, 8")
    e(f"s_add_u32 s{sT2}, s{sT2}, {WS_SS}")
    e("v_lshlrev_b32 v11, 2, v0")
    e("s_nop 4")
    for i in range(16):
        e(f"v_add_f32 v{XM+i}, v{XM+i}, v{O+i}")
        e(f"v_sub_f32 v{XM+16+i}, v{XM+16+i}, v{O+i}")
    for i in range(16):
        e(f"v_add_f32 v{XM+i}, v{XM+i}, v{E+i}")
        e(f"v_add_f32 v{XM+16+i}, v{XM+16+i}, v{E+i}")
    for i in range(16): e(f"v_cvt_pk_bf16_f32 v{16+i}, v{XM+2*i}, v{XM+2*i+1}")
    for u in range(4):
        k.vmem(f"buffer_store_dwordx4 {R(16+4*u,4)}, v10, s[12:15], s{sT0 if u < 2 else sT1} offen offset:{offs[u&1]}", "st")
    e("v_mov_b32 v12, 0"); e("v_mov_b32 v13, 0")
    for i in range(16): e(f"v_dot2c_f32_bf16 v{12+(i&1)}, v{16+i}, v{16+i}")
    e("s_nop 2")
    e("v_add_f32 v12, v12, v13")
    k.vmem(f"buffer_store_dword v12, v11, s[12:15], s{sT2} offen", "st")
    stamp_end(k, stamps, 6, 2, sW, 2)
    if NP:
        e("s_endpgm")
        k.label(f"L_{name}_pack")
    if touch:
        emit_touch_wg(k, sW, 3, NMAIN, touch, nper=4)
        stamp_end(k, stamps, 6, 2, sW, 0)
    elif NP:
        e("s_and_b32 s21, s2, 7")
        e(f"s_sub_u32 s22, s2, {NMAIN}")
        e("s_lshr_b32 s22, s22, 3")
        e("s_mul_i32 s22, s22, 3")
        e(f"s_add_u32 s22, s22, s{sW}")
        e(f"s_cmp_ge_u32 s22, {njob}")
        e(f"s_cbranch_scc1 L_{name}_end")
        e(f"s_add_u32 s22, s22, {job0}")
        e(f"s_mul_i32 s23, s{sW}, 12288")
        pack(k, 21, 22, 23, None)
        stamp_end(k, stamps, 46, 2, sW, 0)
    k.label(f"L_{name}_end")
    e("s_endpgm")
    return k, (256, 100, 256), (NMAIN + NP, 192, 36864)
```

```python
from dsl import *
from layout import *
from k123 import stamp_begin, stamp_mid, stamp_end, R
from k4b import wg_map
import math

SLOT = 36864
MF32 = "v_mfma_f32_32x32x16_bf16"
MF16 = "v_mfma_f32_16x16x32_bf16"
P2ORDER = ["A0", "A1", "A2", "B0", "B1", "B2", "A3", "B3", "N"]

def gen_k4f(name="ffn_kernel", P=5, X=2, NF=9, stamps=False, dist=3, mapping=2, kidx=3, budget=22, pf=True,
            pub_d=40, poll_d=30, chk_d=24, hpub_d=40, hpoll_d=24, hchk_d=24, st_sp=5, spin_max=200000, trace=False, leadrate=1, order=None, dmar=3, hot_lo=0, hot_hi=0, hot_bud=32, xdma=False, xhx=False, lin=False, wev=2, hc0=18, rpoll=(905, 915, 950), tch=(100, 170, 240, 300, 360, 420), trlead=False, dmaf='', nobar=0, fast=0, ssg=100, outf=''):
    order = order or P2ORDER
    k = Kern(name); e = k.e
    SGU, SD, SW, SO, SU = 12, 16, 20, 24, 4
    P1 = [(0, 0, 0), (0, 1, 0), (0, 0, 1), (0, 1, 1)] + [(b, m_, hf) for b in (1, 2, 3) for m_ in (0, 1) for hf in (0, 1)] + [(4, 0, 0), (4, 1, 0)]
    sW, sMT, sFS, sRG = 28, 29, 30, 31
    sOff, sLB1, sLB2, sLB3, sLBN, sLBN3 = 32, 33, 34, 35, 36, 37
    sColW, sColN = 38, 39
    sRow = 40
    sRowN = 44
    sHC, sP, sPR, sT0, sT1, sHo, sSp = 46, 47, 48, 49, 50, 51, 52
    sFH, sFHp, sFR, sFRo, sHXo, sHXp, sHR, sOut, sMn, sSpin = 53, 54, 55, 56, 57, 60, 61, 62, 63, 64
    vW, vN, vD, vDN = 1, 5, 9, 240
    vA = 13
    vAN = 21
    vL16, vC1, vC2, vR = 23, 24, 25, 26
    vAN2 = 27
    vT = 28
    NT = 12
    vH = 40
    ACC = [112, 176]
    vSt, vFl, vPo, vPoll, vFv, vHo, vOo, vMo = 244, 245, 246, 247, 248, 249, 250, 252
    aHP = 144
    aF = 216
    assert aF + 4*NF <= 256
    e("s_cmp_ge_u32 s2, 256")
    e(f"s_cbranch_scc1 L_{name}_end")
    stamp_begin(k, stamps)
    e(f"s_load_dwordx4 s[4:7], s[0:1], {KA_WG}")
    e(f"s_load_dwordx4 s[8:11], s[0:1], {KA_WD}")
    e(f"s_load_dwordx2 s[66:67], s[0:1], {KA_WS}")
    e("v_lshrrev_b32 v28, 6, v0")
    e("v_and_b32 v0, 63, v0")
    e(f"v_readfirstlane_b32 s{sW}, v28")
    wg_map(e, mapping, sFS, sMT, sT0, sT1)
    e(f"s_lshl_b32 s{sRG}, s{sMT}, 2")
    e(f"s_add_u32 s{sRG}, s{sRG}, s{sW}")
    e("v_lshrrev_b32 v28, 3, v0")
    e("v_and_b32 v29, 7, v0")
    e("v_lshrrev_b32 v30, 2, v0")
    e("v_and_b32 v31, 4, v30")
    e("v_xor_b32 v29, v29, v31")
    e("v_lshlrev_b32 v29, 4, v29")
    e(f"v_mul_u32_u24 v{vW}, 9216, v28")
    e(f"v_add_u32 v{vW}, v{vW}, v29")
    if lin: e(f"v_lshlrev_b32 v{vW}, 4, v0")
    for i in range(1, 4): e(f"v_add_u32 v{vW+i}, {i*(8*9216-1024)}, v{vW}")
    e(f"v_lshlrev_b32 v{vL16}, 4, v0")
    e(f"s_lshr_b32 s68, s{sFS}, 1")
    e(f"s_and_b32 s69, s{sFS}, 1")
    e("s_mul_i32 s70, s68, 576")
    e("s_mul_i32 s71, s69, 320")
    e("s_add_u32 s71, s71, s70")
    e(f"s_and_b32 s{sT0}, s{sW}, 1")
    e(f"s_mul_i32 s{sT1}, s{sW}, {72*9216}")
    e(f"s_lshl_b32 s{sColW}, s71, 1")
    e(f"s_add_u32 s{sColW}, s{sColW}, s{sT1}")
    e(f"s_mul_i32 s{sLB1}, s{sW}, 9216")
    e(f"s_mul_i32 s{sHC}, s{sRG}, 36864")
    e(f"s_add_u32 s{sHC}, s{sHC}, {WS_HC}")
    e("v_lshrrev_b32 v32, 5, v0")
    e("v_bfe_u32 v33, v0, 2, 2")
    e("v_lshl_add_u32 v34, v32, 3, v33")
    e("v_bfe_u32 v35, v0, 4, 1")
    e("v_lshlrev_b32 v35, 5, v35")
    e("v_and_b32 v36, 1, v0")
    e("v_lshl_add_u32 v35, v36, 4, v35")
    e("v_bfe_u32 v36, v0, 1, 1")
    e("v_lshl_add_u32 v35, v36, 3, v35")
    e(f"v_lshl_add_u32 v{vAN}, v34, 6, v35")
    e(f"v_add_u32 v{vAN+1}, {SLOT}, v{vAN}")
    e(f"v_add_u32 v{vAN2}, {((18 + order.index('N')) % 4)*SLOT}, v{vAN}")
    e("v_lshrrev_b32 v36, 1, v33")
    e("v_lshl_add_u32 v35, v36, 6, v35")
    e(f"v_lshl_add_u32 v{vA}, v34, 7, v35")
    e(f"v_xor_b32 v{vA+1}, 64, v{vA}")
    for s in range(1, 4):
        e(f"v_add_u32 v{vA+2*s}, {s*SLOT}, v{vA}")
        e(f"v_add_u32 v{vA+2*s+1}, {s*SLOT}, v{vA+1}")
    e("s_waitcnt lgkmcnt(0)")
    k.srd(SGU, 4, D*F*2)
    k.srd(SW, 66, WS_END)
    SR = f"s[{SW}:{SW+3}]"
    NCH = 27
    k.tr = []
    def tr(label):
        if not trace or len(k.tr) >= 64: return
        if trlead and not (label.startswith("L") or label == "end"): return
        if not trlead and label.startswith("L"): return
        e("s_memtime s[58:59]")
        e("s_waitcnt lgkmcnt(0)")
        e("s_sub_u32 s58, s58, s92")
        e(f"v_writelane_b32 v251, s58, {len(k.tr)}")
        k.tr.append(label)

    def dma_items(c):
        slot = c % 4
        it = []
        for i in range(9):
            grp, r = divmod(i, 4)
            if c < 16:
                b, mat, hf = P1[c]
                m0, so = (sLB1, slot*SLOT + 4096*grp), (sColW, 128*b + (288*hf + 32*grp)*9216)
                v, srd = vW, (SU if mat else SGU)
            elif c < 18:
                m0, so = (sLB1, slot*SLOT + 4096*grp), (sColN, 64*grp*9216)
                v, srd = vN, (SU if P1[c][1] else SGU)
            else:
                nm = order[c-18]
                srd = SD
                if nm == "N":
                    v = vDN
                    if grp < 2: m0, so = (sLBN, slot*SLOT + 4096*grp), (sRowN, 64*grp*1152)
                    else: m0, so = (sLBN3, slot*SLOT), (sRowN+1, 0)
                else:
                    v = vD; side = 2*(nm[0] == "B"); db = int(nm[1])
                    if grp < 2: m0, so = (sLB2, slot*SLOT + 4096*grp), (sRow+side, 128*db + 32*grp*1152)
                    else: m0, so = (sLB3, slot*SLOT + 32768), (sRow+side+1, 128*db)
            if r == 0:
                it.append(("s", f"s_add_u32 m0, s{m0[0]}, {m0[1]}"))
                it.append(("s", f"s_add_u32 s{sOff}, s{so[0]}, {so[1]}"))
            it.append(("m", f"buffer_load_dwordx4 v{v+r}, s[{srd}:{srd+3}], s{sOff} offen offset:{1024*r}{dmaf} lds", ("dma", c)))
        return it
    def hc_items(kks):
        it = []
        for n_, kk in enumerate(kks):
            if n_ == 0 or kk % 4 == 0: it.append(("s", f"s_add_u32 s{sHo}, s{sHC}, {4096*(kk//4)}"))
            it.append(("m", f"buffer_load_dwordx4 a[{4*kk}:{4*kk+3}], v{vL16}, {SR}, s{sHo} offen offset:{1024*(kk%4)}", ("hc", kk)))
        return it
    def emit_item(it):
        if it[0] == "s": e(it[1])
        elif xdma and " lds" in it[1] and it[2][1] > 3: k.vm.append(it[2]); k.vm_done = len(k.vm)
        else: k.vmem(it[1], it[2])
    tr("L-karg")
    for it in dma_items(0): emit_item(it)
    tr("L-dma0")
    for it in hc_items(range(0, hc0)): emit_item(it)
    tr("L-hc0")
    if pf:
        e("s_bfe_u32 s77, s2, 0x10003")
        e("s_lshl_b32 s77, s77, 2")
        e(f"s_add_u32 s77, s77, s{sW}")
        k.prefetch_code(name, f"L_{name}_fin", 72, 39, 253, 1, part=(77, 8192))
    k.srd(SU, 6, D*F*2)
    e("v_lshlrev_b32 v39, 2, v0")
    e(f"s_mul_i32 s{sSpin}, s{sRG}, 2304")
    e(f"s_add_u32 s{sSpin}, s{sSpin}, {WS_SS}")
    real_lines = k.lines; k.lines = []
    k.srd(SD, 8, D*F*2)
    k.srd(SO, 10, S*D*2)
    e(f"v_mul_u32_u24 v{vD}, 1152, v28")
    e(f"v_add_u32 v{vD}, v{vD}, v29")
    e("v_and_b32 v31, 3, v0")
    e("v_lshlrev_b32 v31, 4, v31")
    e(f"v_mul_u32_u24 v{vN}, 9216, v30")
    e(f"v_add_u32 v{vN}, v{vN}, v31")
    e(f"v_mul_u32_u24 v{vDN}, 1152, v30")
    e(f"v_add_u32 v{vDN}, v{vDN}, v31")
    for i in range(1, 4):
        e(f"v_add_u32 v{vN+i}, {i*(16*9216-1024)}, v{vN}")
        e(f"v_add_u32 v{vD+i}, {i*(8*1152-1024)}, v{vD}")
        e(f"v_add_u32 v{vDN+i}, {i*(16*1152-1024)}, v{vDN}")
    e("s_lshl_b32 s72, s69, 5")
    e("s_add_u32 s72, s72, s70")
    e("s_add_u32 s72, s72, 256")
    e("s_xor_b32 s65, s69, 1")
    e("s_mul_i32 s73, s65, 320")
    e("s_add_u32 s73, s73, s70")
    e("s_lshl_b32 s74, s65, 5")
    e("s_add_u32 s74, s74, s70")
    e("s_add_u32 s74, s74, 256")
    e(f"s_lshl_b32 s{sColN}, s72, 1")
    e(f"s_add_u32 s{sColN}, s{sColN}, s{sT1}")
    e(f"s_add_u32 s{sColN}, s{sColN}, s{sT1}")
    e("s_mul_i32 s75, s69, 640")
    e("s_lshl_b32 s76, s69, 6")
    e("s_add_u32 s76, s76, 512")
    for i, (f, sh) in enumerate([(71, 6), (72, 3), (73, 6), (74, 3)]):
        e(f"s_lshl_b32 s{sRow+i}, s{sW}, {sh}")
        e(f"s_add_u32 s{sRow+i}, s{sRow+i}, s{f}")
        e(f"s_mul_i32 s{sRow+i}, s{sRow+i}, 1152")
        e(f"s_add_u32 s{sRow+i}, s{sRow+i}, s75")
    e(f"s_cmp_lt_u32 s{sW}, 2")
    e(f"s_cselect_b32 s{sRowN}, s71, s73")
    e(f"s_cselect_b32 s{sRowN+1}, s72, s74")
    e(f"s_cselect_b32 s{sLBN}, 0, 18432")
    for i, sh in ((0, 7), (1, 4)):
        e(f"s_lshl_b32 s65, s{sT0}, {sh}")
        e(f"s_add_u32 s{sRowN+i}, s{sRowN+i}, s65")
        e(f"s_mul_i32 s{sRowN+i}, s{sRowN+i}, 1152")
        e(f"s_add_u32 s{sRowN+i}, s{sRowN+i}, s76")
    e(f"s_lshl_b32 s65, s{sT0}, 10")
    e(f"s_add_u32 s{sLBN3}, s{sLBN}, s65")
    e(f"s_add_u32 s{sLBN3}, s{sLBN3}, 16384")
    e(f"s_lshl_b32 s65, s{sT0}, 13")
    e(f"s_add_u32 s{sLBN}, s{sLBN}, s65")
    e(f"s_lshl_b32 s{sLB2}, s{sW}, 13")
    e(f"s_lshl_b32 s{sLB3}, s{sW}, 10")
    e(f"s_lshl_b32 s{sPR}, s{sRG}, 1")
    e(f"s_add_u32 s{sPR}, s{sPR}, s69")
    e(f"s_mul_i32 s{sPR}, s{sPR}, {9*16384}")
    e(f"s_add_u32 s{sPR}, s{sPR}, {WS_P}")
    e(f"s_lshl_b32 s{sP}, s68, 8")
    e(f"s_add_u32 s{sP}, s{sP}, s{sPR}")
    e("s_lshl_b32 s65, s68, 11")
    e(f"s_add_u32 s{sPR}, s{sPR}, s65")
    e(f"s_mul_i32 s65, s{sRG}, {FLAG_STRIDE}")
    e(f"s_add_u32 s65, s65, {WS_FLAG}")
    e(f"s_mul_i32 s{sFH}, s{sFS}, 640")
    e(f"s_add_u32 s{sFH}, s{sFH}, s65")
    e(f"s_xor_b32 s{sFHp}, s{sFS}, 1")
    e(f"s_mul_i32 s{sHXp}, s{sFHp}, 18432")
    e(f"s_mul_i32 s{sFHp}, s{sFHp}, 640")
    e(f"s_add_u32 s{sFHp}, s{sFHp}, s65")
    e(f"s_add_u32 s{sFR}, s65, s75")
    e(f"s_add_u32 s{sFR}, s{sFR}, {80*128}")
    e(f"s_lshl_b32 s{sFRo}, s68, 2")
    e(f"s_add_u32 s{sFRo}, s{sFRo}, s{sFR}")
    e(f"s_mul_i32 s65, s{sRG}, {16*18432}")
    e(f"s_add_u32 s65, s65, {WS_HX}")
    e(f"s_add_u32 s{sHXp}, s{sHXp}, s65")
    e(f"s_mul_i32 s{sHXo}, s{sFS}, 18432")
    e(f"s_add_u32 s{sHXo}, s{sHXo}, s65")
    e(f"s_lshl_b32 s{sHR}, s68, 6")
    e(f"s_add_u32 s{sHR}, s{sHR}, s{sHC}")
    e(f"s_mul_i32 s{sOut}, s68, {4*73728}")
    e(f"s_mul_i32 s65, s{sRG}, 1152")
    e(f"s_add_u32 s{sOut}, s{sOut}, s65")
    e(f"s_lshl_b32 s{sMn}, s68, 4")
    e(f"s_lshl_b32 s65, s{sRG}, 7")
    e(f"s_add_u32 s{sMn}, s{sMn}, s65")
    e(f"s_add_u32 s{sMn}, s{sMn}, {WS_MEAN}")
    e("v_and_b32 v32, 3, v0")
    e("v_bfe_u32 v33, v0, 2, 2")
    e("v_bfe_u32 v34, v0, 4, 1")
    e("v_lshrrev_b32 v35, 5, v0")
    e(f"v_lshlrev_b32 v{vSt}, 4, v32")
    e(f"v_lshl_add_u32 v{vHo}, v33, 9, v{vSt}")
    e(f"v_lshl_add_u32 v{vHo}, v34, 3, v{vHo}")
    e(f"v_lshl_add_u32 v{vHo}, v35, 11, v{vHo}")
    e(f"v_lshl_add_u32 v{vSt}, v35, 6, v{vSt}")
    e("v_bfe_u32 v36, v0, 2, 3")
    e(f"v_lshl_add_u32 v{vSt}, v36, 11, v{vSt}")
    e(f"v_mul_u32_u24 v{vOo}, 73728, v32")
    e(f"v_lshl_add_u32 v{vOo}, v33, 4, v{vOo}")
    e(f"v_lshl_add_u32 v{vOo}, v34, 3, v{vOo}")
    e(f"v_lshl_add_u32 v{vMo}, v35, 30, v{vOo}")
    e(f"v_lshl_add_u32 v{vOo}, v35, 6, v{vOo}")
    e("v_and_b32 v36, 7, v0")
    e(f"v_lshlrev_b32 v{vPo}, 2, v36")
    e("v_cmp_eq_u32 vcc, 0, v0")
    e("v_bfrev_b32 v36, 1")
    e(f"v_mov_b32 v{vFv}, 1")
    e(f"v_cndmask_b32 v{vFl}, v36, 0, vcc")
    vTch, vTcg, sTch, STG = (251 if not trace else 255), 254, 96, 8
    if any(x is not None for x in tch):
        e(f"s_lshl_b32 s78, s{sMT}, 1")
        e("s_add_u32 s78, s78, s69")
        e("s_lshl_b32 s78, s78, 2")
        e(f"s_add_u32 s78, s78, s{sW}")
        e("s_mul_i32 s79, s68, 1152")
        for i, (u0, cnt_, col) in enumerate([(0, 18, 2), (20, 18, 3), (40, 9, 4)]):
            e(f"s_sub_u32 s65, s78, {u0}")
            e("s_cmp_ge_u32 s65, 9")
            e(f"s_cselect_b32 s{sTch+i}, {640 - 9*64*9216}, 0")
            e(f"s_mul_i32 s77, s65, {64*9216}")
            e(f"s_add_u32 s{sTch+i}, s{sTch+i}, s77")
            e(f"s_add_u32 s{sTch+i}, s{sTch+i}, s79")
            e(f"s_add_u32 s{sTch+i}, s{sTch+i}, {128*col}")
            e(f"s_cmp_lt_u32 s65, {cnt_}")
            e(f"s_cselect_b32 s{sTch+i}, s{sTch+i}, 0x40000000")
        e(f"s_mul_i32 s79, s68, {576*1152}")
        for i in range(3):
            e(f"s_sub_u32 s65, s78, {52 + 16*i}")
            e(f"s_add_u32 s77, s65, {14*i}")
            e("s_lshl_b32 s77, s77, 14")
            e(f"s_add_u32 s{sTch+3+i}, s77, s79")
            e(f"s_cmp_lt_u32 s65, {14 if i < 2 else 13}")
            e(f"s_cselect_b32 s{sTch+3+i}, s{sTch+3+i}, 0x40000000")
        e(f"v_lshlrev_b32 v{vTch}, 8, v0")
        e(f"v_mul_u32_u24 v{vTcg}, 9216, v0")
    dl = [x.strip() for x in k.lines]; k.lines = real_lines
    defer = []
    i_ = 0
    while i_ < len(dl):
        grp = [dl[i_]]; i_ += 1
        if grp[0].startswith(("s_cmp", "s_bitcmp")):
            while i_ < len(dl) and dl[i_].startswith("s_cselect"): grp.append(dl[i_]); i_ += 1
        defer.append(grp)
    lead = hc_items(range(hc0, 18)) + dma_items(1) + dma_items(2) + hc_items(range(18, 36))
    lead += [("m", f"buffer_load_dword v{vH+t}, v39, {SR}, s{sSpin} offen offset:{256*t}", "ss") for t in range(9)]
    lead += dma_items(3)

    mf = []
    Q = [112, 144, 176, 208]
    def accP1(b, mat):
        if b == 4: return Q[0] + 16*mat
        return Q[3 - b % 2] if mat else Q[b % 2]
    acc2 = {0: Q[3], 1: Q[1], 2: Q[2], 3: Q[0], 4: Q[3]}
    last_m = {}
    for c in range(NCH):
        slot = c % 4
        if c < 16:
            b, mat, hf = P1[c]
            for j in range(18):
                for t in (0, 1):
                    off = j*2048
                    last_m[("gu"[mat], b, t)] = len(mf)
                    mf.append(dict(c=c, rd=[(vA+2*slot+t, off), (vA+2*slot+t, off+512)], B=("hc", 18*hf+j), D=accP1(b, mat) + 16*t, first=(hf == 0 and j == 0), own=("g", b)))
        elif c < 18:
            mat = P1[c][1]
            for j in range(36):
                off = j*1024
                last_m[("gu"[mat], 4, 0)] = len(mf)
                mf.append(dict(c=c, rd=[(vAN+slot, off), (vAN+slot, off+256)], B=("hc", j), D=accP1(4, mat), first=(j == 0), own=("g", 4)))
        else:
            nm = order[c-18]
            if nm == "N":
                for side in (0, 1):
                    for j in range(18):
                        off = side*18432 + j*1024
                        last_m[("o", 4, 0)] = len(mf)
                        mf.append(dict(c=c, rd=[(vAN2, off), (vAN2, off+256)], B=("hp" if side else "h", j), D=acc2[4], first=(side == 0 and j == 0), own=("o", 4)))
            else:
                db = int(nm[1]); isB = nm[0] == "B"
                seq = [(j, t) for j in range(18) for t in (0, 1)]
                if isB and nm != "B0": seq = [(j, t) for t in (0, 1) for j in range(18)]
                for (j, t) in seq:
                    off = j*2048
                    last_m[("o", db, t)] = len(mf)
                    mf.append(dict(c=c, rd=[(vA+2*slot+t, off), (vA+2*slot+t, off+512)], B=("hp" if isB else "h", j), D=acc2[db] + 16*t, first=(not isB and j == 0), own=("o", db)))
    NM = len(mf); assert NM == 972
    def breg(B):
        kind, j = B
        if kind == "hc": return f"a[{4*j}:{4*j+3}]"
        if kind == "hp": return f"a[{aHP+4*j}:{aHP+4*j+3}]"
        return R(vH + 4*j, 4)

    class Op:
        __slots__ = ("txt", "kind", "deps", "done", "prio", "min_gap", "tag", "cost", "soft")
        def __init__(s, txt, kind="v", deps=(), min_gap=0, prio=0, tag=None):
            s.txt, s.kind, s.deps, s.min_gap, s.prio, s.tag = txt, kind, list(deps), min_gap, prio, tag
            s.done = None; s.soft = 0
            s.cost = 8 if kind == "x" else (5 if kind == "m" or (kind == "v" and (txt.startswith("v_fma_") or txt.startswith("v_cvt_pk") or "0x" in txt)) else 4)
    ops = []
    c1 = -2.0 * math.log2(math.e) * math.sqrt(2.0 / math.pi); c2 = c1 * 0.044715
    chain = [("w", "ss")] + [f"v_add_f32 v{vH}, v{vH}, v{vH+t}" for t in range(1, 9)]
    chain += [f"v_mov_b32 v{vH+1}, v{vH}", None, f"v_permlane32_swap_b32 v{vH}, v{vH+1}", None,
              f"v_add_f32 v{vH}, v{vH}, v{vH+1}", f"v_mov_b32 v{vR}, {fhex(1e-5)}", f"v_fmac_f32 v{vR}, {fhex(1.0/576)}, v{vH}", None,
              ("x", f"v_rsq_f32 v{vH+3}, v{vR}"), None,
              f"v_mul_f32 v{vC1}, {fhex(c1)}, v{vH+3}", f"v_mul_f32 v{vH+4}, v{vH+3}, v{vH+3}",
              f"v_mul_f32 v{vH+4}, v{vH+4}, v{vH+3}", f"v_mul_f32 v{vC2}, {fhex(c2)}, v{vH+4}"]
    prev = None; skip = 0
    for it in chain:
        if it is None: skip = 1; continue
        if isinstance(it, tuple) and it[0] == "w": o = Op(None, "vmwait", tag=it[1], min_gap=ssg)
        elif isinstance(it, tuple): o = Op(it[1], "x")
        else: o = Op(it, "v")
        if prev is not None: o.deps = [(prev, skip)]
        o.prio = -1; ops.append(o); prev = o; skip = 0
    stats_last = prev
    tfree = {}; tc = [0]; hdone = {}; owner_ops = {}
    def gelu(b, t, pr0):
        AG, AU = accP1(b, 0) + 16*t, accP1(b, 1) + 16*t
        mg = last_m[("g", b, t)] + 4; mu = last_m[("u", b, t)] + 4
        Hb = vH + 16*b + 8*t
        lst = []; res = []
        for i in range(16):
            G, U = AG + i, AU + i
            T = vT + tc[0] % NT; tc[0] += 1
            pr = pr0 + i
            d0 = [(stats_last, 1)] + ([(tfree[T], 0)] if T in tfree else [])
            m1 = Op(f"v_mul_f32 v{T}, v{G}, v{G}", deps=d0, min_gap=mg, prio=pr)
            f1 = Op(f"v_fma_f32 v{T}, v{T}, v{vC2}, v{vC1}", deps=[(m1, 0)], prio=pr)
            m2 = Op(f"v_mul_f32 v{T}, v{T}, v{G}", deps=[(f1, 0)], prio=pr)
            ex = Op(f"v_exp_f32 v{T}, v{T}", "x", deps=[(m2, 0)], prio=pr)
            f2 = Op(f"v_fma_f32 v{T}, v{T}, v{vR}, v{vR}", deps=[(ex, 1)], prio=pr)
            rc = Op(f"v_rcp_f32 v{T}, v{T}", "x", deps=[(f2, 0)], prio=pr)
            m3 = Op(f"v_mul_f32 v{G}, v{G}, v{T}", deps=[(rc, 1)], prio=pr)
            m4 = Op(f"v_mul_f32 v{U}, v{U}, v{G}", deps=[(m3, 0)], min_gap=mu, prio=pr)
            tfree[T] = m3; lst += [m1, f1, m2, ex, f2, rc, m3, m4]; res.append(m4)
            if i & 1:
                cv = Op(f"v_cvt_pk_bf16_f32 v{Hb + i//2}, v{U-1}, v{U}", deps=[(res[i-1], 0), (res[i], 0), (stats_last, 1)], prio=pr + 0.7)
                lst.append(cv); hdone[Hb + i//2] = cv
        return lst
    spins = []
    def flag_ops(last_st, sttag, pub_txt, poll_fn, reg, ident, loads, d, prio, after=None, poll_at=0):
        w = Op(None, "vmwait", deps=[(last_st, d[0])], tag=sttag, prio=prio)
        pb = Op(pub_txt, "m", deps=[(w, 0)], prio=prio, tag=("pub", ident))
        pl = Op(poll_fn(reg), "m", deps=[(pb, d[1])] + ([(regfree[reg], 0)] if reg in regfree else []), prio=prio, tag=("poll", ident))
        pl.soft = poll_at
        w2 = Op(None, "vmwait", deps=[(pl, d[2])] + ([(after, 0)] if after else []), tag=("poll", ident), prio=prio)
        cm = Op(f"v_cmp_eq_u32 vcc, 0, v{reg}", deps=[(w2, 0)], prio=prio)
        regfree[reg] = cm
        br = Op((ident, poll_fn(vSpin)), "chk", deps=[(cm, 1)], prio=prio)
        lst = [w, pb, pl, w2, cm, br]; pv = br
        for kind, txt, tag in loads:
            o = Op(txt, kind, deps=[(pv, 1)], prio=prio, tag=tag); lst.append(o); pv = o
        return lst
    regfree = {}
    vSpin = 253
    PREG = [vPoll, 254, 255]
    lastchk = None
    prev_hst = None
    for b in range(5):
        lst = []
        for t in ((0, 1) if b < 4 else (0,)): lst += gelu(b, t, b*40 + t*16)
        owner_ops[("g", b)] = lst; ops += lst
        nfr = 4 if b < 4 else 2
        so = Op(f"s_add_u32 s{sT0}, s{sHXo}, {4096*b}", "s", deps=[(prev_hst, 0)] if prev_hst else [], prio=b*40, min_gap=144)
        ops.append(so)
        for j in range(nfr):
            fr = 4*b + j
            st = Op(f"buffer_store_dwordx4 {R(vH+4*fr,4)}, v{vL16}, {SR}, s{sT0} offen offset:{1024*j} sc1", "m",
                    deps=[(hdone[vH+4*fr+r], 1) for r in range(4)] + [(so, 0)] + ([(prev_hst, 1)] if prev_hst else []), prio=b*40 + 8*j + 8, tag=("hst", b))
            ops.append(st); prev_hst = st
        loads = [("s", f"s_add_u32 s{sSp}, s{sHXp}, {4096*b}", None)]
        loads += [("m", f"buffer_load_dwordx4 a[{aHP+16*b+4*j}:{aHP+16*b+4*j+3}], v{vL16}, {SR}, s{sSp} offen offset:{1024*j} sc1", ("hp", 4*b+j)) for j in range(nfr)]
        dd = (hpub_d, hpoll_d if b >= 3 else 2*hpoll_d, hchk_d)
        fl = flag_ops(prev_hst, ("hst", b), f"buffer_store_dword v{vFv}, v{vFl}, {SR}, s{sFH} offen offset:{128*b} sc1",
                      (lambda r, b=b: f"buffer_load_dword v{r}, off, {SR}, s{sFHp} offset:{128*b} sc1"), PREG[b % 2], f"h{b}", loads, dd, b*40 + 39, after=lastchk)
        ops += fl; lastchk = fl[-1]
    comp = sorted(range(5), key=lambda db: last_m[("o", db, 0 if db == 4 else 1)])
    prev_st = prev_hst
    tail_blocks = []
    stlast = {}
    def red_pub(db): return f"buffer_store_dword v{vFv}, v{vFl}, {SR}, s{sFRo} offen offset:{128*db} sc1"
    def red_poll(db, reg=vPoll): return f"buffer_load_dword v{reg}, v{vPo}, {SR}, s{sFR} offen offset:{128*db} sc1"
    def red_loads(db):
        l = []
        for t in ((0, 1) if db < 4 else (0,)):
            T = 2*db + t
            l.append(("s", f"s_add_u32 s{sSp}, s{sPR}, {T*16384}", None))
            l += [("m", f"buffer_load_dwordx4 a[{8*T+4*j}:{8*T+4*j+3}], v{vL16}, {SR}, s{sSp} offen offset:{1024*j} sc1", ("rl", db)) for j in range(2)]
        return l
    state = {}; pollreg = {}
    for ci, db in enumerate(comp):
        lst = []
        for t in ((0, 1) if db < 4 else (0,)):
            a = acc2[db] + 16*t; mg = last_m[("o", db, t)] + 4
            pr = 1000 + ci*100 + t*40
            pv = None
            for ee in (0, 1):
                cvs = []
                for j in range(4*ee, 4*ee+4):
                    o = Op(f"v_cvt_pk_bf16_f32 v{a+j}, v{a+2*j}, v{a+2*j+1}", min_gap=mg, prio=pr + j, deps=[(pv, 0)] if pv else [])
                    lst.append(o); pv = o
                so = Op(f"s_add_u32 s{sT0}, s{sP}, {(2*db+t)*16384 + ee*128}", "s", deps=[(prev_st, 0)], min_gap=mg, prio=pr + 4*ee)
                st = Op(f"buffer_store_dwordx4 {R(a+4*ee,4)}, v{vSt}, {SR}, s{sT0} offen sc1", "m", deps=[(pv, 1), (so, 0), (prev_st, st_sp)], prio=pr + 4*ee + 4, tag=("st", db))
                lst += [so, st]; prev_st = st
        owner_ops[("o", db)] = lst; ops += lst
        est = last_m[("o", db, 0 if db == 4 else 1)] + 8 + st_sp
        pat = rpoll[ci] if ci < len(rpoll) else 5000
        fl = flag_ops(prev_st, ("st", db), red_pub(db), (lambda r, db=db: red_poll(db, r)), PREG[ci % 3], f"r{db}", red_loads(db), (pub_d, poll_d, chk_d), 900 + ci, after=lastchk, poll_at=pat)
        tp = max(est + pub_d + poll_d, pat)
        if tp + chk_d < NM - 12: ops += fl; lastchk = fl[-1]; state[db] = "done"
        elif tp < NM - 3: ops += fl[:3]; state[db] = "polled"; pollreg[db] = PREG[ci % 3]
        elif est + pub_d < NM - 3: ops += fl[:2]; state[db] = "pub"
        else: state[db] = "none"
    glast = [(o, 1) for o in owner_ops[("g", 4)]]
    pv = None
    for j in range(5):
        if j < 4:
            s1 = Op(f"s_lshl_b32 s{sHo}, s75, 5", "s", deps=glast + ([(pv, 0)] if pv else []), prio=890)
        else:
            s1 = Op(f"s_lshl_b32 s{sHo}, s76, 5", "s", deps=[(pv, 0)], prio=890)
        s2_ = Op(f"s_add_u32 s{sHo}, s{sHo}, s{sHR}", "s", deps=[(s1, 0)], prio=890)
        lst = [s1, s2_]; pv = s2_
        if 0 < j < 4:
            s3 = Op(f"s_add_u32 s{sHo}, s{sHo}, {4096*j}", "s", deps=[(s2_, 0)], prio=890); lst.append(s3); pv = s3
        ld = Op(f"buffer_load_dwordx2 v[{vT+2*j}:{vT+2*j+1}], v{vHo}, {SR}, s{sHo} offen", "m", deps=[(pv, 0)], prio=890, tag="res")
        ops += lst + [ld]; pv = ld
    mo = Op(f"v_and_b32 v{vT+11}, 60, v39", deps=glast, prio=890) if False else None
    m1_ = Op(f"v_lshrrev_b32 v{vT+11}, 2, v{vL16}", deps=glast, prio=889)
    m2_ = Op(f"v_and_b32 v{vT+11}, 12, v{vT+11}", deps=[(m1_, 0)], prio=889)
    ops += [m1_, m2_, Op(f"buffer_load_dword v{vT+10}, v{vT+11}, {SR}, s{sMn} offen", "m", deps=[(pv, 1), (m2_, 1)], prio=890, tag="res")]
    for i, gp in enumerate(tch):
        if gp is None: continue
        for z in (0, 1):
            if i < 3: txt = f"buffer_load_dword v{vSpin}, v{vTcg}, s[{(SGU, SU)[z]}:{(SGU, SU)[z]+3}], s{sTch+i} offen"
            else: txt = f"buffer_load_dword v{vSpin}, v{vTch}, s[{SD}:{SD+3}], s{sTch+i} offen offset:{128*z}"
            ops.append(Op(txt, "m", min_gap=gp, prio=-2, tag="touch"))
    pending = sorted(ops, key=lambda o: o.prio)

    def ready(o, g):
        if g < o.min_gap or g < o.soft: return False
        for d, lat in o.deps:
            if d.done is None or g < d.done + lat: return False
        return True
    def take(kinds, g, maxcost=99):
        for idx, o in enumerate(pending[:260]):
            if o.kind in kinds and o.cost <= maxcost and ready(o, g):
                pending.pop(idx); o.done = g
                return o
        return None
    nforced = [0]
    def force(o, g):
        if o.done is not None: return
        for d, lat in o.deps: force(d, g)
        assert g >= o.min_gap, (o.txt, g, o.min_gap)
        pending.remove(o); o.done = g - 1
        e("s_nop 1"); emit_op(o); nforced[0] += 1
    def emit_check(ident, poll_txt):
        e(f"s_cbranch_vccnz L_{name}_spin{ident}")
        k.label(f"L_{name}_ret{ident}")
        spins.append((ident, poll_txt))
    def emit_op(o):
        if o.kind == "vmwait":
            if o.tag == "ss": assert k.vm.count("ss") == 9 and not defer
            if o.tag != "ss": tr(f"pre-wait{o.tag}")
            k.wait(vm=o.tag)
            if o.tag != "ss": tr(f"post-wait{o.tag}")
        elif o.kind == "chk":
            emit_check(*o.txt); tr(f"post-chk{o.txt[0]}")
        elif o.kind == "m":
            if xhx and "sc1" in o.txt and "store_dwordx4" in o.txt and o.tag[0] == "hst": k.vmem("buffer_load_dword v253, off, s[20:23], s46", o.tag)
            else: k.vmem(o.txt, o.tag)
        else: e(o.txt)
    def emit_reads(n):
        fr = aF + 4*(n % NF)
        for ei, (ar, off) in enumerate(mf[n]["rd"]):
            k.lds(f"ds_read_b64_tr_b16 a[{fr+2*ei}:{fr+2*ei+1}], v{ar} offset:{off}", ("f", n))
    def barrier(c):
        assert k.vm.count(("dma", c)) == 9, c
        if c > 17: tr(f"pre-bar{c}")
        if trlead == 2 or c < 9: tr(f"L-pre-bar{c}")
        k.wait(vm=[("dma", c)], lg0=(c > 0))
        if trlead == 2 or c < 9: tr(f"L-waited{c}")
        if nobar == 0 or c < 4 or (nobar == 2 and c % 2 == 0): e("s_barrier")
        if trlead != 2 and c < 9: tr(f"L-post-bar{c}")
    stamp_mid(k, stamps, 0)
    barrier(0)
    next_read = 0; bar_done = 0
    for n in range(P): emit_reads(n); next_read += 1
    vq = list(lead)
    forced = 0
    k.wait(lg=("f", 0), vm=("hc", 0))
    firstseen = {}; last_vm = [-9]
    for g in range(NM):
        m = mf[g]; c = m["c"]
        assert k._need(k.lg, k.lg_done, ("f", g)) is None
        B = m["B"]
        if B[0] in ("hc", "hp"): assert B in k.vm and k._need(k.vm, k.vm_done, B) is None, (g, B)
        if B[0] == "h":
            regs = range(vH + 4*B[1], vH + 4*B[1] + 4)
            for r in regs: force(hdone[r], g - 1)
            if any(hdone[r].done >= g - 2 for r in regs): e("s_nop 1")
        if m["first"]:
            for own, lst in owner_ops.items():
                if own == m["own"] or own not in firstseen: continue
                if any(abs(x - m["D"]) < 16 for x in firstseen[own]):
                    for o in lst: force(o, g - 1)
                    if any(o.done >= g - 2 for o in lst): e("s_nop 1")
            firstseen.setdefault(m["own"], []).append(m["D"])
        fr = aF + 4*(g % NF); Dr = R(m["D"], 16)
        e(f"{MF32} {Dr}, a[{fr}:{fr+3}], {breg(B)}, {'0' if m['first'] else Dr}")
        if trlead != 2 and g < 144 and g % 6 == 0: tr(f"L-g{g}")
        if g == 143: stamp_mid(k, stamps, 1)
        if g == 647: stamp_mid(k, stamps, 2)
        bud = budget; cnt = 5; free_first = True
        hot = hot_lo <= g < hot_hi
        if hot: bud = hot_bud; cnt = 8
        E = 36*(c+1) - 1
        if c + 1 < NCH and g == E - P + X:
            while k.vm.count(("dma", c+1)) < 9: emit_item(vq.pop(0)); forced += 1
            barrier(c + 1); bar_done = c + 1; free_first = False; bud -= 4; cnt -= 1
            if c + 1 + dist < NCH: vq += dma_items(c + 1 + dist)
        if g + 1 < NM:
            nb = mf[g+1]["B"]
            vmt = nb if nb[0] in ("hc", "hp") else None
            if vmt is not None and vmt not in k.vm:
                if vmt[0] == "hc":
                    while vmt not in k.vm: emit_item(vq.pop(0)); forced += 1
                else:
                    force([o for o in ops if o.tag == vmt and o.kind == "m"][0], g)
            need_lg = k._need(k.lg, k.lg_done, ("f", g+1)) is not None
            tgt = ("f", min(g + wev, next_read - 1)) if need_lg else None
            if k.wait(lg=tgt, vm=vmt):
                if not free_first: bud -= 4; cnt -= 1
                free_first = False
        if free_first:
            if vq and vq[0][0] == "s": emit_item(vq.pop(0))
            else:
                o = take(("s", "vmwait", "chk"), g)
                if o: emit_op(o)
        nrd = 0
        while next_read < NM and next_read <= g + P and mf[next_read]["c"] <= bar_done and nrd < 2:
            emit_reads(next_read); next_read += 1; nrd += 1; bud -= 8; cnt -= 2
        if cnt > 0 and bud >= 5:
            inlead = c < 4
            if inlead and vq and vq[0][0] == "s":
                emit_item(vq.pop(0)); bud -= 4; cnt -= 1
                if vq and vq[0][0] == "s": emit_item(vq.pop(0)); bud -= 4; cnt -= 1
            nm_ = sum(1 for x in vq if x[0] == "m")
            if vq and vq[0][0] == "m" and vq[0][2] == "ss": go = True
            elif g < fast: go = True
            elif nm_ > 9 or inlead: go = g - last_vm[0] >= 2
            else: go = g - last_vm[0] >= dmar
            if vq and vq[0][0] == "m" and go:
                emit_item(vq.pop(0)); bud -= 5; cnt -= 1; last_vm[0] = g
            else:
                o = take(("m",), g)
                if o: emit_op(o); bud -= 5; cnt -= 1
        then = 0
        while defer and (bud >= 4 or then == 0) and then < 3:
            for x in defer.pop(0): e(x); bud -= 5; cnt -= 1; then += 1
        if hot and bud >= 20:
            o = take(("x",), g)
            if o: emit_op(o); bud -= 8; cnt -= 1
        xo = take(("x",), g) if (bud >= 8 and cnt > 0) else None
        if xo: bud -= 8; cnt -= 1; xo.done = None
        while cnt > 0:
            o = take(("v",), g, bud)
            if not o: break
            emit_op(o); bud -= o.cost; cnt -= 1
        if xo: xo.done = g; emit_op(xo)
        elif cnt > 0 and bud >= 8:
            xo = take(("x",), g)
            if xo: emit_op(xo)
    assert not vq
    e("s_nop 11")
    g = NM + 10
    while pending:
        o = take(("v", "x", "s", "m", "vmwait", "chk"), g); g += 1
        if o: emit_op(o)
    stamp_mid(k, stamps, 3)
    vDo = vH; vTp = vH + 24; vA0 = vH + 32
    def publish(db):
        k.wait(vm=("st", db)); k.vmem(red_pub(db), ("pub", db))
    def consume(db, reg):
        e(f"v_cmp_eq_u32 vcc, 0, v{reg}")
        ld = red_loads(db)
        e(ld[0][1])
        emit_check(f"r{db}", red_poll(db, vSpin))
        tr(f"tail-chk{db}")
        for kind, txt, tag in ld[1:]:
            if kind == "s": e(txt)
            else: k.vmem(txt, tag)
    def reduce_blk(db):
        Dr = R(vDo + 4*db, 4)
        k.wait(vm=("rl", db))
        for t in ((0, 1) if db < 4 else (0,)):
            for j in range(2):
                a = 8*(2*db+t) + 4*j
                e(f"{MF16} {Dr}, {R(vA0 + 4*t, 4)}, a[{a}:{a+3}], {Dr}")
    lastb = comp[-1]
    for db in comp[:-1]:
        if state[db] == "none": publish(db); state[db] = "pub"
    for db in comp:
        if state[db] == "polled":
            k.wait(vm=("poll", f"r{db}")); consume(db, pollreg[db]); state[db] = "late"
    e(f"v_and_b32 v{vTp+6}, 1, v0")
    e(f"v_lshlrev_b32 v{vTp+6}, 4, v{vTp+6}")
    e(f"v_mov_b32 v{vTp+7}, 0x3f80")
    e(f"v_lshlrev_b32 v{vTp+7}, v{vTp+6}, v{vTp+7}")
    e(f"v_bfe_u32 v{vTp+6}, v0, 1, 3")
    for r in range(8):
        e(f"v_cmp_eq_u32 vcc, {r}, v{vTp+6}")
        e("s_nop 1")
        e(f"v_cndmask_b32 v{vA0+r}, 0, v{vTp+7}, vcc")
    k.wait(vm="res")
    for j in range(5):
        for u in range(2):
            e(f"v_lshlrev_b32 v{vDo+4*j+2*u}, 16, v{vT+2*j+u}")
            e(f"v_and_b32 v{vDo+4*j+2*u+1}, 0xffff0000, v{vT+2*j+u}")
        for u in range(4): e(f"v_add_f32 v{vDo+4*j+u}, v{vDo+4*j+u}, v{vT+10}")
    e("s_nop 1")
    for db in comp:
        if state[db] == "done": reduce_blk(db)
    tr("tail-prepub")
    publish(lastb)
    tr("tail-pub")
    rest = [db for db in comp[:-1] if state[db] == "pub"]
    for db in rest: k.vmem(red_poll(db, vTp + db), ("tp", db))
    for db in rest:
        k.wait(vm=("tp", db)); consume(db, vTp + db)
    k.vmem(red_poll(lastb, vTp + lastb), ("tp", lastb))
    for db in comp:
        if state[db] == "late": reduce_blk(db)
    k.wait(vm=("tp", lastb)); consume(lastb, vTp + lastb)
    for db in rest + [lastb]: reduce_blk(db)
    e(f"s_add_u32 s{sT0}, s{sOut}, s75")
    e(f"s_add_u32 s{sT1}, s{sOut}, s76")
    e("s_nop 5")
    for j in range(5):
        a = vDo + 4*j
        e(f"v_cvt_pk_bf16_f32 v{a}, v{a}, v{a+1}")
        e(f"v_cvt_pk_bf16_f32 v{a+1}, v{a+2}, v{a+3}")
        if j < 4: k.vmem(f"buffer_store_dwordx2 v[{a}:{a+1}], v{vOo}, s[{SO}:{SO+3}], s{sT0} offen offset:{128*j}{outf}", "out")
        else: k.vmem(f"buffer_store_dwordx2 v[{a}:{a+1}], v{vMo}, s[{SO}:{SO+3}], s{sT1} offen{outf}", "out")
    if trace:
        tr("end")
        e("s_lshl_b32 s58, s2, 2")
        e(f"s_add_u32 s58, s58, s{sW}")
        e("s_lshl_b32 s58, s58, 8")
        e(f"s_add_u32 s58, s58, {WS_END + 8*131072}")
        e(f"s_mov_b32 s{SW+2}, {WS_END + 12*131072}")
        e("v_lshlrev_b32 v252, 2, v0")
        e(f"buffer_store_dword v251, v252, {SR}, s58 offen")
        open("trace_labels.txt", "w").write("\n".join(k.tr))
    stamp_end(k, stamps, 66, kidx, sW, 4)
    k.label(f"L_{name}_end")
    e("s_endpgm")
    for ident, ptxt in spins:
        k.label(f"L_{name}_spin{ident}")
        e(f"s_mov_b32 s{sSpin}, {spin_max}")
        k.label(f"L_{name}_spinl{ident}")
        e(ptxt)
        e(f"s_sub_u32 s{sSpin}, s{sSpin}, 1")
        e("s_waitcnt vmcnt(0)")
        e(f"v_cmp_eq_u32 vcc, 0, v{vSpin}")
        e(f"s_cmp_eq_u32 s{sSpin}, 0")
        e(f"s_cbranch_scc1 L_{name}_ret{ident}")
        e(f"s_cbranch_vccnz L_{name}_spinl{ident}")
        e(f"s_branch L_{name}_ret{ident}")
    k.label(f"L_{name}_fin")
    k.info = (forced, nforced[0], dict(state))
    return k, (512, 102, 256), (256, 256, 4*SLOT)
```

```python
from dsl import *
from layout import *
from k123 import stamp_begin, stamp_mid, stamp_end, Tracer, emit_wprefetch, emit_touch_wg, MF32, R
import math
from k4b import emit_pack_job
DPP = "quad_perm:[1,0,3,2] row_mask:0xf bank_mask:0xf"


def pack_wg(k, name, sW, nw, id0, job0, njob, pk, stamps, kidx):
    e = k.e
    e("s_and_b32 s21, s2, 7")
    e(f"s_sub_u32 s22, s2, {id0}")
    e("s_lshr_b32 s22, s22, 3")
    e(f"s_mul_i32 s22, s22, {nw}")
    e(f"s_add_u32 s22, s22, s{sW}")
    e(f"s_cmp_ge_u32 s22, {njob}")
    e(f"s_cbranch_scc1 L_{name}_end")
    e(f"s_add_u32 s22, s22, {job0}")
    e(f"s_mul_i32 s23, s{sW}, 12288")
    pk(k, 21, 22, 23)
    stamp_end(k, stamps, 46, kidx, sW, 0)


def xt_load(k, s0):
    k.e(f"s_load_dwordx4 s[{s0}:{s0+3}], s[0:1], {KA_WG}")
    k.e(f"s_load_dwordx2 s[{s0+4}:{s0+5}], s[0:1], {KA_WD}")
def xt_prep(k, s0, sU, lane, va, spec):
    e = k.e
    tmp = va + len(spec)
    e(f"s_and_b32 s{s0+7}, s2, 7")
    for n_, (m_, lo, hi) in enumerate(spec):
        e(f"s_add_u32 s{s0+6}, s{sU}, {lo}")
        e(f"s_mul_i32 s{s0+20+n_}, s{s0+7}, {1152 if m_ != 'd' else 576*1152}")
        e(f"s_cmp_lt_u32 s{sU}, {hi - lo}")
        e(f"s_cselect_b32 s{s0+20+n_}, s{s0+20+n_}, 0x40000000")
        e(f"s_lshl_b32 s{s0+6}, s{s0+6}, 6")
        e(f"s_and_b32 s{s0+6}, s{s0+6}, 0x3fff")
        e(f"v_add_u32 v{va+n_}, s{s0+6}, {lane}")
        if m_ in "GU":
            e(f"v_lshrrev_b32 v{tmp}, 2, v{va+n_}")
            e(f"v_mul_u32_u24 v{va+n_}, 9216, v{tmp}")
            e(f"v_and_b32 v{tmp}, 1, {lane}")
            e(f"v_lshl_add_u32 v{va+n_}, v{tmp}, 7, v{va+n_}")
            e(f"v_bfe_u32 v{tmp}, {lane}, 1, 1")
            e(f"v_mul_u32_u24 v{tmp}, 640, v{tmp}")
            e(f"v_add_u32 v{va+n_}, v{va+n_}, v{tmp}")
        elif m_ != "d":
            e(f"v_mul_u32_u24 v{tmp}, 7282, v{va+n_}")
            e(f"v_lshrrev_b32 v{tmp}, 16, v{tmp}")
            e(f"v_mul_u32_u24 v{tmp}, {9216-1152}, v{tmp}")
            e(f"v_lshl_add_u32 v{va+n_}, v{va+n_}, 7, v{tmp}")
        else: e(f"v_lshlrev_b32 v{va+n_}, 7, v{va+n_}")
    for m_ in sorted(set(x[0] for x in spec)):
        i = "gud".index(m_.lower())
        k.srd(s0+8+4*i, s0+2*i, D*F*2)
def xt_fire(k, s0, va, vd, spec, fl=""):
    for n_, (m_, lo, hi) in enumerate(spec):
        i = "gud".index(m_.lower())
        k.e(f"buffer_load_dword v{vd}, v{va+n_}, s[{s0+8+4*i}:{s0+11+4*i}], s{s0+20+n_} offen{fl}")

def gen_k1(name="fwd_kernel", stamps=False, pf=True, wpf=None, trace=False, xf=" nt", xt=None, pk=None, jobs=(0, 0)):
    NMAIN, NWT = 192, 64
    NP = 8 * (-(-jobs[1] // 4))
    k = Kern(name); e = k.e
    tr = Tracer(k, trace, 199)
    sW, sS2, sCT, sT0, sT1, sT2, sT = 20, 21, 22, 23, 24, 25, 19
    e(f"s_cmp_ge_u32 s2, {NMAIN + NWT + NP}")
    e(f"s_cbranch_scc1 L_{name}_end")
    stamp_begin(k, stamps)
    e(f"s_load_dwordx2 s[4:5], s[0:1], {KA_X}")
    e(f"s_load_dwordx2 s[6:7], s[0:1], {KA_WS}")
    e("v_lshrrev_b32 v1, 6, v0")
    e("v_and_b32 v2, 63, v0")
    e(f"v_readfirstlane_b32 s{sW}, v1")
    if NP:
        e(f"s_cmp_ge_u32 s2, {NMAIN + NWT}")
        e(f"s_cbranch_scc1 L_{name}_pack")
    if pf:
        e("s_bfe_u32 s40, s2, 0x10003")
        e("s_lshl_b32 s40, s40, 2")
        e(f"s_add_u32 s40, s40, s{sW}")
        k.prefetch_code("L_text_begin", "L_text_end", 32, 3, 1, 1, lane="v2", part=(40, 8192))
    e(f"s_cmp_ge_u32 s2, {NMAIN}")
    e(f"s_cbranch_scc1 L_{name}_wt")
    e("v_mov_b32 v0, v2")
    if xt: xt_load(k, 52)
    e(f"s_lshr_b32 s{sT0}, s2, 3")
    e(f"s_mul_hi_u32 s{sT1}, s{sT0}, 0x55555556")
    e(f"s_mul_i32 s{sCT}, s{sT1}, 3")
    e(f"s_sub_u32 s{sCT}, s{sT0}, s{sCT}")
    e(f"s_and_b32 s{sS2}, s2, 7")
    e(f"s_lshl_b32 s{sS2}, s{sS2}, 3")
    e(f"s_add_u32 s{sS2}, s{sS2}, s{sT1}")
    e("v_lshrrev_b32 v4, 3, v0")
    e("v_lshrrev_b32 v5, 4, v0")
    e("v_and_b32 v6, 7, v0")
    e("v_xor_b32 v6, v6, v5")
    e("v_lshlrev_b32 v6, 4, v6")
    e("v_mul_u32_u24 v2, 73728, v4")
    e("v_add_u32 v2, v2, v6")
    e(f"s_and_b32 s26, s{sW}, 1")
    e("s_lshl_b32 s26, s26, 6")
    e("v_xor_b32 v2, s26, v2")
    e(f"s_mul_i32 s27, s{sW}, {8*73728}")
    e(f"s_mul_i32 s{sT2}, s{sS2}, 1152")
    e(f"s_add_u32 s27, s27, s{sT2}")
    e(f"s_lshl_b32 s26, s{sW}, 10")
    e("s_waitcnt lgkmcnt(0)")
    tr("karg")
    k.srd(8, 4, S*D*2)
    for i in range(9):
        e(f"s_add_u32 m0, s26, {4096*i - 128*i}")
        e("s_nop 0")
        k.vmem(f"buffer_load_dwordx4 v2, s[8:11], s27 offen offset:{128*i}{xf} lds", "x")
    tr("issued")
    if xt:
        e(f"s_lshl_b32 s51, s{sT0}, 2")
        e(f"s_add_u32 s51, s51, s{sW}")
        xt_prep(k, 52, 51, "v0", 224, xt[0])
        if xt[1] == "early": xt_fire(k, 52, 224, 1, xt[0])
    k.srd(12, 6, WS_END)
    e("v_lshrrev_b32 v5, 5, v0")
    e("v_and_b32 v35, 31, v0")
    e("v_mov_b32 v31, 0x3f803f80")
    e(f"s_mul_i32 s{sT1}, s{sW}, 18")
    e("v_mul_u32_u24 v10, 9, v5")
    e(f"v_add_u32 v10, s{sT1}, v10")
    e("v_bfe_u32 v13, v0, 1, 3")
    vSA = 180
    for i in range(9):
        e(f"v_add_u32 v11, {i}, v10")
        e("v_lshrrev_b32 v12, 3, v11")
        e("v_and_b32 v11, 7, v11")
        e("v_xor_b32 v11, v11, v13")
        e("v_lshlrev_b32 v11, 4, v11")
        e("v_lshl_add_u32 v11, v12, 12, v11")
        e(f"v_lshl_add_u32 v{vSA+i}, v35, 7, v11")
    e(f"s_lshl_b32 s{sT1}, s{sW}, 9")
    e(f"s_add_u32 s{sT1}, s{sT1}, 36864")
    e(f"v_lshl_add_u32 v34, v0, 3, s{sT1}")
    e(f"s_mul_i32 s{sT}, s{sCT}, 3")
    e(f"s_min_u32 s{sT1}, s{sCT}, 1")
    e(f"s_add_u32 s{sT}, s{sT}, s{sT1}")
    e(f"s_add_u32 s{sT}, s{sT}, s{sW}")
    e(f"s_mul_i32 s18, s{sT1}, s{sW}")
    e("s_cmp_eq_u32 s18, 3")
    e(f"s_cbranch_scc1 L_{name}_hgen")
    vE, vE2 = 40, 76
    e(f"s_lshl_b32 s17, s{sT}, 4")
    e("v_bfe_u32 v4, v0, 1, 4")
    e("v_add_u32 v4, s17, v4")
    e("v_and_b32 v6, 1, v0")
    e("v_cvt_f32_u32 v7, v4")
    e(f"v_mul_f32 v7, {fhex(1.0/288)}, v7")
    e("v_cvt_f32_u32 v8, v6")
    e("v_mul_f32 v8, 0x3e800000, v8")
    e("v_cvt_f32_u32 v9, v5")
    e("v_mul_f32 v10, 0x41000000, v9")
    e("v_fma_f32 v8, v10, v7, v8")
    e("v_and_b32 v30, 1, v4")
    e("v_mul_u32_u24 v30, 0x8000, v30")
    e("v_lshl_or_b32 v30, v30, 16, v30")
    for j in range(9):
        for t in range(8): e(f"v_fmamk_f32 v{10+t}, v7, {fhex(16*j+t)}, v8")
        for t in range(8): e(f"v_cos_f32 v{10+t}, v{10+t}")
        for t in range(4): e(f"v_cvt_pk_bf16_f32 v{vE+4*j+t}, v{10+2*t}, v{11+2*t}")
        for t in range(4): e(f"v_xor_b32 v{vE2+4*j+t}, v30, v{vE+4*j+t}")
        if xt and xt[1] == j: xt_fire(k, 52, 224, 1, xt[0])
    e("v_mov_b32 v10, 0")
    for r in range(36): e(f"v_dot2c_f32_bf16 v10, v{vE+r}, v31")
    e("v_mul_f32 v12, 0.5, v7")
    e("v_lshlrev_b32 v13, 31, v6")
    e("v_xor_b32 v12, v12, v13")
    e("v_cos_f32 v32, v12")
    e("v_sin_f32 v33, v12")
    e("v_mov_b32 v11, v10")
    e("v_and_b32 v13, 1, v4")
    e("v_or_b32 v13, v13, v5")
    e("v_permlane32_swap_b32 v10, v11")
    e("v_cmp_eq_u32 vcc, 0, v13")
    e("v_mov_b32 v113, 0")
    e("v_add_f32 v10, v10, v11")
    e("v_mul_f32 v10, -2.0, v10")
    e("v_cndmask_b32 v10, 0, v10, vcc")
    e("v_mov_b32 v114, 0")
    e("v_mov_b32 v115, 0")
    e("v_cvt_pk_bf16_f32 v112, v10, v113")
    for r in (117, 118, 119): e(f"v_mov_b32 v{r}, 0")
    vF = 120
    e("v_cvt_f32_u32 v10, v35")
    e(f"v_mul_f32 v11, {fhex(1.0/32)}, v10")
    e(f"v_cvt_f32_u32 v12, s{sS2}")
    e(f"v_mul_f32 v12, {fhex(1.0/64)}, v12")
    e("v_fma_f32 v12, v9, 4.0, v12")
    e("v_mul_f32 v12, v12, v11")
    for jj in range(2):
        for t in range(8): e(f"v_fmamk_f32 v{14+t}, v11, {fhex(16*jj + 8*(t >> 2) + (t & 3))}, v12")
        for t in range(8): e(f"v_cos_f32 v{22+t}, v{14+t}")
        for t in range(8): e(f"v_sin_f32 v{14+t}, -v{14+t}")
        for t in range(4): e(f"v_cvt_pk_bf16_f32 v{vF+4*jj+t}, v{22+2*t}, v{23+2*t}")
        for t in range(4): e(f"v_cvt_pk_bf16_f32 v{vF+8+4*jj+t}, v{14+2*t}, v{15+2*t}")
    e("v_bfe_u32 v10, v0, 1, 3")
    e("v_lshlrev_b32 v11, 1, v5")
    e("v_xor_b32 v10, v10, v11")
    e("v_lshlrev_b32 v10, 4, v10")
    e("v_lshl_add_u32 v36, v35, 7, v10")
    e("v_xor_b32 v37, 16, v36")
    e("v_xor_b32 v38, 64, v36")
    e("v_xor_b32 v39, 80, v36")
    e("s_mov_b32 s28, 0x05040100")
    e("s_mov_b32 s29, 0x07060302")
    e("v_lshlrev_b32 v26, 3, v0")
    e(f"s_lshl_b32 s{sT1}, s{sW}, 8")
    e(f"s_add_u32 s{sT1}, s{sT1}, {36864+2048}")
    e(f"v_lshl_add_u32 v27, v0, 2, s{sT1}")
    e(f"v_lshl_add_u32 v28, v5, 4, s{sT1}")
    e(f"s_lshr_b32 s{sT1}, s{sS2}, 3")
    e(f"s_lshl_b32 s{sT1}, s{sT1}, 10")
    e(f"s_bfe_u32 s{sT2}, s{sS2}, 0x10002")
    e(f"s_lshl_b32 s{sT2}, s{sT2}, 9")
    e(f"s_add_u32 s{sT1}, s{sT1}, s{sT2}")
    e(f"s_and_b32 s{sT2}, s{sS2}, 1")
    e(f"s_lshl_b32 s{sT2}, s{sT2}, 8")
    e(f"s_add_u32 s{sT1}, s{sT1}, s{sT2}")
    e(f"s_bfe_u32 s{sT2}, s{sS2}, 0x10001")
    e(f"s_lshl_b32 s{sT2}, s{sT2}, 7")
    e(f"s_add_u32 s{sT1}, s{sT1}, s{sT2}")
    e(f"v_lshl_add_u32 v10, v35, 2, s{sT1}")
    e("v_lshl_add_u32 v11, v5, 1, s17")
    e("v_lshlrev_b32 v11, 13, v11")
    e("v_add_u32 v24, v10, v11")
    e("v_subrev_u32 v24, 8192, v24")
    e("v_sub_u32 v25, v10, v11")
    e(f"v_add_u32 v25, {143*8192}, v25")
    k.srd_off(44, 6, WS_Y, 144*8192)
    k.srd_off(48, 6, WS_Y + 144*8192, 144*8192)
    k.label(f"L_{name}_nogen")
    tr("gen")
    stamp_mid(k, stamps, 0)
    e(f"s_waitcnt vmcnt({len(xt[0]) if xt and xt[1] != 'late' else 0})")
    if xt and xt[1] == "late": xt_fire(k, 52, 224, 1, xt[0])
    tr("xarr")
    e("s_barrier")
    tr("bar")
    stamp_mid(k, stamps, 1)
    for i in range(9): k.lds(f"ds_read_b128 {R(136+4*i,4)}, v{vSA+i}", ("s", i))
    vX = 172
    def xread(j):
        b = vX + 8*(j % 3)
        for x in (0, 1): k.lds(f"ds_read_b128 {R(b+4*x,4)}, v{36+2*(j&1)+x} offset:{(j>>1)*4096}", ("x", j))
    e("v_mov_b32 v10, 0"); e("v_mov_b32 v11, 0"); e("v_mov_b32 v12, 0"); e("v_mov_b32 v13, 0")
    e("s_cmp_eq_u32 s18, 3")
    e(f"s_cbranch_scc1 L_{name}_helper")
    xread(0); xread(1); xread(2)
    def stats_dot(waits=True):
        for i in range(9):
            if waits: k.wait(lg=("s", i))
            for r in range(4):
                e(f"v_dot2c_f32_bf16 v{10+2*(r&1)}, v{136+4*i+r}, v31")
                e(f"v_dot2c_f32_bf16 v{11+2*(r&1)}, v{136+4*i+r}, v{136+4*i+r}")
        e("s_nop 2")
        e("v_add_f32 v10, v10, v12")
        e("v_add_f32 v11, v11, v13")
    stats_dot()
    k.lds("ds_write_b64 v34, v[10:11]", "sw")
    tr("stats")
    A0, A1 = 136, 152
    vD = [8, 200]
    def perms(j):
        b = vX + 8*(j % 3); d = vD[j & 1]
        return [f"v_perm_b32 v{d+r}, v{b+2*r+1}, v{b+2*r}, s28" for r in range(4)] + [f"v_perm_b32 v{d+4+r}, v{b+2*r+1}, v{b+2*r}, s29" for r in range(4)]
    k.wait(lg=["sw", ("x", 0)])
    for p in perms(0): e(p)
    fill = {}
    fill[2] = lambda: e("s_barrier")
    def f3():
        for i in range(4): k.lds(f"ds_read_b64 {R(16+2*i,2)}, v26 offset:{36864+512*i}", "sp")
    fill[3] = f3
    def f7():
        k.wait(lg="sp")
        e("v_add_f32 v16, v16, v18"); e("v_add_f32 v17, v17, v19")
    fill[8] = f7
    fill[9] = lambda: (e("v_add_f32 v20, v20, v22"), e("v_add_f32 v21, v21, v23"))
    fill[10] = lambda: (e("v_add_f32 v16, v16, v20"), e("v_add_f32 v17, v17, v21"))
    fill[11] = lambda: (e("v_mov_b32 v18, v16"), e("v_mov_b32 v19, v17"))
    fill[12] = lambda: (e("v_permlane32_swap_b32 v16, v18"), e("v_permlane32_swap_b32 v17, v19"))
    fill[13] = lambda: (e("v_add_f32 v16, v16, v18"), e("v_add_f32 v17, v17, v19"))
    fill[14] = lambda: (e(f"v_mul_f32 v16, {fhex(1.0/576)}, v16"), e(f"v_mul_f32 v17, {fhex(1.0/576)}, v17"))
    fill[15] = lambda: (e("v_fma_f32 v17, -v16, v16, v17"), e("v_max_f32 v17, 0, v17"))
    fill[16] = lambda: (e(f"v_add_f32 v17, {fhex(1e-5)}, v17"), e("v_cvt_pk_bf16_f32 v116, v16, v117"))
    fill[17] = lambda: e("v_rsq_f32 v17, v17")
    fill[18] = lambda: e(f"v_mul_f32 v17, {fhex(2.0/(2048*576))}, v17")
    fill[19] = lambda: k.lds("ds_write_b32 v27, v17", "rw")
    vRr = 208
    def f22():
        for g in range(4): k.lds(f"ds_read_b128 {R(vRr+4*g,4)}, v28 offset:{32*g}", "rr")
    fill[22] = f22
    def f26():
        e(f"s_cmp_lg_u32 s{sT}, 0")
        e(f"s_cbranch_scc1 L_{name}_nomean")
        e(f"s_lshl_b32 s{sT1}, s{sS2}, 7")
        e(f"s_add_u32 s{sT1}, s{sT1}, {WS_MEAN}")
        e("v_lshlrev_b32 v19, 2, v35")
        e(f"buffer_store_dword v16, v19, s[12:15], s{sT1} offen")
        k.label(f"L_{name}_nomean")
    fill[26] = f26
    e("s_nop 0")
    for j in range(18):
        Bm = R((vE if j < 9 else vE2) + 4*(j % 9), 4)
        d = vD[j & 1]
        nx = perms(j+1) if j + 1 < 18 else []
        for p in (0, 1):
            acc = R(A1 if p else A0, 16)
            e(f"{MF32} {acc}, {R(d+4*p,4)}, {Bm}, {'0' if j == 0 else acc}")
            if p == 0 and nx: k.wait(lg=("x", j+1))
            if p == 0 and j + 3 < 18: xread(j + 3)
            for x in nx[4*p:4*p+4]: e(x)
            n = 2*j + p
            if n in fill: fill[n]()
    e(f"{MF32} {R(A1,16)}, {R(116,4)}, {R(112,4)}, {R(A1,16)}")
    e(f"{MF32} {R(A0,16)}, {R(116,4)}, {R(112,4)}, {R(A0,16)}")
    tr("mfma")
    stamp_mid(k, stamps, 2)
    if wpf: emit_wprefetch(k, sW, 4, "v0", 2, 1, 52, wpf, skip3=True)
    else: e("s_nop 10")
    k.wait(lg="rr")
    Bq, O1, O2 = 40, 56, 72
    for i in range(16): e(f"v_mul_f32 v{Bq+i}, v32, v{A1+i}")
    for i in range(16): e(f"v_fmac_f32_dpp v{Bq+i}, v{A1+i}, v33 {DPP}")
    for i in range(16): e(f"v_mul_f32 v{A0+i}, v{A0+i}, v{vRr+i}")
    for i in range(16): e(f"v_fma_f32 v{O1+i}, v{Bq+i}, v{vRr+i}, v{A0+i}")
    for i in range(8): e(f"v_cvt_pk_bf16_f32 v{88+i}, v{O1+2*i}, v{O1+2*i+1}")
    P1, Q1, P2, Q2 = 172, 152, 224, 240
    w2 = [f"v_fma_f32 v{O2+i}, -v{Bq+i}, v{vRr+i}, v{A0+i}" for i in range(16)] + [f"v_cvt_pk_bf16_f32 v{96+i}, v{O2+2*i}, v{O2+2*i+1}" for i in range(8)]
    e(w2.pop(0)); e(w2.pop(0))
    for (Dd, a, f, first) in [(P1, 88, vF, 1), (Q1, 88, vF+8, 1), (P1, 92, vF+4, 0), (Q1, 92, vF+12, 0)]:
        e(f"{MF32} {R(Dd,16)}, {R(a,4)}, {R(f,4)}, {'0' if first else R(Dd,16)}")
        for _ in range(6):
            if w2: e(w2.pop(0))
    e("s_nop 1")
    tr("comb")
    c1 = []
    for i in range(0, 16, 2):
        c1.append(f"v_sub_f32 v{O1+i}, v{P1+i}, v{Q1+i+1}")
        c1.append(f"v_add_f32 v{O1+i+1}, v{Q1+i}, v{P1+i+1}")
    c1 += [f"v_cvt_pk_bf16_f32 v{88+i}, v{O1+2*i}, v{O1+2*i+1}" for i in range(8)]
    adr = [f"v_add_u32 v{8+i}, {(4*(i>>1)+(i&1))*8192}, v24" for i in range(8)] + [f"v_subrev_u32 v{200+i}, {(4*(i>>1)+(i&1))*8192}, v25" for i in range(8)]
    for n_, (Dd, a, f, first) in enumerate([(P2, 96, vF, 1), (Q2, 96, vF+8, 1), (P2, 100, vF+4, 0), (Q2, 100, vF+12, 0)]):
        e(f"{MF32} {R(Dd,16)}, {R(a,4)}, {R(f,4)}, {'0' if first else R(Dd,16)}")
        src = adr if n_ < 3 else c1
        for _ in range(6):
            if src: e(src.pop(0))
    assert not adr
    for x in c1: e(x)
    for i in range(8): k.vmem(f"buffer_store_dword v{88+i}, v{8+i}, s[44:47], 0 offen", "st")
    for i in range(0, 16, 2):
        e(f"v_add_f32 v{O2+i}, v{P2+i}, v{Q2+i+1}")
        e(f"v_sub_f32 v{O2+i+1}, v{Q2+i}, v{P2+i+1}")
    for i in range(8): e(f"v_cvt_pk_bf16_f32 v{96+i}, v{O2+2*i}, v{O2+2*i+1}")
    for i in range(8): k.vmem(f"buffer_store_dword v{96+i}, v{200+i}, s[48:51], 0 offen", "st")
    tr("stored")
    tr.dump(6, sW, 198)
    stamp_end(k, stamps, 6, 0, sW, 3)
    e("s_endpgm")
    k.label(f"L_{name}_hgen")
    if xt and isinstance(xt[1], int):
        e("s_waitcnt vmcnt(0)")
        xt_fire(k, 52, 224, 1, xt[0])
    e(f"s_branch L_{name}_nogen")
    k.label(f"L_{name}_helper")
    e("s_waitcnt lgkmcnt(0)")
    stats_dot(False)
    e("ds_write_b64 v34, v[10:11]")
    e("s_waitcnt lgkmcnt(0)")
    e("s_barrier")
    e("s_endpgm")
    k.label(f"L_{name}_wt")
    e(f"s_load_dwordx4 s[28:31], s[0:1], {KA_WR}")
    e(f"s_sub_u32 s{sT0}, s2, {NMAIN}")
    e("v_lshlrev_b32 v3, 4, v0")
    e(f"s_mul_i32 s{sT1}, s{sT0}, 18496")
    e(f"s_lshl_b32 s{sT2}, s{sW}, 10")
    e("s_waitcnt lgkmcnt(0)")
    k.srd(8, 28, 2048*289*2)
    k.srd(12, 30, 2048*289*2)
    k.srd(16, 6, WS_END)
    for r in range(5):
        for mat in range(2):
            e(f"s_add_u32 m0, s{sT2}, {mat*20480 + r*4096}")
            e(f"s_add_u32 s26, s{sT1}, {r*4096}")
            e(f"buffer_load_dwordx4 v3, s[{8+4*mat}:{11+4*mat}], s26 offen{xf} lds")
    e("v_mov_b32 v8, 0"); e("v_mov_b32 v9, 0"); e("v_mov_b32 v10, 0"); e("v_mov_b32 v11, 0")
    e("v_lshrrev_b32 v7, 1, v0")
    e("v_min_u32 v7, 95, v7")
    e("v_lshlrev_b32 v7, 7, v7")
    e("v_and_b32 v12, 1, v0")
    e("v_lshl_add_u32 v7, v12, 4, v7")
    e(f"s_mul_i32 s26, s{sT0}, {FLAG_STRIDE}")
    e(f"s_add_u32 s26, s26, {WS_FLAG}")
    e("buffer_store_dwordx4 v[8:11], v7, s[16:19], s26 offen")
    e(f"s_lshl_b32 s27, s{sT0}, 2")
    e(f"s_add_u32 s27, s27, s{sW}")
    e("s_cmp_ge_u32 s27, 162")
    e(f"s_cbranch_scc1 L_{name}_nog")
    e("s_mul_hi_u32 s28, s27, 0x1c71c71d")
    e("s_mul_i32 s29, s28, 9")
    e("s_sub_u32 s29, s27, s29")
    e("s_and_b32 s30, s28, 1")
    e("s_lshr_b32 s28, s28, 1")
    e("v_and_b32 v12, 0x13, v2")
    e("v_bfe_u32 v13, v2, 2, 1")
    e("v_lshl_add_u32 v12, v13, 3, v12")
    e("v_bfe_u32 v13, v2, 3, 1")
    e("v_lshl_add_u32 v12, v13, 2, v12")
    e("s_lshl_b32 s28, s28, 5")
    e("v_add_u32 v12, s28, v12")
    e("v_cvt_f32_u32 v12, v12")
    e("v_lshrrev_b32 v13, 5, v2")
    e("s_lshl_b32 s29, s29, 4")
    e("s_add_u32 s29, s29, s30")
    e("s_add_u32 s29, s29, 1")
    e("v_lshl_add_u32 v13, v13, 3, s29")
    e("v_cvt_f32_u32 v13, v13")
    for t in range(4):
        e(f"v_add_f32 v{14+t}, {fhex(2*t)}, v13")
        e(f"v_mul_f32 v{14+t}, v{14+t}, v12")
        e(f"v_mul_f32 v{14+t}, {fhex(1.0/576)}, v{14+t}")
    for t in range(4): e(f"v_cos_f32 v{18+t}, v{14+t}")
    for t in range(4): e(f"v_sin_f32 v{14+t}, v{14+t}")
    e("v_lshlrev_b32 v13, 4, v2")
    for t in range(4): e(f"v_cvt_pk_bf16_f32 v{24+t}, v{18+t}, v{14+t}")
    e("s_lshl_b32 s27, s27, 10")
    e(f"s_add_u32 s27, s27, {WS_G}")
    e("buffer_store_dwordx4 v[24:27], v13, s[16:19], s27 offen")
    k.label(f"L_{name}_nog")
    e("v_and_b32 v3, 31, v0")
    e("v_lshrrev_b32 v4, 5, v0")
    e("v_mul_u32_u24 v5, 578, v3")
    e("v_lshl_add_u32 v5, v4, 1, v5")
    e("v_lshlrev_b32 v6, 2, v3")
    e("v_lshl_add_u32 v6, v4, 13, v6")
    e(f"s_lshl_b32 s{sT1}, s{sT0}, 7")
    e(f"s_add_u32 s{sT1}, s{sT1}, {WS_WT}")
    e("s_waitcnt vmcnt(0)")
    e("s_barrier")
    for part in range(6):
        for i in range(6*part, 6*part+6):
            e(f"ds_read_u16 v{30+i}, v5 offset:{2+16*i}")
            e(f"ds_read_u16 v{70+i}, v5 offset:{20480+2+16*i}")
        if part > 0:
            e("s_waitcnt lgkmcnt(12)")
            for i in range(6*part-6, 6*part):
                e(f"v_lshl_or_b32 v{30+i}, v{70+i}, 16, v{30+i}")
                e(f"s_add_u32 s26, s{sT1}, {8*8192*i}")
                e(f"buffer_store_dword v{30+i}, v6, s[16:19], s26 offen")
    e("s_waitcnt lgkmcnt(0)")
    for i in range(30, 36):
        e(f"v_lshl_or_b32 v{30+i}, v{70+i}, 16, v{30+i}")
        e(f"s_add_u32 s26, s{sT1}, {8*8192*i}")
        e(f"buffer_store_dword v{30+i}, v6, s[16:19], s26 offen")
    stamp_end(k, stamps, 6, 0, sW, 0)
    if NP:
        e("s_endpgm")
        k.label(f"L_{name}_pack")
        e("v_mov_b32 v0, v2")
        pack_wg(k, name, sW, 4, NMAIN + NWT, jobs[0], jobs[1], pk, stamps, 0)
    k.label(f"L_{name}_end")
    e("s_endpgm")
    return k, (256, 100, 256), (NMAIN + NWT + NP, 256, 49152 if NP else 40960)

def gen_k2(name="col_kernel", stamps=False, touch=None, trace=False, xt=None, pk=None, jobs=(0, 0)):
    NMAIN = 288
    NP = (90 if touch == 'gu' else 81) if touch else 0
    if jobs[1]: NP = 8 * (-(-jobs[1] // 4))
    k = Kern(name); e = k.e
    tr = Tracer(k, trace, 38)
    sW, sT0, sT1, sT2 = 20, 23, 24, 25
    e(f"s_cmp_ge_u32 s2, {NMAIN + NP}")
    e(f"s_cbranch_scc1 L_{name}_end")
    stamp_begin(k, stamps)
    e(f"s_load_dwordx2 s[6:7], s[0:1], {KA_WS}")
    e("v_lshrrev_b32 v1, 6, v0")
    e("v_and_b32 v0, 63, v0")
    e(f"v_readfirstlane_b32 s{sW}, v1")
    if NP:
        e(f"s_cmp_ge_u32 s2, {NMAIN}")
        e(f"s_cbranch_scc1 L_{name}_t")
    if xt: xt_load(k, 52)
    e("v_lshlrev_b32 v2, 4, v0")
    e("v_lshrrev_b32 v5, 5, v0")
    e("v_and_b32 v35, 31, v0")
    e("v_lshlrev_b32 v3, 2, v35")
    e("v_lshl_add_u32 v3, v5, 8, v3")
    e(f"s_lshl_b32 s{sT0}, s2, 13")
    e(f"s_lshl_b32 s26, s{sW}, 11")
    e(f"s_add_u32 s{sT0}, s{sT0}, s26")
    e(f"s_add_u32 s{sT1}, s{sT0}, {WS_Y}")
    e(f"s_add_u32 s{sT2}, s{sT0}, {WS_WT}")
    e("s_mov_b32 m0, s26")
    vM = 80
    e("v_bfe_u32 v4, v0, 1, 4")
    e(f"s_lshl_b32 s27, s{sW}, 4")
    e("v_add_u32 v4, s27, v4")
    e("v_and_b32 v6, 1, v0")
    e("v_cvt_f32_u32 v7, v4")
    e(f"v_mul_f32 v8, {fhex(1.0/64)}, v7")
    e("v_cvt_f32_u32 v9, v6")
    e("v_mul_f32 v9, 0x3e800000, v9")
    e("v_cvt_f32_u32 v36, v5")
    e("v_add_f32 v10, v36, v36")
    e("v_fma_f32 v9, v10, v8, v9")
    def m1(jp):
        for u in range(8):
            j, t = 2*jp + (u >> 2), u & 3
            e(f"v_fmamk_f32 v{12+u}, v8, {fhex(8*j + 4*(t>>1) + (t&1))}, v9")
        for u in range(8): e(f"v_cos_f32 v{20+u}, v{12+u}")
        for u in range(8): e(f"v_sin_f32 v{12+u}, v{12+u}")
        for u in range(8): e(f"v_cvt_pk_bf16_f32 v{vM+8*jp+u}, v{20+u}, v{12+u}")
    m1(0)
    e("s_waitcnt lgkmcnt(0)")
    tr("karg")
    k.srd(12, 6, WS_END)
    for i in range(2): k.vmem(f"buffer_load_dwordx4 v2, s[12:15], s{sT1} offen offset:{1024*i} lds", "y")
    vWt = 72
    for i in range(8):
        k.vmem(f"buffer_load_dword v{vWt+i}, v3, s[12:15], s{sT2} offen offset:{(4*(i>>1)+(i&1))*128}", "w")
    tr("issued")
    if xt:
        e("s_lshr_b32 s51, s2, 3")
        e("s_lshl_b32 s51, s51, 2")
        e(f"s_add_u32 s51, s51, s{sW}")
        e("s_sub_u32 s51, s51, 16")
        xt_prep(k, 52, 51, "v0", 160, xt)
        xt_fire(k, 52, 160, 1, xt)
        for _ in xt: k.vm.append("xt")
    m1(1)
    e("v_and_b32 v10, 1, v4")
    e("v_mul_u32_u24 v10, 0x8000, v10")
    e("v_lshl_or_b32 v10, v10, 16, v10")
    for u in range(16): e(f"v_xor_b32 v{vM+16+u}, v10, v{vM+u}")
    e(f"v_mul_f32 v8, {fhex(1.0/2048)}, v7")
    e("v_lshlrev_b32 v10, 31, v6")
    e("v_xor_b32 v8, v8, v10")
    e("v_mul_f32 v9, 4.0, v36")
    e("v_mul_f32 v9, v9, v8")
    for i in range(16): e(f"v_fmamk_f32 v{128+i}, v8, {fhex(8*(i>>2) + (i&3))}, v9")
    for i in range(16): e(f"v_cos_f32 v{112+i}, v{128+i}")
    for i in range(16): e(f"v_sin_f32 v{128+i}, v{128+i}")
    e("v_lshlrev_b32 v34, 2, v0")
    tr("gen")
    k.wait(vm="y")
    tr("yarr")
    e("s_barrier")
    vY = 40
    for j in range(8):
        for u in (0, 1): k.lds(f"ds_read2st64_b32 {R(vY+4*j+2*u,2)}, v34 offset0:{4*j+2*u} offset1:{4*j+2*u+1}", ("y", j))
        if j == 6: k.wait(lg=("y", 0))
    vF = 144
    fg = ["v_cvt_f32_u32 v10, v35", f"v_mul_f32 v11, {fhex(1.0/32)}, v10", "v_mul_f32 v32, 4.0, v36", "v_mul_f32 v32, v32, v11"]
    fg += [f"v_fmamk_f32 v{14+t}, v11, {fhex(8*(t>>2) + (t&3))}, v32" for t in range(8)]
    fg += [f"v_cos_f32 v{22+t}, v{14+t}" for t in range(8)] + [f"v_sin_f32 v{14+t}, -v{14+t}" for t in range(8)]
    for _ in range(12): e(fg.pop(0))
    stamp_mid(k, stamps, 0)
    D2 = R(160, 16)
    for j in range(8):
        k.wait(lg=("y", j))
        e(f"{MF32} {D2}, {R(vM+4*j,4)}, {R(vY+4*j,4)}, {'0' if j == 0 else D2}")
        for _ in range(2): e(fg.pop(0))
    assert not fg
    stamp_mid(k, stamps, 1)
    for t in range(4):
        e(f"v_cvt_pk_bf16_f32 v{vF+t}, v{22+2*t}, v{23+2*t}")
        e(f"v_cvt_pk_bf16_f32 v{vF+8+t}, v{14+2*t}, v{15+2*t}")
    k.wait(vm="w")
    for i in range(8):
        e(f"v_lshlrev_b32 v{12+2*i}, 16, v{vWt+i}")
        e(f"v_and_b32 v{13+2*i}, 0xffff0000, v{vWt+i}")
    for i in range(8):
        e(f"v_mul_f32 v{176+2*i}, v{160+2*i}, v{12+2*i}")
        e(f"v_mul_f32 v{177+2*i}, v{160+2*i}, v{13+2*i}")
    e("v_add_u32 v30, s26, v2")
    for hh in (0, 1):
        for i in range(4*hh, 4*hh+4):
            e(f"v_fma_f32 v{176+2*i}, -v{161+2*i}, v{13+2*i}, v{176+2*i}")
            e(f"v_fma_f32 v{177+2*i}, -v{161+2*i}, v{12+2*i}, -v{177+2*i}")
        for i in range(4*hh, 4*hh+4): e(f"v_cvt_pk_bf16_f32 v{72+i}, v{176+2*i}, v{177+2*i}")
        k.lds(f"ds_write_b128 v30, {R(72+4*hh,4)} offset:{8192+1024*hh}")
    tr("wmul")
    e("v_and_b32 v10, 1, v0")
    e("v_mul_u32_u24 v10, 0x8000, v10")
    e("v_lshl_or_b32 v10, v10, 16, v10")
    k.wait(lg0=True)
    e("s_barrier")
    for j in range(8): k.lds(f"ds_read_b128 {R(vY+4*j,4)}, v2 offset:{8192+1024*j}", ("a", j))
    for t in range(4):
        e(f"v_xor_b32 v{vF+4+t}, v10, v{vF+t}")
        e(f"v_xor_b32 v{vF+12+t}, v10, v{vF+8+t}")
    tr("xchg")
    sa = ["s_and_b32 s27, s2, 1", "s_mul_i32 s29, s27, 18432", "s_lshr_b32 s27, s2, 4", "s_lshl_b32 s27, s27, 10", "s_add_u32 s29, s29, s27",
          "s_bfe_u32 s27, s2, 0x20001", "s_lshl_b32 s27, s27, 8", "s_add_u32 s29, s29, s27",
          "s_bfe_u32 s27, s2, 0x10003", "s_lshl_b32 s27, s27, 7", "s_add_u32 s29, s29, s27",
          f"s_mul_i32 s27, s{sW}, {16*36864}", "s_add_u32 s29, s29, s27", f"s_add_u32 s29, s29, {WS_V}",
          "v_mul_u32_u24 v31, 73728, v5", "v_lshl_add_u32 v31, v35, 2, v31"]
    D3 = R(176, 16)
    for j in range(8):
        k.wait(lg=("a", j))
        e(f"{MF32} {D3}, {R(vY+4*j,4)}, {R(vM+4*j,4)}, {'0' if j == 0 else D3}")
        for _ in range(2): e(sa.pop(0))
    e("s_cmp_lg_u32 s2, 287")
    e(f"s_cbranch_scc1 L_{name}_nonyq")
    for i in range(32): e(f"v_mul_f32 v{112+i}, 0.5, v{112+i}")
    k.label(f"L_{name}_nonyq")
    e("s_nop 7")
    for hh in (0, 1):
        for i in range(8*hh, 8*hh+8): e(f"v_mul_f32 v{160+i}, v{176+i}, v{112+i}")
        for i in range(8*hh, 8*hh+8): e(f"v_fmac_f32_dpp v{160+i}, v{176+i}, v{128+i} {DPP}")
        for i in range(4*hh, 4*hh+4): e(f"v_cvt_pk_bf16_f32 v{40+i}, v{160+2*i}, v{161+2*i}")
        e("s_nop 1")
        e(f"{MF32} {R(80,16)}, {R(40+4*hh,4)}, {R(vF+4*hh,4)}, {'0' if hh == 0 else R(80,16)}")
        e(f"{MF32} {R(96,16)}, {R(40+4*hh,4)}, {R(vF+8+4*hh,4)}, {'0' if hh == 0 else R(96,16)}")
    tr("twid")
    for i in range(1, 8): e(f"s_add_u32 s{30+i}, s29, {(4*(i>>1)+(i&1))*36864}")
    e("s_mov_b32 s30, s29")
    e("s_nop 4")
    for i in range(8):
        e(f"v_sub_f32 v{48+2*i}, v{80+2*i}, v{96+2*i+1}")
        e(f"v_add_f32 v{48+2*i+1}, v{96+2*i}, v{80+2*i+1}")
        e(f"v_cvt_pk_bf16_f32 v{40+i}, v{48+2*i}, v{49+2*i}")
        k.vmem(f"buffer_store_dword v{40+i}, v31, s[12:15], s{30+i} offen", "st")
    tr("stored")
    tr.dump(6, sW, 39)
    stamp_end(k, stamps, 6, 1, sW, 2)
    if NP:
        e("s_endpgm")
        k.label(f"L_{name}_t")
        if jobs[1]: pack_wg(k, name, sW, 4, NMAIN, jobs[0], jobs[1], pk, stamps, 1)
        else:
            emit_touch_wg(k, sW, 4, NMAIN, touch)
            stamp_end(k, stamps, 6, 1, sW, 0)
    k.label(f"L_{name}_end")
    e("s_endpgm")
    return k, (192, 100, 192), (NMAIN + NP, 256, 49152 if jobs[1] else 16384)

def gen_k3(name="inv_kernel", stamps=False, hc16=False, wpf=None, touch=None, trace=False, xt=None, pk=None, jobs=(0, 0), xf=''):
    NMAIN = 192
    NP = (120 if touch == 'gu' else 54) if touch else 0
    if xt: NP = 64
    if jobs[1]: NP = 8 * (-(-jobs[1] // 3))
    k = Kern(name); e = k.e
    tr = Tracer(k, trace, 4)
    sW, sRG, sT, sT0, sT1, sT2 = 20, 21, 22, 23, 24, 25
    e(f"s_cmp_ge_u32 s2, {NMAIN + NP}")
    e(f"s_cbranch_scc1 L_{name}_end")
    stamp_begin(k, stamps)
    e(f"s_load_dwordx2 s[4:5], s[0:1], {KA_X}")
    e(f"s_load_dwordx2 s[6:7], s[0:1], {KA_WS}")
    e("v_lshrrev_b32 v1, 6, v0")
    e("v_and_b32 v0, 63, v0")
    e(f"v_readfirstlane_b32 s{sW}, v1")
    if NP:
        e(f"s_cmp_ge_u32 s2, {NMAIN}")
        e(f"s_cbranch_scc1 L_{name}_t")
    e(f"s_lshr_b32 s{sT0}, s2, 3")
    e(f"s_mul_hi_u32 s{sT1}, s{sT0}, 0x55555556")
    e(f"s_mul_i32 s{sT}, s{sT1}, 3")
    e(f"s_sub_u32 s{sT}, s{sT0}, s{sT}")
    e(f"s_mul_i32 s{sT}, s{sT}, 3")
    e(f"s_add_u32 s{sT}, s{sT}, s{sW}")
    e(f"s_and_b32 s{sRG}, s2, 7")
    e(f"s_lshl_b32 s{sRG}, s{sRG}, 3")
    e(f"s_add_u32 s{sRG}, s{sRG}, s{sT1}")
    e("v_lshlrev_b32 v2, 4, v0")
    e(f"s_mul_i32 s26, s{sRG}, 36864")
    e(f"s_add_u32 s27, s26, {WS_V}")
    e(f"s_mul_i32 s28, s{sT}, 18432")
    e(f"s_add_u32 s28, s28, {WS_G}")
    e(f"s_mul_i32 s29, s{sW}, 12288")
    e("s_add_u32 s27, s27, s29")
    e("v_lshrrev_b32 v5, 5, v0")
    e("v_and_b32 v6, 31, v0")
    e("v_mul_u32_u24 v7, 73728, v6")
    e("v_lshl_add_u32 v7, v5, 4, v7")
    e(f"s_mul_i32 s30, s{sRG}, 1152")
    e(f"s_lshl_b32 s{sT1}, s{sT}, 6")
    e(f"s_add_u32 s30, s30, s{sT1}")
    e("v_lshlrev_b32 v8, 2, v6")
    e(f"s_lshl_b32 s31, s{sRG}, 7")
    e(f"s_add_u32 s31, s31, {WS_MEAN}")
    e("v_and_b32 v10, 1, v0")
    e("v_lshlrev_b32 v10, 4, v10")
    e("v_bfe_u32 v11, v0, 1, 1")
    e("v_and_b32 v12, 1, v0")
    e("v_xor_b32 v12, v12, v11")
    e("v_lshlrev_b32 v12, 15, v12")
    e("v_lshl_or_b32 v11, v11, 31, v12")
    e("v_lshlrev_b32 v3, 2, v0")
    e("s_waitcnt lgkmcnt(0)")
    tr("karg")
    k.srd(12, 6, WS_END)
    for i in range(12):
        if i % 4 == 0:
            e(f"s_add_u32 m0, s29, {1024*i}")
            e(f"s_add_u32 s{sT0}, s27, {1024*i}")
        k.vmem(f"buffer_load_dwordx4 v2, s[12:15], s{sT0} offen offset:{(i&3)*1024} lds", "V")
    vG = 100
    gorder = [f for j in range(9) for f in (j, 9 + j)]
    for f in gorder:
        e(f"s_add_u32 s{sT1}, s28, {(f>>2)*4096}")
        k.vmem(f"buffer_load_dwordx4 {R(vG+4*f,4)}, v2, s[12:15], s{sT1} offen offset:{(f&3)*1024}", ("g", f))
    k.srd(8, 4, S*D*2)
    for u in range(4):
        k.vmem(f"buffer_load_dwordx4 {R(16+4*u,4)}, v7, s[8:11], s30 offen offset:{(u>>1)*576 + (u&1)*32}{xf}", "x")
    k.vmem("buffer_load_dword v9, v8, s[12:15], s31 offen", "x")
    if wpf: emit_wprefetch(k, sW, 3, "v0", 12, 1, 44, wpf)
    tr("issued")
    stamp_mid(k, stamps, 0)
    k.wait(vm="V")
    tr("varr")
    e("s_barrier")
    O, E, XM = 32, 48, 64
    seq = []
    for n_, f in enumerate(gorder):
        seq.append(("lo", f))
        if n_ >= 2: seq.append(("hi", gorder[n_-2]))
    seq += [("hi", gorder[-2]), ("hi", gorder[-1])]
    def step(kind, f):
        pi, j = divmod(f, 9)
        return 18*pi + j + (9 if kind == "hi" else 0)
    RING = [172 + 4*i for i in range(6)]
    ROT = [196, 200, 204]
    def rd(n):
        st = step(*seq[n]); b = RING[n % 6]
        for u in (0, 1): k.lds(f"ds_read2st64_b32 {R(b+2*u,2)}, v3 offset0:{4*st+2*u} offset1:{4*st+2*u+1}", ("b", n))
    for n in range(5): rd(n)
    started = set(); nrot = 0; rotreg = {}; rotdone = {}
    pend = []
    for n, (kind, f) in enumerate(seq):
        k.wait(vm=("g", f), lg=("b", n))
        accb = O if f < 9 else E
        acc = R(accb, 16)
        if kind == "hi":
            assert f in rotdone
            if rotdone[f] >= n - 1 or n >= 33: e("s_nop 1")
        a = vG + 4*f if kind == "lo" else rotreg[f]
        e(f"{MF32} {acc}, {R(a,4)}, {R(RING[n % 6],4)}, {'0' if accb not in started else acc}")
        started.add(accb)
        if n + 5 < 36: rd(n + 5)
        if kind == "lo":
            rr = ROT[nrot % 3]; nrot += 1; rotreg[f] = rr
            pend += [(f"v_alignbit_b32 v{rr+r}, v{vG+4*f+r}, v{vG+4*f+r}, v10", None) for r in range(4)] + [(f"v_xor_b32 v{rr+r}, v11, v{rr+r}", f if r == 3 else None) for r in range(4)]
        lim = 4 if n + 5 < 36 else 6
        for _ in range(lim):
            if pend:
                t_, fin = pend.pop(0); e(t_)
                if fin is not None: rotdone[fin] = n
    tr("mfma")
    stamp_mid(k, stamps, 1)
    k.wait(vm="x")
    for r in range(16):
        e(f"v_lshlrev_b32 v{XM+2*r}, 16, v{16+r}")
        e(f"v_and_b32 v{XM+2*r+1}, 0xffff0000, v{16+r}")
    e(f"s_lshl_b32 s{sT0}, s{sT}, 11")
    e(f"s_add_u32 s{sT0}, s{sT0}, s26")
    e(f"s_add_u32 s{sT0}, s{sT0}, {WS_HC}")
    e(f"s_add_u32 s{sT1}, s{sT0}, {18*1024}")
    e(f"s_mul_i32 s{sT2}, s{sRG}, 9")
    e(f"s_add_u32 s{sT2}, s{sT2}, s{sT}")
    e(f"s_lshl_b32 s{sT2}, s{sT2}, 8")
    e(f"s_add_u32 s{sT2}, s{sT2}, {WS_SS}")
    for i in range(16): e(f"v_sub_f32 v{E+i}, v{E+i}, v9")
    for u in range(4):
        for i in range(8*(u&1), 8*(u&1)+8):
            x_ = XM + 16*(u>>1) + i
            e(f"v_add_f32 v{x_}, v{x_}, v{E+i}")
            e(f"v_{'add' if u < 2 else 'sub'}_f32 v{x_}, v{x_}, v{O+i}")
        for i in range(4): e(f"v_cvt_pk_bf16_f32 v{16+4*u+i}, v{XM+8*u+2*i}, v{XM+8*u+2*i+1}")
        k.vmem(f"buffer_store_dwordx4 {R(16+4*u,4)}, v2, s[12:15], s{sT0 if u < 2 else sT1} offen offset:{1024*(u&1)}", "st")
    e("v_mov_b32 v12, 0"); e("v_mov_b32 v13, 0")
    for i in range(16): e(f"v_dot2c_f32_bf16 v{12+(i&1)}, v{16+i}, v{16+i}")
    e("s_nop 2")
    e("v_add_f32 v12, v12, v13")
    k.vmem(f"buffer_store_dword v12, v3, s[12:15], s{sT2} offen", "st")
    tr("stored")
    tr.dump(6, sW, 14)
    stamp_end(k, stamps, 6, 2, sW, 2)
    if NP:
        e("s_endpgm")
        k.label(f"L_{name}_t")
        if jobs[1]:
            pack_wg(k, name, sW, 3, NMAIN, jobs[0], jobs[1], pk, stamps, 2)
            e("s_endpgm")
        elif xt:
            xt_load(k, 52)
            e(f"s_sub_u32 s51, s2, {NMAIN}")
            e("s_lshr_b32 s51, s51, 3")
            e("s_mul_i32 s51, s51, 3")
            e(f"s_add_u32 s51, s51, s{sW}")
            e("s_waitcnt lgkmcnt(0)")
            spec = [(m_, lo + 24*i, hi) for (m_, lo, hi) in xt for i in range(-(-(hi - lo) // 24))]
            assert len(spec) <= 4
            xt_prep(k, 52, 51, "v0", 4, spec)
            xt_fire(k, 52, 4, 1, spec)
        else: emit_touch_wg(k, sW, 3, NMAIN, touch, nper=4)
        stamp_end(k, stamps, 6, 2, sW, 0)
    k.label(f"L_{name}_end")
    e("s_endpgm")
    return k, (208, 100, 208), (NMAIN + NP, 192, 36864)
```

```python
import sys, json
from dsl import *
from kfft import *
from k4f import *
HDR = open("sequential_preLN__spectral_gfnet__geglu_ffn__prompt.s.ref").read().split("; Override launch geometry")[0]
def build(path, stamps=False, k4=None, k1=None, k2=None, k3=None, split=None, pst=' sc1', pld=' nt'):
    k1, k2, k3 = dict(k1 or {}), dict(k2 or {}), dict(k3 or {})
    if split:
        pk = lambda k, a, b, c: emit_pack_job(k, 3, a, b, c, ld_flags=pld, st_flags=pst)
        k1.update(pk=pk, jobs=(0, split[0])); k2.update(pk=pk, jobs=(split[0], split[1])); k3.update(pk=pk, jobs=(split[0]+split[1], 162-split[0]-split[1]))
    ks = [gen_k1(stamps=stamps, **(k1 or {})), gen_k2(stamps=stamps, **(k2 or {})), gen_k3(stamps=stamps, hc16=False, **(k3 or {})), gen_k4f(stamps=stamps, kidx=3, **(k4 or {}))]
    print(path, ks[-1][0].info)
    txt = assemble_file(HDR, [(k, *l) for k, r, l in ks], [(k, *r) for k, r, l in ks])
    open(path, "w").write(txt)
if __name__ == "__main__":
    opts = json.loads(sys.argv[2]) if len(sys.argv) > 2 else {}
    build(sys.argv[1], **opts)
```

```python
from dsl import *
from layout import *
from k123 import stamp_begin, stamp_mid, stamp_end, R
from k4b import wg_map
import math

SLOT = 36864
MF32 = "v_mfma_f32_32x32x16_bf16"
MF16 = "v_mfma_f32_16x16x32_bf16"
P2ORDER = ["A0", "A1", "A2", "B0", "B1", "B2", "A3", "B3", "N"]

def gen_k4g(name="ffn_kernel", P=6, X=3, NF=10, stamps=False, dist=3, mapping=4, kidx=3, pf=True,
            pub_d=80, poll_d=60, chk_d=48, hpub_d=80, hpoll_d=48, hchk_d=48, st_sp=10, spin_max=200000, trace=False, order=None, dmar=6,
            wev=1, hc0=18, rpoll=(1810, 1830, 1900), trlead=False, nobar=0, fast=0, ssg=200, outf='', dfin=1352, margin=1.03, sent=(3, 4), clr_at=300, clr_sp=10, clr_poll=1400, sload=(), retry_max=4000, lead_v=0, lrate=4, early_out=False, nb=True):
    xdma = xhx = lin = False; dmaf = ''; tch = []
    order = order or P2ORDER
    k = Kern(name); e = k.e
    SGU, SD, SW, SO, SU = 12, 16, 20, 24, 4
    P1 = [(0, 0, 0), (0, 1, 0), (0, 0, 1), (0, 1, 1)] + [(b, m_, hf) for b in (1, 2, 3) for m_ in (0, 1) for hf in (0, 1)] + [(4, 0, 0), (4, 1, 0)]
    sW, sMT, sFS, sRG = 28, 29, 30, 31
    sOff, sLB1, sLB2, sLB3, sLBN, sLBN3 = 32, 33, 34, 35, 36, 37
    sColW, sColN = 38, 39
    sRow = 40
    sRowN = 44
    sHC, sP, sPR, sT0, sT1, sHo, sSp = 46, 47, 48, 49, 50, 51, 52
    sFH, sFHp, sFR, sFRo, sHXo, sHXp, sHR, sOut, sMn, sSpin = 53, 54, 55, 56, 57, 60, 61, 62, 63, 64
    vW, vD, vN, vDN = 1, 5, 104, 240
    vA = 9
    vAN = 21
    vL16 = 23
    vC1, vC2, vR = (24, 25), (26, 27), (250, 252)
    vT = 28
    NT = 12
    vH = 40
    vSt, vFl, vPo, vPoll, vFv, vHo = 244, 245, 246, 247, 248, 249
    REG = 49152
    aHP = 144
    aF = 216
    assert aF + 4*NF <= 256
    e("s_cmp_ge_u32 s2, 256")
    e(f"s_cbranch_scc1 L_{name}_end")
    stamp_begin(k, stamps)
    e(f"s_load_dwordx4 s[4:7], s[0:1], {KA_WG}")
    e(f"s_load_dwordx4 s[8:11], s[0:1], {KA_WD}")
    e(f"s_load_dwordx2 s[66:67], s[0:1], {KA_WS}")
    e("v_lshrrev_b32 v28, 6, v0")
    e("v_and_b32 v0, 63, v0")
    e(f"v_readfirstlane_b32 s{sW}, v28")
    wg_map(e, mapping, sFS, sMT, sT0, sT1)
    e(f"s_lshl_b32 s{sRG}, s{sMT}, 2")
    e(f"s_add_u32 s{sRG}, s{sRG}, s{sW}")
    e("v_lshrrev_b32 v28, 3, v0")
    e("v_and_b32 v29, 7, v0")
    e("v_lshrrev_b32 v30, 2, v0")
    e("v_and_b32 v31, 6, v28")
    e("v_xor_b32 v29, v29, v31")
    e("v_lshlrev_b32 v29, 4, v29")
    e(f"v_mul_u32_u24 v{vW}, 9216, v28")
    e(f"v_add_u32 v{vW}, v{vW}, v29")
    if lin: e(f"v_lshlrev_b32 v{vW}, 4, v0")
    for i in range(1, 4): e(f"v_add_u32 v{vW+i}, {i*(8*9216-1024)}, v{vW}")
    e(f"v_lshlrev_b32 v{vL16}, 4, v0")
    e(f"s_lshr_b32 s68, s{sFS}, 1")
    e(f"s_and_b32 s69, s{sFS}, 1")
    e("s_mul_i32 s70, s68, 576")
    e("s_mul_i32 s71, s69, 320")
    e("s_add_u32 s71, s71, s70")
    e(f"s_and_b32 s{sT0}, s{sW}, 1")
    e(f"s_mul_i32 s{sT1}, s{sW}, {72*9216}")
    e(f"s_lshl_b32 s{sColW}, s71, 1")
    e(f"s_add_u32 s{sColW}, s{sColW}, s{sT1}")
    e(f"s_mul_i32 s{sLB1}, s{sW}, 9216")
    e(f"s_mul_i32 s{sHC}, s{sRG}, 36864")
    e(f"s_add_u32 s{sHC}, s{sHC}, {WS_HC}")
    e("v_and_b32 v32, 3, v0")
    e("v_lshlrev_b32 v32, 3, v32")
    e("v_bfe_u32 v33, v0, 3, 2")
    e("v_lshl_add_u32 v33, v33, 5, v32")
    e(f"v_lshl_add_u32 v{vA}, v30, 7, v33")
    for t in range(1, 4): e(f"v_xor_b32 v{vA+t}, {32*t}, v{vA}")
    for r in range(1, 3):
        for t in range(4): e(f"v_add_u32 v{vA+4*r+t}, {r*REG}, v{vA+t}")
    e("v_bfe_u32 v33, v0, 4, 1")
    e("v_lshl_add_u32 v33, v33, 5, v32")
    e(f"v_lshl_add_u32 v{vAN}, v30, 6, v33")
    e(f"v_xor_b32 v{vAN+1}, 32, v{vAN}")
    e("s_waitcnt lgkmcnt(0)")
    k.srd(SGU, 4, D*F*2)
    k.srd(SW, 66, WS_END)
    SR = f"s[{SW}:{SW+3}]"
    NCH = 27
    k.tr = []
    def tr(label):
        if not trace or len(k.tr) >= 64: return
        if trlead and not (label.startswith("L") or label == "end"): return
        if not trlead and label.startswith("L"): return
        e("s_memtime s[58:59]")
        e("s_waitcnt lgkmcnt(0)")
        e("s_sub_u32 s58, s58, s92")
        e(f"v_writelane_b32 v251, s58, {len(k.tr)}")
        k.tr.append(label)

    def dma_items(c):
        slot = c % 4
        it = []
        for i in range(9):
            grp, r = divmod(i, 4)
            if c < 16:
                b, mat, hf = P1[c]
                m0, so = (sLB1, slot*SLOT + 4096*grp), (sColW, 128*b + (288*hf + 32*grp)*9216)
                v, srd = vW, (SU if mat else SGU)
            elif c < 18:
                m0, so = (sLB1, slot*SLOT + 4096*grp), (sColN, 64*grp*9216)
                v, srd = vN, (SU if P1[c][1] else SGU)
            else:
                nm = order[c-18]
                srd = SD
                if nm == "N":
                    v = vDN
                    if grp < 2: m0, so = (sLBN, slot*SLOT + 4096*grp), (sRowN, 64*grp*1152)
                    else: m0, so = (sLBN3, slot*SLOT), (sRowN+1, 0)
                else:
                    v = vD; side = 2*(nm[0] == "B"); db = int(nm[1])
                    if grp < 2: m0, so = (sLB2, slot*SLOT + 4096*grp), (sRow+side, 128*db + 32*grp*1152)
                    else: m0, so = (sLB3, slot*SLOT + 32768), (sRow+side+1, 128*db)
            if r == 0:
                it.append(("s", f"s_add_u32 m0, s{m0[0]}, {m0[1]}"))
                it.append(("s", f"s_add_u32 s{sOff}, s{so[0]}, {so[1]}"))
            it.append(("m", f"buffer_load_dwordx4 v{v+r}, s[{srd}:{srd+3}], s{sOff} offen offset:{1024*r}{dmaf} lds", ("dma", c)))
        return it
    def hc_items(kks):
        it = []
        for n_, kk in enumerate(kks):
            if n_ == 0 or kk % 4 == 0: it.append(("s", f"s_add_u32 s{sHo}, s{sHC}, {4096*(kk//4)}"))
            it.append(("m", f"buffer_load_dwordx4 a[{4*kk}:{4*kk+3}], v{vL16}, {SR}, s{sHo} offen offset:{1024*(kk%4)}", ("hc", kk)))
        return it
    def emit_item(it):
        if it[0] == "s": e(it[1])
        elif xdma and " lds" in it[1] and it[2][1] > 3: k.vm.append(it[2]); k.vm_done = len(k.vm)
        else: k.vmem(it[1], it[2])
    tr("L-karg")
    for it in dma_items(0): emit_item(it)
    tr("L-dma0")
    for it in hc_items(range(0, hc0)): emit_item(it)
    tr("L-hc0")
    if pf:
        e("s_bfe_u32 s77, s2, 0x10003")
        e("s_lshl_b32 s77, s77, 2")
        e(f"s_add_u32 s77, s77, s{sW}")
        k.prefetch_code(name, f"L_{name}_fin", 72, 39, 253, 1, part=(77, 8192))
    k.srd(SU, 6, D*F*2)
    e("v_lshlrev_b32 v39, 2, v0")
    e(f"s_mul_i32 s{sSpin}, s{sRG}, 2304")
    e(f"s_add_u32 s{sSpin}, s{sSpin}, {WS_SS}")
    real_lines = k.lines; k.lines = []
    k.srd(SD, 8, D*F*2)
    k.srd(SO, 10, S*D*2)
    e(f"v_mul_u32_u24 v{vD}, 1152, v28")
    e(f"v_add_u32 v{vD}, v{vD}, v29")
    e("v_and_b32 v31, 3, v0")
    e("v_and_b32 v37, 2, v28")
    e("v_xor_b32 v31, v31, v37")
    e("v_lshlrev_b32 v31, 4, v31")
    e(f"v_mul_u32_u24 v{vN}, 9216, v30")
    e(f"v_add_u32 v{vN}, v{vN}, v31")
    e(f"v_mul_u32_u24 v{vDN}, 1152, v30")
    e(f"v_add_u32 v{vDN}, v{vDN}, v31")
    for i in range(1, 4):
        e(f"v_add_u32 v{vN+i}, {i*(16*9216-1024)}, v{vN}")
        e(f"v_add_u32 v{vD+i}, {i*(8*1152-1024)}, v{vD}")
        e(f"v_add_u32 v{vDN+i}, {i*(16*1152-1024)}, v{vDN}")
    e("s_lshl_b32 s72, s69, 5")
    e("s_add_u32 s72, s72, s70")
    e("s_add_u32 s72, s72, 256")
    e("s_xor_b32 s65, s69, 1")
    e("s_mul_i32 s73, s65, 320")
    e("s_add_u32 s73, s73, s70")
    e("s_lshl_b32 s74, s65, 5")
    e("s_add_u32 s74, s74, s70")
    e("s_add_u32 s74, s74, 256")
    e(f"s_lshl_b32 s{sColN}, s72, 1")
    e(f"s_add_u32 s{sColN}, s{sColN}, s{sT1}")
    e(f"s_add_u32 s{sColN}, s{sColN}, s{sT1}")
    e("s_mul_i32 s75, s69, 640")
    e("s_lshl_b32 s76, s69, 6")
    e("s_add_u32 s76, s76, 512")
    for i, (f, sh) in enumerate([(71, 6), (72, 3), (73, 6), (74, 3)]):
        e(f"s_lshl_b32 s{sRow+i}, s{sW}, {sh}")
        e(f"s_add_u32 s{sRow+i}, s{sRow+i}, s{f}")
        e(f"s_mul_i32 s{sRow+i}, s{sRow+i}, 1152")
        e(f"s_add_u32 s{sRow+i}, s{sRow+i}, s75")
    e(f"s_cmp_lt_u32 s{sW}, 2")
    e(f"s_cselect_b32 s{sRowN}, s71, s73")
    e(f"s_cselect_b32 s{sRowN+1}, s72, s74")
    e(f"s_cselect_b32 s{sLBN}, 0, 18432")
    for i, sh in ((0, 7), (1, 4)):
        e(f"s_lshl_b32 s65, s{sT0}, {sh}")
        e(f"s_add_u32 s{sRowN+i}, s{sRowN+i}, s65")
        e(f"s_mul_i32 s{sRowN+i}, s{sRowN+i}, 1152")
        e(f"s_add_u32 s{sRowN+i}, s{sRowN+i}, s76")
    e(f"s_lshl_b32 s65, s{sT0}, 10")
    e(f"s_add_u32 s{sLBN3}, s{sLBN}, s65")
    e(f"s_add_u32 s{sLBN3}, s{sLBN3}, 16384")
    e(f"s_lshl_b32 s65, s{sT0}, 13")
    e(f"s_add_u32 s{sLBN}, s{sLBN}, s65")
    e(f"s_lshl_b32 s{sLB2}, s{sW}, 13")
    e(f"s_lshl_b32 s{sLB3}, s{sW}, 10")
    e(f"s_lshl_b32 s{sPR}, s{sRG}, 1")
    e(f"s_add_u32 s{sPR}, s{sPR}, s69")
    e(f"s_mul_i32 s{sPR}, s{sPR}, {9*16384}")
    e(f"s_add_u32 s{sPR}, s{sPR}, {WS_P}")
    e(f"s_lshl_b32 s{sP}, s68, 8")
    e(f"s_add_u32 s{sP}, s{sP}, s{sPR}")
    e("s_lshl_b32 s65, s68, 11")
    e(f"s_add_u32 s{sPR}, s{sPR}, s65")
    e(f"s_mul_i32 s65, s{sRG}, {FLAG_STRIDE}")
    e(f"s_add_u32 s65, s65, {WS_FLAG}")
    e(f"s_mul_i32 s{sFH}, s{sFS}, 640")
    e(f"s_add_u32 s{sFH}, s{sFH}, s65")
    e(f"s_xor_b32 s{sFHp}, s{sFS}, 1")
    e(f"s_mul_i32 s{sHXp}, s{sFHp}, 18432")
    e(f"s_mul_i32 s{sFHp}, s{sFHp}, 640")
    e(f"s_add_u32 s{sFHp}, s{sFHp}, s65")
    e(f"s_add_u32 s{sFR}, s65, s75")
    e(f"s_add_u32 s{sFR}, s{sFR}, {80*128}")
    e(f"s_lshl_b32 s{sFRo}, s68, 2")
    e(f"s_add_u32 s{sFRo}, s{sFRo}, s{sFR}")
    e(f"s_mul_i32 s65, s{sRG}, {16*18432}")
    e(f"s_add_u32 s65, s65, {WS_HX}")
    e(f"s_add_u32 s{sHXp}, s{sHXp}, s65")
    e(f"s_mul_i32 s{sHXo}, s{sFS}, 18432")
    e(f"s_add_u32 s{sHXo}, s{sHXo}, s65")
    e(f"s_and_b32 s{sHR}, s68, 3")
    e(f"s_lshl_b32 s{sHR}, s{sHR}, 6")
    e("s_lshr_b32 s65, s68, 2")
    e("s_lshl_b32 s65, s65, 10")
    e(f"s_add_u32 s{sHR}, s{sHR}, s65")
    e(f"s_add_u32 s{sHR}, s{sHR}, s{sHC}")
    e(f"s_mul_i32 s{sOut}, s68, {4*73728}")
    e(f"s_mul_i32 s65, s{sRG}, 1152")
    e(f"s_add_u32 s{sOut}, s{sOut}, s65")
    e(f"s_lshl_b32 s{sMn}, s68, 4")
    e(f"s_lshl_b32 s65, s{sRG}, 7")
    e(f"s_add_u32 s{sMn}, s{sMn}, s65")
    e(f"s_add_u32 s{sMn}, s{sMn}, {WS_MEAN}")
    e("v_and_b32 v32, 3, v0")
    e("v_bfe_u32 v33, v0, 2, 2")
    e("v_bfe_u32 v34, v0, 4, 1")
    e("v_lshrrev_b32 v35, 5, v0")
    e("v_lshrrev_b32 v36, 4, v0")
    e(f"v_lshlrev_b32 v{vSt}, 4, v32")
    e(f"v_lshl_add_u32 v{vHo}, v33, 8, v{vSt}")
    e(f"v_lshl_add_u32 v{vHo}, v34, 3, v{vHo}")
    e(f"v_lshl_add_u32 v{vHo}, v35, 11, v{vHo}")
    e(f"v_lshl_add_u32 v{vSt}, v36, 6, v{vSt}")
    e(f"v_lshl_add_u32 v{vSt}, v33, 11, v{vSt}")
    e("v_and_b32 v36, 7, v0")
    e(f"v_lshlrev_b32 v{vPo}, 2, v36")
    e("v_cmp_eq_u32 vcc, 0, v0")
    e("v_bfrev_b32 v36, 1")
    e(f"v_mov_b32 v{vFv}, 1")
    e(f"v_cndmask_b32 v{vFl}, v36, 0, vcc")
    vTch, vTcg, sTch, STG = (251 if not trace else 255), 254, 96, 8
    if any(x is not None for x in tch):
        e(f"s_lshl_b32 s78, s{sMT}, 1")
        e("s_add_u32 s78, s78, s69")
        e("s_lshl_b32 s78, s78, 2")
        e(f"s_add_u32 s78, s78, s{sW}")
        e("s_mul_i32 s79, s68, 1152")
        for i, (u0, cnt_, col) in enumerate([(0, 18, 2), (20, 18, 3), (40, 9, 4)]):
            e(f"s_sub_u32 s65, s78, {u0}")
            e("s_cmp_ge_u32 s65, 9")
            e(f"s_cselect_b32 s{sTch+i}, {640 - 9*64*9216}, 0")
            e(f"s_mul_i32 s77, s65, {64*9216}")
            e(f"s_add_u32 s{sTch+i}, s{sTch+i}, s77")
            e(f"s_add_u32 s{sTch+i}, s{sTch+i}, s79")
            e(f"s_add_u32 s{sTch+i}, s{sTch+i}, {128*col}")
            e(f"s_cmp_lt_u32 s65, {cnt_}")
            e(f"s_cselect_b32 s{sTch+i}, s{sTch+i}, 0x40000000")
        e(f"s_mul_i32 s79, s68, {576*1152}")
        for i in range(3):
            e(f"s_sub_u32 s65, s78, {52 + 16*i}")
            e(f"s_add_u32 s77, s65, {14*i}")
            e("s_lshl_b32 s77, s77, 14")
            e(f"s_add_u32 s{sTch+3+i}, s77, s79")
            e(f"s_cmp_lt_u32 s65, {14 if i < 2 else 13}")
            e(f"s_cselect_b32 s{sTch+3+i}, s{sTch+3+i}, 0x40000000")
        e(f"v_lshlrev_b32 v{vTch}, 8, v0")
        e(f"v_mul_u32_u24 v{vTcg}, 9216, v0")
    dl = [x.strip() for x in k.lines]; k.lines = real_lines
    defer = []
    i_ = 0
    while i_ < len(dl):
        grp = [dl[i_]]; i_ += 1
        if grp[0].startswith(("s_cmp", "s_bitcmp")):
            while i_ < len(dl) and dl[i_].startswith("s_cselect"): grp.append(dl[i_]); i_ += 1
        defer.append(grp)
    ss_items = [("m", f"buffer_load_dword v{vH+t}, v39, {SR}, s{sSpin} offen offset:{256*t}", "ss") for t in range(9)]
    if lead_v == 0: lead = hc_items(range(hc0, 18)) + dma_items(1) + dma_items(2) + hc_items(range(18, 36)) + ss_items + dma_items(3)
    elif lead_v == 1: lead = hc_items(range(hc0, 18)) + dma_items(1) + dma_items(2) + hc_items(range(18, 28)) + dma_items(3) + hc_items(range(28, 36)) + ss_items
    else: lead = dma_items(1) + hc_items(range(hc0, 18)) + dma_items(2) + hc_items(range(18, 28)) + dma_items(3) + hc_items(range(28, 36)) + ss_items

    mf = []
    Q = [112, 144, 176, 208]
    def accP1(b, mat):
        if b == 4: return Q[0] + 16*mat
        return Q[3 - b % 2] if mat else Q[b % 2]
    acc2 = {0: Q[3], 1: Q[1], 2: Q[2], 3: Q[0], 4: Q[3]}
    last_m = {}
    def wide_rd(slot, ks, t):
        a = slot*SLOT + ks*4096
        r = a // REG
        return [(vA + 4*r + t, a - r*REG), (vA + 4*r + t, a - r*REG + 2048)]
    def add(c, rd, kind, ks, Dt, t, first, own, key):
        last_m[key] = 2*len(mf) + 1
        mf.append(dict(c=c, rd=rd, B=[(kind, 2*ks), (kind, 2*ks+1)], D=[Dt + 4*(t & 1), Dt + 8 + 4*(t & 1)], Dt=Dt, first=first, own=own))
    for c in range(NCH):
        slot = c % 4
        if c < 16:
            b, mat, hf = P1[c]
            for j in range(9):
                for t in range(4):
                    add(c, wide_rd(slot, j, t), "hc", 9*hf + j, accP1(b, mat) + 16*(t >> 1), t, hf == 0 and j == 0, ("g", b), ("gu"[mat], b, t >> 1))
        elif c < 18:
            mat = P1[c][1]
            for j in range(18):
                for t in (0, 1):
                    add(c, [(vAN+t, j*2048), (vAN+t, j*2048+1024)], "hc", j, accP1(4, mat), t, j == 0, ("g", 4), ("gu"[mat], 4, 0))
        else:
            nm = order[c-18]
            if nm == "N":
                for j in range(18):
                    for t in (0, 1):
                        add(c, [(vAN+t, j*2048), (vAN+t, j*2048+1024)], "hp" if j >= 9 else "h", j % 9, acc2[4], t, j == 0, ("o", 4), ("o", 4, 0))
            else:
                db = int(nm[1]); isB = nm[0] == "B"
                seq = [(j, t) for j in range(9) for t in range(4)]
                if isB and nm != "B0": seq = [(j, t) for tp in (0, 1) for j in range(9) for t in (2*tp, 2*tp+1)]
                for (j, t) in seq:
                    add(c, wide_rd(slot, j, t), "hp" if isB else "h", j, acc2[db] + 16*(t >> 1), t, (not isB) and j == 0, ("o", db), ("o", db, t >> 1))
    NFR = len(mf); assert NFR == 972
    NM = 2*NFR
    cN = 18 + order.index("N")
    nslot = {16: 0, 17: 1, cN: cN % 4}
    def breg(B):
        kind, j = B
        if kind == "hc": return f"a[{4*j}:{4*j+3}]"
        if kind == "hp": return f"a[{aHP+4*j}:{aHP+4*j+3}]"
        return R(vH + 4*j, 4)

    class Op:
        __slots__ = ("txt", "kind", "deps", "done", "prio", "min_gap", "tag", "cost", "soft")
        def __init__(s, txt, kind="v", deps=(), min_gap=0, prio=0, tag=None):
            s.txt, s.kind, s.deps, s.min_gap, s.prio, s.tag = txt, kind, list(deps), min_gap, prio, tag
            s.done = None; s.soft = 0
            s.cost = 8 if kind == "x" else (5 if kind == "m" or (kind == "v" and (txt.startswith("v_fma_") or txt.startswith("v_cvt_pk") or "0x" in txt)) else 4)
    ops = []
    c1 = -2.0 * math.log2(math.e) * math.sqrt(2.0 / math.pi); c2 = c1 * 0.044715
    chain = [("w", "ss")] + [f"v_add_f32 v{vH}, v{vH}, v{vH+t}" for t in range(1, 9)]
    chain += [f"v_mov_b32 v{vH+1}, v{vH}", None, f"v_permlane32_swap_b32 v{vH}, v{vH+1}", None,
              f"v_add_f32 v{vH}, v{vH}, v{vH+1}", f"v_mov_b32 v{vR[0]}, {fhex(1e-5)}", f"v_fmac_f32 v{vR[0]}, {fhex(1.0/576)}, v{vH}",
              f"v_mov_b32 v{vR[1]}, v{vR[0]}", None, f"v_permlane16_swap_b32 v{vR[0]}, v{vR[1]}", None]
    for hf in (0, 1):
        chain += [("x", f"v_rsq_f32 v{vH+3}, v{vR[hf]}"), None,
                  f"v_mul_f32 v{vC1[hf]}, {fhex(c1)}, v{vH+3}", f"v_mul_f32 v{vH+4}, v{vH+3}, v{vH+3}",
                  f"v_mul_f32 v{vH+4}, v{vH+4}, v{vH+3}", f"v_mul_f32 v{vC2[hf]}, {fhex(c2)}, v{vH+4}"]
    prev = None; skip = 0
    for it in chain:
        if it is None: skip = 2; continue
        if isinstance(it, tuple) and it[0] == "w": o = Op(None, "vmwait", tag=it[1], min_gap=ssg)
        elif isinstance(it, tuple): o = Op(it[1], "x")
        else: o = Op(it, "v")
        if prev is not None: o.deps = [(prev, skip)]
        o.prio = -1; ops.append(o); prev = o; skip = 0
    stats_last = prev
    tfree = {}; tc = [0]; hdone = {}; owner_ops = {}
    def gelu(b, t, pr0):
        AG, AU = accP1(b, 0) + 16*t, accP1(b, 1) + 16*t
        mg = last_m[("g", b, t)] + 5; mu = last_m[("u", b, t)] + 5
        Hb = vH + 16*b + 8*t
        lst = []; res = []
        for i in range(16):
            G, U = AG + i, AU + i
            T = vT + tc[0] % NT; tc[0] += 1
            pr = pr0 + i
            d0 = [(stats_last, 1)] + ([(tfree[T], 0)] if T in tfree else [])
            m1 = Op(f"v_mul_f32 v{T}, v{G}, v{G}", deps=d0, min_gap=mg, prio=pr)
            f1 = Op(f"v_fma_f32 v{T}, v{T}, v{vC2[i>>3]}, v{vC1[i>>3]}", deps=[(m1, 0)], prio=pr)
            m2 = Op(f"v_mul_f32 v{T}, v{T}, v{G}", deps=[(f1, 0)], prio=pr)
            ex = Op(f"v_exp_f32 v{T}, v{T}", "x", deps=[(m2, 0)], prio=pr)
            f2 = Op(f"v_fma_f32 v{T}, v{T}, v{vR[i>>3]}, v{vR[i>>3]}", deps=[(ex, 1)], prio=pr)
            rc = Op(f"v_rcp_f32 v{T}, v{T}", "x", deps=[(f2, 0)], prio=pr)
            m3 = Op(f"v_mul_f32 v{G}, v{G}, v{T}", deps=[(rc, 1)], prio=pr)
            m4 = Op(f"v_mul_f32 v{U}, v{U}, v{G}", deps=[(m3, 0)], min_gap=mu, prio=pr)
            tfree[T] = m3; lst += [m1, f1, m2, ex, f2, rc, m3, m4]; res.append(m4)
            if i & 1:
                cv = Op(f"v_cvt_pk_bf16_f32 v{Hb + i//2}, v{U-1}, v{U}", deps=[(res[i-1], 0), (res[i], 0), (stats_last, 1)], prio=pr + 0.7)
                lst.append(cv); hdone[Hb + i//2] = cv
        return lst
    spins = []
    def flag_ops(last_st, sttag, pub_txt, poll_fn, reg, ident, loads, d, prio, after=None, poll_at=0, nbreg=None):
        w = Op(None, "vmwait", deps=[(last_st, d[0])], tag=sttag, prio=prio)
        pb = Op(pub_txt, "m", deps=[(w, 0)], prio=prio, tag=("pub", ident))
        pl = Op(poll_fn(reg), "m", deps=[(pb, d[1])] + ([(regfree[reg], 0)] if reg in regfree else []), prio=prio, tag=("poll", ident))
        pl.soft = poll_at
        w2 = Op(None, "vmwait", deps=[(pl, d[2])] + ([(after, 0)] if after else []), tag=("poll", ident), prio=prio)
        cm = Op(f"v_cmp_eq_u32 vcc, 0, v{reg}", deps=[(w2, 0)], prio=prio)
        regfree[reg] = cm
        if nbreg is None: br = Op((ident, poll_fn(vSpin)), "chk", deps=[(cm, 1)], prio=prio)
        else: br = Op(f"s_cmp_eq_u64 vcc, 0\n    s_cselect_b32 s{nbreg}, s{sPR}, 0x40000000", "s", deps=[(cm, 1)], prio=prio)
        lst = [w, pb, pl, w2, cm, br]; pv = br
        for kind, txt, tag in loads:
            o = Op(txt, kind, deps=[(pv, 1)], prio=prio, tag=tag); lst.append(o); pv = o
        return lst
    regfree = {}
    vSpin = 253
    PREG = [vPoll, 254, 255]
    lastchk = None
    prev_hst = None
    for b in range(5):
        lst = []
        for t in ((0, 1) if b < 4 else (0,)): lst += gelu(b, t, b*40 + t*16)
        owner_ops[("g", b)] = lst; ops += lst
        nfr = 4 if b < 4 else 2
        so = Op(f"s_add_u32 s{sT0}, s{sHXo}, {4096*b}", "s", deps=[(prev_hst, 0)] if prev_hst else [], prio=b*40, min_gap=288)
        ops.append(so)
        for j in range(nfr):
            fr = 4*b + j
            st = Op(f"buffer_store_dwordx4 {R(vH+4*fr,4)}, v{vL16}, {SR}, s{sT0} offen offset:{1024*j} sc1", "m",
                    deps=[(hdone[vH+4*fr+r], 1) for r in range(4)] + [(so, 0)] + ([(prev_hst, 1)] if prev_hst else []), prio=b*40 + 8*j + 8, tag=("hst", b))
            ops.append(st); prev_hst = st
        loads = [("s", f"s_add_u32 s{sSp}, s{sHXp}, {4096*b}", None)]
        loads += [("m", f"buffer_load_dwordx4 a[{aHP+16*b+4*j}:{aHP+16*b+4*j+3}], v{vL16}, {SR}, s{sSp} offen offset:{1024*j} sc1", ("hp", 4*b+j)) for j in range(nfr)]
        dd = (hpub_d, hpoll_d if b >= 3 else 2*hpoll_d, hchk_d)
        fl = flag_ops(prev_hst, ("hst", b), f"buffer_store_dword v{vFv}, v{vFl}, {SR}, s{sFH} offen offset:{128*b} sc1",
                      (lambda r, b=b: f"buffer_load_dword v{r}, off, {SR}, s{sFHp} offset:{128*b} sc1"), PREG[b % 2], f"h{b}", loads, dd, b*40 + 39, after=lastchk)
        ops += fl; lastchk = fl[-1]
    comp = sorted(range(5), key=lambda db: last_m[("o", db, 0 if db == 4 else 1)])
    prev_st = prev_hst
    tail_blocks = []
    stlast = {}
    def red_pub(db): return f"buffer_store_dword v{vFv}, v{vFl}, {SR}, s{sFRo} offen offset:{128*db} sc1"
    def red_poll(db, reg=vPoll): return f"buffer_load_dword v{reg}, v{vPo}, {SR}, s{sFR} offen offset:{128*db} sc1"
    def red_loads(db, base=None):
        base = sPR if base is None else base
        l = []
        for t in ((0, 1) if db < 4 else (0,)):
            T = 2*db + t
            l.append(("s", f"s_add_u32 s{sSp}, s{base}, {T*16384}", None))
            l += [("m", f"buffer_load_dwordx4 a[{8*T+4*j}:{8*T+4*j+3}], v{vL16}, {SR}, s{sSp} offen offset:{1024*j} sc1", ("rl", db)) for j in range(2)]
        return l
    state = {}; pollreg = {}
    clr_chk = None
    if sent:
        late_clr = clr_at > 1000
        vN_ = 24 if late_clr else vH + 60
        gl_ = [(o, 1) for o in owner_ops[("g", 4)]] if late_clr else []
        mv = [Op(f"v_mov_b32 v{vN_+r}, -1", min_gap=clr_at, prio=-3, deps=gl_) for r in range(4)]
        ops += mv; pv = None
        for db in sent:
            for t in ((0, 1) if db < 4 else (0,)):
                so = Op(f"s_add_u32 s{sT1}, s{sPR}, {(2*db+t)*16384}", "s", deps=[(pv, 0)] if pv else [], min_gap=clr_at, prio=-3)
                ops.append(so)
                for j in (0, 1):
                    st = Op(f"buffer_store_dwordx4 {R(vN_,4)}, v{vL16}, {SR}, s{sT1} offen offset:{1024*j} sc1", "m",
                            deps=[(so, 0)] + [(x, 1) for x in mv] + ([(pv, clr_sp)] if pv else []), prio=-3, tag="clr")
                    ops.append(st); pv = st
        if not late_clr:
            for r in range(4): hdone[vN_+r].deps.append((pv, 2))
        fl = flag_ops(pv, "clr", red_pub(4), (lambda r: red_poll(4, r)), PREG[2], "clr", [], (pub_d, poll_d, chk_d), 500, after=lastchk, poll_at=clr_poll)
        ops += fl; lastchk = fl[-1]; clr_chk = fl[-1]
    for ci, db in enumerate(comp):
        lst = []
        for t in ((0, 1) if db < 4 else (0,)):
            a = acc2[db] + 16*t; mg = last_m[("o", db, t)] + 5
            pr = 1000 + ci*100 + t*40
            pv = None
            for ee in (0, 1):
                cvs = []
                for j in range(4*ee, 4*ee+4):
                    o = Op(f"v_cvt_pk_bf16_f32 v{a+j}, v{a+2*j}, v{a+2*j+1}", min_gap=mg, prio=pr + j, deps=[(pv, 0)] if pv else [])
                    lst.append(o); pv = o
                so = Op(f"s_add_u32 s{sT0}, s{sP}, {(2*db+t)*16384 + ee*8192}", "s", deps=[(prev_st, 0)], min_gap=mg, prio=pr + 4*ee)
                st = Op(f"buffer_store_dwordx4 {R(a+4*ee,4)}, v{vSt}, {SR}, s{sT0} offen sc1", "m", deps=[(pv, 1), (so, 0), (prev_st, st_sp)] + ([(clr_chk, 1)] if db in sent else []), prio=pr + 4*ee + 4, tag=("st", db))
                lst += [so, st]; prev_st = st
        owner_ops[("o", db)] = lst; ops += lst
        est = last_m[("o", db, 0 if db == 4 else 1)] + 16 + st_sp
        if db in sent:
            state[db] = "sent"
            sl = dict(sload)
            if db in sl:
                pv = lastchk
                for kind, txt, tag in red_loads(db):
                    o = Op(txt, kind, deps=[(pv, 1), (prev_st, pub_d)], prio=900 + ci, tag=tag); o.soft = sl[db]; ops.append(o); pv = o
                lastchk = pv; state[db] = "sentl"
            continue
        pat = rpoll[ci] if ci < len(rpoll) else 5000
        fl = flag_ops(prev_st, ("st", db), red_pub(db), (lambda r, db=db: red_poll(db, r)), PREG[ci % 3], f"r{db}", red_loads(db, 96 + db if nb else None), (pub_d, poll_d, chk_d), 900 + ci, after=lastchk, poll_at=pat, nbreg=(96 + db if nb else None))
        tp = max(est + pub_d + poll_d, pat)
        if tp + chk_d < NM - 24: ops += fl; lastchk = fl[-1]; state[db] = "done"
        elif tp < NM - 6: ops += fl[:3]; state[db] = "polled"; pollreg[db] = PREG[ci % 3]
        elif est + pub_d < NM - 6: ops += fl[:2]; state[db] = "pub"
        else: state[db] = "none"
    glast = [(o, 1) for o in owner_ops[("g", 4)]]
    pv = None
    for j in range(5):
        if j < 4:
            s1 = Op(f"s_lshl_b32 s{sHo}, s75, 5", "s", deps=glast + ([(pv, 0)] if pv else []), prio=890)
        else:
            s1 = Op(f"s_lshl_b32 s{sHo}, s76, 5", "s", deps=[(pv, 0)], prio=890)
        s2_ = Op(f"s_add_u32 s{sHo}, s{sHo}, s{sHR}", "s", deps=[(s1, 0)], prio=890)
        lst = [s1, s2_]; pv = s2_
        if 0 < j < 4:
            s3 = Op(f"s_add_u32 s{sHo}, s{sHo}, {4096*j}", "s", deps=[(s2_, 0)], prio=890); lst.append(s3); pv = s3
        ld = Op(f"buffer_load_dwordx2 v[{vT+2*j}:{vT+2*j+1}], v{vHo}, {SR}, s{sHo} offen", "m", deps=[(pv, 0)], prio=890, tag="res")
        ops += lst + [ld]; pv = ld
    mo = Op(f"v_and_b32 v{vT+11}, 60, v39", deps=glast, prio=890) if False else None
    m1_ = Op(f"v_lshrrev_b32 v{vT+11}, 2, v{vL16}", deps=glast, prio=889)
    m2_ = Op(f"v_and_b32 v{vT+11}, 12, v{vT+11}", deps=[(m1_, 0)], prio=889)
    ops += [m1_, m2_, Op(f"buffer_load_dword v{vT+10}, v{vT+11}, {SR}, s{sMn} offen", "m", deps=[(pv, 1), (m2_, 1)], prio=890, tag="res")]
    for i, gp in enumerate(tch):
        if gp is None: continue
        for z in (0, 1):
            if i < 3: txt = f"buffer_load_dword v{vSpin}, v{vTcg}, s[{(SGU, SU)[z]}:{(SGU, SU)[z]+3}], s{sTch+i} offen"
            else: txt = f"buffer_load_dword v{vSpin}, v{vTch}, s[{SD}:{SD+3}], s{sTch+i} offen offset:{128*z}"
            ops.append(Op(txt, "m", min_gap=gp, prio=-2, tag="touch"))
    pending = sorted(ops, key=lambda o: o.prio)

    def ready(o, g):
        if g < o.min_gap or g < o.soft: return False
        for d, lat in o.deps:
            if d.done is None or g < d.done + lat: return False
        return True
    def take(kinds, g, maxcost=99):
        for idx, o in enumerate(pending[:260]):
            if o.kind in kinds and o.cost <= maxcost and ready(o, g):
                pending.pop(idx); o.done = g
                return o
        return None
    nforced = [0]
    def force(o, g):
        if o.done is not None: return
        for d, lat in o.deps: force(d, g)
        assert g >= o.min_gap, (o.txt, g, o.min_gap)
        pending.remove(o); o.done = g - 1
        e("s_nop 1"); emit_op(o); nforced[0] += 1
    def emit_check(ident, poll_txt):
        e(f"s_cbranch_vccnz L_{name}_spin{ident}")
        k.label(f"L_{name}_ret{ident}")
        spins.append((ident, poll_txt))
    def emit_op(o):
        assert not defer or o.prio == -1, o.txt
        if o.kind == "vmwait":
            if o.tag == "ss": assert k.vm.count("ss") == 9 and not defer
            if o.tag != "ss": tr(f"pre-wait{o.tag}")
            k.wait(vm=o.tag)
            if o.tag != "ss": tr(f"post-wait{o.tag}")
        elif o.kind == "chk":
            emit_check(*o.txt); tr(f"post-chk{o.txt[0]}")
        elif o.kind == "m":
            if xhx and "sc1" in o.txt and "store_dwordx4" in o.txt and o.tag[0] == "hst": k.vmem("buffer_load_dword v253, off, s[20:23], s46", o.tag)
            else: k.vmem(o.txt, o.tag)
        else: e(o.txt)
    cur_nslot = [0]
    def emit_half(hidx):
        n, ei = divmod(hidx, 2)
        fr = aF + 4*(n % NF)
        c_ = mf[n]["c"]
        if c_ in nslot and nslot[c_] != cur_nslot[0]:
            d_ = (nslot[c_] - cur_nslot[0]) * SLOT
            for t in (0, 1): e(f"v_add_u32 v{vAN+t}, {d_ & 0xffffffff}, v{vAN+t}")
            cur_nslot[0] = nslot[c_]
        ar, off = mf[n]["rd"][ei]
        k.lds(f"ds_read_b64_tr_b16 a[{fr+2*ei}:{fr+2*ei+1}], v{ar} offset:{off}", ("f", n))
    def barrier(c):
        assert k.vm.count(("dma", c)) == 9, c
        if c > 17: tr(f"pre-bar{c}")
        if trlead == 2 or c < 9: tr(f"L-pre-bar{c}")
        k.wait(vm=[("dma", c)], lg0=(c > 0))
        if trlead == 2 or c < 9: tr(f"L-waited{c}")
        if nobar == 0 or c < 4 or (nobar == 2 and c % 2 == 0): e("s_barrier")
        if trlead != 2 and c < 9: tr(f"L-post-bar{c}")
    stamp_mid(k, stamps, 0)
    barrier(0)
    bar_done = 0
    rh = 0
    for _ in range(2*P): emit_half(rh); rh += 1
    vq = list(lead)
    forced = 0
    k.wait(lg=("f", 0), vm=("hc", 1))
    firstseen = {}; last_vm = [-9]
    over = 0; credit = 0.0
    dls = [(0, 8*72 - 4), (1, 12*72 - 4), (2, 16*72 - 4), (3, dfin - 16), (4, dfin)]
    for g in range(NM):
        n, hf = divmod(g, 2)
        m = mf[n]; c = m["c"]
        assert rh >= 2*n + 2 and k._need(k.lg, k.lg_done, ("f", n)) is None
        B = m["B"][hf]
        if B[0] in ("hc", "hp"): assert B in k.vm and k._need(k.vm, k.vm_done, B) is None, (g, B)
        if B[0] == "h":
            regs = range(vH + 4*B[1], vH + 4*B[1] + 4)
            for r in regs: force(hdone[r], g - 1)
            if any(hdone[r].done >= g - 2 for r in regs): e("s_nop 1")
        if m["first"] and hf == 0:
            for own, lst in owner_ops.items():
                if own == m["own"] or own not in firstseen: continue
                if m["Dt"] in firstseen[own]:
                    for o in lst: force(o, g - 1)
                    if any(o.done >= g - 2 for o in lst): e("s_nop 1")
            firstseen.setdefault(m["own"], set()).add(m["Dt"])
        fr = aF + 4*(n % NF); Dr = R(m["D"][hf], 4)
        e(f"{MF16} {Dr}, a[{fr}:{fr+3}], {breg(B)}, {'0' if m['first'] else Dr}")
        if g == 287: stamp_mid(k, stamps, 1)
        if g == 1295: stamp_mid(k, stamps, 2)
        slots = 2; free_first = True
        E = 36*(c+1) - 1
        if hf == 1:
            if c + 1 < NCH and n == E - P + X:
                while k.vm.count(("dma", c+1)) < 9: emit_item(vq.pop(0)); forced += 1
                barrier(c + 1); bar_done = c + 1; free_first = False; slots -= 1
                if c + 1 + dist < NCH: vq += dma_items(c + 1 + dist)
            if n + 1 < NFR:
                nb = mf[n+1]["B"][1]
                vmt = nb if nb[0] in ("hc", "hp") else None
                if vmt is not None and vmt not in k.vm:
                    if vmt[0] == "hc":
                        while vmt not in k.vm: emit_item(vq.pop(0)); forced += 1
                    else: force([o for o in ops if o.tag == vmt and o.kind == "m"][0], g)
                need_lg = k._need(k.lg, k.lg_done, ("f", n+1)) is not None
                tgt = ("f", min(n + wev, rh//2 - 1)) if need_lg else None
                if k.wait(lg=tgt, vm=vmt):
                    if not free_first: slots -= 1
                    free_first = False
        if free_first:
            if vq and vq[0][0] == "s": emit_item(vq.pop(0))
            else:
                o = take(("s", "vmwait", "chk"), g)
                if o: emit_op(o)
                elif defer and len(defer[0]) == 1 and defer[0][0].startswith("s_"): e(defer.pop(0)[0])
        def can_half(): return rh < NM and mf[rh//2]["c"] <= bar_done and rh <= g + 2*P + 1
        nrd = 0
        while can_half() and nrd < (2 if rh < g + 2*P else 1):
            emit_half(rh); rh += 1; slots -= 1; nrd += 1
        if slots > 0:
            inlead = c < 4
            nm_ = sum(1 for x in vq if x[0] == "m")
            if vq and vq[0][0] == "m" and vq[0][2] == "ss": go = True
            elif g < fast: go = True
            elif nm_ > 9 or inlead: go = g - last_vm[0] >= (lrate if inlead else 4)
            else: go = g - last_vm[0] >= dmar
            if vq and vq[0][0] == "m" and go:
                emit_item(vq.pop(0)); slots -= 1; last_vm[0] = g
            else:
                o = take(("m",), g)
                if o: emit_op(o); slots -= 1
        if defer and slots > 0:
            for x in defer.pop(0): e(x); slots -= 1
        rate = 0.0; cum = 0
        for b_, dl_ in dls:
            cum += sum((2 if o.kind == "x" else 1) for o in owner_ops[("g", b_)] if o.done is None)
            if cum: rate = max(rate, cum / max(dl_ - g, 1))
        credit = min(credit + rate*margin, 3.0)
        allow = max(slots, min(int(credit), 2 + (rate > 1.6)))
        used = 0
        xo = None
        if allow >= 2 or (allow >= 1 and (credit >= 1.0 or rate == 0)):
            xo = take(("x",), g)
            if xo: allow -= 2; used += 2; xo.done = None
        while allow > 0:
            o = take(("v",), g)
            if not o: break
            emit_op(o); allow -= 1; used += 1
        if xo: xo.done = g; emit_op(xo)
        credit = max(credit - used, -2.0)
        over += max(0, used - max(slots, 0))
    assert not vq
    tr("loopend")
    e("s_nop 7")
    g = NM + 10
    while pending:
        o = take(("v", "x", "s", "m", "vmwait", "chk"), g); g += 1
        if o: emit_op(o)
    stamp_mid(k, stamps, 3)
    tr("laststores")
    vDo = vH; vTp = vH + 24; vA0 = vH + 32
    def publish(db):
        k.wait(vm=("st", db)); k.vmem(red_pub(db), ("pub", db))
    def consume(db, reg):
        e(f"v_cmp_eq_u32 vcc, 0, v{reg}")
        ld = red_loads(db)
        e(ld[0][1])
        emit_check(f"r{db}", red_poll(db, vSpin))
        tr(f"tail-chk{db}")
        for kind, txt, tag in ld[1:]:
            if kind == "s": e(txt)
            else: k.vmem(txt, tag)
    def reduce_blk(db):
        Dr = R(vDo + 4*db, 4)
        k.wait(vm=("rl", db))
        for t in ((0, 1) if db < 4 else (0,)):
            for j in range(2):
                a = 8*(2*db+t) + 4*j
                e(f"{MF16} {Dr}, {R(vA0 + 4*t, 4)}, a[{a}:{a+3}], {Dr}")
    flagged = [db for db in comp if db not in sent]
    for db in flagged:
        if state[db] == "none": publish(db); state[db] = "pub"
    catch = []
    if nb:
        for db in flagged:
            if state[db] == "done":
                e(f"s_cmp_lg_u32 s{96+db}, s{sPR}")
                e(f"s_cbranch_scc1 L_{name}_cu{db}")
                k.label(f"L_{name}_cb{db}")
                catch.append(db)
    for db in flagged:
        if state[db] == "polled":
            k.wait(vm=("poll", f"r{db}")); tr("tail-pollw"); consume(db, pollreg[db]); state[db] = "late"
    rest = [db for db in flagged if state[db] == "pub"]
    for db in rest: k.vmem(red_poll(db, vTp + db), ("tp", db))
    def issue_loads(db, track=True):
        for kind, txt, tag in red_loads(db):
            if kind == "s" or not track: e(txt)
            else: k.vmem(txt, tag)
    for db in comp:
        if state[db] == "sent" and db != comp[-1]: issue_loads(db)
    vOo, vMo = vH + 40, vH + 41
    e(f"v_and_b32 v{vMo}, 3, v0")
    e(f"v_mul_u32_u24 v{vOo}, 73728, v{vMo}")
    e(f"v_bfe_u32 v{vMo}, v0, 2, 3")
    e(f"v_lshl_add_u32 v{vOo}, v{vMo}, 3, v{vOo}")
    e(f"v_lshrrev_b32 v{vTp+6}, 5, v0")
    e(f"v_lshl_add_u32 v{vMo}, v{vTp+6}, 30, v{vOo}")
    e(f"v_lshl_add_u32 v{vOo}, v{vTp+6}, 6, v{vOo}")
    e(f"v_and_b32 v{vTp+6}, 1, v0")
    e(f"v_lshlrev_b32 v{vTp+6}, 4, v{vTp+6}")
    e(f"v_mov_b32 v{vTp+7}, 0x3f80")
    e(f"v_lshlrev_b32 v{vTp+7}, v{vTp+6}, v{vTp+7}")
    e(f"v_bfe_u32 v{vTp+6}, v0, 1, 3")
    for r in range(8):
        e(f"v_cmp_eq_u32 vcc, {r}, v{vTp+6}")
        e("s_nop 1")
        e(f"v_cndmask_b32 v{vA0+r}, 0, v{vTp+7}, vcc")
    k.wait(vm="res")
    for j in range(5):
        for u in range(2):
            e(f"v_lshlrev_b32 v{vDo+4*j+2*u}, 16, v{vT+2*j+u}")
            e(f"v_and_b32 v{vDo+4*j+2*u+1}, 0xffff0000, v{vT+2*j+u}")
        for u in range(4): e(f"v_add_f32 v{vDo+4*j+u}, v{vDo+4*j+u}, v{vT+10}")
    e("s_nop 1")
    e(f"s_add_u32 s{sT0}, s{sOut}, s75")
    e(f"s_add_u32 s{sT1}, s{sOut}, s76")
    stored = set()
    def out_store(j):
        a = vDo + 4*j
        e(f"v_cvt_pk_bf16_f32 v{a}, v{a}, v{a+1}")
        e(f"v_cvt_pk_bf16_f32 v{a+1}, v{a+2}, v{a+3}")
        if j < 4: k.vmem(f"buffer_store_dwordx2 v[{a}:{a+1}], v{vOo}, s[{SO}:{SO+3}], s{sT0} offen offset:{128*j}{outf}", "out")
        else: k.vmem(f"buffer_store_dwordx2 v[{a}:{a+1}], v{vMo}, s[{SO}:{SO+3}], s{sT1} offen{outf}", "out")
        stored.add(j)
    dn = [db for db in comp if state[db] == "done"]
    for db in dn[:2]: reduce_blk(db)
    tr("tail-a")
    for db in rest:
        k.wait(vm=("tp", db)); consume(db, vTp + db)
    if comp[-1] in sent:
        k.wait(vm=("st", comp[-1]))
        tr("tail-ack")
        issue_loads(comp[-1])
    for db in dn[2:]: reduce_blk(db)
    for db in flagged:
        if state[db] in ("late", "pub"): reduce_blk(db)
    if early_out:
        e("s_nop 7")
        for db in flagged: out_store(db)
    vZ = vH + 44
    for db in [x for x in comp if x in sent]:
        Dz = R(vZ + 4*db, 4)
        k.wait(vm=("rl", db))
        e(f"s_mov_b32 s{sSpin}, {retry_max}")
        k.label(f"L_{name}_sr{db}")
        first = True
        for t in ((0, 1) if db < 4 else (0,)):
            for j in range(2):
                a = 8*(2*db+t) + 4*j
                e(f"{MF16} {Dz}, {R(vA0 + 4*t, 4)}, a[{a}:{a+3}], {'0' if first else Dz}"); first = False
        e(f"s_sub_u32 s{sSpin}, s{sSpin}, 1")
        e("s_nop 6")
        e(f"v_cmp_u_f32 vcc, v{vZ+4*db}, v{vZ+4*db+1}")
        e(f"v_cmp_u_f32 s[70:71], v{vZ+4*db+2}, v{vZ+4*db+3}")
        e("s_nop 0")
        e("s_or_b64 s[70:71], s[70:71], vcc")
        e(f"s_cbranch_scc1 L_{name}_sx{db}")
        k.label(f"L_{name}_sd{db}")
        tr(f"tail-sent{db}")
        for u in range(4): e(f"v_add_f32 v{vDo+4*db+u}, v{vDo+4*db+u}, v{vZ+4*db+u}")
        if early_out: out_store(db)
    e("s_nop 7")
    for j in range(5):
        if j not in stored: out_store(j)
    if trace:
        tr("end")
        e("s_waitcnt vmcnt(0)")
        tr("drained")
        e("s_lshl_b32 s58, s2, 2")
        e(f"s_add_u32 s58, s58, s{sW}")
        e("s_lshl_b32 s58, s58, 8")
        e(f"s_add_u32 s58, s58, {WS_END + 8*131072}")
        e(f"s_mov_b32 s{SW+2}, {WS_END + 12*131072}")
        e("v_lshlrev_b32 v252, 2, v0")
        e(f"buffer_store_dword v251, v252, {SR}, s58 offen")
        open("trace_labels.txt", "w").write("\n".join(k.tr))
    stamp_end(k, stamps, 66, kidx, sW, 4)
    k.label(f"L_{name}_end")
    e("s_endpgm")
    for ident, ptxt in spins:
        k.label(f"L_{name}_spin{ident}")
        e(f"s_mov_b32 s{sSpin}, {spin_max}")
        k.label(f"L_{name}_spinl{ident}")
        e(ptxt)
        e(f"s_sub_u32 s{sSpin}, s{sSpin}, 1")
        e("s_waitcnt vmcnt(0)")
        e(f"v_cmp_eq_u32 vcc, 0, v{vSpin}")
        e(f"s_cmp_eq_u32 s{sSpin}, 0")
        e(f"s_cbranch_scc1 L_{name}_ret{ident}")
        e(f"s_cbranch_vccnz L_{name}_spinl{ident}")
        e(f"s_branch L_{name}_ret{ident}")
    for db in catch:
        k.label(f"L_{name}_cu{db}")
        e(f"s_mov_b32 s{sSpin}, {spin_max}")
        k.label(f"L_{name}_cul{db}")
        e(red_poll(db, vSpin))
        e(f"s_sub_u32 s{sSpin}, s{sSpin}, 1")
        e("s_waitcnt vmcnt(0)")
        e(f"v_cmp_eq_u32 vcc, 0, v{vSpin}")
        e(f"s_cmp_eq_u32 s{sSpin}, 0")
        e(f"s_cbranch_scc1 L_{name}_cug{db}")
        e(f"s_cbranch_vccnz L_{name}_cul{db}")
        k.label(f"L_{name}_cug{db}")
        issue_loads(db, track=False)
        e("s_waitcnt vmcnt(0)")
        e(f"s_branch L_{name}_cb{db}")
    for db in sent:
        k.label(f"L_{name}_sx{db}")
        e(f"s_cmp_eq_u32 s{sSpin}, 0")
        e(f"s_cbranch_scc1 L_{name}_sd{db}")
        issue_loads(db, track=False)
        e("s_waitcnt vmcnt(0)")
        e(f"s_branch L_{name}_sr{db}")
    k.label(f"L_{name}_fin")
    k.info = (forced, nforced[0], over, dict(state))
    return k, (512, 102, 256), (256, 256, 4*SLOT)
```

```python
from dsl import *
from layout import *
from k123 import stamp_begin, stamp_mid, stamp_end, Tracer, emit_wprefetch, emit_touch_wg, MF32, R
import math
from k4b import emit_pack_job
DPP = "quad_perm:[1,0,3,2] row_mask:0xf bank_mask:0xf"


def pack_wg(k, name, sW, nw, id0, job0, njob, pk, stamps, kidx):
    e = k.e
    e("s_and_b32 s21, s2, 7")
    e(f"s_sub_u32 s22, s2, {id0}")
    e("s_lshr_b32 s22, s22, 3")
    e(f"s_mul_i32 s22, s22, {nw}")
    e(f"s_add_u32 s22, s22, s{sW}")
    e(f"s_cmp_ge_u32 s22, {njob}")
    e(f"s_cbranch_scc1 L_{name}_end")
    e(f"s_add_u32 s22, s22, {job0}")
    e(f"s_mul_i32 s23, s{sW}, 12288")
    pk(k, 21, 22, 23)
    stamp_end(k, stamps, 46, kidx, sW, 0)


def xt_load(k, s0):
    k.e(f"s_load_dwordx4 s[{s0}:{s0+3}], s[0:1], {KA_WG}")
    k.e(f"s_load_dwordx2 s[{s0+4}:{s0+5}], s[0:1], {KA_WD}")
def xt_prep(k, s0, sU, lane, va, spec):
    e = k.e
    tmp = va + len(spec)
    e(f"s_and_b32 s{s0+7}, s2, 7")
    for n_, (m_, lo, hi) in enumerate(spec):
        e(f"s_add_u32 s{s0+6}, s{sU}, {lo}")
        e(f"s_mul_i32 s{s0+20+n_}, s{s0+7}, {1152 if m_ != 'd' else 576*1152}")
        e(f"s_cmp_lt_u32 s{sU}, {hi - lo}")
        e(f"s_cselect_b32 s{s0+20+n_}, s{s0+20+n_}, 0x40000000")
        e(f"s_lshl_b32 s{s0+6}, s{s0+6}, 6")
        e(f"s_and_b32 s{s0+6}, s{s0+6}, 0x3fff")
        e(f"v_add_u32 v{va+n_}, s{s0+6}, {lane}")
        if m_ in "GU":
            e(f"v_lshrrev_b32 v{tmp}, 2, v{va+n_}")
            e(f"v_mul_u32_u24 v{va+n_}, 9216, v{tmp}")
            e(f"v_and_b32 v{tmp}, 1, {lane}")
            e(f"v_lshl_add_u32 v{va+n_}, v{tmp}, 7, v{va+n_}")
            e(f"v_bfe_u32 v{tmp}, {lane}, 1, 1")
            e(f"v_mul_u32_u24 v{tmp}, 640, v{tmp}")
            e(f"v_add_u32 v{va+n_}, v{va+n_}, v{tmp}")
        elif m_ != "d":
            e(f"v_mul_u32_u24 v{tmp}, 7282, v{va+n_}")
            e(f"v_lshrrev_b32 v{tmp}, 16, v{tmp}")
            e(f"v_mul_u32_u24 v{tmp}, {9216-1152}, v{tmp}")
            e(f"v_lshl_add_u32 v{va+n_}, v{va+n_}, 7, v{tmp}")
        else: e(f"v_lshlrev_b32 v{va+n_}, 7, v{va+n_}")
    for m_ in sorted(set(x[0] for x in spec)):
        i = "gud".index(m_.lower())
        k.srd(s0+8+4*i, s0+2*i, D*F*2)
def xt_fire(k, s0, va, vd, spec, fl=""):
    for n_, (m_, lo, hi) in enumerate(spec):
        i = "gud".index(m_.lower())
        k.e(f"buffer_load_dword v{vd}, v{va+n_}, s[{s0+8+4*i}:{s0+11+4*i}], s{s0+20+n_} offen{fl}")

def gen_k1(name="fwd_kernel", stamps=False, pf=True, wpf=None, trace=False, xf="", xt=None, pk=None, jobs=(0, 0), sf="", wf="", hc16=False):
    NMAIN, NWT = 192, 64
    NP = 8 * (-(-jobs[1] // 4))
    k = Kern(name); e = k.e
    tr = Tracer(k, trace, 199)
    sW, sS2, sCT, sT0, sT1, sT2, sT = 20, 21, 22, 23, 24, 25, 19
    e(f"s_cmp_ge_u32 s2, {NMAIN + NWT + NP}")
    e(f"s_cbranch_scc1 L_{name}_end")
    stamp_begin(k, stamps)
    e(f"s_load_dwordx2 s[4:5], s[0:1], {KA_X}")
    e(f"s_load_dwordx2 s[6:7], s[0:1], {KA_WS}")
    e("v_lshrrev_b32 v1, 6, v0")
    e("v_and_b32 v2, 63, v0")
    e(f"v_readfirstlane_b32 s{sW}, v1")
    if NP:
        e(f"s_cmp_ge_u32 s2, {NMAIN + NWT}")
        e(f"s_cbranch_scc1 L_{name}_pack")
    if pf:
        e("s_bfe_u32 s40, s2, 0x10003")
        e("s_lshl_b32 s40, s40, 2")
        e(f"s_add_u32 s40, s40, s{sW}")
        k.prefetch_code("L_text_begin", "L_text_end", 32, 3, 1, 1, lane="v2", part=(40, 8192))
    e(f"s_cmp_ge_u32 s2, {NMAIN}")
    e(f"s_cbranch_scc1 L_{name}_wt")
    e("v_mov_b32 v0, v2")
    if xt: xt_load(k, 52)
    e(f"s_lshr_b32 s{sT0}, s2, 3")
    e(f"s_mul_hi_u32 s{sT1}, s{sT0}, 0x55555556")
    e(f"s_mul_i32 s{sCT}, s{sT1}, 3")
    e(f"s_sub_u32 s{sCT}, s{sT0}, s{sCT}")
    e(f"s_and_b32 s{sS2}, s2, 7")
    e(f"s_lshl_b32 s{sS2}, s{sS2}, 3")
    e(f"s_add_u32 s{sS2}, s{sS2}, s{sT1}")
    e("v_lshrrev_b32 v4, 3, v0")
    e("v_lshrrev_b32 v5, 4, v0")
    e("v_and_b32 v6, 7, v0")
    e("v_xor_b32 v6, v6, v5")
    e("v_lshlrev_b32 v6, 4, v6")
    e("v_mul_u32_u24 v2, 73728, v4")
    e("v_add_u32 v2, v2, v6")
    e(f"s_and_b32 s26, s{sW}, 1")
    e("s_lshl_b32 s26, s26, 6")
    e("v_xor_b32 v2, s26, v2")
    e(f"s_mul_i32 s27, s{sW}, {8*73728}")
    e(f"s_mul_i32 s{sT2}, s{sS2}, 1152")
    e(f"s_add_u32 s27, s27, s{sT2}")
    e(f"s_lshl_b32 s26, s{sW}, 10")
    e("s_waitcnt lgkmcnt(0)")
    tr("karg")
    k.srd(8, 4, S*D*2)
    for i in range(9):
        e(f"s_add_u32 m0, s26, {4096*i - 128*i}")
        e("s_nop 0")
        k.vmem(f"buffer_load_dwordx4 v2, s[8:11], s27 offen offset:{128*i}{xf} lds", "x")
    tr("issued")
    if xt:
        e(f"s_lshl_b32 s51, s{sT0}, 2")
        e(f"s_add_u32 s51, s51, s{sW}")
        xt_prep(k, 52, 51, "v0", 224, xt[0])
        if xt[1] == "early": xt_fire(k, 52, 224, 1, xt[0])
    k.srd(12, 6, WS_END)
    e("v_lshrrev_b32 v5, 5, v0")
    e("v_and_b32 v35, 31, v0")
    e("v_mov_b32 v31, 0x3f803f80")
    e(f"s_mul_i32 s{sT1}, s{sW}, 18")
    e("v_mul_u32_u24 v10, 9, v5")
    e(f"v_add_u32 v10, s{sT1}, v10")
    e("v_bfe_u32 v13, v0, 1, 3")
    vSA = 180
    for i in range(9):
        e(f"v_add_u32 v11, {i}, v10")
        e("v_lshrrev_b32 v12, 3, v11")
        e("v_and_b32 v11, 7, v11")
        e("v_xor_b32 v11, v11, v13")
        e("v_lshlrev_b32 v11, 4, v11")
        e("v_lshl_add_u32 v11, v12, 12, v11")
        e(f"v_lshl_add_u32 v{vSA+i}, v35, 7, v11")
    e(f"s_lshl_b32 s{sT1}, s{sW}, 9")
    e(f"s_add_u32 s{sT1}, s{sT1}, 36864")
    e(f"v_lshl_add_u32 v34, v0, 3, s{sT1}")
    e(f"s_mul_i32 s{sT}, s{sCT}, 3")
    e(f"s_min_u32 s{sT1}, s{sCT}, 1")
    e(f"s_add_u32 s{sT}, s{sT}, s{sT1}")
    e(f"s_add_u32 s{sT}, s{sT}, s{sW}")
    e(f"s_mul_i32 s18, s{sT1}, s{sW}")
    e("s_cmp_eq_u32 s18, 3")
    e(f"s_cbranch_scc1 L_{name}_hgen")
    vE, vE2 = 40, 76
    e(f"s_lshl_b32 s17, s{sT}, 4")
    e("v_bfe_u32 v4, v0, 1, 4")
    e("v_add_u32 v4, s17, v4")
    e("v_and_b32 v6, 1, v0")
    e("v_cvt_f32_u32 v7, v4")
    e(f"v_mul_f32 v7, {fhex(1.0/288)}, v7")
    e("v_cvt_f32_u32 v8, v6")
    e("v_mul_f32 v8, 0x3e800000, v8")
    e("v_cvt_f32_u32 v9, v5")
    e("v_mul_f32 v10, 0x41000000, v9")
    e("v_fma_f32 v8, v10, v7, v8")
    e("v_and_b32 v30, 1, v4")
    e("v_mul_u32_u24 v30, 0x8000, v30")
    e("v_lshl_or_b32 v30, v30, 16, v30")
    for j in range(9):
        for t in range(8): e(f"v_fmamk_f32 v{10+t}, v7, {fhex(16*j+t)}, v8")
        for t in range(8): e(f"v_cos_f32 v{10+t}, v{10+t}")
        for t in range(4): e(f"v_cvt_pk_bf16_f32 v{vE+4*j+t}, v{10+2*t}, v{11+2*t}")
        for t in range(4): e(f"v_xor_b32 v{vE2+4*j+t}, v30, v{vE+4*j+t}")
        if xt and xt[1] == j: xt_fire(k, 52, 224, 1, xt[0])
    e("v_mov_b32 v10, 0")
    for r in range(36): e(f"v_dot2c_f32_bf16 v10, v{vE+r}, v31")
    e("v_mul_f32 v12, 0.5, v7")
    e("v_lshlrev_b32 v13, 31, v6")
    e("v_xor_b32 v12, v12, v13")
    e("v_cos_f32 v32, v12")
    e("v_sin_f32 v33, v12")
    e("v_mov_b32 v11, v10")
    e("v_and_b32 v13, 1, v4")
    e("v_or_b32 v13, v13, v5")
    e("v_permlane32_swap_b32 v10, v11")
    e("v_cmp_eq_u32 vcc, 0, v13")
    e("v_mov_b32 v113, 0")
    e("v_add_f32 v10, v10, v11")
    e("v_mul_f32 v10, -2.0, v10")
    e("v_cndmask_b32 v10, 0, v10, vcc")
    e("v_mov_b32 v114, 0")
    e("v_mov_b32 v115, 0")
    e("v_cvt_pk_bf16_f32 v112, v10, v113")
    for r in (117, 118, 119): e(f"v_mov_b32 v{r}, 0")
    vF = 120
    e("v_cvt_f32_u32 v10, v35")
    e(f"v_mul_f32 v11, {fhex(1.0/32)}, v10")
    e(f"v_cvt_f32_u32 v12, s{sS2}")
    e(f"v_mul_f32 v12, {fhex(1.0/64)}, v12")
    e("v_fma_f32 v12, v9, 4.0, v12")
    e("v_mul_f32 v12, v12, v11")
    for jj in range(2):
        for t in range(8): e(f"v_fmamk_f32 v{14+t}, v11, {fhex(16*jj + 8*(t >> 2) + (t & 3))}, v12")
        for t in range(8): e(f"v_cos_f32 v{22+t}, v{14+t}")
        for t in range(8): e(f"v_sin_f32 v{14+t}, -v{14+t}")
        for t in range(4): e(f"v_cvt_pk_bf16_f32 v{vF+4*jj+t}, v{22+2*t}, v{23+2*t}")
        for t in range(4): e(f"v_cvt_pk_bf16_f32 v{vF+8+4*jj+t}, v{14+2*t}, v{15+2*t}")
    e("v_bfe_u32 v10, v0, 1, 3")
    e("v_lshlrev_b32 v11, 1, v5")
    e("v_xor_b32 v10, v10, v11")
    e("v_lshlrev_b32 v10, 4, v10")
    e("v_lshl_add_u32 v36, v35, 7, v10")
    e("v_xor_b32 v37, 16, v36")
    e("v_xor_b32 v38, 64, v36")
    e("v_xor_b32 v39, 80, v36")
    e("s_mov_b32 s28, 0x05040100")
    e("s_mov_b32 s29, 0x07060302")
    e("v_lshlrev_b32 v26, 3, v0")
    e(f"s_lshl_b32 s{sT1}, s{sW}, 8")
    e(f"s_add_u32 s{sT1}, s{sT1}, {36864+2048}")
    e(f"v_lshl_add_u32 v27, v0, 2, s{sT1}")
    e(f"v_lshl_add_u32 v28, v5, 4, s{sT1}")
    e(f"s_lshr_b32 s{sT1}, s{sS2}, 3")
    e(f"s_lshl_b32 s{sT1}, s{sT1}, 10")
    e(f"s_bfe_u32 s{sT2}, s{sS2}, 0x10002")
    e(f"s_lshl_b32 s{sT2}, s{sT2}, 9")
    e(f"s_add_u32 s{sT1}, s{sT1}, s{sT2}")
    e(f"s_and_b32 s{sT2}, s{sS2}, 1")
    e(f"s_lshl_b32 s{sT2}, s{sT2}, 8")
    e(f"s_add_u32 s{sT1}, s{sT1}, s{sT2}")
    e(f"s_bfe_u32 s{sT2}, s{sS2}, 0x10001")
    e(f"s_lshl_b32 s{sT2}, s{sT2}, 7")
    e(f"s_add_u32 s{sT1}, s{sT1}, s{sT2}")
    e(f"v_lshl_add_u32 v10, v35, 2, s{sT1}")
    e("v_lshl_add_u32 v11, v5, 1, s17")
    e("v_lshlrev_b32 v11, 13, v11")
    e("v_add_u32 v24, v10, v11")
    e("v_subrev_u32 v24, 8192, v24")
    e("v_sub_u32 v25, v10, v11")
    e(f"v_add_u32 v25, {143*8192}, v25")
    k.srd_off(44, 6, WS_Y, 144*8192)
    k.srd_off(48, 6, WS_Y + 144*8192, 144*8192)
    k.label(f"L_{name}_nogen")
    tr("gen")
    stamp_mid(k, stamps, 0)
    e(f"s_waitcnt vmcnt({len(xt[0]) if xt and xt[1] != 'late' else 0})")
    if xt and xt[1] == "late": xt_fire(k, 52, 224, 1, xt[0])
    tr("xarr")
    e("s_barrier")
    tr("bar")
    stamp_mid(k, stamps, 1)
    for i in range(9): k.lds(f"ds_read_b128 {R(136+4*i,4)}, v{vSA+i}", ("s", i))
    vX = 172
    def xread(j):
        b = vX + 8*(j % 3)
        for x in (0, 1): k.lds(f"ds_read_b128 {R(b+4*x,4)}, v{36+2*(j&1)+x} offset:{(j>>1)*4096}", ("x", j))
    e("v_mov_b32 v10, 0"); e("v_mov_b32 v11, 0"); e("v_mov_b32 v12, 0"); e("v_mov_b32 v13, 0")
    e("s_cmp_eq_u32 s18, 3")
    e(f"s_cbranch_scc1 L_{name}_helper")
    xread(0); xread(1); xread(2)
    def stats_dot(waits=True):
        for i in range(9):
            if waits: k.wait(lg=("s", i))
            for r in range(4):
                e(f"v_dot2c_f32_bf16 v{10+2*(r&1)}, v{136+4*i+r}, v31")
                e(f"v_dot2c_f32_bf16 v{11+2*(r&1)}, v{136+4*i+r}, v{136+4*i+r}")
        e("s_nop 2")
        e("v_add_f32 v10, v10, v12")
        e("v_add_f32 v11, v11, v13")
    stats_dot()
    k.lds("ds_write_b64 v34, v[10:11]", "sw")
    tr("stats")
    A0, A1 = 136, 152
    vD = [8, 200]
    def perms(j):
        b = vX + 8*(j % 3); d = vD[j & 1]
        return [f"v_perm_b32 v{d+r}, v{b+2*r+1}, v{b+2*r}, s28" for r in range(4)] + [f"v_perm_b32 v{d+4+r}, v{b+2*r+1}, v{b+2*r}, s29" for r in range(4)]
    k.wait(lg=["sw", ("x", 0)])
    for p in perms(0): e(p)
    fill = {}
    fill[2] = lambda: e("s_barrier")
    def f3():
        for i in range(4): k.lds(f"ds_read_b64 {R(16+2*i,2)}, v26 offset:{36864+512*i}", "sp")
    fill[3] = f3
    def f7():
        k.wait(lg="sp")
        e("v_add_f32 v16, v16, v18"); e("v_add_f32 v17, v17, v19")
    fill[8] = f7
    fill[9] = lambda: (e("v_add_f32 v20, v20, v22"), e("v_add_f32 v21, v21, v23"))
    fill[10] = lambda: (e("v_add_f32 v16, v16, v20"), e("v_add_f32 v17, v17, v21"))
    fill[11] = lambda: (e("v_mov_b32 v18, v16"), e("v_mov_b32 v19, v17"))
    fill[12] = lambda: (e("v_permlane32_swap_b32 v16, v18"), e("v_permlane32_swap_b32 v17, v19"))
    fill[13] = lambda: (e("v_add_f32 v16, v16, v18"), e("v_add_f32 v17, v17, v19"))
    fill[14] = lambda: (e(f"v_mul_f32 v16, {fhex(1.0/576)}, v16"), e(f"v_mul_f32 v17, {fhex(1.0/576)}, v17"))
    fill[15] = lambda: (e("v_fma_f32 v17, -v16, v16, v17"), e("v_max_f32 v17, 0, v17"))
    fill[16] = lambda: (e(f"v_add_f32 v17, {fhex(1e-5)}, v17"), e("v_cvt_pk_bf16_f32 v116, v16, v117"))
    fill[17] = lambda: e("v_rsq_f32 v17, v17")
    fill[18] = lambda: e(f"v_mul_f32 v17, {fhex(2.0/(2048*576))}, v17")
    fill[19] = lambda: k.lds("ds_write_b32 v27, v17", "rw")
    vRr = 208
    def f22():
        for g in range(4): k.lds(f"ds_read_b128 {R(vRr+4*g,4)}, v28 offset:{32*g}", "rr")
    fill[22] = f22
    def f26():
        e(f"s_cmp_lg_u32 s{sT}, 0")
        e(f"s_cbranch_scc1 L_{name}_nomean")
        e(f"s_lshl_b32 s{sT1}, s{sS2}, 7")
        e(f"s_add_u32 s{sT1}, s{sT1}, {WS_MEAN}")
        e("v_lshlrev_b32 v19, 2, v35")
        e(f"buffer_store_dword v16, v19, s[12:15], s{sT1} offen")
        k.label(f"L_{name}_nomean")
    fill[26] = f26
    e("s_nop 0")
    for j in range(18):
        Bm = R((vE if j < 9 else vE2) + 4*(j % 9), 4)
        d = vD[j & 1]
        nx = perms(j+1) if j + 1 < 18 else []
        for p in (0, 1):
            acc = R(A1 if p else A0, 16)
            e(f"{MF32} {acc}, {R(d+4*p,4)}, {Bm}, {'0' if j == 0 else acc}")
            if p == 0 and nx: k.wait(lg=("x", j+1))
            if p == 0 and j + 3 < 18: xread(j + 3)
            for x in nx[4*p:4*p+4]: e(x)
            n = 2*j + p
            if n in fill: fill[n]()
    e(f"{MF32} {R(A1,16)}, {R(116,4)}, {R(112,4)}, {R(A1,16)}")
    e(f"{MF32} {R(A0,16)}, {R(116,4)}, {R(112,4)}, {R(A0,16)}")
    tr("mfma")
    stamp_mid(k, stamps, 2)
    if wpf: emit_wprefetch(k, sW, 4, "v0", 2, 1, 52, wpf, skip3=True)
    else: e("s_nop 10")
    k.wait(lg="rr")
    Bq, O1, O2 = 40, 56, 72
    for i in range(16): e(f"v_mul_f32 v{Bq+i}, v32, v{A1+i}")
    for i in range(16): e(f"v_fmac_f32_dpp v{Bq+i}, v{A1+i}, v33 {DPP}")
    for i in range(16): e(f"v_mul_f32 v{A0+i}, v{A0+i}, v{vRr+i}")
    for i in range(16): e(f"v_fma_f32 v{O1+i}, v{Bq+i}, v{vRr+i}, v{A0+i}")
    for i in range(8): e(f"v_cvt_pk_bf16_f32 v{88+i}, v{O1+2*i}, v{O1+2*i+1}")
    P1, Q1, P2, Q2 = 172, 152, 224, 240
    w2 = [f"v_fma_f32 v{O2+i}, -v{Bq+i}, v{vRr+i}, v{A0+i}" for i in range(16)] + [f"v_cvt_pk_bf16_f32 v{96+i}, v{O2+2*i}, v{O2+2*i+1}" for i in range(8)]
    e(w2.pop(0)); e(w2.pop(0))
    for (Dd, a, f, first) in [(P1, 88, vF, 1), (Q1, 88, vF+8, 1), (P1, 92, vF+4, 0), (Q1, 92, vF+12, 0)]:
        e(f"{MF32} {R(Dd,16)}, {R(a,4)}, {R(f,4)}, {'0' if first else R(Dd,16)}")
        for _ in range(6):
            if w2: e(w2.pop(0))
    e("s_nop 1")
    tr("comb")
    c1 = []
    for i in range(0, 16, 2):
        c1.append(f"v_sub_f32 v{O1+i}, v{P1+i}, v{Q1+i+1}")
        c1.append(f"v_add_f32 v{O1+i+1}, v{Q1+i}, v{P1+i+1}")
    c1 += [f"v_cvt_pk_bf16_f32 v{88+i}, v{O1+2*i}, v{O1+2*i+1}" for i in range(8)]
    adr = [f"v_add_u32 v{8+i}, {(4*(i>>1)+(i&1))*8192}, v24" for i in range(8)] + [f"v_subrev_u32 v{200+i}, {(4*(i>>1)+(i&1))*8192}, v25" for i in range(8)]
    for n_, (Dd, a, f, first) in enumerate([(P2, 96, vF, 1), (Q2, 96, vF+8, 1), (P2, 100, vF+4, 0), (Q2, 100, vF+12, 0)]):
        e(f"{MF32} {R(Dd,16)}, {R(a,4)}, {R(f,4)}, {'0' if first else R(Dd,16)}")
        src = adr if n_ < 3 else c1
        for _ in range(6):
            if src: e(src.pop(0))
    assert not adr
    for x in c1: e(x)
    for i in range(8): k.vmem(f"buffer_store_dword v{88+i}, v{8+i}, s[44:47], 0 offen{sf}", "st")
    for i in range(0, 16, 2):
        e(f"v_add_f32 v{O2+i}, v{P2+i}, v{Q2+i+1}")
        e(f"v_sub_f32 v{O2+i+1}, v{Q2+i}, v{P2+i+1}")
    for i in range(8): e(f"v_cvt_pk_bf16_f32 v{96+i}, v{O2+2*i}, v{O2+2*i+1}")
    for i in range(8): k.vmem(f"buffer_store_dword v{96+i}, v{200+i}, s[48:51], 0 offen{sf}", "st")
    tr("stored")
    tr.dump(6, sW, 198)
    stamp_end(k, stamps, 6, 0, sW, 3)
    e("s_endpgm")
    k.label(f"L_{name}_hgen")
    if xt and isinstance(xt[1], int):
        e("s_waitcnt vmcnt(0)")
        xt_fire(k, 52, 224, 1, xt[0])
    e(f"s_branch L_{name}_nogen")
    k.label(f"L_{name}_helper")
    e("s_waitcnt lgkmcnt(0)")
    stats_dot(False)
    e("ds_write_b64 v34, v[10:11]")
    e("s_waitcnt lgkmcnt(0)")
    e("s_barrier")
    e("s_endpgm")
    k.label(f"L_{name}_wt")
    e(f"s_load_dwordx4 s[28:31], s[0:1], {KA_WR}")
    e(f"s_sub_u32 s{sT0}, s2, {NMAIN}")
    e("v_lshlrev_b32 v3, 4, v0")
    e(f"s_mul_i32 s{sT1}, s{sT0}, 18496")
    e(f"s_lshl_b32 s{sT2}, s{sW}, 10")
    e("s_waitcnt lgkmcnt(0)")
    k.srd(8, 28, 2048*289*2)
    k.srd(12, 30, 2048*289*2)
    k.srd(16, 6, WS_END)
    for r in range(5):
        for mat in range(2):
            e(f"s_add_u32 m0, s{sT2}, {mat*20480 + r*4096}")
            e(f"s_add_u32 s26, s{sT1}, {r*4096}")
            e(f"buffer_load_dwordx4 v3, s[{8+4*mat}:{11+4*mat}], s26 offen{xf} lds")
    e("v_mov_b32 v8, 0"); e("v_mov_b32 v9, 0"); e("v_mov_b32 v10, 0"); e("v_mov_b32 v11, 0")
    e(f"s_mul_i32 s26, s{sT0}, {FLAG_STRIDE}")
    e(f"s_add_u32 s26, s26, {WS_FLAG}")
    for r in range(3):
        e(f"buffer_store_dwordx4 v[8:11], v3, s[16:19], s26 offen{wf}")
        e("s_add_u32 s26, s26, 4096")
    e(f"s_lshl_b32 s27, s{sT0}, 2")
    e(f"s_add_u32 s27, s27, s{sW}")
    e("s_cmp_ge_u32 s27, 162")
    e(f"s_cbranch_scc1 L_{name}_nog")
    e("s_mul_hi_u32 s28, s27, 0x1c71c71d")
    e("s_mul_i32 s29, s28, 9")
    e("s_sub_u32 s29, s27, s29")
    e("s_and_b32 s30, s28, 1")
    e("s_lshr_b32 s28, s28, 1")
    if hc16:
        e("v_and_b32 v12, 7, v2")
        e("v_bfe_u32 v13, v2, 3, 1")
        e("v_lshl_add_u32 v12, v13, 4, v12")
        e("v_bfe_u32 v13, v2, 4, 1")
        e("v_lshl_add_u32 v12, v13, 3, v12")
    else:
        e("v_and_b32 v12, 0x13, v2")
        e("v_bfe_u32 v13, v2, 2, 1")
        e("v_lshl_add_u32 v12, v13, 3, v12")
        e("v_bfe_u32 v13, v2, 3, 1")
        e("v_lshl_add_u32 v12, v13, 2, v12")
    e("s_lshl_b32 s28, s28, 5")
    e("v_add_u32 v12, s28, v12")
    e("v_cvt_f32_u32 v12, v12")
    e("v_lshrrev_b32 v13, 5, v2")
    e("s_lshl_b32 s29, s29, 4")
    e("s_add_u32 s29, s29, s30")
    e("s_add_u32 s29, s29, 1")
    e("v_lshl_add_u32 v13, v13, 3, s29")
    e("v_cvt_f32_u32 v13, v13")
    for t in range(4):
        e(f"v_add_f32 v{14+t}, {fhex(2*t)}, v13")
        e(f"v_mul_f32 v{14+t}, v{14+t}, v12")
        e(f"v_mul_f32 v{14+t}, {fhex(1.0/576)}, v{14+t}")
    for t in range(4): e(f"v_cos_f32 v{18+t}, v{14+t}")
    for t in range(4): e(f"v_sin_f32 v{14+t}, v{14+t}")
    e("v_lshlrev_b32 v13, 4, v2")
    for t in range(4): e(f"v_cvt_pk_bf16_f32 v{24+t}, v{18+t}, v{14+t}")
    e("s_lshl_b32 s27, s27, 10")
    e(f"s_add_u32 s27, s27, {WS_G}")
    e(f"buffer_store_dwordx4 v[24:27], v13, s[16:19], s27 offen{wf}")
    k.label(f"L_{name}_nog")
    e("v_and_b32 v3, 31, v0")
    e("v_lshrrev_b32 v4, 5, v0")
    e("v_mul_u32_u24 v5, 578, v3")
    e("v_lshl_add_u32 v5, v4, 1, v5")
    e("v_lshlrev_b32 v6, 2, v3")
    e("v_lshl_add_u32 v6, v4, 13, v6")
    e(f"s_lshl_b32 s{sT1}, s{sT0}, 7")
    e(f"s_add_u32 s{sT1}, s{sT1}, {WS_WT}")
    e("s_waitcnt vmcnt(0)")
    e("s_barrier")
    for part in range(6):
        for i in range(6*part, 6*part+6):
            e(f"ds_read_u16 v{30+i}, v5 offset:{2+16*i}")
            e(f"ds_read_u16 v{70+i}, v5 offset:{20480+2+16*i}")
        if part > 0:
            e("s_waitcnt lgkmcnt(12)")
            for i in range(6*part-6, 6*part):
                e(f"v_lshl_or_b32 v{30+i}, v{70+i}, 16, v{30+i}")
                e(f"s_add_u32 s26, s{sT1}, {8*8192*i}")
                e(f"buffer_store_dword v{30+i}, v6, s[16:19], s26 offen{wf}")
    e("s_waitcnt lgkmcnt(0)")
    for i in range(30, 36):
        e(f"v_lshl_or_b32 v{30+i}, v{70+i}, 16, v{30+i}")
        e(f"s_add_u32 s26, s{sT1}, {8*8192*i}")
        e(f"buffer_store_dword v{30+i}, v6, s[16:19], s26 offen{wf}")
    stamp_end(k, stamps, 6, 0, sW, 0)
    if NP:
        e("s_endpgm")
        k.label(f"L_{name}_pack")
        e("v_mov_b32 v0, v2")
        pack_wg(k, name, sW, 4, NMAIN + NWT, jobs[0], jobs[1], pk, stamps, 0)
    k.label(f"L_{name}_end")
    e("s_endpgm")
    return k, (256, 100, 256), (NMAIN + NWT + NP, 256, 49152 if NP else 40960)

def gen_k2(name="col_kernel", stamps=False, touch=None, trace=False, xt=None, pk=None, jobs=(0, 0), sf=''):
    NMAIN = 288
    NP = (90 if touch == 'gu' else 81) if touch else 0
    if jobs[1]: NP = 8 * (-(-jobs[1] // 4))
    k = Kern(name); e = k.e
    tr = Tracer(k, trace, 38)
    sW, sT0, sT1, sT2 = 20, 23, 24, 25
    e(f"s_cmp_ge_u32 s2, {NMAIN + NP}")
    e(f"s_cbranch_scc1 L_{name}_end")
    stamp_begin(k, stamps)
    e(f"s_load_dwordx2 s[6:7], s[0:1], {KA_WS}")
    e("v_lshrrev_b32 v1, 6, v0")
    e("v_and_b32 v0, 63, v0")
    e(f"v_readfirstlane_b32 s{sW}, v1")
    if NP:
        e(f"s_cmp_ge_u32 s2, {NMAIN}")
        e(f"s_cbranch_scc1 L_{name}_t")
    if xt: xt_load(k, 52)
    e("v_lshlrev_b32 v2, 4, v0")
    e("v_lshrrev_b32 v5, 5, v0")
    e("v_and_b32 v35, 31, v0")
    e("v_lshlrev_b32 v3, 2, v35")
    e("v_lshl_add_u32 v3, v5, 8, v3")
    e(f"s_lshl_b32 s{sT0}, s2, 13")
    e(f"s_lshl_b32 s26, s{sW}, 11")
    e(f"s_add_u32 s{sT0}, s{sT0}, s26")
    e(f"s_add_u32 s{sT1}, s{sT0}, {WS_Y}")
    e(f"s_add_u32 s{sT2}, s{sT0}, {WS_WT}")
    e("s_mov_b32 m0, s26")
    vM = 80
    e("v_bfe_u32 v4, v0, 1, 4")
    e(f"s_lshl_b32 s27, s{sW}, 4")
    e("v_add_u32 v4, s27, v4")
    e("v_and_b32 v6, 1, v0")
    e("v_cvt_f32_u32 v7, v4")
    e(f"v_mul_f32 v8, {fhex(1.0/64)}, v7")
    e("v_cvt_f32_u32 v9, v6")
    e("v_mul_f32 v9, 0x3e800000, v9")
    e("v_cvt_f32_u32 v36, v5")
    e("v_add_f32 v10, v36, v36")
    e("v_fma_f32 v9, v10, v8, v9")
    def m1(jp):
        for u in range(8):
            j, t = 2*jp + (u >> 2), u & 3
            e(f"v_fmamk_f32 v{12+u}, v8, {fhex(8*j + 4*(t>>1) + (t&1))}, v9")
        for u in range(8): e(f"v_cos_f32 v{20+u}, v{12+u}")
        for u in range(8): e(f"v_sin_f32 v{12+u}, v{12+u}")
        for u in range(8): e(f"v_cvt_pk_bf16_f32 v{vM+8*jp+u}, v{20+u}, v{12+u}")
    m1(0)
    e("s_waitcnt lgkmcnt(0)")
    tr("karg")
    k.srd(12, 6, WS_END)
    for i in range(2): k.vmem(f"buffer_load_dwordx4 v2, s[12:15], s{sT1} offen offset:{1024*i} lds", "y")
    vWt = 72
    for i in range(8):
        k.vmem(f"buffer_load_dword v{vWt+i}, v3, s[12:15], s{sT2} offen offset:{(4*(i>>1)+(i&1))*128}", "w")
    tr("issued")
    if xt:
        e("s_lshr_b32 s51, s2, 3")
        e("s_lshl_b32 s51, s51, 2")
        e(f"s_add_u32 s51, s51, s{sW}")
        e("s_sub_u32 s51, s51, 16")
        xt_prep(k, 52, 51, "v0", 160, xt)
        xt_fire(k, 52, 160, 1, xt)
        for _ in xt: k.vm.append("xt")
    m1(1)
    e("v_and_b32 v10, 1, v4")
    e("v_mul_u32_u24 v10, 0x8000, v10")
    e("v_lshl_or_b32 v10, v10, 16, v10")
    for u in range(16): e(f"v_xor_b32 v{vM+16+u}, v10, v{vM+u}")
    e(f"v_mul_f32 v8, {fhex(1.0/2048)}, v7")
    e("v_lshlrev_b32 v10, 31, v6")
    e("v_xor_b32 v8, v8, v10")
    e("v_mul_f32 v9, 4.0, v36")
    e("v_mul_f32 v9, v9, v8")
    for i in range(16): e(f"v_fmamk_f32 v{128+i}, v8, {fhex(8*(i>>2) + (i&3))}, v9")
    for i in range(16): e(f"v_cos_f32 v{112+i}, v{128+i}")
    for i in range(16): e(f"v_sin_f32 v{128+i}, v{128+i}")
    e("v_lshlrev_b32 v34, 2, v0")
    tr("gen")
    k.wait(vm="y")
    tr("yarr")
    e("s_barrier")
    tr("ybar")
    vY = 40
    for j in range(8):
        for u in (0, 1): k.lds(f"ds_read2st64_b32 {R(vY+4*j+2*u,2)}, v34 offset0:{4*j+2*u} offset1:{4*j+2*u+1}", ("y", j))
        if j == 6: k.wait(lg=("y", 0))
    vF = 144
    fg = ["v_cvt_f32_u32 v10, v35", f"v_mul_f32 v11, {fhex(1.0/32)}, v10", "v_mul_f32 v32, 4.0, v36", "v_mul_f32 v32, v32, v11"]
    fg += [f"v_fmamk_f32 v{14+t}, v11, {fhex(8*(t>>2) + (t&3))}, v32" for t in range(8)]
    fg += [f"v_cos_f32 v{22+t}, v{14+t}" for t in range(8)] + [f"v_sin_f32 v{14+t}, -v{14+t}" for t in range(8)]
    for _ in range(12): e(fg.pop(0))
    stamp_mid(k, stamps, 0)
    D2 = R(160, 16)
    for j in range(8):
        k.wait(lg=("y", j))
        e(f"{MF32} {D2}, {R(vM+4*j,4)}, {R(vY+4*j,4)}, {'0' if j == 0 else D2}")
        for _ in range(2): e(fg.pop(0))
    assert not fg
    tr("stB")
    stamp_mid(k, stamps, 1)
    for t in range(4):
        e(f"v_cvt_pk_bf16_f32 v{vF+t}, v{22+2*t}, v{23+2*t}")
        e(f"v_cvt_pk_bf16_f32 v{vF+8+t}, v{14+2*t}, v{15+2*t}")
    k.wait(vm="w")
    tr("warr")
    for i in range(8):
        e(f"v_lshlrev_b32 v{12+2*i}, 16, v{vWt+i}")
        e(f"v_and_b32 v{13+2*i}, 0xffff0000, v{vWt+i}")
    for i in range(8):
        e(f"v_mul_f32 v{176+2*i}, v{160+2*i}, v{12+2*i}")
        e(f"v_mul_f32 v{177+2*i}, v{160+2*i}, v{13+2*i}")
    e("v_add_u32 v30, s26, v2")
    for hh in (0, 1):
        for i in range(4*hh, 4*hh+4):
            e(f"v_fma_f32 v{176+2*i}, -v{161+2*i}, v{13+2*i}, v{176+2*i}")
            e(f"v_fma_f32 v{177+2*i}, -v{161+2*i}, v{12+2*i}, -v{177+2*i}")
        for i in range(4*hh, 4*hh+4): e(f"v_cvt_pk_bf16_f32 v{72+i}, v{176+2*i}, v{177+2*i}")
        k.lds(f"ds_write_b128 v30, {R(72+4*hh,4)} offset:{8192+1024*hh}")
    tr("wmul")
    e("v_and_b32 v10, 1, v0")
    e("v_mul_u32_u24 v10, 0x8000, v10")
    e("v_lshl_or_b32 v10, v10, 16, v10")
    k.wait(lg0=True)
    e("s_barrier")
    for j in range(8): k.lds(f"ds_read_b128 {R(vY+4*j,4)}, v2 offset:{8192+1024*j}", ("a", j))
    for t in range(4):
        e(f"v_xor_b32 v{vF+4+t}, v10, v{vF+t}")
        e(f"v_xor_b32 v{vF+12+t}, v10, v{vF+8+t}")
    tr("xchg")
    sa = ["s_and_b32 s27, s2, 1", "s_mul_i32 s29, s27, 18432", "s_lshr_b32 s27, s2, 4", "s_lshl_b32 s27, s27, 10", "s_add_u32 s29, s29, s27",
          "s_bfe_u32 s27, s2, 0x20001", "s_lshl_b32 s27, s27, 8", "s_add_u32 s29, s29, s27",
          "s_bfe_u32 s27, s2, 0x10003", "s_lshl_b32 s27, s27, 7", "s_add_u32 s29, s29, s27",
          f"s_mul_i32 s27, s{sW}, {16*36864}", "s_add_u32 s29, s29, s27", f"s_add_u32 s29, s29, {WS_V}",
          "v_mul_u32_u24 v31, 73728, v5", "v_lshl_add_u32 v31, v35, 2, v31"]
    D3 = R(176, 16)
    for j in range(8):
        k.wait(lg=("a", j))
        e(f"{MF32} {D3}, {R(vY+4*j,4)}, {R(vM+4*j,4)}, {'0' if j == 0 else D3}")
        for _ in range(2): e(sa.pop(0))
    e("s_cmp_lg_u32 s2, 287")
    e(f"s_cbranch_scc1 L_{name}_nonyq")
    for i in range(32): e(f"v_mul_f32 v{112+i}, 0.5, v{112+i}")
    k.label(f"L_{name}_nonyq")
    e("s_nop 7")
    for hh in (0, 1):
        for i in range(8*hh, 8*hh+8): e(f"v_mul_f32 v{160+i}, v{176+i}, v{112+i}")
        for i in range(8*hh, 8*hh+8): e(f"v_fmac_f32_dpp v{160+i}, v{176+i}, v{128+i} {DPP}")
        for i in range(4*hh, 4*hh+4): e(f"v_cvt_pk_bf16_f32 v{40+i}, v{160+2*i}, v{161+2*i}")
        e("s_nop 1")
        e(f"{MF32} {R(80,16)}, {R(40+4*hh,4)}, {R(vF+4*hh,4)}, {'0' if hh == 0 else R(80,16)}")
        e(f"{MF32} {R(96,16)}, {R(40+4*hh,4)}, {R(vF+8+4*hh,4)}, {'0' if hh == 0 else R(96,16)}")
    tr("twid")
    for i in range(1, 8): e(f"s_add_u32 s{30+i}, s29, {(4*(i>>1)+(i&1))*36864}")
    e("s_mov_b32 s30, s29")
    e("s_nop 4")
    for i in range(8):
        e(f"v_sub_f32 v{48+2*i}, v{80+2*i}, v{96+2*i+1}")
        e(f"v_add_f32 v{48+2*i+1}, v{96+2*i}, v{80+2*i+1}")
        e(f"v_cvt_pk_bf16_f32 v{40+i}, v{48+2*i}, v{49+2*i}")
        k.vmem(f"buffer_store_dword v{40+i}, v31, s[12:15], s{30+i} offen{sf}", "st")
    tr("stored")
    tr.dump(6, sW, 39)
    stamp_end(k, stamps, 6, 1, sW, 2)
    if NP:
        e("s_endpgm")
        k.label(f"L_{name}_t")
        if jobs[1]: pack_wg(k, name, sW, 4, NMAIN, jobs[0], jobs[1], pk, stamps, 1)
        else:
            emit_touch_wg(k, sW, 4, NMAIN, touch)
            stamp_end(k, stamps, 6, 1, sW, 0)
    k.label(f"L_{name}_end")
    e("s_endpgm")
    return k, (192, 100, 192), (NMAIN + NP, 256, 49152 if jobs[1] else 16384)

def gen_k3(name="inv_kernel", stamps=False, hc16=False, wpf=None, touch=None, trace=False, xt=None, pk=None, jobs=(0, 0), xf='', sf=''):
    NMAIN = 192
    NP = (120 if touch == 'gu' else 54) if touch else 0
    if xt: NP = 64
    if jobs[1]: NP = 8 * (-(-jobs[1] // 3))
    k = Kern(name); e = k.e
    tr = Tracer(k, trace, 4)
    sW, sRG, sT, sT0, sT1, sT2 = 20, 21, 22, 23, 24, 25
    e(f"s_cmp_ge_u32 s2, {NMAIN + NP}")
    e(f"s_cbranch_scc1 L_{name}_end")
    stamp_begin(k, stamps)
    e(f"s_load_dwordx2 s[4:5], s[0:1], {KA_X}")
    e(f"s_load_dwordx2 s[6:7], s[0:1], {KA_WS}")
    e("v_lshrrev_b32 v1, 6, v0")
    e("v_and_b32 v0, 63, v0")
    e(f"v_readfirstlane_b32 s{sW}, v1")
    if NP:
        e(f"s_cmp_ge_u32 s2, {NMAIN}")
        e(f"s_cbranch_scc1 L_{name}_t")
    e(f"s_lshr_b32 s{sT0}, s2, 3")
    e(f"s_mul_hi_u32 s{sT1}, s{sT0}, 0x55555556")
    e(f"s_mul_i32 s{sT}, s{sT1}, 3")
    e(f"s_sub_u32 s{sT}, s{sT0}, s{sT}")
    e(f"s_mul_i32 s{sT}, s{sT}, 3")
    e(f"s_add_u32 s{sT}, s{sT}, s{sW}")
    e(f"s_and_b32 s{sRG}, s2, 7")
    e(f"s_lshl_b32 s{sRG}, s{sRG}, 3")
    e(f"s_add_u32 s{sRG}, s{sRG}, s{sT1}")
    e("v_lshlrev_b32 v2, 4, v0")
    e(f"s_mul_i32 s26, s{sRG}, 36864")
    e(f"s_add_u32 s27, s26, {WS_V}")
    e(f"s_mul_i32 s28, s{sT}, 18432")
    e(f"s_add_u32 s28, s28, {WS_G}")
    e(f"s_mul_i32 s29, s{sW}, 12288")
    e("s_add_u32 s27, s27, s29")
    e("v_lshrrev_b32 v5, 5, v0")
    e("v_and_b32 v6, 31, v0")
    e("v_mul_u32_u24 v7, 73728, v6")
    e(f"v_lshl_add_u32 v7, v5, {3 if hc16 else 4}, v7")
    e(f"s_mul_i32 s30, s{sRG}, 1152")
    e(f"s_lshl_b32 s{sT1}, s{sT}, 6")
    e(f"s_add_u32 s30, s30, s{sT1}")
    e("v_lshlrev_b32 v8, 2, v6")
    e(f"s_lshl_b32 s31, s{sRG}, 7")
    e(f"s_add_u32 s31, s31, {WS_MEAN}")
    e("v_and_b32 v10, 1, v0")
    e("v_lshlrev_b32 v10, 4, v10")
    e("v_bfe_u32 v11, v0, 1, 1")
    e("v_and_b32 v12, 1, v0")
    e("v_xor_b32 v12, v12, v11")
    e("v_lshlrev_b32 v12, 15, v12")
    e("v_lshl_or_b32 v11, v11, 31, v12")
    e("v_lshlrev_b32 v3, 2, v0")
    e("s_waitcnt lgkmcnt(0)")
    tr("karg")
    k.srd(12, 6, WS_END)
    for i in range(12):
        if i % 4 == 0:
            e(f"s_add_u32 m0, s29, {1024*i}")
            e(f"s_add_u32 s{sT0}, s27, {1024*i}")
        k.vmem(f"buffer_load_dwordx4 v2, s[12:15], s{sT0} offen offset:{(i&3)*1024} lds", "V")
    vG = 100
    gorder = [f for j in range(9) for f in (j, 9 + j)]
    for f in gorder:
        e(f"s_add_u32 s{sT1}, s28, {(f>>2)*4096}")
        k.vmem(f"buffer_load_dwordx4 {R(vG+4*f,4)}, v2, s[12:15], s{sT1} offen offset:{(f&3)*1024}", ("g", f))
    k.srd(8, 4, S*D*2)
    for u in range(4):
        if hc16:
            for z in (0, 1): k.vmem(f"buffer_load_dwordx2 {R(16+4*u+2*z,2)}, v7, s[8:11], s30 offen offset:{(u>>1)*576 + (u&1)*16 + 32*z}{xf}", "x")
        else: k.vmem(f"buffer_load_dwordx4 {R(16+4*u,4)}, v7, s[8:11], s30 offen offset:{(u>>1)*576 + (u&1)*32}{xf}", "x")
    k.vmem("buffer_load_dword v9, v8, s[12:15], s31 offen", "x")
    if wpf: emit_wprefetch(k, sW, 3, "v0", 12, 1, 44, wpf)
    tr("issued")
    stamp_mid(k, stamps, 0)
    k.wait(vm="V")
    tr("varr")
    e("s_barrier")
    O, E, XM = 32, 48, 64
    seq = []
    for n_, f in enumerate(gorder):
        seq.append(("lo", f))
        if n_ >= 2: seq.append(("hi", gorder[n_-2]))
    seq += [("hi", gorder[-2]), ("hi", gorder[-1])]
    def step(kind, f):
        pi, j = divmod(f, 9)
        return 18*pi + j + (9 if kind == "hi" else 0)
    RING = [172 + 4*i for i in range(6)]
    ROT = [196, 200, 204]
    def rd(n):
        st = step(*seq[n]); b = RING[n % 6]
        for u in (0, 1): k.lds(f"ds_read2st64_b32 {R(b+2*u,2)}, v3 offset0:{4*st+2*u} offset1:{4*st+2*u+1}", ("b", n))
    for n in range(5): rd(n)
    started = set(); nrot = 0; rotreg = {}; rotdone = {}
    pend = []
    for n, (kind, f) in enumerate(seq):
        k.wait(vm=("g", f), lg=("b", n))
        accb = O if f < 9 else E
        acc = R(accb, 16)
        if kind == "hi":
            assert f in rotdone
            if rotdone[f] >= n - 1 or n >= 33: e("s_nop 1")
        a = vG + 4*f if kind == "lo" else rotreg[f]
        e(f"{MF32} {acc}, {R(a,4)}, {R(RING[n % 6],4)}, {'0' if accb not in started else acc}")
        started.add(accb)
        if n + 5 < 36: rd(n + 5)
        if kind == "lo":
            rr = ROT[nrot % 3]; nrot += 1; rotreg[f] = rr
            pend += [(f"v_alignbit_b32 v{rr+r}, v{vG+4*f+r}, v{vG+4*f+r}, v10", None) for r in range(4)] + [(f"v_xor_b32 v{rr+r}, v11, v{rr+r}", f if r == 3 else None) for r in range(4)]
        lim = 4 if n + 5 < 36 else 6
        for _ in range(lim):
            if pend:
                t_, fin = pend.pop(0); e(t_)
                if fin is not None: rotdone[fin] = n
    tr("mfma")
    stamp_mid(k, stamps, 1)
    k.wait(vm="x")
    for r in range(16):
        e(f"v_lshlrev_b32 v{XM+2*r}, 16, v{16+r}")
        e(f"v_and_b32 v{XM+2*r+1}, 0xffff0000, v{16+r}")
    e(f"s_lshl_b32 s{sT0}, s{sT}, 11")
    e(f"s_add_u32 s{sT0}, s{sT0}, s26")
    e(f"s_add_u32 s{sT0}, s{sT0}, {WS_HC}")
    e(f"s_add_u32 s{sT1}, s{sT0}, {18*1024}")
    e(f"s_mul_i32 s{sT2}, s{sRG}, 9")
    e(f"s_add_u32 s{sT2}, s{sT2}, s{sT}")
    e(f"s_lshl_b32 s{sT2}, s{sT2}, 8")
    e(f"s_add_u32 s{sT2}, s{sT2}, {WS_SS}")
    if hc16:
        e("v_and_b32 v2, 15, v0")
        e("v_lshlrev_b32 v2, 4, v2")
        e("v_lshl_add_u32 v2, v5, 8, v2")
        e("v_bfe_u32 v12, v0, 4, 1")
        e("v_lshl_add_u32 v2, v12, 10, v2")
    for i in range(16): e(f"v_sub_f32 v{E+i}, v{E+i}, v9")
    for u in range(4):
        for i in range(8*(u&1), 8*(u&1)+8):
            x_ = XM + 16*(u>>1) + i
            e(f"v_add_f32 v{x_}, v{x_}, v{E+i}")
            e(f"v_{'add' if u < 2 else 'sub'}_f32 v{x_}, v{x_}, v{O+i}")
        for i in range(4): e(f"v_cvt_pk_bf16_f32 v{16+4*u+i}, v{XM+8*u+2*i}, v{XM+8*u+2*i+1}")
        k.vmem(f"buffer_store_dwordx4 {R(16+4*u,4)}, v2, s[12:15], s{sT0 if u < 2 else sT1} offen offset:{(512 if hc16 else 1024)*(u&1)}{sf}", "st")
    e("v_mov_b32 v12, 0"); e("v_mov_b32 v13, 0")
    for i in range(16): e(f"v_dot2c_f32_bf16 v{12+(i&1)}, v{16+i}, v{16+i}")
    e("s_nop 2")
    e("v_add_f32 v12, v12, v13")
    k.vmem(f"buffer_store_dword v12, v3, s[12:15], s{sT2} offen{sf}", "st")
    tr("stored")
    tr.dump(6, sW, 14)
    stamp_end(k, stamps, 6, 2, sW, 2)
    if NP:
        e("s_endpgm")
        k.label(f"L_{name}_t")
        if jobs[1]:
            pack_wg(k, name, sW, 3, NMAIN, jobs[0], jobs[1], pk, stamps, 2)
            e("s_endpgm")
        elif xt:
            xt_load(k, 52)
            e(f"s_sub_u32 s51, s2, {NMAIN}")
            e("s_lshr_b32 s51, s51, 3")
            e("s_mul_i32 s51, s51, 3")
            e(f"s_add_u32 s51, s51, s{sW}")
            e("s_waitcnt lgkmcnt(0)")
            spec = [(m_, lo + 24*i, hi) for (m_, lo, hi) in xt for i in range(-(-(hi - lo) // 24))]
            assert len(spec) <= 4
            xt_prep(k, 52, 51, "v0", 4, spec)
            xt_fire(k, 52, 4, 1, spec)
        else: emit_touch_wg(k, sW, 3, NMAIN, touch, nper=4)
        stamp_end(k, stamps, 6, 2, sW, 0)
    k.label(f"L_{name}_end")
    e("s_endpgm")
    return k, (208, 100, 208), (NMAIN + NP, 192, 36864)
```

```python
import sys, json
from dsl import *
from kfft import *
from k4g import *
HDR = open("sequential_preLN__spectral_gfnet__geglu_ffn__prompt.s.ref").read().split("; Override launch geometry")[0]
def build(path, stamps=False, k4=None, k1=None, k2=None, k3=None, split=None, pst=' sc1', pld=' nt'):
    k1, k2, k3 = dict(k1 or {}), dict(k2 or {}), dict(k3 or {})
    if split:
        pk = lambda k, a, b, c: emit_pack_job(k, 3, a, b, c, ld_flags=pld, st_flags=pst)
        k1.update(pk=pk, jobs=(0, split[0])); k2.update(pk=pk, jobs=(split[0], split[1])); k3.update(pk=pk, jobs=(split[0]+split[1], 162-split[0]-split[1]))
    ks = [gen_k1(stamps=stamps, hc16=True, **(k1 or {})), gen_k2(stamps=stamps, **(k2 or {})), gen_k3(stamps=stamps, hc16=True, **(k3 or {})), gen_k4g(stamps=stamps, kidx=3, **(k4 or {}))]
    print(path, ks[-1][0].info)
    txt = assemble_file(HDR, [(k, *l) for k, r, l in ks], [(k, *r) for k, r, l in ks])
    open(path, "w").write(txt)
if __name__ == "__main__":
    opts = json.loads(sys.argv[2]) if len(sys.argv) > 2 else {}
    build(sys.argv[1], **opts)
```

```python
from dsl import *
from layout import *
from k123 import stamp_begin, stamp_mid, stamp_end, R
from k4b import wg_map
import math

SLOT = 36864
MF32 = "v_mfma_f32_32x32x16_bf16"
MF16 = "v_mfma_f32_16x16x32_bf16"
P2ORDER = ["A0", "A1", "A2", "B0", "B1", "B2", "A3", "B3", "N"]

def gen_k4h(name="ffn_kernel", P=6, X=3, NF=10, stamps=False, dist=3, mapping=4, kidx=3, pf=True,
            pub_d=80, poll_d=60, chk_d=48, hpub_d=80, hpoll_d=48, hchk_d=48, st_sp=10, spin_max=200000, trace=False, order=None, dmar=6,
            wev=1, hc0=10, rpoll=(1810, 1830, 1900), trlead=False, nobar=0, fast=0, ssg=200, outf='', dfin=1352, margin=1.03, sent=(3, 4), clr_at=300, clr_sp=10, clr_poll=1400, sload=(), retry_max=4000, lead_v=0, lrate=4, early_out=True, nb=False, otouch=0, g0=23, xpos=18, r_lo=6, r_hi=4, psleep=0, pubpos=60):
    xdma = xhx = lin = False; dmaf = ''; tch = []
    order = order or P2ORDER
    k = Kern(name); e = k.e
    SGU, SD, SW, SO, SU = 12, 16, 20, 24, 4
    P1 = [(0, 0, 0), (0, 1, 0), (0, 0, 1), (0, 1, 1)] + [(b, m_, hf) for b in (1, 2, 3) for m_ in (0, 1) for hf in (0, 1)] + [(4, 0, 0), (4, 1, 0)]
    sW, sMT, sFS, sRG = 28, 29, 30, 31
    sOff, sLB1, sLB2, sLB3, sLBN, sLBN3 = 32, 33, 34, 35, 36, 37
    sColW, sColN = 38, 39
    sRow = 40
    sRowN = 44
    sHC, sP, sPR, sT0, sT1, sHo, sSp = 46, 47, 48, 49, 50, 51, 52
    sFH, sFHp, sFR, sFRo, sHXo, sHXp, sHR, sOut, sMn, sSpin = 53, 54, 55, 56, 57, 60, 61, 62, 63, 64
    vW, vD, vN, vDN = 1, 5, 104, 240
    vA = 9
    vAN = 21
    vL16 = 23
    vC1, vC2, vR = (24, 25), (26, 27), (250, 252)
    vT = 28
    NT = 12
    vH = 40
    vSt, vFl, vPo, vPoll, vFv, vHo = 244, 245, 246, 247, 248, 249
    REG = 49152
    aHP = 144
    aF = 216
    assert aF + 4*NF <= 256
    e("s_cmp_ge_u32 s2, 256")
    e(f"s_cbranch_scc1 L_{name}_end")
    stamp_begin(k, stamps)
    e(f"s_load_dwordx4 s[4:7], s[0:1], {KA_WG}")
    e(f"s_load_dwordx4 s[8:11], s[0:1], {KA_WD}")
    e(f"s_load_dwordx2 s[66:67], s[0:1], {KA_WS}")
    e(f"s_load_dwordx2 s[96:97], s[0:1], {KA_X}")
    e("v_lshrrev_b32 v28, 6, v0")
    e("v_and_b32 v0, 63, v0")
    e(f"v_readfirstlane_b32 s{sW}, v28")
    wg_map(e, mapping, sFS, sMT, sT0, sT1)
    e(f"s_lshl_b32 s{sRG}, s{sMT}, 2")
    e(f"s_add_u32 s{sRG}, s{sRG}, s{sW}")
    SR = f"s[{SW}:{SW+3}]"
    NCH = 27
    k.tr = []
    def tr(label):
        if not trace or len(k.tr) >= 64: return
        if trlead and not (label.startswith("L") or label == "end"): return
        if not trlead and label.startswith("L"): return
        e("s_memtime s[58:59]")
        e("s_waitcnt lgkmcnt(0)")
        e("s_sub_u32 s58, s58, s92")
        e(f"v_writelane_b32 v251, s58, {len(k.tr)}")
        k.tr.append(label)

    def dma_items(c):
        slot = c % 4
        it = []
        for i in range(9):
            grp, r = divmod(i, 4)
            if c < 16:
                b, mat, hf = P1[c]
                m0, so = (sLB1, slot*SLOT + 4096*grp), (sColW, 128*b + (288*hf + 32*grp)*9216)
                v, srd = vW, (SU if mat else SGU)
            elif c < 18:
                m0, so = (sLB1, slot*SLOT + 4096*grp), (sColN, 64*grp*9216)
                v, srd = vN, (SU if P1[c][1] else SGU)
            else:
                nm = order[c-18]
                srd = SD
                if nm == "N":
                    v = vDN
                    if grp < 2: m0, so = (sLBN, slot*SLOT + 4096*grp), (sRowN, 64*grp*1152)
                    else: m0, so = (sLBN3, slot*SLOT), (sRowN+1, 0)
                else:
                    v = vD; side = 2*(nm[0] == "B"); db = int(nm[1])
                    if grp < 2: m0, so = (sLB2, slot*SLOT + 4096*grp), (sRow+side, 128*db + 32*grp*1152)
                    else: m0, so = (sLB3, slot*SLOT + 32768), (sRow+side+1, 128*db)
            if r == 0:
                it.append(("s", f"s_add_u32 m0, s{m0[0]}, {m0[1]}"))
                it.append(("s", f"s_add_u32 s{sOff}, s{so[0]}, {so[1]}"))
            it.append(("m", f"buffer_load_dwordx4 v{v+r}, s[{srd}:{srd+3}], s{sOff} offen offset:{1024*r}{dmaf} lds", ("dma", c)))
        return it
    def hc_items(kks):
        it = []
        for n_, kk in enumerate(kks):
            if n_ == 0 or kk % 4 == 0: it.append(("s", f"s_add_u32 s{sHo}, s{sHC}, {4096*(kk//4)}"))
            it.append(("m", f"buffer_load_dwordx4 a[{4*kk}:{4*kk+3}], v{vL16}, {SR}, s{sHo} offen offset:{1024*(kk%4)} sc1", ("hc", kk)))
        return it
    def emit_item(it):
        if it[0] == "s": e(it[1])
        elif xdma and " lds" in it[1] and it[2][1] > 3: k.vm.append(it[2]); k.vm_done = len(k.vm)
        else: k.vmem(it[1], it[2])
    qRG, qT, qT0, qT1, qT2 = 32, 33, 44, 45, 34
    e(f"s_lshr_b32 s{qRG}, s{sFS}, 2")
    e(f"s_lshl_b32 s{qT0}, s{sMT}, 2")
    e(f"s_add_u32 s{qRG}, s{qRG}, s{qT0}")
    e(f"s_and_b32 s{qT0}, s{sFS}, 3")
    e(f"s_min_u32 s{qT1}, s{qT0}, 1")
    e(f"s_lshl_b32 s{qT}, s{qT0}, 1")
    e(f"s_add_u32 s{qT}, s{qT}, s{qT1}")
    e(f"s_add_u32 s{qT}, s{qT}, s{sW}")
    e(f"s_add_u32 s{qT1}, s{qT1}, s{sW}")
    e(f"s_cmp_lt_u32 s{qT1}, 3")
    e("s_cselect_b32 s35, 1, 0")
    e(f"s_mul_i32 s98, s{qRG}, {FLAG_STRIDE}")
    e(f"s_lshl_b32 s99, s{qT}, 7")
    e("s_add_u32 s98, s98, s99")
    e(f"s_add_u32 s98, s98, {WS_FLAG + 90*128}")
    e("s_cmp_eq_u32 s35, 1")
    e("s_cselect_b32 s98, s98, 0x40000000")
    e("v_lshlrev_b32 v2, 4, v0")
    e(f"s_mul_i32 s36, s{qRG}, 36864")
    e(f"s_add_u32 s37, s36, {WS_V}")
    e(f"s_mul_i32 s38, s{qT}, 18432")
    e(f"s_add_u32 s38, s38, {WS_G}")
    e(f"s_mul_i32 s39, s{sW}, 9216")
    e("s_add_u32 s37, s37, s39")
    e(f"s_add_u32 s39, s39, {3*SLOT}")
    e("v_lshrrev_b32 v5, 5, v0")
    e("v_and_b32 v6, 31, v0")
    e("v_lshrrev_b32 v7, 2, v0")
    e("v_mul_u32_u24 v7, 73728, v7")
    e("v_lshrrev_b32 v8, 4, v0")
    e("v_xor_b32 v8, v8, v0")
    e("v_and_b32 v8, 3, v8")
    e("v_lshl_add_u32 v7, v8, 4, v7")
    e(f"s_mul_i32 s40, s{qRG}, 1152")
    e(f"s_lshl_b32 s{qT1}, s{qT}, 6")
    e(f"s_add_u32 s40, s40, s{qT1}")
    e(f"s_lshl_b32 s42, s{sW}, 12")
    e(f"s_add_u32 s42, s42, {4*SLOT}")
    e("v_lshlrev_b32 v8, 2, v6")
    e(f"s_lshl_b32 s41, s{qRG}, 7")
    e(f"s_add_u32 s41, s41, {WS_MEAN}")
    e("v_and_b32 v10, 1, v0")
    e("v_lshlrev_b32 v10, 4, v10")
    e("v_bfe_u32 v11, v0, 1, 1")
    e("v_and_b32 v12, 1, v0")
    e("v_xor_b32 v12, v12, v11")
    e("v_lshlrev_b32 v12, 15, v12")
    e("v_lshl_or_b32 v11, v11, 31, v12")
    e("v_lshlrev_b32 v3, 2, v0")
    e(f"v_add_u32 v19, {3*SLOT}, v3")
    e("s_waitcnt lgkmcnt(0)")
    tr("L-karg")
    k.srd(20, 66, WS_END)
    for i in range(9):
        if i % 4 == 0:
            e(f"s_add_u32 m0, s39, {1024*i}")
            e(f"s_add_u32 s{qT0}, s37, {1024*i}")
        k.vmem(f"buffer_load_dwordx4 v2, s[20:23], s{qT0} offen offset:{(i&3)*1024} lds", "V")
    vG, vRot = 100, 172
    lq = []
    for f in range(18):
        it = []
        if f % 4 == 0: it.append(f"s_add_u32 s{qT1}, s38, {(f>>2)*4096}")
        lq.append((it, f"buffer_load_dwordx4 {R(vG+4*f,4)}, v2, s[20:23], s{qT1} offen offset:{(f&3)*1024}", ("g", f)))
    for u in range(4):
        lq.append(([f"s_add_u32 m0, s42, {1024*u}", f"s_add_u32 s43, s40, {(u>>1)*576 + (u&1)*16*73728}"], "buffer_load_dwordx4 v7, s[24:27], s43 offen lds", "x"))
    lq.append(([], "buffer_load_dword v9, v8, s[20:23], s41 offen", "x"))
    def issue():
        pre, ins, tag = lq.pop(0)
        for p in pre: e(p)
        k.vmem(ins, tag)
    lq = [(lq[22][0], lq[22][1], "mean")] + lq[:xpos] + lq[18:22] + lq[xpos:18]
    k.srd(24, 96, S*D*2)
    e("s_cmp_eq_u32 s35, 0")
    e(f"s_cbranch_scc1 L_{name}_idle")
    for _ in range(g0): issue()
    tr("L-issued")
    pass
    k.wait(vm="V")
    tr("L-varr")
    e("s_barrier")
    O, E3, XM = 32, 48, 64
    seq = [("lo", f) for f in range(18)] + [("hi", f) for f in range(18)]
    def step(kind, f):
        pi, j = divmod(f, 9)
        return 18*pi + j + (9 if kind == "hi" else 0)
    RING = [96, 244, 20, 252, 12, 28]
    def rd(n):
        st = step(*seq[n]); b = RING[n % 6]
        for u in (0, 1): k.lds(f"ds_read2st64_b32 {R(b+2*u,2)}, v19 offset0:{4*st+2*u} offset1:{4*st+2*u+1}", ("b", n))
    for n in range(5): rd(n)
    k.wait(vm="mean")
    for i in range(16): e(f"v_sub_f32 v{E3+i}, 0, v9")
    rotdone = {}
    pend = []
    XR = 16
    for n, (kind, f) in enumerate(seq):
        while kind == "lo" and ("g", f) not in k.vm: issue()
        k.wait(vm=("g", f), lg=("b", n))
        accb = O if f < 9 else E3
        acc = R(accb, 16)
        if kind == "hi": assert rotdone[f] < n - 1
        a = (vG if kind == "lo" else vRot) + 4*f
        e(f"{MF32} {acc}, {R(a,4)}, {R(RING[n % 6],4)}, {'0' if n == 0 else acc}")
        if n + 5 < 36: rd(n + 5)
        if lq: issue()
        if kind == "lo":
            rr = vRot + 4*f
            pend += [(f"v_alignbit_b32 v{rr+r}, v{vG+4*f+r}, v{vG+4*f+r}, v10", None) for r in range(4)] + [(f"v_xor_b32 v{rr+r}, v11, v{rr+r}", f if r == 3 else None) for r in range(4)]
        if n == 17:
            assert not lq
            pend += [(x, None) for x in ["v_bfe_u32 v7, v0, 2, 2", "v_lshlrev_b32 v7, 4, v7", "v_lshl_add_u32 v7, v6, 6, v7", "v_lshl_add_u32 v7, v5, 3, v7", "v_add_u32 v7, s42, v7",
                                         "v_xor_b32 v16, 16, v7", "v_xor_b32 v17, 32, v7", "v_xor_b32 v18, 48, v7"]]
            pend.append(("XREAD", None))
            pend += [(x, None) for x in [f"s_lshl_b32 s{qT0}, s{qT}, 11", f"s_add_u32 s{qT0}, s{qT0}, s36", f"s_add_u32 s{qT0}, s{qT0}, {WS_HC}", f"s_add_u32 s{qT1}, s{qT0}, {18*1024}",
                                         "v_and_b32 v2, 15, v0", "v_lshlrev_b32 v2, 4, v2", "v_lshl_add_u32 v2, v5, 8, v2", "v_bfe_u32 v8, v0, 4, 1", "v_lshl_add_u32 v2, v8, 10, v2"]]
            pend.append(("XWAIT", None))
            for r in range(16): pend += [(f"v_lshlrev_b32 v{XM+2*r}, 16, v{100+r}", None), (f"v_and_b32 v{XM+2*r+1}, 0xffff0000, v{100+r}", None)]
            pend.append(("OREADY", None))
            for i in range(16): pend += [(f"v_add_f32 v{XM+i}, v{XM+i}, v{O+i}", None), (f"v_sub_f32 v{XM+16+i}, v{XM+16+i}, v{O+i}", None)]
        lim = r_lo if n < 18 else (r_hi if n < 31 else 6)
        if n == 35: lim = 999
        c_ = 0
        while pend and c_ < lim:
            t_, fin = pend[0]
            if t_ == "OREADY":
                if n < 30: break
                pend.pop(0); continue
            pend.pop(0)
            if t_ == "XREAD":
                k.wait(vm="x")
                xa = [7, 16, 17, 18]
                for u in range(4):
                    for z in (0, 1): k.lds(f"ds_read_b64 {R(100+4*u+2*z,2)}, v{xa[(u&1)+2*z]} offset:{2048*(u>>1)}", "xr")
                c_ += 8
            elif t_ == "XWAIT": k.wait(lg="xr")
            else:
                e(t_); c_ += 1
            if fin is not None: rotdone[fin] = n
        if n == 35: tailn = c_
    tr("L-mfma")
    pass
    e(f"s_mul_i32 s{qT2}, s{qRG}, 9")
    e(f"s_add_u32 s{qT2}, s{qT2}, s{qT}")
    e(f"s_lshl_b32 s{qT2}, s{qT2}, 8")
    e(f"s_add_u32 s{qT2}, s{qT2}, {WS_SS}")
    if tailn < 8: e(f"s_nop {7 - tailn}")
    for u in range(4):
        for i in range(8*(u&1), 8*(u&1)+8):
            x_ = XM + 16*(u>>1) + i
            e(f"v_add_f32 v{x_}, v{x_}, v{E3+i}")
        for i in range(4): e(f"v_cvt_pk_bf16_f32 v{140+4*u+i}, v{XM+8*u+2*i}, v{XM+8*u+2*i+1}")
        k.vmem(f"buffer_store_dwordx4 {R(140+4*u,4)}, v2, s[20:23], s{qT0 if u < 2 else qT1} offen offset:{512*(u&1)} sc1", "st")
    k.tailn = tailn
    e("v_mov_b32 v12, 0"); e("v_mov_b32 v13, 0")
    for i in range(16): e(f"v_dot2c_f32_bf16 v{12+(i&1)}, v{140+i}, v{140+i}")
    e("s_nop 2")
    e("v_add_f32 v12, v12, v13")
    k.vmem(f"buffer_store_dword v12, v3, s[20:23], s{qT2} offen sc1", "st")
    tr("L-stored")
    e(f"s_branch L_{name}_join")
    k.label(f"L_{name}_idle")
    e("s_waitcnt vmcnt(0)")
    e("s_barrier")
    if pf:
        e("s_bfe_u32 s77, s2, 0x20003")
        e("s_lshl_b32 s77, s77, 1")
        e(f"s_and_b32 s76, s{sW}, 1")
        e("s_add_u32 s77, s77, s76")
        sv = list(k.vm)
        k.prefetch_code(name, f"L_{name}_fin", 72, 39, 253, 1, part=(77, 8192))
        k.vm = sv
    e(f"s_cmp_lg_u32 s{sW}, 3")
    e(f"s_cbranch_scc1 L_{name}_join")
    e("v_lshrrev_b32 v28, 3, v0")
    e("v_and_b32 v29, 7, v0")
    e("v_lshrrev_b32 v30, 2, v0")
    e("v_and_b32 v31, 6, v28")
    e("v_xor_b32 v29, v29, v31")
    e("v_lshlrev_b32 v29, 4, v29")
    e(f"v_mul_u32_u24 v{vW}, 9216, v28")
    e(f"v_add_u32 v{vW}, v{vW}, v29")
    if lin: e(f"v_lshlrev_b32 v{vW}, 4, v0")
    for i in range(1, 4): e(f"v_add_u32 v{vW+i}, {i*(8*9216-1024)}, v{vW}")
    e(f"v_lshlrev_b32 v{vL16}, 4, v0")
    e(f"s_lshr_b32 s68, s{sFS}, 1")
    e(f"s_and_b32 s69, s{sFS}, 1")
    e("s_mul_i32 s70, s68, 576")
    e("s_mul_i32 s71, s69, 320")
    e("s_add_u32 s71, s71, s70")
    e(f"s_and_b32 s{sT0}, s{sW}, 1")
    e(f"s_mul_i32 s{sT1}, s{sW}, {72*9216}")
    e(f"s_lshl_b32 s{sColW}, s71, 1")
    e(f"s_add_u32 s{sColW}, s{sColW}, s{sT1}")
    e(f"s_mul_i32 s{sLB1}, s{sW}, 9216")
    e(f"s_mul_i32 s{sHC}, s{sRG}, 36864")
    e(f"s_add_u32 s{sHC}, s{sHC}, {WS_HC}")
    e("v_and_b32 v32, 3, v0")
    e("v_lshlrev_b32 v32, 3, v32")
    e("v_bfe_u32 v33, v0, 3, 2")
    e("v_lshl_add_u32 v33, v33, 5, v32")
    e(f"v_lshl_add_u32 v{vA}, v30, 7, v33")
    for t in range(1, 4): e(f"v_xor_b32 v{vA+t}, {32*t}, v{vA}")
    for r in range(1, 3):
        for t in range(4): e(f"v_add_u32 v{vA+4*r+t}, {r*REG}, v{vA+t}")
    e("v_bfe_u32 v33, v0, 4, 1")
    e("v_lshl_add_u32 v33, v33, 5, v32")
    e(f"v_lshl_add_u32 v{vAN}, v30, 6, v33")
    e(f"v_xor_b32 v{vAN+1}, 32, v{vAN}")
    k.srd(SGU, 4, D*F*2)
    k.srd(16, 6, D*F*2)
    for c in range(3):
        b_, mat, hf = P1[c]
        srd = 16 if mat else SGU
        e(f"s_mov_b32 m0, {c*SLOT}")
        e(f"s_lshl_b32 s{sOff}, s71, 1")
        e(f"s_add_u32 s{sOff}, s{sOff}, {288*hf*9216}")
        e("s_mov_b32 s65, 9")
        k.label(f"L_{name}_ld{c}")
        for r in range(4): e(f"buffer_load_dwordx4 v{vW+r}, s[{srd}:{srd+3}], s{sOff} offen offset:{1024*r} lds")
        e("s_add_u32 m0, m0, 4096")
        e(f"s_add_u32 s{sOff}, s{sOff}, {32*9216}")
        e("s_sub_u32 s65, s65, 1")
        e("s_cmp_lg_u32 s65, 0")
        e(f"s_cbranch_scc1 L_{name}_ld{c}")
    k.label(f"L_{name}_join")
    e("v_cmp_eq_u32 vcc, 0, v0")
    e("v_bfrev_b32 v36, 1")
    e(f"v_mov_b32 v{vFv}, 1")
    e(f"v_cndmask_b32 v{vFl}, v36, 0, vcc")
    join_at = len(k.lines)
    e("v_lshrrev_b32 v28, 3, v0")
    e("v_and_b32 v29, 7, v0")
    e("v_lshrrev_b32 v30, 2, v0")
    e("v_and_b32 v31, 6, v28")
    e("v_xor_b32 v29, v29, v31")
    e("v_lshlrev_b32 v29, 4, v29")
    e(f"v_mul_u32_u24 v{vW}, 9216, v28")
    e(f"v_add_u32 v{vW}, v{vW}, v29")
    if lin: e(f"v_lshlrev_b32 v{vW}, 4, v0")
    for i in range(1, 4): e(f"v_add_u32 v{vW+i}, {i*(8*9216-1024)}, v{vW}")
    e(f"v_lshlrev_b32 v{vL16}, 4, v0")
    e(f"s_lshr_b32 s68, s{sFS}, 1")
    e(f"s_and_b32 s69, s{sFS}, 1")
    e("s_mul_i32 s70, s68, 576")
    e("s_mul_i32 s71, s69, 320")
    e("s_add_u32 s71, s71, s70")
    e(f"s_and_b32 s{sT0}, s{sW}, 1")
    e(f"s_mul_i32 s{sT1}, s{sW}, {72*9216}")
    e(f"s_lshl_b32 s{sColW}, s71, 1")
    e(f"s_add_u32 s{sColW}, s{sColW}, s{sT1}")
    e(f"s_mul_i32 s{sLB1}, s{sW}, 9216")
    e(f"s_mul_i32 s{sHC}, s{sRG}, 36864")
    e(f"s_add_u32 s{sHC}, s{sHC}, {WS_HC}")
    e("v_and_b32 v32, 3, v0")
    e("v_lshlrev_b32 v32, 3, v32")
    e("v_bfe_u32 v33, v0, 3, 2")
    e("v_lshl_add_u32 v33, v33, 5, v32")
    e(f"v_lshl_add_u32 v{vA}, v30, 7, v33")
    for t in range(1, 4): e(f"v_xor_b32 v{vA+t}, {32*t}, v{vA}")
    for r in range(1, 3):
        for t in range(4): e(f"v_add_u32 v{vA+4*r+t}, {r*REG}, v{vA+t}")
    e("v_bfe_u32 v33, v0, 4, 1")
    e("v_lshl_add_u32 v33, v33, 5, v32")
    e(f"v_lshl_add_u32 v{vAN}, v30, 6, v33")
    e(f"v_xor_b32 v{vAN+1}, 32, v{vAN}")
    k.srd(SGU, 4, D*F*2)
    k.srd(SU, 6, D*F*2)
    e("v_lshlrev_b32 v39, 2, v0")
    e(f"s_mul_i32 s{sSpin}, s{sRG}, 2304")
    e(f"s_add_u32 s{sSpin}, s{sSpin}, {WS_SS}")
    k.srd(SD, 8, D*F*2)
    k.srd(SO, 10, S*D*2)
    e(f"v_mul_u32_u24 v{vD}, 1152, v28")
    e(f"v_add_u32 v{vD}, v{vD}, v29")
    e("v_and_b32 v31, 3, v0")
    e("v_and_b32 v37, 2, v28")
    e("v_xor_b32 v31, v31, v37")
    e("v_lshlrev_b32 v31, 4, v31")
    e(f"v_mul_u32_u24 v{vN}, 9216, v30")
    e(f"v_add_u32 v{vN}, v{vN}, v31")
    e(f"v_mul_u32_u24 v{vDN}, 1152, v30")
    e(f"v_add_u32 v{vDN}, v{vDN}, v31")
    for i in range(1, 4):
        e(f"v_add_u32 v{vN+i}, {i*(16*9216-1024)}, v{vN}")
        e(f"v_add_u32 v{vD+i}, {i*(8*1152-1024)}, v{vD}")
        e(f"v_add_u32 v{vDN+i}, {i*(16*1152-1024)}, v{vDN}")
    e("s_lshl_b32 s72, s69, 5")
    e("s_add_u32 s72, s72, s70")
    e("s_add_u32 s72, s72, 256")
    e("s_xor_b32 s65, s69, 1")
    e("s_mul_i32 s73, s65, 320")
    e("s_add_u32 s73, s73, s70")
    e("s_lshl_b32 s74, s65, 5")
    e("s_add_u32 s74, s74, s70")
    e("s_add_u32 s74, s74, 256")
    e(f"s_lshl_b32 s{sColN}, s72, 1")
    e(f"s_add_u32 s{sColN}, s{sColN}, s{sT1}")
    e(f"s_add_u32 s{sColN}, s{sColN}, s{sT1}")
    e("s_mul_i32 s75, s69, 640")
    e("s_lshl_b32 s76, s69, 6")
    e("s_add_u32 s76, s76, 512")
    for i, (f, sh) in enumerate([(71, 6), (72, 3), (73, 6), (74, 3)]):
        e(f"s_lshl_b32 s{sRow+i}, s{sW}, {sh}")
        e(f"s_add_u32 s{sRow+i}, s{sRow+i}, s{f}")
        e(f"s_mul_i32 s{sRow+i}, s{sRow+i}, 1152")
        e(f"s_add_u32 s{sRow+i}, s{sRow+i}, s75")
    e(f"s_cmp_lt_u32 s{sW}, 2")
    e(f"s_cselect_b32 s{sRowN}, s71, s73")
    e(f"s_cselect_b32 s{sRowN+1}, s72, s74")
    e(f"s_cselect_b32 s{sLBN}, 0, 18432")
    for i, sh in ((0, 7), (1, 4)):
        e(f"s_lshl_b32 s65, s{sT0}, {sh}")
        e(f"s_add_u32 s{sRowN+i}, s{sRowN+i}, s65")
        e(f"s_mul_i32 s{sRowN+i}, s{sRowN+i}, 1152")
        e(f"s_add_u32 s{sRowN+i}, s{sRowN+i}, s76")
    e(f"s_lshl_b32 s65, s{sT0}, 10")
    e(f"s_add_u32 s{sLBN3}, s{sLBN}, s65")
    e(f"s_add_u32 s{sLBN3}, s{sLBN3}, 16384")
    e(f"s_lshl_b32 s65, s{sT0}, 13")
    e(f"s_add_u32 s{sLBN}, s{sLBN}, s65")
    e(f"s_lshl_b32 s{sLB2}, s{sW}, 13")
    e(f"s_lshl_b32 s{sLB3}, s{sW}, 10")
    e(f"s_lshl_b32 s{sPR}, s{sRG}, 1")
    e(f"s_add_u32 s{sPR}, s{sPR}, s69")
    e(f"s_mul_i32 s{sPR}, s{sPR}, {9*16384}")
    e(f"s_add_u32 s{sPR}, s{sPR}, {WS_P}")
    e(f"s_lshl_b32 s{sP}, s68, 8")
    e(f"s_add_u32 s{sP}, s{sP}, s{sPR}")
    e("s_lshl_b32 s65, s68, 11")
    e(f"s_add_u32 s{sPR}, s{sPR}, s65")
    e(f"s_mul_i32 s65, s{sRG}, {FLAG_STRIDE}")
    e(f"s_add_u32 s65, s65, {WS_FLAG}")
    e(f"s_mul_i32 s{sFH}, s{sFS}, 640")
    e(f"s_add_u32 s{sFH}, s{sFH}, s65")
    e(f"s_xor_b32 s{sFHp}, s{sFS}, 1")
    e(f"s_mul_i32 s{sHXp}, s{sFHp}, 18432")
    e(f"s_mul_i32 s{sFHp}, s{sFHp}, 640")
    e(f"s_add_u32 s{sFHp}, s{sFHp}, s65")
    e(f"s_add_u32 s{sFR}, s65, s75")
    e(f"s_add_u32 s{sFR}, s{sFR}, {80*128}")
    e(f"s_lshl_b32 s{sFRo}, s68, 2")
    e(f"s_add_u32 s{sFRo}, s{sFRo}, s{sFR}")
    e(f"s_mul_i32 s65, s{sRG}, {16*18432}")
    e(f"s_add_u32 s65, s65, {WS_HX}")
    e(f"s_add_u32 s{sHXp}, s{sHXp}, s65")
    e(f"s_mul_i32 s{sHXo}, s{sFS}, 18432")
    e(f"s_add_u32 s{sHXo}, s{sHXo}, s65")
    e(f"s_and_b32 s{sHR}, s68, 3")
    e(f"s_lshl_b32 s{sHR}, s{sHR}, 6")
    e("s_lshr_b32 s65, s68, 2")
    e("s_lshl_b32 s65, s65, 10")
    e(f"s_add_u32 s{sHR}, s{sHR}, s65")
    e(f"s_add_u32 s{sHR}, s{sHR}, s{sHC}")
    e(f"s_mul_i32 s{sOut}, s68, {4*73728}")
    e(f"s_mul_i32 s65, s{sRG}, 1152")
    e(f"s_add_u32 s{sOut}, s{sOut}, s65")
    e(f"s_lshl_b32 s{sMn}, s68, 4")
    e(f"s_lshl_b32 s65, s{sRG}, 7")
    e(f"s_add_u32 s{sMn}, s{sMn}, s65")
    e(f"s_add_u32 s{sMn}, s{sMn}, {WS_MEAN}")
    e("v_and_b32 v32, 3, v0")
    e("v_bfe_u32 v33, v0, 2, 2")
    e("v_bfe_u32 v34, v0, 4, 1")
    e("v_lshrrev_b32 v35, 5, v0")
    e("v_lshrrev_b32 v36, 4, v0")
    e(f"v_lshlrev_b32 v{vSt}, 4, v32")
    e(f"v_lshl_add_u32 v{vHo}, v33, 8, v{vSt}")
    e(f"v_lshl_add_u32 v{vHo}, v34, 3, v{vHo}")
    e(f"v_lshl_add_u32 v{vHo}, v35, 11, v{vHo}")
    e(f"v_lshl_add_u32 v{vSt}, v36, 6, v{vSt}")
    e(f"v_lshl_add_u32 v{vSt}, v33, 11, v{vSt}")
    e("v_and_b32 v36, 7, v0")
    e(f"v_lshlrev_b32 v{vPo}, 2, v36")
    vTch, vTcg, sTch, STG = (251 if not trace else 255), 254, 96, 8
    if any(x is not None for x in tch):
        e(f"s_lshl_b32 s78, s{sMT}, 1")
        e("s_add_u32 s78, s78, s69")
        e("s_lshl_b32 s78, s78, 2")
        e(f"s_add_u32 s78, s78, s{sW}")
        e("s_mul_i32 s79, s68, 1152")
        for i, (u0, cnt_, col) in enumerate([(0, 18, 2), (20, 18, 3), (40, 9, 4)]):
            e(f"s_sub_u32 s65, s78, {u0}")
            e("s_cmp_ge_u32 s65, 9")
            e(f"s_cselect_b32 s{sTch+i}, {640 - 9*64*9216}, 0")
            e(f"s_mul_i32 s77, s65, {64*9216}")
            e(f"s_add_u32 s{sTch+i}, s{sTch+i}, s77")
            e(f"s_add_u32 s{sTch+i}, s{sTch+i}, s79")
            e(f"s_add_u32 s{sTch+i}, s{sTch+i}, {128*col}")
            e(f"s_cmp_lt_u32 s65, {cnt_}")
            e(f"s_cselect_b32 s{sTch+i}, s{sTch+i}, 0x40000000")
        e(f"s_mul_i32 s79, s68, {576*1152}")
        for i in range(3):
            e(f"s_sub_u32 s65, s78, {52 + 16*i}")
            e(f"s_add_u32 s77, s65, {14*i}")
            e("s_lshl_b32 s77, s77, 14")
            e(f"s_add_u32 s{sTch+3+i}, s77, s79")
            e(f"s_cmp_lt_u32 s65, {14 if i < 2 else 13}")
            e(f"s_cselect_b32 s{sTch+3+i}, s{sTch+3+i}, 0x40000000")
        e(f"v_lshlrev_b32 v{vTch}, 8, v0")
        e(f"v_mul_u32_u24 v{vTcg}, 9216, v0")
    defer = []
    rest_ = k.lines[join_at + pubpos:]; k.lines = k.lines[:join_at + pubpos]
    while rest_ and rest_[0].strip().startswith(("s_cselect", "s_addc", "v_cndmask")): k.lines.append(rest_.pop(0))
    tr("L-setup")
    e("s_waitcnt vmcnt(0)")
    tr("L-ack")
    e(f"buffer_store_dword v{vFv}, v{vFl}, {SR}, s98 offen sc1")
    k.lines += rest_
    e("s_barrier")
    tr("L-bar")
    k.vm = [("dma", c) for c in range(3) for _ in range(9)]; k.vm_done = len(k.vm)
    k.lg = []; k.lg_done = 0
    e("v_and_b32 v32, 15, v0")
    e("v_min_u32 v32, 8, v32")
    e("v_lshlrev_b32 v32, 7, v32")
    e(f"s_mul_i32 s98, s{sRG}, {FLAG_STRIDE}")
    e(f"s_add_u32 s98, s98, {WS_FLAG + 90*128}")
    e(f"s_mov_b32 s99, {spin_max}")
    k.label(f"L_{name}_hw")
    if psleep: e(f"s_sleep {psleep}")
    e(f"buffer_load_dword v33, v32, {SR}, s98 offen sc1")
    e("s_sub_u32 s99, s99, 1")
    e("s_waitcnt vmcnt(0)")
    e("v_cmp_eq_u32 vcc, 0, v33")
    e("s_cmp_eq_u32 s99, 0")
    e(f"s_cbranch_scc1 L_{name}_hg")
    e(f"s_cbranch_vccnz L_{name}_hw")
    k.label(f"L_{name}_hg")
    tr("L-flags")
    for it in hc_items(range(0, hc0)): emit_item(it)
    tr("L-hc0")
    ss_items = [("m", f"buffer_load_dword v{vH+t}, v39, {SR}, s{sSpin} offen offset:{256*t} sc1", "ss") for t in range(9)]
    lead = hc_items(range(hc0, 26)) + dma_items(3) + hc_items(range(26, 36)) + ss_items

    mf = []
    Q = [112, 144, 176, 208]
    def accP1(b, mat):
        if b == 4: return Q[0] + 16*mat
        return Q[3 - b % 2] if mat else Q[b % 2]
    acc2 = {0: Q[3], 1: Q[1], 2: Q[2], 3: Q[0], 4: Q[3]}
    last_m = {}
    def wide_rd(slot, ks, t):
        a = slot*SLOT + ks*4096
        r = a // REG
        return [(vA + 4*r + t, a - r*REG), (vA + 4*r + t, a - r*REG + 2048)]
    def add(c, rd, kind, ks, Dt, t, first, own, key):
        last_m[key] = 2*len(mf) + 1
        mf.append(dict(c=c, rd=rd, B=[(kind, 2*ks), (kind, 2*ks+1)], D=[Dt + 4*(t & 1), Dt + 8 + 4*(t & 1)], Dt=Dt, first=first, own=own))
    for c in range(NCH):
        slot = c % 4
        if c < 16:
            b, mat, hf = P1[c]
            for j in range(9):
                for t in range(4):
                    add(c, wide_rd(slot, j, t), "hc", 9*hf + j, accP1(b, mat) + 16*(t >> 1), t, hf == 0 and j == 0, ("g", b), ("gu"[mat], b, t >> 1))
        elif c < 18:
            mat = P1[c][1]
            for j in range(18):
                for t in (0, 1):
                    add(c, [(vAN+t, j*2048), (vAN+t, j*2048+1024)], "hc", j, accP1(4, mat), t, j == 0, ("g", 4), ("gu"[mat], 4, 0))
        else:
            nm = order[c-18]
            if nm == "N":
                for j in range(18):
                    for t in (0, 1):
                        add(c, [(vAN+t, j*2048), (vAN+t, j*2048+1024)], "hp" if j >= 9 else "h", j % 9, acc2[4], t, j == 0, ("o", 4), ("o", 4, 0))
            else:
                db = int(nm[1]); isB = nm[0] == "B"
                seq = [(j, t) for j in range(9) for t in range(4)]
                if isB and nm != "B0": seq = [(j, t) for tp in (0, 1) for j in range(9) for t in (2*tp, 2*tp+1)]
                for (j, t) in seq:
                    add(c, wide_rd(slot, j, t), "hp" if isB else "h", j, acc2[db] + 16*(t >> 1), t, (not isB) and j == 0, ("o", db), ("o", db, t >> 1))
    NFR = len(mf); assert NFR == 972
    NM = 2*NFR
    cN = 18 + order.index("N")
    nslot = {16: 0, 17: 1, cN: cN % 4}
    def breg(B):
        kind, j = B
        if kind == "hc": return f"a[{4*j}:{4*j+3}]"
        if kind == "hp": return f"a[{aHP+4*j}:{aHP+4*j+3}]"
        return R(vH + 4*j, 4)

    class Op:
        __slots__ = ("txt", "kind", "deps", "done", "prio", "min_gap", "tag", "cost", "soft")
        def __init__(s, txt, kind="v", deps=(), min_gap=0, prio=0, tag=None):
            s.txt, s.kind, s.deps, s.min_gap, s.prio, s.tag = txt, kind, list(deps), min_gap, prio, tag
            s.done = None; s.soft = 0
            s.cost = 8 if kind == "x" else (5 if kind == "m" or (kind == "v" and (txt.startswith("v_fma_") or txt.startswith("v_cvt_pk") or "0x" in txt)) else 4)
    ops = []
    c1 = -2.0 * math.log2(math.e) * math.sqrt(2.0 / math.pi); c2 = c1 * 0.044715
    chain = [("w", "ss")] + [f"v_add_f32 v{vH}, v{vH}, v{vH+t}" for t in range(1, 9)]
    chain += [f"v_mov_b32 v{vH+1}, v{vH}", None, f"v_permlane32_swap_b32 v{vH}, v{vH+1}", None,
              f"v_add_f32 v{vH}, v{vH}, v{vH+1}", f"v_mov_b32 v{vR[0]}, {fhex(1e-5)}", f"v_fmac_f32 v{vR[0]}, {fhex(1.0/576)}, v{vH}",
              f"v_mov_b32 v{vR[1]}, v{vR[0]}", None, f"v_permlane16_swap_b32 v{vR[0]}, v{vR[1]}", None]
    for hf in (0, 1):
        chain += [("x", f"v_rsq_f32 v{vH+3}, v{vR[hf]}"), None,
                  f"v_mul_f32 v{vC1[hf]}, {fhex(c1)}, v{vH+3}", f"v_mul_f32 v{vH+4}, v{vH+3}, v{vH+3}",
                  f"v_mul_f32 v{vH+4}, v{vH+4}, v{vH+3}", f"v_mul_f32 v{vC2[hf]}, {fhex(c2)}, v{vH+4}"]
    prev = None; skip = 0
    for it in chain:
        if it is None: skip = 2; continue
        if isinstance(it, tuple) and it[0] == "w": o = Op(None, "vmwait", tag=it[1], min_gap=ssg)
        elif isinstance(it, tuple): o = Op(it[1], "x")
        else: o = Op(it, "v")
        if prev is not None: o.deps = [(prev, skip)]
        o.prio = -1; ops.append(o); prev = o; skip = 0
    stats_last = prev
    tfree = {}; tc = [0]; hdone = {}; owner_ops = {}
    def gelu(b, t, pr0):
        AG, AU = accP1(b, 0) + 16*t, accP1(b, 1) + 16*t
        mg = last_m[("g", b, t)] + 5; mu = last_m[("u", b, t)] + 5
        Hb = vH + 16*b + 8*t
        lst = []; res = []
        for i in range(16):
            G, U = AG + i, AU + i
            T = vT + tc[0] % NT; tc[0] += 1
            pr = pr0 + i
            d0 = [(stats_last, 1)] + ([(tfree[T], 0)] if T in tfree else [])
            m1 = Op(f"v_mul_f32 v{T}, v{G}, v{G}", deps=d0, min_gap=mg, prio=pr)
            f1 = Op(f"v_fma_f32 v{T}, v{T}, v{vC2[i>>3]}, v{vC1[i>>3]}", deps=[(m1, 0)], prio=pr)
            m2 = Op(f"v_mul_f32 v{T}, v{T}, v{G}", deps=[(f1, 0)], prio=pr)
            ex = Op(f"v_exp_f32 v{T}, v{T}", "x", deps=[(m2, 0)], prio=pr)
            f2 = Op(f"v_fma_f32 v{T}, v{T}, v{vR[i>>3]}, v{vR[i>>3]}", deps=[(ex, 1)], prio=pr)
            rc = Op(f"v_rcp_f32 v{T}, v{T}", "x", deps=[(f2, 0)], prio=pr)
            m3 = Op(f"v_mul_f32 v{G}, v{G}, v{T}", deps=[(rc, 1)], prio=pr)
            m4 = Op(f"v_mul_f32 v{U}, v{U}, v{G}", deps=[(m3, 0)], min_gap=mu, prio=pr)
            tfree[T] = m3; lst += [m1, f1, m2, ex, f2, rc, m3, m4]; res.append(m4)
            if i & 1:
                cv = Op(f"v_cvt_pk_bf16_f32 v{Hb + i//2}, v{U-1}, v{U}", deps=[(res[i-1], 0), (res[i], 0), (stats_last, 1)], prio=pr + 0.7)
                lst.append(cv); hdone[Hb + i//2] = cv
        return lst
    spins = []
    def flag_ops(last_st, sttag, pub_txt, poll_fn, reg, ident, loads, d, prio, after=None, poll_at=0, nbreg=None):
        w = Op(None, "vmwait", deps=[(last_st, d[0])], tag=sttag, prio=prio)
        pb = Op(pub_txt, "m", deps=[(w, 0)], prio=prio, tag=("pub", ident))
        pl = Op(poll_fn(reg), "m", deps=[(pb, d[1])] + ([(regfree[reg], 0)] if reg in regfree else []), prio=prio, tag=("poll", ident))
        pl.soft = poll_at
        w2 = Op(None, "vmwait", deps=[(pl, d[2])] + ([(after, 0)] if after else []), tag=("poll", ident), prio=prio)
        cm = Op(f"v_cmp_eq_u32 vcc, 0, v{reg}", deps=[(w2, 0)], prio=prio)
        regfree[reg] = cm
        if nbreg is None: br = Op((ident, poll_fn(vSpin)), "chk", deps=[(cm, 1)], prio=prio)
        else: br = Op(f"s_cmp_eq_u64 vcc, 0\n    s_cselect_b32 s{nbreg}, s{sPR}, 0x40000000", "s", deps=[(cm, 1)], prio=prio)
        lst = [w, pb, pl, w2, cm, br]; pv = br
        for kind, txt, tag in loads:
            o = Op(txt, kind, deps=[(pv, 1)], prio=prio, tag=tag); lst.append(o); pv = o
        return lst
    regfree = {}
    vSpin = 253
    PREG = [vPoll, 254, 255]
    lastchk = None
    prev_hst = None
    for b in range(5):
        lst = []
        for t in ((0, 1) if b < 4 else (0,)): lst += gelu(b, t, b*40 + t*16)
        owner_ops[("g", b)] = lst; ops += lst
        nfr = 4 if b < 4 else 2
        so = Op(f"s_add_u32 s{sT0}, s{sHXo}, {4096*b}", "s", deps=[(prev_hst, 0)] if prev_hst else [], prio=b*40, min_gap=288)
        ops.append(so)
        for j in range(nfr):
            fr = 4*b + j
            st = Op(f"buffer_store_dwordx4 {R(vH+4*fr,4)}, v{vL16}, {SR}, s{sT0} offen offset:{1024*j} sc1", "m",
                    deps=[(hdone[vH+4*fr+r], 1) for r in range(4)] + [(so, 0)] + ([(prev_hst, 1)] if prev_hst else []), prio=b*40 + 8*j + 8, tag=("hst", b))
            ops.append(st); prev_hst = st
        loads = [("s", f"s_add_u32 s{sSp}, s{sHXp}, {4096*b}", None)]
        loads += [("m", f"buffer_load_dwordx4 a[{aHP+16*b+4*j}:{aHP+16*b+4*j+3}], v{vL16}, {SR}, s{sSp} offen offset:{1024*j} sc1", ("hp", 4*b+j)) for j in range(nfr)]
        dd = (hpub_d, hpoll_d if b >= 3 else 2*hpoll_d, hchk_d)
        fl = flag_ops(prev_hst, ("hst", b), f"buffer_store_dword v{vFv}, v{vFl}, {SR}, s{sFH} offen offset:{128*b} sc1",
                      (lambda r, b=b: f"buffer_load_dword v{r}, off, {SR}, s{sFHp} offset:{128*b} sc1"), PREG[b % 2], f"h{b}", loads, dd, b*40 + 39, after=lastchk)
        ops += fl; lastchk = fl[-1]
    comp = sorted(range(5), key=lambda db: last_m[("o", db, 0 if db == 4 else 1)])
    prev_st = prev_hst
    tail_blocks = []
    stlast = {}
    def red_pub(db): return f"buffer_store_dword v{vFv}, v{vFl}, {SR}, s{sFRo} offen offset:{128*db} sc1"
    def red_poll(db, reg=vPoll): return f"buffer_load_dword v{reg}, v{vPo}, {SR}, s{sFR} offen offset:{128*db} sc1"
    def red_loads(db, base=None):
        base = sPR if base is None else base
        l = []
        for t in ((0, 1) if db < 4 else (0,)):
            T = 2*db + t
            l.append(("s", f"s_add_u32 s{sSp}, s{base}, {T*16384}", None))
            l += [("m", f"buffer_load_dwordx4 a[{8*T+4*j}:{8*T+4*j+3}], v{vL16}, {SR}, s{sSp} offen offset:{1024*j} sc1", ("rl", db)) for j in range(2)]
        return l
    state = {}; pollreg = {}
    clr_chk = None
    if sent:
        late_clr = clr_at > 1000
        vN_ = 24 if late_clr else vH + 60
        gl_ = [(o, 1) for o in owner_ops[("g", 4)]] if late_clr else []
        mv = [Op(f"v_mov_b32 v{vN_+r}, -1", min_gap=clr_at, prio=-3, deps=gl_) for r in range(4)]
        ops += mv; pv = None
        for db in sent:
            for t in ((0, 1) if db < 4 else (0,)):
                so = Op(f"s_add_u32 s{sT1}, s{sPR}, {(2*db+t)*16384}", "s", deps=[(pv, 0)] if pv else [], min_gap=clr_at, prio=-3)
                ops.append(so)
                for j in (0, 1):
                    st = Op(f"buffer_store_dwordx4 {R(vN_,4)}, v{vL16}, {SR}, s{sT1} offen offset:{1024*j} sc1", "m",
                            deps=[(so, 0)] + [(x, 1) for x in mv] + ([(pv, clr_sp)] if pv else []), prio=-3, tag="clr")
                    ops.append(st); pv = st
        if not late_clr:
            for r in range(4): hdone[vN_+r].deps.append((pv, 2))
        fl = flag_ops(pv, "clr", red_pub(4), (lambda r: red_poll(4, r)), PREG[2], "clr", [], (pub_d, poll_d, chk_d), 500, after=lastchk, poll_at=clr_poll)
        ops += fl; lastchk = fl[-1]; clr_chk = fl[-1]
    for ci, db in enumerate(comp):
        lst = []
        for t in ((0, 1) if db < 4 else (0,)):
            a = acc2[db] + 16*t; mg = last_m[("o", db, t)] + 5
            pr = 1000 + ci*100 + t*40
            pv = None
            for ee in (0, 1):
                cvs = []
                for j in range(4*ee, 4*ee+4):
                    o = Op(f"v_cvt_pk_bf16_f32 v{a+j}, v{a+2*j}, v{a+2*j+1}", min_gap=mg, prio=pr + j, deps=[(pv, 0)] if pv else [])
                    lst.append(o); pv = o
                so = Op(f"s_add_u32 s{sT0}, s{sP}, {(2*db+t)*16384 + ee*8192}", "s", deps=[(prev_st, 0)], min_gap=mg, prio=pr + 4*ee)
                st = Op(f"buffer_store_dwordx4 {R(a+4*ee,4)}, v{vSt}, {SR}, s{sT0} offen sc1", "m", deps=[(pv, 1), (so, 0), (prev_st, st_sp)] + ([(clr_chk, 1)] if db in sent else []), prio=pr + 4*ee + 4, tag=("st", db))
                lst += [so, st]; prev_st = st
        owner_ops[("o", db)] = lst; ops += lst
        est = last_m[("o", db, 0 if db == 4 else 1)] + 16 + st_sp
        if db in sent:
            state[db] = "sent"
            sl = dict(sload)
            if db in sl:
                pv = lastchk
                for kind, txt, tag in red_loads(db):
                    o = Op(txt, kind, deps=[(pv, 1), (prev_st, pub_d)], prio=900 + ci, tag=tag); o.soft = sl[db]; ops.append(o); pv = o
                lastchk = pv; state[db] = "sentl"
            continue
        pat = rpoll[ci] if ci < len(rpoll) else 5000
        fl = flag_ops(prev_st, ("st", db), red_pub(db), (lambda r, db=db: red_poll(db, r)), PREG[ci % 3], f"r{db}", red_loads(db, 96 + db if nb else None), (pub_d, poll_d, chk_d), 900 + ci, after=lastchk, poll_at=pat, nbreg=(96 + db if nb else None))
        tp = max(est + pub_d + poll_d, pat)
        if tp + chk_d < NM - 24: ops += fl; lastchk = fl[-1]; state[db] = "done"
        elif tp < NM - 6: ops += fl[:3]; state[db] = "polled"; pollreg[db] = PREG[ci % 3]
        elif est + pub_d < NM - 6: ops += fl[:2]; state[db] = "pub"
        else: state[db] = "none"
    glast = [(o, 1) for o in owner_ops[("g", 4)]]
    pv = None
    for j in range(5):
        if j < 4:
            s1 = Op(f"s_lshl_b32 s{sHo}, s75, 5", "s", deps=glast + ([(pv, 0)] if pv else []), prio=890)
        else:
            s1 = Op(f"s_lshl_b32 s{sHo}, s76, 5", "s", deps=[(pv, 0)], prio=890)
        s2_ = Op(f"s_add_u32 s{sHo}, s{sHo}, s{sHR}", "s", deps=[(s1, 0)], prio=890)
        lst = [s1, s2_]; pv = s2_
        if 0 < j < 4:
            s3 = Op(f"s_add_u32 s{sHo}, s{sHo}, {4096*j}", "s", deps=[(s2_, 0)], prio=890); lst.append(s3); pv = s3
        ld = Op(f"buffer_load_dwordx2 v[{vT+2*j}:{vT+2*j+1}], v{vHo}, {SR}, s{sHo} offen sc1", "m", deps=[(pv, 0)], prio=890, tag="res")
        ops += lst + [ld]; pv = ld
    mo = Op(f"v_and_b32 v{vT+11}, 60, v39", deps=glast, prio=890) if False else None
    m1_ = Op(f"v_lshrrev_b32 v{vT+11}, 2, v{vL16}", deps=glast, prio=889)
    m2_ = Op(f"v_and_b32 v{vT+11}, 12, v{vT+11}", deps=[(m1_, 0)], prio=889)
    ops += [m1_, m2_, Op(f"buffer_load_dword v{vT+10}, v{vT+11}, {SR}, s{sMn} offen", "m", deps=[(pv, 1), (m2_, 1)], prio=890, tag="res")]
    for i, gp in enumerate(tch):
        if gp is None: continue
        for z in (0, 1):
            if i < 3: txt = f"buffer_load_dword v{vSpin}, v{vTcg}, s[{(SGU, SU)[z]}:{(SGU, SU)[z]+3}], s{sTch+i} offen"
            else: txt = f"buffer_load_dword v{vSpin}, v{vTch}, s[{SD}:{SD+3}], s{sTch+i} offen offset:{128*z}"
            ops.append(Op(txt, "m", min_gap=gp, prio=-2, tag="touch"))
    if otouch:
        o1 = Op(f"v_and_b32 v{PREG[2]}, 3, v0", min_gap=otouch, prio=-2)
        o2 = Op(f"v_mul_u32_u24 v{PREG[2]}, 73728, v{PREG[2]}", deps=[(o1, 0)], prio=-2)
        o3 = Op(f"buffer_load_dword v{vSpin}, v{PREG[2]}, s[{SO}:{SO+3}], s{sOut} offen", "m", deps=[(o2, 1)], prio=-2, tag="touch")
        ops += [o1, o2, o3]
    pending = sorted(ops, key=lambda o: o.prio)

    def ready(o, g):
        if g < o.min_gap or g < o.soft: return False
        for d, lat in o.deps:
            if d.done is None or g < d.done + lat: return False
        return True
    def take(kinds, g, maxcost=99):
        for idx, o in enumerate(pending[:260]):
            if o.kind in kinds and o.cost <= maxcost and ready(o, g):
                pending.pop(idx); o.done = g
                return o
        return None
    nforced = [0]
    def force(o, g):
        if o.done is not None: return
        for d, lat in o.deps: force(d, g)
        assert g >= o.min_gap, (o.txt, g, o.min_gap)
        pending.remove(o); o.done = g - 1
        e("s_nop 1"); emit_op(o); nforced[0] += 1
    def emit_check(ident, poll_txt):
        e(f"s_cbranch_vccnz L_{name}_spin{ident}")
        k.label(f"L_{name}_ret{ident}")
        spins.append((ident, poll_txt))
    def emit_op(o):
        assert not defer or o.prio == -1, o.txt
        if o.kind == "vmwait":
            if o.tag == "ss": assert k.vm.count("ss") == 9 and not defer
            if o.tag != "ss": tr(f"pre-wait{o.tag}")
            k.wait(vm=o.tag)
            if o.tag != "ss": tr(f"post-wait{o.tag}")
        elif o.kind == "chk":
            emit_check(*o.txt); tr(f"post-chk{o.txt[0]}")
        elif o.kind == "m":
            if xhx and "sc1" in o.txt and "store_dwordx4" in o.txt and o.tag[0] == "hst": k.vmem("buffer_load_dword v253, off, s[20:23], s46", o.tag)
            else: k.vmem(o.txt, o.tag)
        else: e(o.txt)
    cur_nslot = [0]
    def emit_half(hidx):
        n, ei = divmod(hidx, 2)
        fr = aF + 4*(n % NF)
        c_ = mf[n]["c"]
        if c_ in nslot and nslot[c_] != cur_nslot[0]:
            d_ = (nslot[c_] - cur_nslot[0]) * SLOT
            for t in (0, 1): e(f"v_add_u32 v{vAN+t}, {d_ & 0xffffffff}, v{vAN+t}")
            cur_nslot[0] = nslot[c_]
        ar, off = mf[n]["rd"][ei]
        k.lds(f"ds_read_b64_tr_b16 a[{fr+2*ei}:{fr+2*ei+1}], v{ar} offset:{off}", ("f", n))
    def barrier(c):
        assert k.vm.count(("dma", c)) == 9, c
        if c > 17: tr(f"pre-bar{c}")
        if trlead == 2 or c < 9: tr(f"L-pre-bar{c}")
        k.wait(vm=[("dma", c)], lg0=(c > 0))
        if trlead == 2 or c < 9: tr(f"L-waited{c}")
        if nobar == 0 or c < 4 or (nobar == 2 and c % 2 == 0): e("s_barrier")
        if trlead != 2 and c < 9: tr(f"L-post-bar{c}")
    stamp_mid(k, stamps, 0)
    bar_done = 0
    rh = 0
    for _ in range(2*P): emit_half(rh); rh += 1
    vq = list(lead)
    forced = 0
    k.wait(lg=("f", 0), vm=("hc", 1))
    firstseen = {}; last_vm = [-9]
    over = 0; credit = 0.0
    dls = [(0, 8*72 - 4), (1, 12*72 - 4), (2, 16*72 - 4), (3, dfin - 16), (4, dfin)]
    for g in range(NM):
        n, hf = divmod(g, 2)
        m = mf[n]; c = m["c"]
        assert rh >= 2*n + 2 and k._need(k.lg, k.lg_done, ("f", n)) is None
        B = m["B"][hf]
        if B[0] in ("hc", "hp"): assert B in k.vm and k._need(k.vm, k.vm_done, B) is None, (g, B)
        if B[0] == "h":
            regs = range(vH + 4*B[1], vH + 4*B[1] + 4)
            for r in regs: force(hdone[r], g - 1)
            if any(hdone[r].done >= g - 2 for r in regs): e("s_nop 1")
        if m["first"] and hf == 0:
            for own, lst in owner_ops.items():
                if own == m["own"] or own not in firstseen: continue
                if m["Dt"] in firstseen[own]:
                    for o in lst: force(o, g - 1)
                    if any(o.done >= g - 2 for o in lst): e("s_nop 1")
            firstseen.setdefault(m["own"], set()).add(m["Dt"])
        fr = aF + 4*(n % NF); Dr = R(m["D"][hf], 4)
        e(f"{MF16} {Dr}, a[{fr}:{fr+3}], {breg(B)}, {'0' if m['first'] else Dr}")
        if g == 287: stamp_mid(k, stamps, 1)
        if g == 1295: stamp_mid(k, stamps, 2)
        slots = 2; free_first = True
        E = 36*(c+1) - 1
        if hf == 1:
            if c + 1 < NCH and n == E - P + X:
                while k.vm.count(("dma", c+1)) < 9: emit_item(vq.pop(0)); forced += 1
                barrier(c + 1); bar_done = c + 1; free_first = False; slots -= 1
                if c + 1 + dist < NCH: vq += dma_items(c + 1 + dist)
            if n + 1 < NFR:
                nb = mf[n+1]["B"][1]
                vmt = nb if nb[0] in ("hc", "hp") else None
                if vmt is not None and vmt not in k.vm:
                    if vmt[0] == "hc":
                        while vmt not in k.vm: emit_item(vq.pop(0)); forced += 1
                    else: force([o for o in ops if o.tag == vmt and o.kind == "m"][0], g)
                need_lg = k._need(k.lg, k.lg_done, ("f", n+1)) is not None
                tgt = ("f", min(n + wev, rh//2 - 1)) if need_lg else None
                if k.wait(lg=tgt, vm=vmt):
                    if not free_first: slots -= 1
                    free_first = False
        if free_first:
            if vq and vq[0][0] == "s": emit_item(vq.pop(0))
            else:
                o = take(("s", "vmwait", "chk"), g)
                if o: emit_op(o)
                elif defer and len(defer[0]) == 1 and defer[0][0].startswith("s_"): e(defer.pop(0)[0])
        def can_half(): return rh < NM and mf[rh//2]["c"] <= bar_done and rh <= g + 2*P + 1
        nrd = 0
        while can_half() and nrd < (2 if rh < g + 2*P else 1):
            emit_half(rh); rh += 1; slots -= 1; nrd += 1
        if slots > 0:
            inlead = c < 4
            nm_ = sum(1 for x in vq if x[0] == "m")
            if vq and vq[0][0] == "m" and vq[0][2] == "ss": go = True
            elif g < fast: go = True
            elif nm_ > 9 or inlead: go = g - last_vm[0] >= (lrate if inlead else 4)
            else: go = g - last_vm[0] >= dmar
            if vq and vq[0][0] == "m" and go:
                emit_item(vq.pop(0)); slots -= 1; last_vm[0] = g
            else:
                o = take(("m",), g)
                if o: emit_op(o); slots -= 1
        if defer and slots > 0:
            for x in defer.pop(0): e(x); slots -= 1
        rate = 0.0; cum = 0
        for b_, dl_ in dls:
            cum += sum((2 if o.kind == "x" else 1) for o in owner_ops[("g", b_)] if o.done is None)
            if cum: rate = max(rate, cum / max(dl_ - g, 1))
        credit = min(credit + rate*margin, 3.0)
        allow = max(slots, min(int(credit), 2 + (rate > 1.6)))
        used = 0
        xo = None
        if allow >= 2 or (allow >= 1 and (credit >= 1.0 or rate == 0)):
            xo = take(("x",), g)
            if xo: allow -= 2; used += 2; xo.done = None
        while allow > 0:
            o = take(("v",), g)
            if not o: break
            emit_op(o); allow -= 1; used += 1
        if xo: xo.done = g; emit_op(xo)
        credit = max(credit - used, -2.0)
        over += max(0, used - max(slots, 0))
    assert not vq
    tr("loopend")
    e("s_nop 7")
    g = NM + 10
    while pending:
        o = take(("v", "x", "s", "m", "vmwait", "chk"), g); g += 1
        if o: emit_op(o)
    stamp_mid(k, stamps, 3)
    tr("laststores")
    vDo = vH; vTp = vH + 24; vA0 = vH + 32
    def publish(db):
        k.wait(vm=("st", db)); k.vmem(red_pub(db), ("pub", db))
    def consume(db, reg):
        e(f"v_cmp_eq_u32 vcc, 0, v{reg}")
        ld = red_loads(db)
        e(ld[0][1])
        emit_check(f"r{db}", red_poll(db, vSpin))
        tr(f"tail-chk{db}")
        for kind, txt, tag in ld[1:]:
            if kind == "s": e(txt)
            else: k.vmem(txt, tag)
    def reduce_blk(db):
        Dr = R(vDo + 4*db, 4)
        k.wait(vm=("rl", db))
        for t in ((0, 1) if db < 4 else (0,)):
            for j in range(2):
                a = 8*(2*db+t) + 4*j
                e(f"{MF16} {Dr}, {R(vA0 + 4*t, 4)}, a[{a}:{a+3}], {Dr}")
    flagged = [db for db in comp if db not in sent]
    for db in flagged:
        if state[db] == "none": publish(db); state[db] = "pub"
    catch = []
    if nb:
        for db in flagged:
            if state[db] == "done":
                e(f"s_cmp_lg_u32 s{96+db}, s{sPR}")
                e(f"s_cbranch_scc1 L_{name}_cu{db}")
                k.label(f"L_{name}_cb{db}")
                catch.append(db)
    for db in flagged:
        if state[db] == "polled":
            k.wait(vm=("poll", f"r{db}")); tr("tail-pollw"); consume(db, pollreg[db]); state[db] = "late"
    rest = [db for db in flagged if state[db] == "pub"]
    for db in rest: k.vmem(red_poll(db, vTp + db), ("tp", db))
    def issue_loads(db, track=True):
        for kind, txt, tag in red_loads(db):
            if kind == "s" or not track: e(txt)
            else: k.vmem(txt, tag)
    for db in comp:
        if state[db] == "sent" and db != comp[-1]: issue_loads(db)
    vOo, vMo = vH + 40, vH + 41
    e(f"v_and_b32 v{vMo}, 3, v0")
    e(f"v_mul_u32_u24 v{vOo}, 73728, v{vMo}")
    e(f"v_bfe_u32 v{vMo}, v0, 2, 3")
    e(f"v_lshl_add_u32 v{vOo}, v{vMo}, 3, v{vOo}")
    e(f"v_lshrrev_b32 v{vTp+6}, 5, v0")
    e(f"v_lshl_add_u32 v{vMo}, v{vTp+6}, 30, v{vOo}")
    e(f"v_lshl_add_u32 v{vOo}, v{vTp+6}, 6, v{vOo}")
    e(f"v_and_b32 v{vTp+6}, 1, v0")
    e(f"v_lshlrev_b32 v{vTp+6}, 4, v{vTp+6}")
    e(f"v_mov_b32 v{vTp+7}, 0x3f80")
    e(f"v_lshlrev_b32 v{vTp+7}, v{vTp+6}, v{vTp+7}")
    e(f"v_bfe_u32 v{vTp+6}, v0, 1, 3")
    for r in range(8):
        e(f"v_cmp_eq_u32 vcc, {r}, v{vTp+6}")
        e("s_nop 1")
        e(f"v_cndmask_b32 v{vA0+r}, 0, v{vTp+7}, vcc")
    k.wait(vm="res")
    for j in range(5):
        for u in range(2):
            e(f"v_lshlrev_b32 v{vDo+4*j+2*u}, 16, v{vT+2*j+u}")
            e(f"v_and_b32 v{vDo+4*j+2*u+1}, 0xffff0000, v{vT+2*j+u}")
        for u in range(4): e(f"v_add_f32 v{vDo+4*j+u}, v{vDo+4*j+u}, v{vT+10}")
    e("s_nop 1")
    e(f"s_add_u32 s{sT0}, s{sOut}, s75")
    e(f"s_add_u32 s{sT1}, s{sOut}, s76")
    stored = set()
    def out_store(j):
        a = vDo + 4*j
        e(f"v_cvt_pk_bf16_f32 v{a}, v{a}, v{a+1}")
        e(f"v_cvt_pk_bf16_f32 v{a+1}, v{a+2}, v{a+3}")
        if j < 4: k.vmem(f"buffer_store_dwordx2 v[{a}:{a+1}], v{vOo}, s[{SO}:{SO+3}], s{sT0} offen offset:{128*j}{outf}", "out")
        else: k.vmem(f"buffer_store_dwordx2 v[{a}:{a+1}], v{vMo}, s[{SO}:{SO+3}], s{sT1} offen{outf}", "out")
        stored.add(j)
    dn = [db for db in comp if state[db] == "done"]
    for db in dn[:2]: reduce_blk(db)
    tr("tail-a")
    for db in rest:
        k.wait(vm=("tp", db)); consume(db, vTp + db)
    if comp[-1] in sent:
        k.wait(vm=("st", comp[-1]))
        tr("tail-ack")
        issue_loads(comp[-1])
    for db in dn[2:]: reduce_blk(db)
    for db in flagged:
        if state[db] in ("late", "pub"): reduce_blk(db)
    if early_out:
        e("s_nop 7")
        for db in flagged: out_store(db)
    vZ = vH + 44
    for db in [x for x in comp if x in sent]:
        Dz = R(vZ + 4*db, 4)
        k.wait(vm=("rl", db))
        e(f"s_mov_b32 s{sSpin}, {retry_max}")
        k.label(f"L_{name}_sr{db}")
        first = True
        for t in ((0, 1) if db < 4 else (0,)):
            for j in range(2):
                a = 8*(2*db+t) + 4*j
                e(f"{MF16} {Dz}, {R(vA0 + 4*t, 4)}, a[{a}:{a+3}], {'0' if first else Dz}"); first = False
        e(f"s_sub_u32 s{sSpin}, s{sSpin}, 1")
        e("s_nop 6")
        e(f"v_cmp_u_f32 vcc, v{vZ+4*db}, v{vZ+4*db+1}")
        e(f"v_cmp_u_f32 s[70:71], v{vZ+4*db+2}, v{vZ+4*db+3}")
        e("s_nop 0")
        e("s_or_b64 s[70:71], s[70:71], vcc")
        e(f"s_cbranch_scc1 L_{name}_sx{db}")
        k.label(f"L_{name}_sd{db}")
        tr(f"tail-sent{db}")
        for u in range(4): e(f"v_add_f32 v{vDo+4*db+u}, v{vDo+4*db+u}, v{vZ+4*db+u}")
        if early_out: out_store(db)
    e("s_nop 7")
    for j in range(5):
        if j not in stored: out_store(j)
    if trace:
        tr("end")
        e("s_waitcnt vmcnt(0)")
        tr("drained")
        e("s_lshl_b32 s58, s2, 2")
        e(f"s_add_u32 s58, s58, s{sW}")
        e("s_lshl_b32 s58, s58, 8")
        e(f"s_add_u32 s58, s58, {WS_END + 8*131072}")
        e(f"s_mov_b32 s{SW+2}, {WS_END + 12*131072}")
        e("v_lshlrev_b32 v252, 2, v0")
        e(f"buffer_store_dword v251, v252, {SR}, s58 offen")
        open("trace_labels.txt", "w").write("\n".join(k.tr))
    stamp_end(k, stamps, 66, kidx, sW, 4)
    k.label(f"L_{name}_end")
    e("s_endpgm")
    for ident, ptxt in spins:
        k.label(f"L_{name}_spin{ident}")
        e(f"s_mov_b32 s{sSpin}, {spin_max}")
        k.label(f"L_{name}_spinl{ident}")
        e(ptxt)
        e(f"s_sub_u32 s{sSpin}, s{sSpin}, 1")
        e("s_waitcnt vmcnt(0)")
        e(f"v_cmp_eq_u32 vcc, 0, v{vSpin}")
        e(f"s_cmp_eq_u32 s{sSpin}, 0")
        e(f"s_cbranch_scc1 L_{name}_ret{ident}")
        e(f"s_cbranch_vccnz L_{name}_spinl{ident}")
        e(f"s_branch L_{name}_ret{ident}")
    for db in catch:
        k.label(f"L_{name}_cu{db}")
        e(f"s_mov_b32 s{sSpin}, {spin_max}")
        k.label(f"L_{name}_cul{db}")
        e(red_poll(db, vSpin))
        e(f"s_sub_u32 s{sSpin}, s{sSpin}, 1")
        e("s_waitcnt vmcnt(0)")
        e(f"v_cmp_eq_u32 vcc, 0, v{vSpin}")
        e(f"s_cmp_eq_u32 s{sSpin}, 0")
        e(f"s_cbranch_scc1 L_{name}_cug{db}")
        e(f"s_cbranch_vccnz L_{name}_cul{db}")
        k.label(f"L_{name}_cug{db}")
        issue_loads(db, track=False)
        e("s_waitcnt vmcnt(0)")
        e(f"s_branch L_{name}_cb{db}")
    for db in sent:
        k.label(f"L_{name}_sx{db}")
        e(f"s_cmp_eq_u32 s{sSpin}, 0")
        e(f"s_cbranch_scc1 L_{name}_sd{db}")
        issue_loads(db, track=False)
        e("s_waitcnt vmcnt(0)")
        e(f"s_branch L_{name}_sr{db}")
    k.label(f"L_{name}_fin")
    k.info = (forced, nforced[0], over, dict(state))
    return k, (512, 102, 256), (256, 256, 4*SLOT + 12288)
```

```python
from dsl import *
from layout import *
from k123 import stamp_begin, stamp_mid, stamp_end, Tracer, emit_wprefetch, emit_touch_wg, MF32, R
import math
from k4b import emit_pack_job
DPP = "quad_perm:[1,0,3,2] row_mask:0xf bank_mask:0xf"


def pack_wg(k, name, sW, nw, id0, job0, njob, pk, stamps, kidx):
    e = k.e
    e("s_and_b32 s21, s2, 7")
    e(f"s_sub_u32 s22, s2, {id0}")
    e("s_lshr_b32 s22, s22, 3")
    e(f"s_mul_i32 s22, s22, {nw}")
    e(f"s_add_u32 s22, s22, s{sW}")
    e(f"s_cmp_ge_u32 s22, {njob}")
    e(f"s_cbranch_scc1 L_{name}_end")
    e(f"s_add_u32 s22, s22, {job0}")
    e(f"s_mul_i32 s23, s{sW}, 12288")
    pk(k, 21, 22, 23)
    stamp_end(k, stamps, 46, kidx, sW, 0)


def xt_load(k, s0):
    k.e(f"s_load_dwordx4 s[{s0}:{s0+3}], s[0:1], {KA_WG}")
    k.e(f"s_load_dwordx2 s[{s0+4}:{s0+5}], s[0:1], {KA_WD}")
def xt_prep(k, s0, sU, lane, va, spec):
    e = k.e
    tmp = va + len(spec)
    e(f"s_and_b32 s{s0+7}, s2, 7")
    for n_, (m_, lo, hi) in enumerate(spec):
        e(f"s_add_u32 s{s0+6}, s{sU}, {lo}")
        e(f"s_mul_i32 s{s0+20+n_}, s{s0+7}, {1152 if m_ != 'd' else 576*1152}")
        e(f"s_cmp_lt_u32 s{sU}, {hi - lo}")
        e(f"s_cselect_b32 s{s0+20+n_}, s{s0+20+n_}, 0x40000000")
        e(f"s_lshl_b32 s{s0+6}, s{s0+6}, 6")
        e(f"s_and_b32 s{s0+6}, s{s0+6}, 0x3fff")
        e(f"v_add_u32 v{va+n_}, s{s0+6}, {lane}")
        if m_ in "GU":
            e(f"v_lshrrev_b32 v{tmp}, 2, v{va+n_}")
            e(f"v_mul_u32_u24 v{va+n_}, 9216, v{tmp}")
            e(f"v_and_b32 v{tmp}, 1, {lane}")
            e(f"v_lshl_add_u32 v{va+n_}, v{tmp}, 7, v{va+n_}")
            e(f"v_bfe_u32 v{tmp}, {lane}, 1, 1")
            e(f"v_mul_u32_u24 v{tmp}, 640, v{tmp}")
            e(f"v_add_u32 v{va+n_}, v{va+n_}, v{tmp}")
        elif m_ != "d":
            e(f"v_mul_u32_u24 v{tmp}, 7282, v{va+n_}")
            e(f"v_lshrrev_b32 v{tmp}, 16, v{tmp}")
            e(f"v_mul_u32_u24 v{tmp}, {9216-1152}, v{tmp}")
            e(f"v_lshl_add_u32 v{va+n_}, v{va+n_}, 7, v{tmp}")
        else: e(f"v_lshlrev_b32 v{va+n_}, 7, v{va+n_}")
    for m_ in sorted(set(x[0] for x in spec)):
        i = "gud".index(m_.lower())
        k.srd(s0+8+4*i, s0+2*i, D*F*2)
def xt_fire(k, s0, va, vd, spec, fl=""):
    for n_, (m_, lo, hi) in enumerate(spec):
        i = "gud".index(m_.lower())
        k.e(f"buffer_load_dword v{vd}, v{va+n_}, s[{s0+8+4*i}:{s0+11+4*i}], s{s0+20+n_} offen{fl}")

def gen_k1(name="fwd_kernel", stamps=False, pf=True, wpf=None, trace=False, xf="", xt=None, pk=None, jobs=(0, 0), sf="", wf="", hc16=False, tlb=0):
    NMAIN, NWT = 192, 64
    NP = 8 * (-(-jobs[1] // 4))
    k = Kern(name); e = k.e
    tr = Tracer(k, trace, 199)
    sW, sS2, sCT, sT0, sT1, sT2, sT = 20, 21, 22, 23, 24, 25, 19
    e(f"s_cmp_ge_u32 s2, {NMAIN + NWT + NP}")
    e(f"s_cbranch_scc1 L_{name}_end")
    stamp_begin(k, stamps)
    e(f"s_load_dwordx2 s[4:5], s[0:1], {KA_X}")
    e(f"s_load_dwordx2 s[6:7], s[0:1], {KA_WS}")
    e("v_lshrrev_b32 v1, 6, v0")
    e("v_and_b32 v2, 63, v0")
    e(f"v_readfirstlane_b32 s{sW}, v1")
    if NP:
        e(f"s_cmp_ge_u32 s2, {NMAIN + NWT}")
        e(f"s_cbranch_scc1 L_{name}_pack")
    if pf:
        e("s_bfe_u32 s40, s2, 0x10003")
        e("s_lshl_b32 s40, s40, 2")
        e(f"s_add_u32 s40, s40, s{sW}")
        k.prefetch_code("L_text_begin", "L_text_end", 32, 3, 1, 1, lane="v2", part=(40, 8192))
    e(f"s_cmp_ge_u32 s2, {NMAIN}")
    e(f"s_cbranch_scc1 L_{name}_wt")
    e("v_mov_b32 v0, v2")
    if xt: xt_load(k, 52)
    e(f"s_lshr_b32 s{sT0}, s2, 3")
    e(f"s_mul_hi_u32 s{sT1}, s{sT0}, 0x55555556")
    e(f"s_mul_i32 s{sCT}, s{sT1}, 3")
    e(f"s_sub_u32 s{sCT}, s{sT0}, s{sCT}")
    e(f"s_and_b32 s{sS2}, s2, 7")
    e(f"s_lshl_b32 s{sS2}, s{sS2}, 3")
    e(f"s_add_u32 s{sS2}, s{sS2}, s{sT1}")
    e("v_lshrrev_b32 v4, 3, v0")
    e("v_lshrrev_b32 v5, 4, v0")
    e("v_and_b32 v6, 7, v0")
    e("v_xor_b32 v6, v6, v5")
    e("v_lshlrev_b32 v6, 4, v6")
    e("v_mul_u32_u24 v2, 73728, v4")
    e("v_add_u32 v2, v2, v6")
    e(f"s_and_b32 s26, s{sW}, 1")
    e("s_lshl_b32 s26, s26, 6")
    e("v_xor_b32 v2, s26, v2")
    e(f"s_mul_i32 s27, s{sW}, {8*73728}")
    e(f"s_mul_i32 s{sT2}, s{sS2}, 1152")
    e(f"s_add_u32 s27, s27, s{sT2}")
    e(f"s_lshl_b32 s26, s{sW}, 10")
    e("s_waitcnt lgkmcnt(0)")
    tr("karg")
    k.srd(8, 4, S*D*2)
    for i in range(9):
        e(f"s_add_u32 m0, s26, {4096*i - 128*i}")
        e("s_nop 0")
        k.vmem(f"buffer_load_dwordx4 v2, s[8:11], s27 offen offset:{128*i}{xf} lds", "x")
    tr("issued")
    if xt:
        e(f"s_lshl_b32 s51, s{sT0}, 2")
        e(f"s_add_u32 s51, s51, s{sW}")
        xt_prep(k, 52, 51, "v0", 224, xt[0])
        if xt[1] == "early": xt_fire(k, 52, 224, 1, xt[0])
    k.srd(12, 6, WS_END)
    e("v_lshrrev_b32 v5, 5, v0")
    e("v_and_b32 v35, 31, v0")
    e("v_mov_b32 v31, 0x3f803f80")
    e(f"s_mul_i32 s{sT1}, s{sW}, 18")
    e("v_mul_u32_u24 v10, 9, v5")
    e(f"v_add_u32 v10, s{sT1}, v10")
    e("v_bfe_u32 v13, v0, 1, 3")
    vSA = 180
    for i in range(9):
        e(f"v_add_u32 v11, {i}, v10")
        e("v_lshrrev_b32 v12, 3, v11")
        e("v_and_b32 v11, 7, v11")
        e("v_xor_b32 v11, v11, v13")
        e("v_lshlrev_b32 v11, 4, v11")
        e("v_lshl_add_u32 v11, v12, 12, v11")
        e(f"v_lshl_add_u32 v{vSA+i}, v35, 7, v11")
    e(f"s_lshl_b32 s{sT1}, s{sW}, 9")
    e(f"s_add_u32 s{sT1}, s{sT1}, 36864")
    e(f"v_lshl_add_u32 v34, v0, 3, s{sT1}")
    e(f"s_mul_i32 s{sT}, s{sCT}, 3")
    e(f"s_min_u32 s{sT1}, s{sCT}, 1")
    e(f"s_add_u32 s{sT}, s{sT}, s{sT1}")
    e(f"s_add_u32 s{sT}, s{sT}, s{sW}")
    e(f"s_mul_i32 s18, s{sT1}, s{sW}")
    e("s_cmp_eq_u32 s18, 3")
    e(f"s_cbranch_scc1 L_{name}_hgen")
    vE, vE2 = 40, 76
    e(f"s_lshl_b32 s17, s{sT}, 4")
    e("v_bfe_u32 v4, v0, 1, 4")
    e("v_add_u32 v4, s17, v4")
    e("v_and_b32 v6, 1, v0")
    e("v_cvt_f32_u32 v7, v4")
    e(f"v_mul_f32 v7, {fhex(1.0/288)}, v7")
    e("v_cvt_f32_u32 v8, v6")
    e("v_mul_f32 v8, 0x3e800000, v8")
    e("v_cvt_f32_u32 v9, v5")
    e("v_mul_f32 v10, 0x41000000, v9")
    e("v_fma_f32 v8, v10, v7, v8")
    e("v_and_b32 v30, 1, v4")
    e("v_mul_u32_u24 v30, 0x8000, v30")
    e("v_lshl_or_b32 v30, v30, 16, v30")
    for j in range(9):
        for t in range(8): e(f"v_fmamk_f32 v{10+t}, v7, {fhex(16*j+t)}, v8")
        for t in range(8): e(f"v_cos_f32 v{10+t}, v{10+t}")
        for t in range(4): e(f"v_cvt_pk_bf16_f32 v{vE+4*j+t}, v{10+2*t}, v{11+2*t}")
        for t in range(4): e(f"v_xor_b32 v{vE2+4*j+t}, v30, v{vE+4*j+t}")
        if xt and xt[1] == j: xt_fire(k, 52, 224, 1, xt[0])
    e("v_mov_b32 v10, 0")
    for r in range(36): e(f"v_dot2c_f32_bf16 v10, v{vE+r}, v31")
    e("v_mul_f32 v12, 0.5, v7")
    e("v_lshlrev_b32 v13, 31, v6")
    e("v_xor_b32 v12, v12, v13")
    e("v_cos_f32 v32, v12")
    e("v_sin_f32 v33, v12")
    e("v_mov_b32 v11, v10")
    e("v_and_b32 v13, 1, v4")
    e("v_or_b32 v13, v13, v5")
    e("v_permlane32_swap_b32 v10, v11")
    e("v_cmp_eq_u32 vcc, 0, v13")
    e("v_mov_b32 v113, 0")
    e("v_add_f32 v10, v10, v11")
    e("v_mul_f32 v10, -2.0, v10")
    e("v_cndmask_b32 v10, 0, v10, vcc")
    e("v_mov_b32 v114, 0")
    e("v_mov_b32 v115, 0")
    e("v_cvt_pk_bf16_f32 v112, v10, v113")
    for r in (117, 118, 119): e(f"v_mov_b32 v{r}, 0")
    vF = 120
    e("v_cvt_f32_u32 v10, v35")
    e(f"v_mul_f32 v11, {fhex(1.0/32)}, v10")
    e(f"v_cvt_f32_u32 v12, s{sS2}")
    e(f"v_mul_f32 v12, {fhex(1.0/64)}, v12")
    e("v_fma_f32 v12, v9, 4.0, v12")
    e("v_mul_f32 v12, v12, v11")
    for jj in range(2):
        for t in range(8): e(f"v_fmamk_f32 v{14+t}, v11, {fhex(16*jj + 8*(t >> 2) + (t & 3))}, v12")
        for t in range(8): e(f"v_cos_f32 v{22+t}, v{14+t}")
        for t in range(8): e(f"v_sin_f32 v{14+t}, -v{14+t}")
        for t in range(4): e(f"v_cvt_pk_bf16_f32 v{vF+4*jj+t}, v{22+2*t}, v{23+2*t}")
        for t in range(4): e(f"v_cvt_pk_bf16_f32 v{vF+8+4*jj+t}, v{14+2*t}, v{15+2*t}")
    e("v_bfe_u32 v10, v0, 1, 3")
    e("v_lshlrev_b32 v11, 1, v5")
    e("v_xor_b32 v10, v10, v11")
    e("v_lshlrev_b32 v10, 4, v10")
    e("v_lshl_add_u32 v36, v35, 7, v10")
    e("v_xor_b32 v37, 16, v36")
    e("v_xor_b32 v38, 64, v36")
    e("v_xor_b32 v39, 80, v36")
    e("s_mov_b32 s28, 0x05040100")
    e("s_mov_b32 s29, 0x07060302")
    e("v_lshlrev_b32 v26, 3, v0")
    e(f"s_lshl_b32 s{sT1}, s{sW}, 8")
    e(f"s_add_u32 s{sT1}, s{sT1}, {36864+2048}")
    e(f"v_lshl_add_u32 v27, v0, 2, s{sT1}")
    e(f"v_lshl_add_u32 v28, v5, 4, s{sT1}")
    e(f"s_lshr_b32 s{sT1}, s{sS2}, 3")
    e(f"s_lshl_b32 s{sT1}, s{sT1}, 10")
    e(f"s_bfe_u32 s{sT2}, s{sS2}, 0x10002")
    e(f"s_lshl_b32 s{sT2}, s{sT2}, 9")
    e(f"s_add_u32 s{sT1}, s{sT1}, s{sT2}")
    e(f"s_and_b32 s{sT2}, s{sS2}, 1")
    e(f"s_lshl_b32 s{sT2}, s{sT2}, 8")
    e(f"s_add_u32 s{sT1}, s{sT1}, s{sT2}")
    e(f"s_bfe_u32 s{sT2}, s{sS2}, 0x10001")
    e(f"s_lshl_b32 s{sT2}, s{sT2}, 7")
    e(f"s_add_u32 s{sT1}, s{sT1}, s{sT2}")
    e(f"v_lshl_add_u32 v10, v35, 2, s{sT1}")
    e("v_lshl_add_u32 v11, v5, 1, s17")
    e("v_lshlrev_b32 v11, 13, v11")
    e("v_add_u32 v24, v10, v11")
    e("v_subrev_u32 v24, 8192, v24")
    e("v_sub_u32 v25, v10, v11")
    e(f"v_add_u32 v25, {143*8192}, v25")
    k.srd_off(44, 6, WS_Y, 144*8192)
    k.srd_off(48, 6, WS_Y + 144*8192, 144*8192)
    k.label(f"L_{name}_nogen")
    tr("gen")
    stamp_mid(k, stamps, 0)
    e(f"s_waitcnt vmcnt({len(xt[0]) if xt and xt[1] != 'late' else 0})")
    if xt and xt[1] == "late": xt_fire(k, 52, 224, 1, xt[0])
    tr("xarr")
    e("s_barrier")
    tr("bar")
    stamp_mid(k, stamps, 1)
    for i in range(9): k.lds(f"ds_read_b128 {R(136+4*i,4)}, v{vSA+i}", ("s", i))
    vX = 172
    def xread(j):
        b = vX + 8*(j % 3)
        for x in (0, 1): k.lds(f"ds_read_b128 {R(b+4*x,4)}, v{36+2*(j&1)+x} offset:{(j>>1)*4096}", ("x", j))
    e("v_mov_b32 v10, 0"); e("v_mov_b32 v11, 0"); e("v_mov_b32 v12, 0"); e("v_mov_b32 v13, 0")
    e("s_cmp_eq_u32 s18, 3")
    e(f"s_cbranch_scc1 L_{name}_helper")
    xread(0); xread(1); xread(2)
    def stats_dot(waits=True):
        for i in range(9):
            if waits: k.wait(lg=("s", i))
            for r in range(4):
                e(f"v_dot2c_f32_bf16 v{10+2*(r&1)}, v{136+4*i+r}, v31")
                e(f"v_dot2c_f32_bf16 v{11+2*(r&1)}, v{136+4*i+r}, v{136+4*i+r}")
        e("s_nop 2")
        e("v_add_f32 v10, v10, v12")
        e("v_add_f32 v11, v11, v13")
    stats_dot()
    k.lds("ds_write_b64 v34, v[10:11]", "sw")
    tr("stats")
    A0, A1 = 136, 152
    vD = [8, 200]
    def perms(j):
        b = vX + 8*(j % 3); d = vD[j & 1]
        return [f"v_perm_b32 v{d+r}, v{b+2*r+1}, v{b+2*r}, s28" for r in range(4)] + [f"v_perm_b32 v{d+4+r}, v{b+2*r+1}, v{b+2*r}, s29" for r in range(4)]
    k.wait(lg=["sw", ("x", 0)])
    for p in perms(0): e(p)
    fill = {}
    fill[2] = lambda: e("s_barrier")
    def f3():
        for i in range(4): k.lds(f"ds_read_b64 {R(16+2*i,2)}, v26 offset:{36864+512*i}", "sp")
    fill[3] = f3
    def f7():
        k.wait(lg="sp")
        e("v_add_f32 v16, v16, v18"); e("v_add_f32 v17, v17, v19")
    fill[8] = f7
    fill[9] = lambda: (e("v_add_f32 v20, v20, v22"), e("v_add_f32 v21, v21, v23"))
    fill[10] = lambda: (e("v_add_f32 v16, v16, v20"), e("v_add_f32 v17, v17, v21"))
    fill[11] = lambda: (e("v_mov_b32 v18, v16"), e("v_mov_b32 v19, v17"))
    fill[12] = lambda: (e("v_permlane32_swap_b32 v16, v18"), e("v_permlane32_swap_b32 v17, v19"))
    fill[13] = lambda: (e("v_add_f32 v16, v16, v18"), e("v_add_f32 v17, v17, v19"))
    fill[14] = lambda: (e(f"v_mul_f32 v16, {fhex(1.0/576)}, v16"), e(f"v_mul_f32 v17, {fhex(1.0/576)}, v17"))
    fill[15] = lambda: (e("v_fma_f32 v17, -v16, v16, v17"), e("v_max_f32 v17, 0, v17"))
    fill[16] = lambda: (e(f"v_add_f32 v17, {fhex(1e-5)}, v17"), e("v_cvt_pk_bf16_f32 v116, v16, v117"))
    fill[17] = lambda: e("v_rsq_f32 v17, v17")
    fill[18] = lambda: e(f"v_mul_f32 v17, {fhex(2.0/(2048*576))}, v17")
    fill[19] = lambda: k.lds("ds_write_b32 v27, v17", "rw")
    vRr = 208
    def f22():
        for g in range(4): k.lds(f"ds_read_b128 {R(vRr+4*g,4)}, v28 offset:{32*g}", "rr")
    fill[22] = f22
    def f26():
        e(f"s_cmp_lg_u32 s{sT}, 0")
        e(f"s_cbranch_scc1 L_{name}_nomean")
        e(f"s_lshl_b32 s{sT1}, s{sS2}, 7")
        e(f"s_add_u32 s{sT1}, s{sT1}, {WS_MEAN}")
        e("v_lshlrev_b32 v19, 2, v35")
        e(f"buffer_store_dword v16, v19, s[12:15], s{sT1} offen")
        k.label(f"L_{name}_nomean")
    fill[26] = f26
    e("s_nop 0")
    for j in range(18):
        Bm = R((vE if j < 9 else vE2) + 4*(j % 9), 4)
        d = vD[j & 1]
        nx = perms(j+1) if j + 1 < 18 else []
        for p in (0, 1):
            acc = R(A1 if p else A0, 16)
            e(f"{MF32} {acc}, {R(d+4*p,4)}, {Bm}, {'0' if j == 0 else acc}")
            if p == 0 and nx: k.wait(lg=("x", j+1))
            if p == 0 and j + 3 < 18: xread(j + 3)
            for x in nx[4*p:4*p+4]: e(x)
            n = 2*j + p
            if n in fill: fill[n]()
    e(f"{MF32} {R(A1,16)}, {R(116,4)}, {R(112,4)}, {R(A1,16)}")
    e(f"{MF32} {R(A0,16)}, {R(116,4)}, {R(112,4)}, {R(A0,16)}")
    tr("mfma")
    stamp_mid(k, stamps, 2)
    if wpf: emit_wprefetch(k, sW, 4, "v0", 2, 1, 52, wpf, skip3=True)
    else: e("s_nop 10")
    k.wait(lg="rr")
    Bq, O1, O2 = 40, 56, 72
    for i in range(16): e(f"v_mul_f32 v{Bq+i}, v32, v{A1+i}")
    for i in range(16): e(f"v_fmac_f32_dpp v{Bq+i}, v{A1+i}, v33 {DPP}")
    for i in range(16): e(f"v_mul_f32 v{A0+i}, v{A0+i}, v{vRr+i}")
    for i in range(16): e(f"v_fma_f32 v{O1+i}, v{Bq+i}, v{vRr+i}, v{A0+i}")
    for i in range(8): e(f"v_cvt_pk_bf16_f32 v{88+i}, v{O1+2*i}, v{O1+2*i+1}")
    P1, Q1, P2, Q2 = 172, 152, 224, 240
    w2 = [f"v_fma_f32 v{O2+i}, -v{Bq+i}, v{vRr+i}, v{A0+i}" for i in range(16)] + [f"v_cvt_pk_bf16_f32 v{96+i}, v{O2+2*i}, v{O2+2*i+1}" for i in range(8)]
    e(w2.pop(0)); e(w2.pop(0))
    for (Dd, a, f, first) in [(P1, 88, vF, 1), (Q1, 88, vF+8, 1), (P1, 92, vF+4, 0), (Q1, 92, vF+12, 0)]:
        e(f"{MF32} {R(Dd,16)}, {R(a,4)}, {R(f,4)}, {'0' if first else R(Dd,16)}")
        for _ in range(6):
            if w2: e(w2.pop(0))
    e("s_nop 1")
    tr("comb")
    c1 = []
    for i in range(0, 16, 2):
        c1.append(f"v_sub_f32 v{O1+i}, v{P1+i}, v{Q1+i+1}")
        c1.append(f"v_add_f32 v{O1+i+1}, v{Q1+i}, v{P1+i+1}")
    c1 += [f"v_cvt_pk_bf16_f32 v{88+i}, v{O1+2*i}, v{O1+2*i+1}" for i in range(8)]
    adr = [f"v_add_u32 v{8+i}, {(4*(i>>1)+(i&1))*8192}, v24" for i in range(8)] + [f"v_subrev_u32 v{200+i}, {(4*(i>>1)+(i&1))*8192}, v25" for i in range(8)]
    for n_, (Dd, a, f, first) in enumerate([(P2, 96, vF, 1), (Q2, 96, vF+8, 1), (P2, 100, vF+4, 0), (Q2, 100, vF+12, 0)]):
        e(f"{MF32} {R(Dd,16)}, {R(a,4)}, {R(f,4)}, {'0' if first else R(Dd,16)}")
        src = adr if n_ < 3 else c1
        for _ in range(6):
            if src: e(src.pop(0))
    assert not adr
    for x in c1: e(x)
    for i in range(8): k.vmem(f"buffer_store_dword v{88+i}, v{8+i}, s[44:47], 0 offen{sf}", "st")
    for i in range(0, 16, 2):
        e(f"v_add_f32 v{O2+i}, v{P2+i}, v{Q2+i+1}")
        e(f"v_sub_f32 v{O2+i+1}, v{Q2+i}, v{P2+i+1}")
    for i in range(8): e(f"v_cvt_pk_bf16_f32 v{96+i}, v{O2+2*i}, v{O2+2*i+1}")
    for i in range(8): k.vmem(f"buffer_store_dword v{96+i}, v{200+i}, s[48:51], 0 offen{sf}", "st")
    tr("stored")
    tr.dump(6, sW, 198)
    stamp_end(k, stamps, 6, 0, sW, 3)
    e("s_endpgm")
    k.label(f"L_{name}_hgen")
    if xt and isinstance(xt[1], int):
        e("s_waitcnt vmcnt(0)")
        xt_fire(k, 52, 224, 1, xt[0])
    e(f"s_branch L_{name}_nogen")
    k.label(f"L_{name}_helper")
    e("s_waitcnt lgkmcnt(0)")
    stats_dot(False)
    e("ds_write_b64 v34, v[10:11]")
    e("s_waitcnt lgkmcnt(0)")
    e("s_barrier")
    e("s_endpgm")
    k.label(f"L_{name}_wt")
    e(f"s_load_dwordx4 s[28:31], s[0:1], {KA_WR}")
    e(f"s_sub_u32 s{sT0}, s2, {NMAIN}")
    e("v_lshlrev_b32 v3, 4, v0")
    e(f"s_mul_i32 s{sT1}, s{sT0}, 18496")
    e(f"s_lshl_b32 s{sT2}, s{sW}, 10")
    e("s_waitcnt lgkmcnt(0)")
    k.srd(8, 28, 2048*289*2)
    k.srd(12, 30, 2048*289*2)
    k.srd(16, 6, WS_END)
    for r in range(5):
        for mat in range(2):
            e(f"s_add_u32 m0, s{sT2}, {mat*20480 + r*4096}")
            e(f"s_add_u32 s26, s{sT1}, {r*4096}")
            e(f"buffer_load_dwordx4 v3, s[{8+4*mat}:{11+4*mat}], s26 offen{xf} lds")
    if tlb:
        e(f"s_load_dwordx2 s[34:35], s[0:1], {KA_OUT}")
        e(f"s_lshr_b32 s27, s{sT0}, 3")
        e("s_lshl_b32 s27, s27, 8")
        e("v_add_u32 v12, s27, v0")
        e(f"v_mul_u32_u24 v12, {tlb // 16}, v12")
        e("v_lshlrev_b32 v12, 4, v12")
        e("buffer_load_dword v100, v12, s[16:19], 0 offen")
        e("s_waitcnt lgkmcnt(0)")
        k.srd(36, 34, S*D*2)
        e("buffer_load_dword v101, v12, s[36:39], 0 offen")
    e("v_mov_b32 v8, 0"); e("v_mov_b32 v9, 0"); e("v_mov_b32 v10, 0"); e("v_mov_b32 v11, 0")
    e(f"s_mul_i32 s26, s{sT0}, {FLAG_STRIDE}")
    e(f"s_add_u32 s26, s26, {WS_FLAG}")
    for r in range(3):
        e(f"buffer_store_dwordx4 v[8:11], v3, s[16:19], s26 offen{wf}")
        e("s_add_u32 s26, s26, 4096")
    e(f"s_cmp_eq_u32 s{sW}, 0")
    e("s_cselect_b32 s26, s26, 0x40000000")
    e(f"buffer_store_dwordx4 v[8:11], v3, s[16:19], s26 offen{wf}")
    e(f"s_lshl_b32 s27, s{sT0}, 2")
    e(f"s_add_u32 s27, s27, s{sW}")
    e("s_cmp_ge_u32 s27, 162")
    e(f"s_cbranch_scc1 L_{name}_nog")
    e("s_mul_hi_u32 s28, s27, 0x1c71c71d")
    e("s_mul_i32 s29, s28, 9")
    e("s_sub_u32 s29, s27, s29")
    e("s_and_b32 s30, s28, 1")
    e("s_lshr_b32 s28, s28, 1")
    if hc16:
        e("v_and_b32 v12, 7, v2")
        e("v_bfe_u32 v13, v2, 3, 1")
        e("v_lshl_add_u32 v12, v13, 4, v12")
        e("v_bfe_u32 v13, v2, 4, 1")
        e("v_lshl_add_u32 v12, v13, 3, v12")
    else:
        e("v_and_b32 v12, 0x13, v2")
        e("v_bfe_u32 v13, v2, 2, 1")
        e("v_lshl_add_u32 v12, v13, 3, v12")
        e("v_bfe_u32 v13, v2, 3, 1")
        e("v_lshl_add_u32 v12, v13, 2, v12")
    e("s_lshl_b32 s28, s28, 5")
    e("v_add_u32 v12, s28, v12")
    e("v_cvt_f32_u32 v12, v12")
    e("v_lshrrev_b32 v13, 5, v2")
    e("s_lshl_b32 s29, s29, 4")
    e("s_add_u32 s29, s29, s30")
    e("s_add_u32 s29, s29, 1")
    e("v_lshl_add_u32 v13, v13, 3, s29")
    e("v_cvt_f32_u32 v13, v13")
    for t in range(4):
        e(f"v_add_f32 v{14+t}, {fhex(2*t)}, v13")
        e(f"v_mul_f32 v{14+t}, v{14+t}, v12")
        e(f"v_mul_f32 v{14+t}, {fhex(1.0/576)}, v{14+t}")
    for t in range(4): e(f"v_cos_f32 v{18+t}, v{14+t}")
    for t in range(4): e(f"v_sin_f32 v{14+t}, v{14+t}")
    e("v_lshlrev_b32 v13, 4, v2")
    for t in range(4): e(f"v_cvt_pk_bf16_f32 v{24+t}, v{18+t}, v{14+t}")
    e("s_lshl_b32 s27, s27, 10")
    e(f"s_add_u32 s27, s27, {WS_G}")
    e(f"buffer_store_dwordx4 v[24:27], v13, s[16:19], s27 offen{wf}")
    k.label(f"L_{name}_nog")
    e("v_and_b32 v3, 31, v0")
    e("v_lshrrev_b32 v4, 5, v0")
    e("v_mul_u32_u24 v5, 578, v3")
    e("v_lshl_add_u32 v5, v4, 1, v5")
    e("v_lshlrev_b32 v6, 2, v3")
    e("v_lshl_add_u32 v6, v4, 13, v6")
    e(f"s_lshl_b32 s{sT1}, s{sT0}, 7")
    e(f"s_add_u32 s{sT1}, s{sT1}, {WS_WT}")
    e("s_waitcnt vmcnt(0)")
    e("s_barrier")
    for part in range(6):
        for i in range(6*part, 6*part+6):
            e(f"ds_read_u16 v{30+i}, v5 offset:{2+16*i}")
            e(f"ds_read_u16 v{70+i}, v5 offset:{20480+2+16*i}")
        if part > 0:
            e("s_waitcnt lgkmcnt(12)")
            for i in range(6*part-6, 6*part):
                e(f"v_lshl_or_b32 v{30+i}, v{70+i}, 16, v{30+i}")
                e(f"s_add_u32 s26, s{sT1}, {8*8192*i}")
                e(f"buffer_store_dword v{30+i}, v6, s[16:19], s26 offen{wf}")
    e("s_waitcnt lgkmcnt(0)")
    for i in range(30, 36):
        e(f"v_lshl_or_b32 v{30+i}, v{70+i}, 16, v{30+i}")
        e(f"s_add_u32 s26, s{sT1}, {8*8192*i}")
        e(f"buffer_store_dword v{30+i}, v6, s[16:19], s26 offen{wf}")
    stamp_end(k, stamps, 6, 0, sW, 0)
    if NP:
        e("s_endpgm")
        k.label(f"L_{name}_pack")
        e("v_mov_b32 v0, v2")
        pack_wg(k, name, sW, 4, NMAIN + NWT, jobs[0], jobs[1], pk, stamps, 0)
    k.label(f"L_{name}_end")
    e("s_endpgm")
    return k, (256, 100, 256), (NMAIN + NWT + NP, 256, 49152 if NP else 40960)

def gen_k1b(name="fwd_kernel", stamps=False, pf=True, wpf=None, trace=False, xf="", xt=None, pk=None, jobs=(0, 0), sf="", wf="", hc16=False, tlb=0, pflate=True):
    NMAIN, NWT = 192, 64
    NP = 8 * (-(-jobs[1] // 4))
    k = Kern(name); e = k.e
    tr = Tracer(k, trace, 199)
    sW, sS2, sCT, sT0, sT1, sT2, sT = 20, 21, 22, 23, 24, 25, 19
    e(f"s_cmp_ge_u32 s2, {NMAIN + NWT + NP}")
    e(f"s_cbranch_scc1 L_{name}_end")
    stamp_begin(k, stamps)
    e(f"s_load_dwordx2 s[4:5], s[0:1], {KA_X}")
    e(f"s_load_dwordx2 s[6:7], s[0:1], {KA_WS}")
    e("v_lshrrev_b32 v1, 6, v0")
    e("v_and_b32 v2, 63, v0")
    e(f"v_readfirstlane_b32 s{sW}, v1")
    if NP:
        e(f"s_cmp_ge_u32 s2, {NMAIN + NWT}")
        e(f"s_cbranch_scc1 L_{name}_pack")
    if pf and not pflate:
        e("s_bfe_u32 s40, s2, 0x10003")
        e("s_lshl_b32 s40, s40, 2")
        e(f"s_add_u32 s40, s40, s{sW}")
        k.prefetch_code("L_text_begin", "L_text_end", 32, 3, 1, 1, lane="v2", part=(40, 8192))
    e(f"s_cmp_ge_u32 s2, {NMAIN}")
    e(f"s_cbranch_scc1 L_{name}_wt")
    e("v_mov_b32 v0, v2")
    if xt: xt_load(k, 52)
    e(f"s_lshr_b32 s{sT0}, s2, 3")
    e(f"s_mul_hi_u32 s{sT1}, s{sT0}, 0x55555556")
    e(f"s_mul_i32 s{sCT}, s{sT1}, 3")
    e(f"s_sub_u32 s{sCT}, s{sT0}, s{sCT}")
    e(f"s_and_b32 s{sS2}, s2, 7")
    e(f"s_lshl_b32 s{sS2}, s{sS2}, 3")
    e(f"s_add_u32 s{sS2}, s{sS2}, s{sT1}")
    e("v_lshrrev_b32 v4, 3, v0")
    e("v_lshrrev_b32 v5, 4, v0")
    e("v_and_b32 v6, 7, v0")
    e("v_xor_b32 v6, v6, v5")
    e("v_lshlrev_b32 v6, 4, v6")
    e("v_mul_u32_u24 v2, 73728, v4")
    e("v_add_u32 v2, v2, v6")
    e(f"s_and_b32 s26, s{sW}, 1")
    e("s_lshl_b32 s26, s26, 6")
    e("v_xor_b32 v2, s26, v2")
    e(f"s_mul_i32 s27, s{sW}, {8*73728}")
    e(f"s_mul_i32 s{sT2}, s{sS2}, 1152")
    e(f"s_add_u32 s27, s27, s{sT2}")
    e(f"s_lshl_b32 s26, s{sW}, 10")
    e("s_waitcnt lgkmcnt(0)")
    tr("karg")
    k.srd(8, 4, S*D*2)
    e("s_mov_b32 m0, s26")
    e("s_nop 0")
    for i in range(9):
        k.vmem(f"buffer_load_dwordx4 v2, s[8:11], s27 offen offset:{128*i}{xf} lds", "x")
        if i < 8:
            e(f"s_add_u32 m0, m0, {4096 - 128}")
            e("s_nop 0")
    tr("issued")
    vE, vE2 = 40, 76
    e(f"s_mul_i32 s{sT}, s{sCT}, 3")
    e(f"s_min_u32 s{sT1}, s{sCT}, 1")
    e(f"s_add_u32 s{sT}, s{sT}, s{sT1}")
    e(f"s_add_u32 s{sT}, s{sT}, s{sW}")
    e(f"s_mul_i32 s18, s{sT1}, s{sW}")
    e("s_getpc_b64 s[40:41]")
    k.label(f"L_{name}_tpc")
    e(f"s_add_u32 s40, s40, L_etab-L_{name}_tpc")
    e("s_addc_u32 s41, s41, 0")
    e("s_and_b32 s41, s41, 0xffff")
    e("s_mov_b32 s42, 102400")
    e("s_mov_b32 s43, 0x20000")
    e(f"s_mul_i32 s16, s{sT}, 10240")
    e("s_cmp_eq_u32 s18, 3")
    e("s_cselect_b32 s16, 0x40000000, s16")
    e("v_lshlrev_b32 v34, 4, v0")
    for j in range(10):
        if j and j % 4 == 0: e("s_add_u32 s16, s16, 4096")
        k.vmem(f"buffer_load_dwordx4 {R(vE+4*j if j < 9 else 28, 4)}, v34, s[40:43], s16 offen offset:{1024*(j%4)}", "tab")
    tr("tissued")
    if xt:
        e(f"s_lshl_b32 s51, s{sT0}, 2")
        e(f"s_add_u32 s51, s51, s{sW}")
        xt_prep(k, 52, 51, "v0", 224, xt[0])
        if xt[1] == "early": xt_fire(k, 52, 224, 1, xt[0])
    k.srd(12, 6, WS_END)
    e("v_lshrrev_b32 v5, 5, v0")
    e("v_and_b32 v35, 31, v0")
    e("v_add_u32 v34, s26, v34")
    e("s_cmp_eq_u32 s18, 3")
    e(f"s_cbranch_scc1 L_{name}_nogen")
    e(f"s_lshl_b32 s17, s{sT}, 4")
    e("v_cvt_f32_u32 v9, v5")
    for r in (113, 114, 115, 117, 118, 119): e(f"v_mov_b32 v{r}, 0")
    vF = 120
    e("v_cvt_f32_u32 v10, v35")
    e(f"v_mul_f32 v11, {fhex(1.0/32)}, v10")
    e(f"v_cvt_f32_u32 v12, s{sS2}")
    e(f"v_mul_f32 v12, {fhex(1.0/64)}, v12")
    e("v_fma_f32 v12, v9, 4.0, v12")
    e("v_mul_f32 v12, v12, v11")
    for jj in range(2):
        for t in range(8): e(f"v_fmamk_f32 v{136+t}, v11, {fhex(16*jj + 8*(t >> 2) + (t & 3))}, v12")
        for t in range(8): e(f"v_cos_f32 v{144+t}, v{136+t}")
        for t in range(8): e(f"v_sin_f32 v{136+t}, -v{136+t}")
        for t in range(4): e(f"v_cvt_pk_bf16_f32 v{vF+4*jj+t}, v{144+2*t}, v{145+2*t}")
        for t in range(4): e(f"v_cvt_pk_bf16_f32 v{vF+8+4*jj+t}, v{136+2*t}, v{137+2*t}")
    e("v_bfe_u32 v10, v0, 1, 3")
    e("v_lshlrev_b32 v11, 1, v5")
    e("v_xor_b32 v10, v10, v11")
    e("v_lshlrev_b32 v10, 4, v10")
    e("v_lshl_add_u32 v36, v35, 7, v10")
    e("v_xor_b32 v37, 16, v36")
    e("v_xor_b32 v38, 64, v36")
    e("v_xor_b32 v39, 80, v36")
    e("s_mov_b32 s28, 0x05040100")
    e("s_mov_b32 s29, 0x07060302")
    e("v_lshlrev_b32 v26, 4, v5")
    e("v_lshlrev_b32 v27, 2, v35")
    e(f"s_lshr_b32 s{sT1}, s{sS2}, 3")
    e(f"s_lshl_b32 s{sT1}, s{sT1}, 10")
    e(f"s_bfe_u32 s{sT2}, s{sS2}, 0x10002")
    e(f"s_lshl_b32 s{sT2}, s{sT2}, 9")
    e(f"s_add_u32 s{sT1}, s{sT1}, s{sT2}")
    e(f"s_and_b32 s{sT2}, s{sS2}, 1")
    e(f"s_lshl_b32 s{sT2}, s{sT2}, 8")
    e(f"s_add_u32 s{sT1}, s{sT1}, s{sT2}")
    e(f"s_bfe_u32 s{sT2}, s{sS2}, 0x10001")
    e(f"s_lshl_b32 s{sT2}, s{sT2}, 7")
    e(f"s_add_u32 s{sT1}, s{sT1}, s{sT2}")
    e(f"v_lshl_add_u32 v10, v35, 2, s{sT1}")
    e("v_lshl_add_u32 v11, v5, 1, s17")
    e("v_lshlrev_b32 v11, 13, v11")
    e("v_add_u32 v24, v10, v11")
    e("v_subrev_u32 v24, 8192, v24")
    e("v_sub_u32 v25, v10, v11")
    e(f"v_add_u32 v25, {143*8192}, v25")
    k.srd_off(44, 6, WS_Y, 144*8192)
    k.srd_off(48, 6, WS_Y + 144*8192, 144*8192)
    ntouch = len(xt[0]) if xt else 0
    k.label(f"L_{name}_nogen")
    tr("gen")
    stamp_mid(k, stamps, 0)
    e(f"s_waitcnt vmcnt({10 + (ntouch if xt and xt[1] == 'early' else 0)})")
    if xt and xt[1] != "early": xt_fire(k, 52, 224, 1, xt[0])
    tr("xarr")
    for i in range(9): k.lds(f"ds_read_b128 {R(136+4*i,4)}, v34 offset:{4096*i}", ("s", i))
    e("v_mov_b32 v10, 0"); e("v_mov_b32 v11, 0"); e("v_mov_b32 v12, 0"); e("v_mov_b32 v13, 0")
    e("v_mov_b32 v14, 0x3f803f80")
    e("v_lshrrev_b32 v15, 3, v0")
    e("v_lshlrev_b32 v15, 2, v15")
    e(f"s_lshl_b32 s{sT1}, s{sW}, 5")
    e(f"v_add_u32 v15, s{sT1}, v15")
    for i in range(9):
        k.wait(lg=("s", i))
        for r in range(4):
            e(f"v_dot2c_f32_bf16 v{10+2*(r&1)}, v{136+4*i+r}, v14")
            e(f"v_dot2c_f32_bf16 v{11+2*(r&1)}, v{136+4*i+r}, v{136+4*i+r}")
    e("s_nop 2")
    e("v_add_f32 v10, v10, v12")
    e("v_add_f32 v11, v11, v13")
    for ctl in ("quad_perm:[1,0,3,2]", "quad_perm:[2,3,0,1]", "row_half_mirror"):
        e("s_nop 0")
        e(f"v_add_f32_dpp v10, v10, v10 {ctl} row_mask:0xf bank_mask:0xf")
        e(f"v_add_f32_dpp v11, v11, v11 {ctl} row_mask:0xf bank_mask:0xf")
    e(f"v_mul_f32 v10, {fhex(1.0/576)}, v10")
    e(f"v_mul_f32 v11, {fhex(1.0/576)}, v11")
    e("v_fma_f32 v11, -v10, v10, v11")
    e("v_max_f32 v11, 0, v11")
    e(f"v_add_f32 v11, {fhex(1e-5)}, v11")
    e("v_rsq_f32 v11, v11")
    e("ds_write_b32 v15, v10 offset:36992")
    e(f"v_mul_f32 v11, {fhex(2.0/(2048*576))}, v11")
    e("ds_write_b32 v15, v11 offset:36864")
    e("s_waitcnt lgkmcnt(0)")
    k.lg_done = len(k.lg)
    tr("stats")
    e("s_barrier")
    e("s_cmp_eq_u32 s18, 3")
    e(f"s_cbranch_scc1 L_{name}_end")
    tr("bar")
    stamp_mid(k, stamps, 1)
    vX = 172
    def xread(j):
        b = vX + 8*(j % 3)
        for x in (0, 1): k.lds(f"ds_read_b128 {R(b+4*x,4)}, v{36+2*(j&1)+x} offset:{(j>>1)*4096}", ("x", j))
    xread(0); xread(1); xread(2)
    vRr = 208
    k.lds("ds_read_b32 v16, v27 offset:36992", "mn")
    for g in range(4): k.lds(f"ds_read_b128 {R(vRr+4*g,4)}, v26 offset:{36864+32*g}", "rr")
    A0, A1 = 136, 152
    vD = [8, 200]
    def perms(j):
        b = vX + 8*(j % 3); d = vD[j & 1]
        return [f"v_perm_b32 v{d+r}, v{b+2*r+1}, v{b+2*r}, s28" for r in range(4)] + [f"v_perm_b32 v{d+4+r}, v{b+2*r+1}, v{b+2*r}, s29" for r in range(4)]
    e(f"s_waitcnt vmcnt({ntouch})")
    tr("tab")
    xq = [f"v_xor_b32 v{vE2+r}, v31, v{vE+r}" for r in range(36)] + ["v_mov_b32 v112, v28"]
    for _ in range(12): e(xq.pop(0))
    k.wait(lg=("x", 0))
    for p in perms(0): e(p)
    e("s_nop 0")
    for j in range(18):
        Bm = R((vE if j < 9 else vE2) + 4*(j % 9), 4)
        d = vD[j & 1]
        nx = perms(j+1) if j + 1 < 18 else []
        for p in (0, 1):
            acc = R(A1 if p else A0, 16)
            e(f"{MF32} {acc}, {R(d+4*p,4)}, {Bm}, {'0' if j == 0 else acc}")
            if p == 0 and nx: k.wait(lg=("x", j+1))
            if j + 3 < 18:
                b = vX + 8*((j+3) % 3)
                k.lds(f"ds_read_b128 {R(b+4*p,4)}, v{36+2*((j+3)&1)+p} offset:{((j+3)>>1)*4096}", ("x", j+3))
            for x in nx[4*p:4*p+4]: e(x)
            if xq: e(xq.pop(0))
            if j == 16 and p == 1: e("v_cvt_pk_bf16_f32 v116, v16, v117")
            if j == 17 and p == 0:
                e(f"s_lshl_b32 s{sT1}, s{sS2}, 7")
                e(f"s_add_u32 s{sT1}, s{sT1}, {WS_MEAN}")
                e(f"s_cmp_eq_u32 s{sT}, 0")
                e(f"s_cselect_b32 s{sT1}, s{sT1}, 0x40000000")
                e(f"buffer_store_dword v16, v27, s[12:15], s{sT1} offen")
    e(f"{MF32} {R(A1,16)}, {R(116,4)}, {R(112,4)}, {R(A1,16)}")
    e(f"{MF32} {R(A0,16)}, {R(116,4)}, {R(112,4)}, {R(A0,16)}")
    tr("mfma")
    stamp_mid(k, stamps, 2)
    e("s_nop 10")
    k.wait(lg="rr")
    Bq, O1, O2 = 40, 56, 72
    for i in range(16): e(f"v_mul_f32 v{Bq+i}, v29, v{A1+i}")
    for i in range(16): e(f"v_fmac_f32_dpp v{Bq+i}, v{A1+i}, v30 {DPP}")
    for i in range(16): e(f"v_mul_f32 v{A0+i}, v{A0+i}, v{vRr+i}")
    for i in range(16): e(f"v_fma_f32 v{O1+i}, v{Bq+i}, v{vRr+i}, v{A0+i}")
    for i in range(8): e(f"v_cvt_pk_bf16_f32 v{88+i}, v{O1+2*i}, v{O1+2*i+1}")
    P1, Q1, P2, Q2 = 172, 152, 224, 240
    w2 = [f"v_fma_f32 v{O2+i}, -v{Bq+i}, v{vRr+i}, v{A0+i}" for i in range(16)] + [f"v_cvt_pk_bf16_f32 v{96+i}, v{O2+2*i}, v{O2+2*i+1}" for i in range(8)]
    e(w2.pop(0)); e(w2.pop(0))
    for (Dd, a, f, first) in [(P1, 88, vF, 1), (Q1, 88, vF+8, 1), (P1, 92, vF+4, 0), (Q1, 92, vF+12, 0)]:
        e(f"{MF32} {R(Dd,16)}, {R(a,4)}, {R(f,4)}, {'0' if first else R(Dd,16)}")
        for _ in range(6):
            if w2: e(w2.pop(0))
    e("s_nop 1")
    tr("comb")
    c1 = []
    for i in range(0, 16, 2):
        c1.append(f"v_sub_f32 v{O1+i}, v{P1+i}, v{Q1+i+1}")
        c1.append(f"v_add_f32 v{O1+i+1}, v{Q1+i}, v{P1+i+1}")
    c1 += [f"v_cvt_pk_bf16_f32 v{88+i}, v{O1+2*i}, v{O1+2*i+1}" for i in range(8)]
    adr = [f"v_add_u32 v{8+i}, {(4*(i>>1)+(i&1))*8192}, v24" for i in range(8)] + [f"v_subrev_u32 v{200+i}, {(4*(i>>1)+(i&1))*8192}, v25" for i in range(8)]
    for n_, (Dd, a, f, first) in enumerate([(P2, 96, vF, 1), (Q2, 96, vF+8, 1), (P2, 100, vF+4, 0), (Q2, 100, vF+12, 0)]):
        e(f"{MF32} {R(Dd,16)}, {R(a,4)}, {R(f,4)}, {'0' if first else R(Dd,16)}")
        src = adr if n_ < 3 else c1
        for _ in range(6):
            if src: e(src.pop(0))
    assert not adr
    for x in c1: e(x)
    for i in range(8): k.vmem(f"buffer_store_dword v{88+i}, v{8+i}, s[44:47], 0 offen{sf}", "st")
    for i in range(0, 16, 2):
        e(f"v_add_f32 v{O2+i}, v{P2+i}, v{Q2+i+1}")
        e(f"v_sub_f32 v{O2+i+1}, v{Q2+i}, v{P2+i+1}")
    for i in range(8): e(f"v_cvt_pk_bf16_f32 v{96+i}, v{O2+2*i}, v{O2+2*i+1}")
    for i in range(8): k.vmem(f"buffer_store_dword v{96+i}, v{200+i}, s[48:51], 0 offen{sf}", "st")
    tr("stored")
    tr.dump(6, sW, 198)
    stamp_end(k, stamps, 6, 0, sW, 3)
    e("s_endpgm")
    k.label(f"L_{name}_wt")
    e(f"s_load_dwordx4 s[28:31], s[0:1], {KA_WR}")
    if pf and pflate:
        e("s_bfe_u32 s40, s2, 0x10003")
        e("s_lshl_b32 s40, s40, 2")
        e(f"s_add_u32 s40, s40, s{sW}")
        k.prefetch_code("L_text_begin", "L_text_end", 32, 4, 1, 1, lane="v2", part=(40, 8192))
    e(f"s_sub_u32 s{sT0}, s2, {NMAIN}")
    e("v_lshlrev_b32 v3, 4, v0")
    e(f"s_mul_i32 s{sT1}, s{sT0}, 18496")
    e(f"s_lshl_b32 s{sT2}, s{sW}, 10")
    e("s_waitcnt lgkmcnt(0)")
    k.srd(8, 28, 2048*289*2)
    k.srd(12, 30, 2048*289*2)
    k.srd(16, 6, WS_END)
    for r in range(5):
        for mat in range(2):
            e(f"s_add_u32 m0, s{sT2}, {mat*20480 + r*4096}")
            e(f"s_add_u32 s26, s{sT1}, {r*4096}")
            e(f"buffer_load_dwordx4 v3, s[{8+4*mat}:{11+4*mat}], s26 offen{xf} lds")
    if tlb:
        e(f"s_load_dwordx2 s[34:35], s[0:1], {KA_OUT}")
        e(f"s_lshr_b32 s27, s{sT0}, 3")
        e("s_lshl_b32 s27, s27, 8")
        e("v_add_u32 v12, s27, v0")
        e(f"v_mul_u32_u24 v12, {tlb // 16}, v12")
        e("v_lshlrev_b32 v12, 4, v12")
        e("buffer_load_dword v100, v12, s[16:19], 0 offen")
        e("s_waitcnt lgkmcnt(0)")
        k.srd(36, 34, S*D*2)
        e("buffer_load_dword v101, v12, s[36:39], 0 offen")
    e("v_mov_b32 v8, 0"); e("v_mov_b32 v9, 0"); e("v_mov_b32 v10, 0"); e("v_mov_b32 v11, 0")
    e(f"s_mul_i32 s26, s{sT0}, {FLAG_STRIDE}")
    e(f"s_add_u32 s26, s26, {WS_FLAG}")
    for r in range(3):
        e(f"buffer_store_dwordx4 v[8:11], v3, s[16:19], s26 offen{wf}")
        e("s_add_u32 s26, s26, 4096")
    e(f"s_cmp_eq_u32 s{sW}, 0")
    e("s_cselect_b32 s26, s26, 0x40000000")
    e(f"buffer_store_dwordx4 v[8:11], v3, s[16:19], s26 offen{wf}")
    e(f"s_lshl_b32 s27, s{sT0}, 2")
    e(f"s_add_u32 s27, s27, s{sW}")
    e("s_cmp_ge_u32 s27, 162")
    e(f"s_cbranch_scc1 L_{name}_nog")
    e("s_mul_hi_u32 s28, s27, 0x1c71c71d")
    e("s_mul_i32 s29, s28, 9")
    e("s_sub_u32 s29, s27, s29")
    e("s_and_b32 s30, s28, 1")
    e("s_lshr_b32 s28, s28, 1")
    if hc16:
        e("v_and_b32 v12, 7, v2")
        e("v_bfe_u32 v13, v2, 3, 1")
        e("v_lshl_add_u32 v12, v13, 4, v12")
        e("v_bfe_u32 v13, v2, 4, 1")
        e("v_lshl_add_u32 v12, v13, 3, v12")
    else:
        e("v_and_b32 v12, 0x13, v2")
        e("v_bfe_u32 v13, v2, 2, 1")
        e("v_lshl_add_u32 v12, v13, 3, v12")
        e("v_bfe_u32 v13, v2, 3, 1")
        e("v_lshl_add_u32 v12, v13, 2, v12")
    e("s_lshl_b32 s28, s28, 5")
    e("v_add_u32 v12, s28, v12")
    e("v_cvt_f32_u32 v12, v12")
    e("v_lshrrev_b32 v13, 5, v2")
    e("s_lshl_b32 s29, s29, 4")
    e("s_add_u32 s29, s29, s30")
    e("s_add_u32 s29, s29, 1")
    e("v_lshl_add_u32 v13, v13, 3, s29")
    e("v_cvt_f32_u32 v13, v13")
    for t in range(4):
        e(f"v_add_f32 v{14+t}, {fhex(2*t)}, v13")
        e(f"v_mul_f32 v{14+t}, v{14+t}, v12")
        e(f"v_mul_f32 v{14+t}, {fhex(1.0/576)}, v{14+t}")
    for t in range(4): e(f"v_cos_f32 v{18+t}, v{14+t}")
    for t in range(4): e(f"v_sin_f32 v{14+t}, v{14+t}")
    e("v_lshlrev_b32 v13, 4, v2")
    for t in range(4): e(f"v_cvt_pk_bf16_f32 v{24+t}, v{18+t}, v{14+t}")
    e("s_lshl_b32 s27, s27, 10")
    e(f"s_add_u32 s27, s27, {WS_G}")
    e(f"buffer_store_dwordx4 v[24:27], v13, s[16:19], s27 offen{wf}")
    k.label(f"L_{name}_nog")
    e("v_and_b32 v3, 31, v0")
    e("v_lshrrev_b32 v4, 5, v0")
    e("v_mul_u32_u24 v5, 578, v3")
    e("v_lshl_add_u32 v5, v4, 1, v5")
    e("v_lshlrev_b32 v6, 2, v3")
    e("v_lshl_add_u32 v6, v4, 13, v6")
    e(f"s_lshl_b32 s{sT1}, s{sT0}, 7")
    e(f"s_add_u32 s{sT1}, s{sT1}, {WS_WT}")
    e("s_waitcnt vmcnt(0)")
    e("s_barrier")
    for part in range(6):
        for i in range(6*part, 6*part+6):
            e(f"ds_read_u16 v{30+i}, v5 offset:{2+16*i}")
            e(f"ds_read_u16 v{70+i}, v5 offset:{20480+2+16*i}")
        if part > 0:
            e("s_waitcnt lgkmcnt(12)")
            for i in range(6*part-6, 6*part):
                e(f"v_lshl_or_b32 v{30+i}, v{70+i}, 16, v{30+i}")
                e(f"s_add_u32 s26, s{sT1}, {8*8192*i}")
                e(f"buffer_store_dword v{30+i}, v6, s[16:19], s26 offen{wf}")
    e("s_waitcnt lgkmcnt(0)")
    for i in range(30, 36):
        e(f"v_lshl_or_b32 v{30+i}, v{70+i}, 16, v{30+i}")
        e(f"s_add_u32 s26, s{sT1}, {8*8192*i}")
        e(f"buffer_store_dword v{30+i}, v6, s[16:19], s26 offen{wf}")
    stamp_end(k, stamps, 6, 0, sW, 0)
    if NP:
        e("s_endpgm")
        k.label(f"L_{name}_pack")
        e("v_mov_b32 v0, v2")
        pack_wg(k, name, sW, 4, NMAIN + NWT, jobs[0], jobs[1], pk, stamps, 0)
    k.label(f"L_{name}_end")
    e("s_endpgm")
    return k, (256, 100, 256), (NMAIN + NWT + NP, 256, 49152 if NP else 40960)


def gen_k1c(name="fwd_kernel", stamps=False, pf=True, wpf=None, trace=False, xf="", xt=None, pk=None, jobs=(0, 0), sf="", wf="", hc16=False, tlb=0, pflate=False, nwt=64):
    NMAIN, NWT = 192, 64
    NP = 8 * (-(-jobs[1] // 4))
    k = Kern(name); e = k.e
    tr = Tracer(k, trace, 199)
    sW, sS2, sCT, sT0, sT1, sT2, sT = 20, 21, 22, 23, 24, 25, 19
    e(f"s_cmp_ge_u32 s2, {NMAIN + NWT + NP}")
    e(f"s_cbranch_scc1 L_{name}_end")
    stamp_begin(k, stamps)
    e(f"s_load_dwordx2 s[4:5], s[0:1], {KA_X}")
    e(f"s_load_dwordx2 s[6:7], s[0:1], {KA_WS}")
    e("v_lshrrev_b32 v1, 6, v0")
    e("v_and_b32 v2, 63, v0")
    e(f"v_readfirstlane_b32 s{sW}, v1")
    if NP:
        e(f"s_cmp_ge_u32 s2, {NMAIN + NWT}")
        e(f"s_cbranch_scc1 L_{name}_pack")
    if pf and not pflate:
        e("s_bfe_u32 s40, s2, 0x10003")
        e("s_lshl_b32 s40, s40, 2")
        e(f"s_add_u32 s40, s40, s{sW}")
        k.prefetch_code("L_text_begin", "L_text_end", 32, 3, 1, 1, lane="v2", part=(40, 8192))
    e(f"s_cmp_ge_u32 s2, {NMAIN}")
    e(f"s_cbranch_scc1 L_{name}_wt")
    e("v_mov_b32 v0, v2")
    if xt: xt_load(k, 52)
    e(f"s_lshr_b32 s{sT0}, s2, 3")
    e(f"s_mul_hi_u32 s{sT1}, s{sT0}, 0x55555556")
    e(f"s_mul_i32 s{sCT}, s{sT1}, 3")
    e(f"s_sub_u32 s{sCT}, s{sT0}, s{sCT}")
    e(f"s_and_b32 s{sS2}, s2, 7")
    e(f"s_lshl_b32 s{sS2}, s{sS2}, 3")
    e(f"s_add_u32 s{sS2}, s{sS2}, s{sT1}")
    e("v_lshrrev_b32 v4, 3, v0")
    e("v_lshrrev_b32 v5, 4, v0")
    e("v_and_b32 v6, 7, v0")
    e("v_xor_b32 v6, v6, v5")
    e("v_lshlrev_b32 v6, 4, v6")
    e("v_mul_u32_u24 v2, 73728, v4")
    e("v_add_u32 v2, v2, v6")
    e(f"s_and_b32 s26, s{sW}, 1")
    e("s_lshl_b32 s26, s26, 6")
    e("v_xor_b32 v2, s26, v2")
    e(f"s_mul_i32 s27, s{sW}, {8*73728}")
    e(f"s_mul_i32 s{sT2}, s{sS2}, 1152")
    e(f"s_add_u32 s27, s27, s{sT2}")
    e(f"s_lshl_b32 s26, s{sW}, 10")
    e("s_waitcnt lgkmcnt(0)")
    tr("karg")
    k.srd(8, 4, S*D*2)
    e("s_mov_b32 m0, s26")
    e("s_nop 0")
    for i in range(9):
        k.vmem(f"buffer_load_dwordx4 v2, s[8:11], s27 offen offset:{128*i}{xf} lds", "x")
        if i < 8:
            e(f"s_add_u32 m0, m0, {4096 - 128}")
            e("s_nop 0")
    tr("issued")
    vE, vE2 = 40, 76
    e(f"s_mul_i32 s{sT}, s{sCT}, 3")
    e(f"s_min_u32 s{sT1}, s{sCT}, 1")
    e(f"s_add_u32 s{sT}, s{sT}, s{sT1}")
    e(f"s_add_u32 s{sT}, s{sT}, s{sW}")
    e(f"s_mul_i32 s18, s{sT1}, s{sW}")
    e("v_lshlrev_b32 v34, 4, v0")
    if xt:
        e(f"s_lshl_b32 s51, s{sT0}, 2")
        e(f"s_add_u32 s51, s51, s{sW}")
        xt_prep(k, 52, 51, "v0", 224, xt[0])
        if xt[1] == "early": xt_fire(k, 52, 224, 1, xt[0])
    k.srd(12, 6, WS_END)
    e("v_lshrrev_b32 v5, 5, v0")
    e("v_and_b32 v35, 31, v0")
    e("v_add_u32 v34, s26, v34")
    e("s_cmp_eq_u32 s18, 3")
    e(f"s_cbranch_scc1 L_{name}_hgen")
    e(f"s_lshl_b32 s17, s{sT}, 4")
    e("v_bfe_u32 v4, v0, 1, 4")
    e("v_add_u32 v4, s17, v4")
    e("v_and_b32 v6, 1, v0")
    e("v_cvt_f32_u32 v7, v4")
    e(f"v_mul_f32 v7, {fhex(1.0/288)}, v7")
    e("v_cvt_f32_u32 v8, v6")
    e("v_mul_f32 v8, 0x3e800000, v8")
    e("v_cvt_f32_u32 v9, v5")
    e("v_mul_f32 v10, 0x41000000, v9")
    e("v_fma_f32 v10, v10, v7, v8")
    for t in range(1, 8): e(f"v_add_f32 v{10+t}, v{9+t}, v7")
    e("v_mul_f32 v8, 0x41800000, v7")
    e("v_and_b32 v31, 1, v4")
    e("v_mul_u32_u24 v31, 0x8000, v31")
    e("v_lshl_or_b32 v31, v31, 16, v31")
    e("v_mov_b32 v28, 0")
    e("v_mov_b32 v3, 0x3f803f80")
    for j in range(9):
        for t in range(8): e(f"v_cos_f32 v{18+t}, v{10+t}")
        if j < 8:
            for t in range(8): e(f"v_add_f32 v{10+t}, v8, v{10+t}")
        for t in range(4): e(f"v_cvt_pk_bf16_f32 v{vE+4*j+t}, v{18+2*t}, v{19+2*t}")
        for t in range(4): e(f"v_dot2c_f32_bf16 v28, v{vE+4*j+t}, v3")
        if xt and xt[1] == j: xt_fire(k, 52, 224, 1, xt[0])
    e("v_mul_f32 v12, 0.5, v7")
    e("v_lshlrev_b32 v13, 31, v6")
    e("v_xor_b32 v12, v12, v13")
    e("v_cos_f32 v29, v12")
    e("v_sin_f32 v30, v12")
    e("v_mov_b32 v11, v28")
    e("v_and_b32 v13, 1, v4")
    e("v_or_b32 v13, v13, v5")
    e("v_permlane32_swap_b32 v28, v11")
    e("v_cmp_eq_u32 vcc, 0, v13")
    for r in (113, 114, 115, 117, 118, 119): e(f"v_mov_b32 v{r}, 0")
    e("v_add_f32 v28, v28, v11")
    e("v_mul_f32 v28, -2.0, v28")
    e("v_cndmask_b32 v28, 0, v28, vcc")
    e("v_cvt_pk_bf16_f32 v112, v28, v113")
    vF = 120
    e("v_cvt_f32_u32 v10, v35")
    e(f"v_mul_f32 v11, {fhex(1.0/32)}, v10")
    e(f"v_cvt_f32_u32 v12, s{sS2}")
    e(f"v_mul_f32 v12, {fhex(1.0/64)}, v12")
    e("v_fma_f32 v12, v9, 4.0, v12")
    e("v_mul_f32 v12, v12, v11")
    for jj in range(2):
        for t in range(8): e(f"v_fmamk_f32 v{136+t}, v11, {fhex(16*jj + 8*(t >> 2) + (t & 3))}, v12")
        for t in range(8): e(f"v_cos_f32 v{144+t}, v{136+t}")
        for t in range(8): e(f"v_sin_f32 v{136+t}, -v{136+t}")
        for t in range(4): e(f"v_cvt_pk_bf16_f32 v{vF+4*jj+t}, v{144+2*t}, v{145+2*t}")
        for t in range(4): e(f"v_cvt_pk_bf16_f32 v{vF+8+4*jj+t}, v{136+2*t}, v{137+2*t}")
    e("v_bfe_u32 v10, v0, 1, 3")
    e("v_lshlrev_b32 v11, 1, v5")
    e("v_xor_b32 v10, v10, v11")
    e("v_lshlrev_b32 v10, 4, v10")
    e("v_lshl_add_u32 v36, v35, 7, v10")
    e("v_xor_b32 v37, 16, v36")
    e("v_xor_b32 v38, 64, v36")
    e("v_xor_b32 v39, 80, v36")
    e("s_mov_b32 s28, 0x05040100")
    e("s_mov_b32 s29, 0x07060302")
    e("v_lshlrev_b32 v26, 4, v5")
    e("v_lshlrev_b32 v27, 2, v35")
    e(f"s_lshr_b32 s{sT1}, s{sS2}, 3")
    e(f"s_lshl_b32 s{sT1}, s{sT1}, 10")
    e(f"s_bfe_u32 s{sT2}, s{sS2}, 0x10002")
    e(f"s_lshl_b32 s{sT2}, s{sT2}, 9")
    e(f"s_add_u32 s{sT1}, s{sT1}, s{sT2}")
    e(f"s_and_b32 s{sT2}, s{sS2}, 1")
    e(f"s_lshl_b32 s{sT2}, s{sT2}, 8")
    e(f"s_add_u32 s{sT1}, s{sT1}, s{sT2}")
    e(f"s_bfe_u32 s{sT2}, s{sS2}, 0x10001")
    e(f"s_lshl_b32 s{sT2}, s{sT2}, 7")
    e(f"s_add_u32 s{sT1}, s{sT1}, s{sT2}")
    e(f"v_lshl_add_u32 v10, v35, 2, s{sT1}")
    e("v_lshl_add_u32 v11, v5, 1, s17")
    e("v_lshlrev_b32 v11, 13, v11")
    e("v_add_u32 v24, v10, v11")
    e("v_subrev_u32 v24, 8192, v24")
    e("v_sub_u32 v25, v10, v11")
    e(f"v_add_u32 v25, {143*8192}, v25")
    k.srd_off(44, 6, WS_Y, 144*8192)
    k.srd_off(48, 6, WS_Y + 144*8192, 144*8192)
    ntouch = len(xt[0]) if xt else 0
    k.label(f"L_{name}_nogen")
    tr("gen")
    stamp_mid(k, stamps, 0)
    e(f"s_waitcnt vmcnt({ntouch if xt and xt[1] != 'late' else 0})")
    if xt and xt[1] == "late": xt_fire(k, 52, 224, 1, xt[0])
    tr("xarr")
    for i in range(9): k.lds(f"ds_read_b128 {R(136+4*i,4)}, v34 offset:{4096*i}", ("s", i))
    e("v_mov_b32 v10, 0"); e("v_mov_b32 v11, 0"); e("v_mov_b32 v12, 0"); e("v_mov_b32 v13, 0")
    e("v_mov_b32 v14, 0x3f803f80")
    e("v_lshrrev_b32 v15, 3, v0")
    e("v_lshlrev_b32 v15, 2, v15")
    e(f"s_lshl_b32 s{sT1}, s{sW}, 5")
    e(f"v_add_u32 v15, s{sT1}, v15")
    for i in range(9):
        k.wait(lg=("s", i))
        for r in range(4):
            e(f"v_dot2c_f32_bf16 v{10+2*(r&1)}, v{136+4*i+r}, v14")
            e(f"v_dot2c_f32_bf16 v{11+2*(r&1)}, v{136+4*i+r}, v{136+4*i+r}")
    e("s_nop 2")
    e("v_add_f32 v10, v10, v12")
    e("v_add_f32 v11, v11, v13")
    for ctl in ("quad_perm:[1,0,3,2]", "quad_perm:[2,3,0,1]", "row_half_mirror"):
        e("s_nop 0")
        e(f"v_add_f32_dpp v10, v10, v10 {ctl} row_mask:0xf bank_mask:0xf")
        e(f"v_add_f32_dpp v11, v11, v11 {ctl} row_mask:0xf bank_mask:0xf")
    e(f"v_mul_f32 v10, {fhex(1.0/576)}, v10")
    e(f"v_mul_f32 v11, {fhex(1.0/576)}, v11")
    e("v_fma_f32 v11, -v10, v10, v11")
    e("v_max_f32 v11, 0, v11")
    e(f"v_add_f32 v11, {fhex(1e-5)}, v11")
    e("v_rsq_f32 v11, v11")
    e("ds_write_b32 v15, v10 offset:36992")
    e(f"v_mul_f32 v11, {fhex(2.0/(2048*576))}, v11")
    e("ds_write_b32 v15, v11 offset:36864")
    e("s_waitcnt lgkmcnt(0)")
    k.lg_done = len(k.lg)
    tr("stats")
    e("s_barrier")
    e("s_cmp_eq_u32 s18, 3")
    e(f"s_cbranch_scc1 L_{name}_end")
    tr("bar")
    stamp_mid(k, stamps, 1)
    vX = 172
    def xread(j):
        b = vX + 8*(j % 3)
        for x in (0, 1): k.lds(f"ds_read_b128 {R(b+4*x,4)}, v{36+2*(j&1)+x} offset:{(j>>1)*4096}", ("x", j))
    xread(0); xread(1); xread(2)
    vRr = 208
    k.lds("ds_read_b32 v16, v27 offset:36992", "mn")
    for g in range(4): k.lds(f"ds_read_b128 {R(vRr+4*g,4)}, v26 offset:{36864+32*g}", "rr")
    A0, A1 = 136, 152
    vD = [8, 200]
    def perms(j):
        b = vX + 8*(j % 3); d = vD[j & 1]
        return [f"v_perm_b32 v{d+r}, v{b+2*r+1}, v{b+2*r}, s28" for r in range(4)] + [f"v_perm_b32 v{d+4+r}, v{b+2*r+1}, v{b+2*r}, s29" for r in range(4)]
    xq = [f"v_xor_b32 v{vE2+r}, v31, v{vE+r}" for r in range(36)]
    for _ in range(12): e(xq.pop(0))
    k.wait(lg=("x", 0))
    for p in perms(0): e(p)
    e("s_nop 0")
    for j in range(18):
        Bm = R((vE if j < 9 else vE2) + 4*(j % 9), 4)
        d = vD[j & 1]
        nx = perms(j+1) if j + 1 < 18 else []
        for p in (0, 1):
            acc = R(A1 if p else A0, 16)
            e(f"{MF32} {acc}, {R(d+4*p,4)}, {Bm}, {'0' if j == 0 else acc}")
            if p == 0 and nx: k.wait(lg=("x", j+1))
            if j + 3 < 18:
                b = vX + 8*((j+3) % 3)
                k.lds(f"ds_read_b128 {R(b+4*p,4)}, v{36+2*((j+3)&1)+p} offset:{((j+3)>>1)*4096}", ("x", j+3))
            for x in nx[4*p:4*p+4]: e(x)
            if xq: e(xq.pop(0))
            if j == 16 and p == 1: e("v_cvt_pk_bf16_f32 v116, v16, v117")
            if j == 17 and p == 0:
                e(f"s_lshl_b32 s{sT1}, s{sS2}, 7")
                e(f"s_add_u32 s{sT1}, s{sT1}, {WS_MEAN}")
                e(f"s_cmp_eq_u32 s{sT}, 0")
                e(f"s_cselect_b32 s{sT1}, s{sT1}, 0x40000000")
                e(f"buffer_store_dword v16, v27, s[12:15], s{sT1} offen")
    e(f"{MF32} {R(A1,16)}, {R(116,4)}, {R(112,4)}, {R(A1,16)}")
    e(f"{MF32} {R(A0,16)}, {R(116,4)}, {R(112,4)}, {R(A0,16)}")
    tr("mfma")
    stamp_mid(k, stamps, 2)
    e("s_nop 10")
    k.wait(lg="rr")
    Bq, O1, O2 = 40, 56, 72
    for i in range(16): e(f"v_mul_f32 v{Bq+i}, v29, v{A1+i}")
    for i in range(16): e(f"v_fmac_f32_dpp v{Bq+i}, v{A1+i}, v30 {DPP}")
    for i in range(16): e(f"v_mul_f32 v{A0+i}, v{A0+i}, v{vRr+i}")
    for i in range(16): e(f"v_fma_f32 v{O1+i}, v{Bq+i}, v{vRr+i}, v{A0+i}")
    for i in range(8): e(f"v_cvt_pk_bf16_f32 v{88+i}, v{O1+2*i}, v{O1+2*i+1}")
    P1, Q1, P2, Q2 = 172, 152, 224, 240
    w2 = [f"v_fma_f32 v{O2+i}, -v{Bq+i}, v{vRr+i}, v{A0+i}" for i in range(16)] + [f"v_cvt_pk_bf16_f32 v{96+i}, v{O2+2*i}, v{O2+2*i+1}" for i in range(8)]
    e(w2.pop(0)); e(w2.pop(0))
    for (Dd, a, f, first) in [(P1, 88, vF, 1), (Q1, 88, vF+8, 1), (P1, 92, vF+4, 0), (Q1, 92, vF+12, 0)]:
        e(f"{MF32} {R(Dd,16)}, {R(a,4)}, {R(f,4)}, {'0' if first else R(Dd,16)}")
        for _ in range(6):
            if w2: e(w2.pop(0))
    e("s_nop 1")
    tr("comb")
    c1 = []
    for i in range(0, 16, 2):
        c1.append(f"v_sub_f32 v{O1+i}, v{P1+i}, v{Q1+i+1}")
        c1.append(f"v_add_f32 v{O1+i+1}, v{Q1+i}, v{P1+i+1}")
    c1 += [f"v_cvt_pk_bf16_f32 v{88+i}, v{O1+2*i}, v{O1+2*i+1}" for i in range(8)]
    adr = [f"v_add_u32 v{8+i}, {(4*(i>>1)+(i&1))*8192}, v24" for i in range(8)] + [f"v_subrev_u32 v{200+i}, {(4*(i>>1)+(i&1))*8192}, v25" for i in range(8)]
    for n_, (Dd, a, f, first) in enumerate([(P2, 96, vF, 1), (Q2, 96, vF+8, 1), (P2, 100, vF+4, 0), (Q2, 100, vF+12, 0)]):
        e(f"{MF32} {R(Dd,16)}, {R(a,4)}, {R(f,4)}, {'0' if first else R(Dd,16)}")
        src = adr if n_ < 3 else c1
        for _ in range(6):
            if src: e(src.pop(0))
    assert not adr
    for x in c1: e(x)
    for i in range(8): k.vmem(f"buffer_store_dword v{88+i}, v{8+i}, s[44:47], 0 offen{sf}", "st")
    for i in range(0, 16, 2):
        e(f"v_add_f32 v{O2+i}, v{P2+i}, v{Q2+i+1}")
        e(f"v_sub_f32 v{O2+i+1}, v{Q2+i}, v{P2+i+1}")
    for i in range(8): e(f"v_cvt_pk_bf16_f32 v{96+i}, v{O2+2*i}, v{O2+2*i+1}")
    for i in range(8): k.vmem(f"buffer_store_dword v{96+i}, v{200+i}, s[48:51], 0 offen{sf}", "st")
    tr("stored")
    tr.dump(6, sW, 198)
    stamp_end(k, stamps, 6, 0, sW, 3)
    e("s_endpgm")
    k.label(f"L_{name}_hgen")
    if xt and isinstance(xt[1], int):
        e("s_waitcnt vmcnt(0)")
        xt_fire(k, 52, 224, 1, xt[0])
    e(f"s_branch L_{name}_nogen")
    k.label(f"L_{name}_wt")
    e(f"s_load_dwordx4 s[28:31], s[0:1], {KA_WR}")
    if pf and pflate:
        e("s_bfe_u32 s40, s2, 0x10003")
        e("s_lshl_b32 s40, s40, 2")
        e(f"s_add_u32 s40, s40, s{sW}")
        k.prefetch_code("L_text_begin", "L_text_end", 32, 4, 1, 1, lane="v2", part=(40, 8192))
    e(f"s_sub_u32 s{sT0}, s2, {NMAIN}")
    e("v_lshlrev_b32 v3, 4, v0")
    e(f"s_mul_i32 s{sT1}, s{sT0}, 18496")
    e(f"s_lshl_b32 s{sT2}, s{sW}, 10")
    e("s_waitcnt lgkmcnt(0)")
    k.srd(8, 28, 2048*289*2)
    k.srd(12, 30, 2048*289*2)
    k.srd(16, 6, WS_END)
    for r in range(5):
        for mat in range(2):
            e(f"s_add_u32 m0, s{sT2}, {mat*20480 + r*4096}")
            e(f"s_add_u32 s26, s{sT1}, {r*4096}")
            e(f"buffer_load_dwordx4 v3, s[{8+4*mat}:{11+4*mat}], s26 offen{xf} lds")
    if tlb:
        e(f"s_load_dwordx2 s[34:35], s[0:1], {KA_OUT}")
        e(f"s_lshr_b32 s27, s{sT0}, 3")
        e("s_lshl_b32 s27, s27, 8")
        e("v_add_u32 v12, s27, v0")
        e(f"v_mul_u32_u24 v12, {tlb // 16}, v12")
        e("v_lshlrev_b32 v12, 4, v12")
        e("buffer_load_dword v100, v12, s[16:19], 0 offen")
        e("s_waitcnt lgkmcnt(0)")
        k.srd(36, 34, S*D*2)
        e("buffer_load_dword v101, v12, s[36:39], 0 offen")
    e("v_mov_b32 v8, 0"); e("v_mov_b32 v9, 0"); e("v_mov_b32 v10, 0"); e("v_mov_b32 v11, 0")
    e(f"s_mul_i32 s26, s{sT0}, {FLAG_STRIDE}")
    e(f"s_add_u32 s26, s26, {WS_FLAG}")
    for r in range(3):
        e(f"buffer_store_dwordx4 v[8:11], v3, s[16:19], s26 offen{wf}")
        e("s_add_u32 s26, s26, 4096")
    e(f"s_cmp_eq_u32 s{sW}, 0")
    e("s_cselect_b32 s26, s26, 0x40000000")
    e(f"buffer_store_dwordx4 v[8:11], v3, s[16:19], s26 offen{wf}")
    e(f"s_lshl_b32 s27, s{sT0}, 2")
    e(f"s_add_u32 s27, s27, s{sW}")
    e("s_cmp_ge_u32 s27, 162")
    e(f"s_cbranch_scc1 L_{name}_nog")
    e("s_mul_hi_u32 s28, s27, 0x1c71c71d")
    e("s_mul_i32 s29, s28, 9")
    e("s_sub_u32 s29, s27, s29")
    e("s_and_b32 s30, s28, 1")
    e("s_lshr_b32 s28, s28, 1")
    if hc16:
        e("v_and_b32 v12, 7, v2")
        e("v_bfe_u32 v13, v2, 3, 1")
        e("v_lshl_add_u32 v12, v13, 4, v12")
        e("v_bfe_u32 v13, v2, 4, 1")
        e("v_lshl_add_u32 v12, v13, 3, v12")
    else:
        e("v_and_b32 v12, 0x13, v2")
        e("v_bfe_u32 v13, v2, 2, 1")
        e("v_lshl_add_u32 v12, v13, 3, v12")
        e("v_bfe_u32 v13, v2, 3, 1")
        e("v_lshl_add_u32 v12, v13, 2, v12")
    e("s_lshl_b32 s28, s28, 5")
    e("v_add_u32 v12, s28, v12")
    e("v_cvt_f32_u32 v12, v12")
    e("v_lshrrev_b32 v13, 5, v2")
    e("s_lshl_b32 s29, s29, 4")
    e("s_add_u32 s29, s29, s30")
    e("s_add_u32 s29, s29, 1")
    e("v_lshl_add_u32 v13, v13, 3, s29")
    e("v_cvt_f32_u32 v13, v13")
    for t in range(4):
        e(f"v_add_f32 v{14+t}, {fhex(2*t)}, v13")
        e(f"v_mul_f32 v{14+t}, v{14+t}, v12")
        e(f"v_mul_f32 v{14+t}, {fhex(1.0/576)}, v{14+t}")
    for t in range(4): e(f"v_cos_f32 v{18+t}, v{14+t}")
    for t in range(4): e(f"v_sin_f32 v{14+t}, v{14+t}")
    e("v_lshlrev_b32 v13, 4, v2")
    for t in range(4): e(f"v_cvt_pk_bf16_f32 v{24+t}, v{18+t}, v{14+t}")
    e("s_lshl_b32 s27, s27, 10")
    e(f"s_add_u32 s27, s27, {WS_G}")
    e(f"buffer_store_dwordx4 v[24:27], v13, s[16:19], s27 offen{wf}")
    k.label(f"L_{name}_nog")
    e("v_and_b32 v3, 31, v0")
    e("v_lshrrev_b32 v4, 5, v0")
    e("v_mul_u32_u24 v5, 578, v3")
    e("v_lshl_add_u32 v5, v4, 1, v5")
    e("v_lshlrev_b32 v6, 2, v3")
    e("v_lshl_add_u32 v6, v4, 13, v6")
    e(f"s_lshl_b32 s{sT1}, s{sT0}, 7")
    e(f"s_add_u32 s{sT1}, s{sT1}, {WS_WT}")
    e("s_waitcnt vmcnt(0)")
    e("s_barrier")
    for part in range(6):
        for i in range(6*part, 6*part+6):
            e(f"ds_read_u16 v{30+i}, v5 offset:{2+16*i}")
            e(f"ds_read_u16 v{70+i}, v5 offset:{20480+2+16*i}")
        if part > 0:
            e("s_waitcnt lgkmcnt(12)")
            for i in range(6*part-6, 6*part):
                e(f"v_lshl_or_b32 v{30+i}, v{70+i}, 16, v{30+i}")
                e(f"s_add_u32 s26, s{sT1}, {8*8192*i}")
                e(f"buffer_store_dword v{30+i}, v6, s[16:19], s26 offen{wf}")
    e("s_waitcnt lgkmcnt(0)")
    for i in range(30, 36):
        e(f"v_lshl_or_b32 v{30+i}, v{70+i}, 16, v{30+i}")
        e(f"s_add_u32 s26, s{sT1}, {8*8192*i}")
        e(f"buffer_store_dword v{30+i}, v6, s[16:19], s26 offen{wf}")
    stamp_end(k, stamps, 6, 0, sW, 0)
    if NP:
        e("s_endpgm")
        k.label(f"L_{name}_pack")
        e("v_mov_b32 v0, v2")
        pack_wg(k, name, sW, 4, NMAIN + NWT, jobs[0], jobs[1], pk, stamps, 0)
    k.label(f"L_{name}_end")
    e("s_endpgm")
    return k, (256, 100, 256), (NMAIN + NWT + NP, 256, 49152 if NP else 40960)


def etab_text():
    import numpy as np
    def bf(x):
        u = np.asarray(x, dtype=np.float32).view(np.uint32)
        return ((u + 0x7FFF + ((u >> 16) & 1)) >> 16).astype(np.uint32)
    out = np.zeros((10, 10, 64, 4), np.uint32)
    l = np.arange(64); n = l & 31; h = l >> 5; c = n & 1
    for T in range(10):
        kk = 16*T + (n >> 1)
        cs = np.zeros(64)
        for j in range(9):
            v = np.stack([np.cos(2*np.pi*(((16*j + 8*h + t) * kk % 288) / 288.0 + c/4.0)) for t in range(8)], 1)
            v[np.abs(v) < 1e-12] = 0.0
            b = bf(v)
            out[T, j] = b[:, 0::2] | (b[:, 1::2] << 16)
            cs += (b << 16).astype(np.uint32).view(np.float32).astype(np.float64).sum(1)
        tot = cs[:32] + cs[32:]
        corr = np.where((kk % 2 == 0) & (h == 0), -2.0 * np.concatenate([tot, tot]), 0.0)
        ph = 2*np.pi*kk/576.0
        out[T, 9, :, 0] = bf(corr)
        out[T, 9, :, 1] = np.cos(ph).astype(np.float32).view(np.uint32)
        out[T, 9, :, 2] = (np.sin(ph) * np.where(c == 1, -1.0, 1.0)).astype(np.float32).view(np.uint32)
        out[T, 9, :, 3] = np.where(kk % 2 == 1, 0x80008000, 0)
    q = out.reshape(-1).view(np.uint64)
    lines = [".p2align 7", ".type L_etab,@object", "L_etab:"]
    for i in range(0, len(q), 8): lines.append(".quad " + ",".join("0x%x" % x for x in q[i:i+8]))
    lines.append(".size L_etab, 102400")
    return "\n".join(lines) + "\n"

def gen_k2(name="col_kernel", stamps=False, touch=None, trace=False, xt=None, pk=None, jobs=(0, 0), sf='', gt=False, prio=0):
    NMAIN = 288
    NP = (90 if touch == 'gu' else 81) if touch else 0
    if jobs[1]: NP = 8 * (-(-jobs[1] // 4))
    k = Kern(name); e = k.e
    tr = Tracer(k, trace, 38)
    sW, sT0, sT1, sT2 = 20, 23, 24, 25
    e(f"s_cmp_ge_u32 s2, {NMAIN + NP}")
    e(f"s_cbranch_scc1 L_{name}_end")
    stamp_begin(k, stamps)
    e(f"s_load_dwordx2 s[6:7], s[0:1], {KA_WS}")
    e("v_lshrrev_b32 v1, 6, v0")
    e("v_and_b32 v0, 63, v0")
    e(f"v_readfirstlane_b32 s{sW}, v1")
    if NP:
        e(f"s_cmp_ge_u32 s2, {NMAIN}")
        e(f"s_cbranch_scc1 L_{name}_t")
    if prio:
        e("s_cmp_lt_u32 s2, 256")
        e(f"s_cbranch_scc1 L_{name}_np")
        e(f"s_setprio {prio}")
        k.label(f"L_{name}_np")
    if xt: xt_load(k, 52)
    e("v_lshlrev_b32 v2, 4, v0")
    e("v_lshrrev_b32 v5, 5, v0")
    e("v_and_b32 v35, 31, v0")
    e("v_lshlrev_b32 v3, 2, v35")
    e("v_lshl_add_u32 v3, v5, 8, v3")
    e(f"s_lshl_b32 s{sT0}, s2, 13")
    e(f"s_lshl_b32 s26, s{sW}, 11")
    e(f"s_add_u32 s{sT0}, s{sT0}, s26")
    e(f"s_add_u32 s{sT1}, s{sT0}, {WS_Y}")
    e(f"s_add_u32 s{sT2}, s{sT0}, {WS_WT}")
    e("s_mov_b32 m0, s26")
    vM = 80
    e("v_bfe_u32 v4, v0, 1, 4")
    e(f"s_lshl_b32 s27, s{sW}, 4")
    e("v_add_u32 v4, s27, v4")
    e("v_and_b32 v6, 1, v0")
    e("v_cvt_f32_u32 v7, v4")
    e(f"v_mul_f32 v8, {fhex(1.0/64)}, v7")
    e("v_cvt_f32_u32 v9, v6")
    e("v_mul_f32 v9, 0x3e800000, v9")
    e("v_cvt_f32_u32 v36, v5")
    e("v_add_f32 v10, v36, v36")
    e("v_fma_f32 v9, v10, v8, v9")
    def m1(jp):
        for u in range(8):
            j, t = 2*jp + (u >> 2), u & 3
            e(f"v_fmamk_f32 v{12+u}, v8, {fhex(8*j + 4*(t>>1) + (t&1))}, v9")
        for u in range(8): e(f"v_cos_f32 v{20+u}, v{12+u}")
        for u in range(8): e(f"v_sin_f32 v{12+u}, v{12+u}")
        for u in range(8): e(f"v_cvt_pk_bf16_f32 v{vM+8*jp+u}, v{20+u}, v{12+u}")
    m1(0)
    e("s_waitcnt lgkmcnt(0)")
    tr("karg")
    k.srd(12, 6, WS_END)
    for i in range(2): k.vmem(f"buffer_load_dwordx4 v2, s[12:15], s{sT1} offen offset:{1024*i} lds", "y")
    vWt = 72
    for i in range(8):
        k.vmem(f"buffer_load_dword v{vWt+i}, v3, s[12:15], s{sT2} offen offset:{(4*(i>>1)+(i&1))*128}", "w")
    tr("issued")
    if gt:
        e("s_lshr_b32 s51, s2, 3")
        e("s_lshl_b32 s51, s51, 2")
        e(f"s_add_u32 s51, s51, s{sW}")
        e("s_sub_u32 s51, s51, 100")
        e("s_lshl_b32 s50, s51, 13")
        e(f"s_add_u32 s50, s50, {WS_G}")
        e("s_cmp_lt_u32 s51, 21")
        e("s_cselect_b32 s50, s50, 0x40000000")
        e("v_lshlrev_b32 v164, 7, v0")
        k.vmem("buffer_load_dword v1, v164, s[12:15], s50 offen", "xt")
    if xt:
        e("s_lshr_b32 s51, s2, 3")
        e("s_lshl_b32 s51, s51, 2")
        e(f"s_add_u32 s51, s51, s{sW}")
        e("s_sub_u32 s51, s51, 16")
        xt_prep(k, 52, 51, "v0", 160, xt)
        xt_fire(k, 52, 160, 1, xt)
        for _ in xt: k.vm.append("xt")
    m1(1)
    e("v_and_b32 v10, 1, v4")
    e("v_mul_u32_u24 v10, 0x8000, v10")
    e("v_lshl_or_b32 v10, v10, 16, v10")
    for u in range(16): e(f"v_xor_b32 v{vM+16+u}, v10, v{vM+u}")
    e(f"v_mul_f32 v8, {fhex(1.0/2048)}, v7")
    e("v_lshlrev_b32 v10, 31, v6")
    e("v_xor_b32 v8, v8, v10")
    e("v_mul_f32 v9, 4.0, v36")
    e("v_mul_f32 v9, v9, v8")
    for i in range(16): e(f"v_fmamk_f32 v{128+i}, v8, {fhex(8*(i>>2) + (i&3))}, v9")
    for i in range(16): e(f"v_cos_f32 v{112+i}, v{128+i}")
    for i in range(16): e(f"v_sin_f32 v{128+i}, v{128+i}")
    e("v_lshlrev_b32 v34, 2, v0")
    tr("gen")
    k.wait(vm="y")
    tr("yarr")
    e("s_barrier")
    tr("ybar")
    vY = 40
    for j in range(8):
        for u in (0, 1): k.lds(f"ds_read2st64_b32 {R(vY+4*j+2*u,2)}, v34 offset0:{4*j+2*u} offset1:{4*j+2*u+1}", ("y", j))
        if j == 6: k.wait(lg=("y", 0))
    vF = 144
    fg = ["v_cvt_f32_u32 v10, v35", f"v_mul_f32 v11, {fhex(1.0/32)}, v10", "v_mul_f32 v32, 4.0, v36", "v_mul_f32 v32, v32, v11"]
    fg += [f"v_fmamk_f32 v{14+t}, v11, {fhex(8*(t>>2) + (t&3))}, v32" for t in range(8)]
    fg += [f"v_cos_f32 v{22+t}, v{14+t}" for t in range(8)] + [f"v_sin_f32 v{14+t}, -v{14+t}" for t in range(8)]
    for _ in range(12): e(fg.pop(0))
    stamp_mid(k, stamps, 0)
    D2 = R(160, 16)
    for j in range(8):
        k.wait(lg=("y", j))
        e(f"{MF32} {D2}, {R(vM+4*j,4)}, {R(vY+4*j,4)}, {'0' if j == 0 else D2}")
        for _ in range(2): e(fg.pop(0))
    assert not fg
    tr("stB")
    stamp_mid(k, stamps, 1)
    for t in range(4):
        e(f"v_cvt_pk_bf16_f32 v{vF+t}, v{22+2*t}, v{23+2*t}")
        e(f"v_cvt_pk_bf16_f32 v{vF+8+t}, v{14+2*t}, v{15+2*t}")
    k.wait(vm="w")
    tr("warr")
    for i in range(8):
        e(f"v_lshlrev_b32 v{12+2*i}, 16, v{vWt+i}")
        e(f"v_and_b32 v{13+2*i}, 0xffff0000, v{vWt+i}")
    for i in range(8):
        e(f"v_mul_f32 v{176+2*i}, v{160+2*i}, v{12+2*i}")
        e(f"v_mul_f32 v{177+2*i}, v{160+2*i}, v{13+2*i}")
    e("v_add_u32 v30, s26, v2")
    for hh in (0, 1):
        for i in range(4*hh, 4*hh+4):
            e(f"v_fma_f32 v{176+2*i}, -v{161+2*i}, v{13+2*i}, v{176+2*i}")
            e(f"v_fma_f32 v{177+2*i}, -v{161+2*i}, v{12+2*i}, -v{177+2*i}")
        for i in range(4*hh, 4*hh+4): e(f"v_cvt_pk_bf16_f32 v{72+i}, v{176+2*i}, v{177+2*i}")
        k.lds(f"ds_write_b128 v30, {R(72+4*hh,4)} offset:{8192+1024*hh}")
    tr("wmul")
    e("v_and_b32 v10, 1, v0")
    e("v_mul_u32_u24 v10, 0x8000, v10")
    e("v_lshl_or_b32 v10, v10, 16, v10")
    k.wait(lg0=True)
    e("s_barrier")
    for j in range(8): k.lds(f"ds_read_b128 {R(vY+4*j,4)}, v2 offset:{8192+1024*j}", ("a", j))
    for t in range(4):
        e(f"v_xor_b32 v{vF+4+t}, v10, v{vF+t}")
        e(f"v_xor_b32 v{vF+12+t}, v10, v{vF+8+t}")
    tr("xchg")
    sa = ["s_and_b32 s27, s2, 1", "s_mul_i32 s29, s27, 18432", "s_lshr_b32 s27, s2, 4", "s_lshl_b32 s27, s27, 10", "s_add_u32 s29, s29, s27",
          "s_bfe_u32 s27, s2, 0x20001", "s_lshl_b32 s27, s27, 8", "s_add_u32 s29, s29, s27",
          "s_bfe_u32 s27, s2, 0x10003", "s_lshl_b32 s27, s27, 7", "s_add_u32 s29, s29, s27",
          f"s_mul_i32 s27, s{sW}, {16*36864}", "s_add_u32 s29, s29, s27", f"s_add_u32 s29, s29, {WS_V}",
          "v_mul_u32_u24 v31, 73728, v5", "v_lshl_add_u32 v31, v35, 2, v31"]
    D3 = R(176, 16)
    for j in range(8):
        k.wait(lg=("a", j))
        e(f"{MF32} {D3}, {R(vY+4*j,4)}, {R(vM+4*j,4)}, {'0' if j == 0 else D3}")
        for _ in range(2): e(sa.pop(0))
    e("s_cmp_lg_u32 s2, 287")
    e(f"s_cbranch_scc1 L_{name}_nonyq")
    for i in range(32): e(f"v_mul_f32 v{112+i}, 0.5, v{112+i}")
    k.label(f"L_{name}_nonyq")
    e("s_nop 7")
    for hh in (0, 1):
        for i in range(8*hh, 8*hh+8): e(f"v_mul_f32 v{160+i}, v{176+i}, v{112+i}")
        for i in range(8*hh, 8*hh+8): e(f"v_fmac_f32_dpp v{160+i}, v{176+i}, v{128+i} {DPP}")
        for i in range(4*hh, 4*hh+4): e(f"v_cvt_pk_bf16_f32 v{40+i}, v{160+2*i}, v{161+2*i}")
        e("s_nop 1")
        e(f"{MF32} {R(80,16)}, {R(40+4*hh,4)}, {R(vF+4*hh,4)}, {'0' if hh == 0 else R(80,16)}")
        e(f"{MF32} {R(96,16)}, {R(40+4*hh,4)}, {R(vF+8+4*hh,4)}, {'0' if hh == 0 else R(96,16)}")
    tr("twid")
    for i in range(1, 8): e(f"s_add_u32 s{30+i}, s29, {(4*(i>>1)+(i&1))*36864}")
    e("s_mov_b32 s30, s29")
    e("s_nop 4")
    for i in range(8):
        e(f"v_sub_f32 v{48+2*i}, v{80+2*i}, v{96+2*i+1}")
        e(f"v_add_f32 v{48+2*i+1}, v{96+2*i}, v{80+2*i+1}")
        e(f"v_cvt_pk_bf16_f32 v{40+i}, v{48+2*i}, v{49+2*i}")
        k.vmem(f"buffer_store_dword v{40+i}, v31, s[12:15], s{30+i} offen{sf}", "st")
    tr("stored")
    tr.dump(6, sW, 39)
    stamp_end(k, stamps, 6, 1, sW, 2)
    if NP:
        e("s_endpgm")
        k.label(f"L_{name}_t")
        if jobs[1]: pack_wg(k, name, sW, 4, NMAIN, jobs[0], jobs[1], pk, stamps, 1)
        else:
            emit_touch_wg(k, sW, 4, NMAIN, touch)
            stamp_end(k, stamps, 6, 1, sW, 0)
    k.label(f"L_{name}_end")
    e("s_endpgm")
    return k, (192, 100, 192), (NMAIN + NP, 256, 49152 if jobs[1] else 16384)

def gen_k3(name="inv_kernel", stamps=False, hc16=False, wpf=None, touch=None, trace=False, xt=None, pk=None, jobs=(0, 0), xf='', sf=''):
    NMAIN = 192
    NP = (120 if touch == 'gu' else 54) if touch else 0
    if xt: NP = 64
    if jobs[1]: NP = 8 * (-(-jobs[1] // 3))
    k = Kern(name); e = k.e
    tr = Tracer(k, trace, 4)
    sW, sRG, sT, sT0, sT1, sT2 = 20, 21, 22, 23, 24, 25
    e(f"s_cmp_ge_u32 s2, {NMAIN + NP}")
    e(f"s_cbranch_scc1 L_{name}_end")
    stamp_begin(k, stamps)
    e(f"s_load_dwordx2 s[4:5], s[0:1], {KA_X}")
    e(f"s_load_dwordx2 s[6:7], s[0:1], {KA_WS}")
    e("v_lshrrev_b32 v1, 6, v0")
    e("v_and_b32 v0, 63, v0")
    e(f"v_readfirstlane_b32 s{sW}, v1")
    if NP:
        e(f"s_cmp_ge_u32 s2, {NMAIN}")
        e(f"s_cbranch_scc1 L_{name}_t")
    e(f"s_lshr_b32 s{sT0}, s2, 3")
    e(f"s_mul_hi_u32 s{sT1}, s{sT0}, 0x55555556")
    e(f"s_mul_i32 s{sT}, s{sT1}, 3")
    e(f"s_sub_u32 s{sT}, s{sT0}, s{sT}")
    e(f"s_mul_i32 s{sT}, s{sT}, 3")
    e(f"s_add_u32 s{sT}, s{sT}, s{sW}")
    e(f"s_and_b32 s{sRG}, s2, 7")
    e(f"s_lshl_b32 s{sRG}, s{sRG}, 3")
    e(f"s_add_u32 s{sRG}, s{sRG}, s{sT1}")
    e("v_lshlrev_b32 v2, 4, v0")
    e(f"s_mul_i32 s26, s{sRG}, 36864")
    e(f"s_add_u32 s27, s26, {WS_V}")
    e(f"s_mul_i32 s28, s{sT}, 18432")
    e(f"s_add_u32 s28, s28, {WS_G}")
    e(f"s_mul_i32 s29, s{sW}, 12288")
    e("s_add_u32 s27, s27, s29")
    e("v_lshrrev_b32 v5, 5, v0")
    e("v_and_b32 v6, 31, v0")
    e("v_mul_u32_u24 v7, 73728, v6")
    e(f"v_lshl_add_u32 v7, v5, {3 if hc16 else 4}, v7")
    e(f"s_mul_i32 s30, s{sRG}, 1152")
    e(f"s_lshl_b32 s{sT1}, s{sT}, 6")
    e(f"s_add_u32 s30, s30, s{sT1}")
    e("v_lshlrev_b32 v8, 2, v6")
    e(f"s_lshl_b32 s31, s{sRG}, 7")
    e(f"s_add_u32 s31, s31, {WS_MEAN}")
    e("v_and_b32 v10, 1, v0")
    e("v_lshlrev_b32 v10, 4, v10")
    e("v_bfe_u32 v11, v0, 1, 1")
    e("v_and_b32 v12, 1, v0")
    e("v_xor_b32 v12, v12, v11")
    e("v_lshlrev_b32 v12, 15, v12")
    e("v_lshl_or_b32 v11, v11, 31, v12")
    e("v_lshlrev_b32 v3, 2, v0")
    e("s_waitcnt lgkmcnt(0)")
    tr("karg")
    k.srd(12, 6, WS_END)
    for i in range(12):
        if i % 4 == 0:
            e(f"s_add_u32 m0, s29, {1024*i}")
            e(f"s_add_u32 s{sT0}, s27, {1024*i}")
        k.vmem(f"buffer_load_dwordx4 v2, s[12:15], s{sT0} offen offset:{(i&3)*1024} lds", "V")
    vG = 100
    gorder = [f for j in range(9) for f in (j, 9 + j)]
    for f in gorder:
        e(f"s_add_u32 s{sT1}, s28, {(f>>2)*4096}")
        k.vmem(f"buffer_load_dwordx4 {R(vG+4*f,4)}, v2, s[12:15], s{sT1} offen offset:{(f&3)*1024}", ("g", f))
    k.srd(8, 4, S*D*2)
    for u in range(4):
        if hc16:
            for z in (0, 1): k.vmem(f"buffer_load_dwordx2 {R(16+4*u+2*z,2)}, v7, s[8:11], s30 offen offset:{(u>>1)*576 + (u&1)*16 + 32*z}{xf}", "x")
        else: k.vmem(f"buffer_load_dwordx4 {R(16+4*u,4)}, v7, s[8:11], s30 offen offset:{(u>>1)*576 + (u&1)*32}{xf}", "x")
    k.vmem("buffer_load_dword v9, v8, s[12:15], s31 offen", "x")
    if wpf: emit_wprefetch(k, sW, 3, "v0", 12, 1, 44, wpf)
    tr("issued")
    stamp_mid(k, stamps, 0)
    k.wait(vm="V")
    tr("varr")
    e("s_barrier")
    O, E, XM = 32, 48, 64
    seq = []
    for n_, f in enumerate(gorder):
        seq.append(("lo", f))
        if n_ >= 2: seq.append(("hi", gorder[n_-2]))
    seq += [("hi", gorder[-2]), ("hi", gorder[-1])]
    def step(kind, f):
        pi, j = divmod(f, 9)
        return 18*pi + j + (9 if kind == "hi" else 0)
    RING = [172 + 4*i for i in range(6)]
    ROT = [196, 200, 204]
    def rd(n):
        st = step(*seq[n]); b = RING[n % 6]
        for u in (0, 1): k.lds(f"ds_read2st64_b32 {R(b+2*u,2)}, v3 offset0:{4*st+2*u} offset1:{4*st+2*u+1}", ("b", n))
    for n in range(5): rd(n)
    started = set(); nrot = 0; rotreg = {}; rotdone = {}
    pend = []
    for n, (kind, f) in enumerate(seq):
        k.wait(vm=("g", f), lg=("b", n))
        accb = O if f < 9 else E
        acc = R(accb, 16)
        if kind == "hi":
            assert f in rotdone
            if rotdone[f] >= n - 1 or n >= 33: e("s_nop 1")
        a = vG + 4*f if kind == "lo" else rotreg[f]
        e(f"{MF32} {acc}, {R(a,4)}, {R(RING[n % 6],4)}, {'0' if accb not in started else acc}")
        started.add(accb)
        if n + 5 < 36: rd(n + 5)
        if kind == "lo":
            rr = ROT[nrot % 3]; nrot += 1; rotreg[f] = rr
            pend += [(f"v_alignbit_b32 v{rr+r}, v{vG+4*f+r}, v{vG+4*f+r}, v10", None) for r in range(4)] + [(f"v_xor_b32 v{rr+r}, v11, v{rr+r}", f if r == 3 else None) for r in range(4)]
        lim = 4 if n + 5 < 36 else 6
        for _ in range(lim):
            if pend:
                t_, fin = pend.pop(0); e(t_)
                if fin is not None: rotdone[fin] = n
    tr("mfma")
    stamp_mid(k, stamps, 1)
    k.wait(vm="x")
    for r in range(16):
        e(f"v_lshlrev_b32 v{XM+2*r}, 16, v{16+r}")
        e(f"v_and_b32 v{XM+2*r+1}, 0xffff0000, v{16+r}")
    e(f"s_lshl_b32 s{sT0}, s{sT}, 11")
    e(f"s_add_u32 s{sT0}, s{sT0}, s26")
    e(f"s_add_u32 s{sT0}, s{sT0}, {WS_HC}")
    e(f"s_add_u32 s{sT1}, s{sT0}, {18*1024}")
    e(f"s_mul_i32 s{sT2}, s{sRG}, 9")
    e(f"s_add_u32 s{sT2}, s{sT2}, s{sT}")
    e(f"s_lshl_b32 s{sT2}, s{sT2}, 8")
    e(f"s_add_u32 s{sT2}, s{sT2}, {WS_SS}")
    if hc16:
        e("v_and_b32 v2, 15, v0")
        e("v_lshlrev_b32 v2, 4, v2")
        e("v_lshl_add_u32 v2, v5, 8, v2")
        e("v_bfe_u32 v12, v0, 4, 1")
        e("v_lshl_add_u32 v2, v12, 10, v2")
    for i in range(16): e(f"v_sub_f32 v{E+i}, v{E+i}, v9")
    for u in range(4):
        for i in range(8*(u&1), 8*(u&1)+8):
            x_ = XM + 16*(u>>1) + i
            e(f"v_add_f32 v{x_}, v{x_}, v{E+i}")
            e(f"v_{'add' if u < 2 else 'sub'}_f32 v{x_}, v{x_}, v{O+i}")
        for i in range(4): e(f"v_cvt_pk_bf16_f32 v{16+4*u+i}, v{XM+8*u+2*i}, v{XM+8*u+2*i+1}")
        k.vmem(f"buffer_store_dwordx4 {R(16+4*u,4)}, v2, s[12:15], s{sT0 if u < 2 else sT1} offen offset:{(512 if hc16 else 1024)*(u&1)}{sf}", "st")
    e("v_mov_b32 v12, 0"); e("v_mov_b32 v13, 0")
    for i in range(16): e(f"v_dot2c_f32_bf16 v{12+(i&1)}, v{16+i}, v{16+i}")
    e("s_nop 2")
    e("v_add_f32 v12, v12, v13")
    k.vmem(f"buffer_store_dword v12, v3, s[12:15], s{sT2} offen{sf}", "st")
    tr("stored")
    tr.dump(6, sW, 14)
    stamp_end(k, stamps, 6, 2, sW, 2)
    if NP:
        e("s_endpgm")
        k.label(f"L_{name}_t")
        if jobs[1]:
            pack_wg(k, name, sW, 3, NMAIN, jobs[0], jobs[1], pk, stamps, 2)
            e("s_endpgm")
        elif xt:
            xt_load(k, 52)
            e(f"s_sub_u32 s51, s2, {NMAIN}")
            e("s_lshr_b32 s51, s51, 3")
            e("s_mul_i32 s51, s51, 3")
            e(f"s_add_u32 s51, s51, s{sW}")
            e("s_waitcnt lgkmcnt(0)")
            spec = [(m_, lo + 24*i, hi) for (m_, lo, hi) in xt for i in range(-(-(hi - lo) // 24))]
            assert len(spec) <= 4
            xt_prep(k, 52, 51, "v0", 4, spec)
            xt_fire(k, 52, 4, 1, spec)
        else: emit_touch_wg(k, sW, 3, NMAIN, touch, nper=4)
        stamp_end(k, stamps, 6, 2, sW, 0)
    k.label(f"L_{name}_end")
    e("s_endpgm")
    return k, (208, 100, 208), (NMAIN + NP, 192, 36864)

def gen_k3b(name="inv_kernel", stamps=False, hc16=True, trace=False, g0=7, sf='', wpf=None, xpos=10, r_lo=8, r_hi=4):
    NMAIN = 192
    k = Kern(name); e = k.e
    tr = Tracer(k, trace, 4)
    sW, sRG, sT, sT0, sT1, sT2 = 20, 21, 22, 23, 24, 25
    e(f"s_cmp_ge_u32 s2, {NMAIN}")
    e(f"s_cbranch_scc1 L_{name}_end")
    stamp_begin(k, stamps)
    e(f"s_load_dwordx2 s[6:7], s[0:1], {KA_WS}")
    e(f"s_load_dwordx2 s[4:5], s[0:1], {KA_X}")
    e("v_lshrrev_b32 v1, 6, v0")
    e("v_and_b32 v0, 63, v0")
    e(f"v_readfirstlane_b32 s{sW}, v1")
    e(f"s_lshr_b32 s{sT0}, s2, 3")
    e(f"s_mul_hi_u32 s{sT1}, s{sT0}, 0x55555556")
    e(f"s_mul_i32 s{sT}, s{sT1}, 3")
    e(f"s_sub_u32 s{sT}, s{sT0}, s{sT}")
    e(f"s_mul_i32 s{sT}, s{sT}, 3")
    e(f"s_add_u32 s{sT}, s{sT}, s{sW}")
    e(f"s_and_b32 s{sRG}, s2, 7")
    e(f"s_lshl_b32 s{sRG}, s{sRG}, 3")
    e(f"s_add_u32 s{sRG}, s{sRG}, s{sT1}")
    e("v_lshlrev_b32 v2, 4, v0")
    e(f"s_mul_i32 s26, s{sRG}, 36864")
    e(f"s_add_u32 s27, s26, {WS_V}")
    e(f"s_mul_i32 s28, s{sT}, 18432")
    e(f"s_add_u32 s28, s28, {WS_G}")
    e(f"s_mul_i32 s29, s{sW}, 12288")
    e("s_add_u32 s27, s27, s29")
    e("v_lshrrev_b32 v5, 5, v0")
    e("v_and_b32 v6, 31, v0")
    e("v_lshrrev_b32 v7, 2, v0")
    e("v_mul_u32_u24 v7, 73728, v7")
    e("v_lshrrev_b32 v8, 4, v0")
    e("v_xor_b32 v8, v8, v0")
    e("v_and_b32 v8, 3, v8")
    e("v_lshl_add_u32 v7, v8, 4, v7")
    e(f"s_mul_i32 s30, s{sRG}, 1152")
    e(f"s_lshl_b32 s{sT1}, s{sT}, 6")
    e(f"s_add_u32 s30, s30, s{sT1}")
    e(f"s_lshl_b32 s32, s{sW}, 12")
    e("s_add_u32 s32, s32, 36864")
    e("v_lshlrev_b32 v8, 2, v6")
    e(f"s_lshl_b32 s31, s{sRG}, 7")
    e(f"s_add_u32 s31, s31, {WS_MEAN}")
    e("v_and_b32 v10, 1, v0")
    e("v_lshlrev_b32 v10, 4, v10")
    e("v_bfe_u32 v11, v0, 1, 1")
    e("v_and_b32 v12, 1, v0")
    e("v_xor_b32 v12, v12, v11")
    e("v_lshlrev_b32 v12, 15, v12")
    e("v_lshl_or_b32 v11, v11, 31, v12")
    e("v_lshlrev_b32 v3, 2, v0")
    e("s_waitcnt lgkmcnt(0)")
    tr("karg")
    k.srd(12, 6, WS_END)
    for i in range(12):
        if i % 4 == 0:
            e(f"s_add_u32 m0, s29, {1024*i}")
            e(f"s_add_u32 s{sT0}, s27, {1024*i}")
        k.vmem(f"buffer_load_dwordx4 v2, s[12:15], s{sT0} offen offset:{(i&3)*1024} lds", "V")
    vG, vRot = 100, 172
    lq = []
    for f in range(18):
        it = []
        if f % 4 == 0: it.append(f"s_add_u32 s{sT1}, s28, {(f>>2)*4096}")
        lq.append((it, f"buffer_load_dwordx4 {R(vG+4*f,4)}, v2, s[12:15], s{sT1} offen offset:{(f&3)*1024}", ("g", f)))
    for u in range(4):
        lq.append(([f"s_add_u32 m0, s32, {1024*u}", f"s_add_u32 s33, s30, {(u>>1)*576 + (u&1)*16*73728}"], "buffer_load_dwordx4 v7, s[8:11], s33 offen lds", "x"))
    lq.append(([], "buffer_load_dword v9, v8, s[12:15], s31 offen", "x"))
    def issue():
        pre, ins, tag = lq.pop(0)
        for p in pre: e(p)
        k.vmem(ins, tag)
    lq = [(lq[22][0], lq[22][1], "mean")] + lq[:xpos] + lq[18:22] + lq[xpos:18]
    k.srd(8, 4, S*D*2)
    for _ in range(g0): issue()
    tr("issued")
    stamp_mid(k, stamps, 0)
    k.wait(vm="V")
    tr("varr")
    e("s_barrier")
    O, E, XM = 32, 48, 64
    seq = [("lo", f) for f in range(18)] + [("hi", f) for f in range(18)]
    def step(kind, f):
        pi, j = divmod(f, 9)
        return 18*pi + j + (9 if kind == "hi" else 0)
    RING = [96, 244, 248, 252, 12, 28]
    def rd(n):
        st = step(*seq[n]); b = RING[n % 6]
        for u in (0, 1): k.lds(f"ds_read2st64_b32 {R(b+2*u,2)}, v3 offset0:{4*st+2*u} offset1:{4*st+2*u+1}", ("b", n))
    for n in range(5): rd(n)
    k.wait(vm="mean")
    for i in range(16): e(f"v_sub_f32 v{E+i}, 0, v9")
    rotdone = {}
    pend = []
    XR = 16
    for n, (kind, f) in enumerate(seq):
        while kind == "lo" and ("g", f) not in k.vm: issue()
        k.wait(vm=("g", f), lg=("b", n))
        accb = O if f < 9 else E
        acc = R(accb, 16)
        if kind == "hi": assert rotdone[f] < n - 1
        a = (vG if kind == "lo" else vRot) + 4*f
        e(f"{MF32} {acc}, {R(a,4)}, {R(RING[n % 6],4)}, {'0' if n == 0 else acc}")
        if n + 5 < 36: rd(n + 5)
        if lq: issue()
        if kind == "lo":
            rr = vRot + 4*f
            pend += [(f"v_alignbit_b32 v{rr+r}, v{vG+4*f+r}, v{vG+4*f+r}, v10", None) for r in range(4)] + [(f"v_xor_b32 v{rr+r}, v11, v{rr+r}", f if r == 3 else None) for r in range(4)]
        if n == 17:
            assert not lq
            pend += [(x, None) for x in ["v_bfe_u32 v7, v0, 2, 2", "v_lshlrev_b32 v7, 4, v7", "v_lshl_add_u32 v7, v6, 6, v7", "v_lshl_add_u32 v7, v5, 3, v7", "v_add_u32 v7, s32, v7",
                                         "v_xor_b32 v16, 16, v7", "v_xor_b32 v17, 32, v7", "v_xor_b32 v18, 48, v7"]]
            pend.append(("XREAD", None))
            pend += [(x, None) for x in [f"s_lshl_b32 s{sT0}, s{sT}, 11", f"s_add_u32 s{sT0}, s{sT0}, s26", f"s_add_u32 s{sT0}, s{sT0}, {WS_HC}", f"s_add_u32 s{sT1}, s{sT0}, {18*1024}",
                                         "v_and_b32 v2, 15, v0", "v_lshlrev_b32 v2, 4, v2", "v_lshl_add_u32 v2, v5, 8, v2", "v_bfe_u32 v8, v0, 4, 1", "v_lshl_add_u32 v2, v8, 10, v2"]]
            pend.append(("XWAIT", None))
            for r in range(16): pend += [(f"v_lshlrev_b32 v{XM+2*r}, 16, v{100+r}", None), (f"v_and_b32 v{XM+2*r+1}, 0xffff0000, v{100+r}", None)]
            pend.append(("OREADY", None))
            for i in range(16): pend += [(f"v_add_f32 v{XM+i}, v{XM+i}, v{O+i}", None), (f"v_sub_f32 v{XM+16+i}, v{XM+16+i}, v{O+i}", None)]
        lim = r_lo if n < 18 else (r_hi if n < 31 else 6)
        if n == 35: lim = 999
        c_ = 0
        while pend and c_ < lim:
            t_, fin = pend[0]
            if t_ == "OREADY":
                if n < 30: break
                pend.pop(0); continue
            pend.pop(0)
            if t_ == "XREAD":
                k.wait(vm="x")
                xa = [7, 16, 17, 18]
                for u in range(4):
                    for z in (0, 1): k.lds(f"ds_read_b64 {R(100+4*u+2*z,2)}, v{xa[(u&1)+2*z]} offset:{2048*(u>>1)}", "xr")
                c_ += 8
            elif t_ == "XWAIT": k.wait(lg="xr")
            else:
                e(t_); c_ += 1
            if fin is not None: rotdone[fin] = n
        if n == 35: tailn = c_
    tr("mfma")
    stamp_mid(k, stamps, 1)
    e(f"s_mul_i32 s{sT2}, s{sRG}, 9")
    e(f"s_add_u32 s{sT2}, s{sT2}, s{sT}")
    e(f"s_lshl_b32 s{sT2}, s{sT2}, 8")
    e(f"s_add_u32 s{sT2}, s{sT2}, {WS_SS}")
    if tailn < 8: e(f"s_nop {7 - tailn}")
    for u in range(4):
        for i in range(8*(u&1), 8*(u&1)+8):
            x_ = XM + 16*(u>>1) + i
            e(f"v_add_f32 v{x_}, v{x_}, v{E+i}")
        for i in range(4): e(f"v_cvt_pk_bf16_f32 v{140+4*u+i}, v{XM+8*u+2*i}, v{XM+8*u+2*i+1}")
        k.vmem(f"buffer_store_dwordx4 {R(140+4*u,4)}, v2, s[12:15], s{sT0 if u < 2 else sT1} offen offset:{512*(u&1)}{sf}", "st")
    k.tailn = tailn
    e("v_mov_b32 v12, 0"); e("v_mov_b32 v13, 0")
    for i in range(16): e(f"v_dot2c_f32_bf16 v{12+(i&1)}, v{140+i}, v{140+i}")
    e("s_nop 2")
    e("v_add_f32 v12, v12, v13")
    k.vmem(f"buffer_store_dword v12, v3, s[12:15], s{sT2} offen{sf}", "st")
    tr("stored")
    tr.dump(6, sW, 14)
    stamp_end(k, stamps, 6, 2, sW, 2)
    k.label(f"L_{name}_end")
    e("s_endpgm")
    return k, (256, 100, 256), (NMAIN, 192, 36864 + 12288)
```

```python
S, D, F = 2048, 576, 4608
SZ = S * D * 2
WS_Y    = 0
WS_V    = WS_Y + SZ
WS_HC   = WS_V + SZ
WS_WT   = WS_HC + SZ
WS_G    = WS_WT + SZ
WS_MEAN = WS_G + 9 * 36 * 1024
WS_SS   = WS_MEAN + 8192
WS_P    = (WS_SS + 64 * 9 * 256 + 4095) // 4096 * 4096
P_BYTES = 8 * 64 * 36 * 1024
WS_WP   = WS_P + P_BYTES
SLICE_B = 27 * 36864
WS_HX   = WS_WP
WS_FLAG = WS_HX + 64 * 16 * 18 * 1024
import os
FLAG_STRIDE = int(os.environ.get('FLAG_STRIDE', 13312))
WS_FA   = WS_FLAG + 64 * 13312 + 4096
WS_END  = WS_FA + 704 * 128
KA_X, KA_WR, KA_WI, KA_BX, KA_WG, KA_WU, KA_WD, KA_OUT, KA_DBG, KA_WS = [8 * i for i in range(10)]
```

```python
import sys, json
from dsl import *
from kfft import *
from k4h import *
HDR = open("sequential_preLN__spectral_gfnet__geglu_ffn__prompt.s.ref").read().split("; Override launch geometry")[0]
def build(path, stamps=False, k4=None, k1=None, k2=None, k3=None, split=None, pst=' sc1', pld=' nt'):
    k1, k2, k3 = dict(k1 or {}), dict(k2 or {}), dict(k3 or {})
    if split:
        pk = lambda k, a, b, c: emit_pack_job(k, 3, a, b, c, ld_flags=pld, st_flags=pst)
        k1.update(pk=pk, jobs=(0, split[0])); k2.update(pk=pk, jobs=(split[0], split[1])); k3.update(pk=pk, jobs=(split[0]+split[1], 162-split[0]-split[1]))
    ks = [gen_k1c(stamps=stamps, hc16=True, **(k1 or {})), gen_k2(stamps=stamps, **(k2 or {})), gen_k4h(stamps=stamps, kidx=2, **(k4 or {}))]
    print(path, ks[-1][0].info)
    if stamps:
        k = Kern("zend_kernel"); e = k.e
        stamp_begin(k, True)
        e(f"s_load_dwordx2 s[6:7], s[0:1], {KA_WS}")
        e("s_mov_b32 s20, 0")
        stamp_end(k, True, 6, len(ks), 20, 0)
        e("s_endpgm")
        ks.append((k, (24, 100, 24), (8, 64, 0)))
    txt = assemble_file(HDR, [(k, *l) for k, r, l in ks], [(k, *r) for k, r, l in ks])
    open(path, "w").write(txt)
if __name__ == "__main__":
    opts = json.loads(sys.argv[2]) if len(sys.argv) > 2 else {}
    build(sys.argv[1], **opts)
```

```python
from dsl import *
from layout import *
from k123 import stamp_begin, stamp_mid, stamp_end, R
from k4b import wg_map
import math

SLOT = 36864
MF32 = "v_mfma_f32_32x32x16_bf16"
MF16 = "v_mfma_f32_16x16x32_bf16"
P2ORDER = ["A0", "A1", "B0", "B1", "A2", "B2", "A3", "B3", "N"]

def gen_k4h(name="ffn_kernel", P=6, X=3, NF=10, stamps=False, dist=3, mapping=4, kidx=3, pf=True,
            pub_d=80, poll_d=60, chk_d=48, hpub_d=50, hpoll_d=30, hchk_d=36, st_sp=10, spin_max=200000, trace=False, order=None, dmar=6,
            wev=1, hc0=10, rpoll=(1740, 1790, 1880), trlead=False, nobar=0, fast=0, ssg=200, outf='', dfin=None, margin=1.03, sent=(3, 4), clr_at=300, clr_sp=10, clr_poll=1300, sload=(), retry_max=4000, lead_v=0, lrate=4, early_out=True, nb=False, otouch=0, g0=23, xpos=18, r_lo=6, r_hi=4, psleep=0, pubpos=60, drop=(), hgrp=((0,), (1,), (2,), (3,), (4,)), ld_sp=1, res_at=0, noack=False, chain_mode=0, padn=0, gdrop=False, fullg=False, ldsleep=0, xn=8, clr_pre=False, dtouch=0):
    xdma = xhx = lin = False; dmaf = ''; tch = []
    order = order or P2ORDER
    if dfin is None: dfin = 1352 if chain_mode == 0 else 1340
    k = Kern(name); e = k.e
    SGU, SD, SW, SO, SU = 12, 16, 20, 24, 4
    P1 = [(0, 0, 0), (0, 1, 0), (0, 0, 1), (0, 1, 1)] + [(b, m_, hf) for b in (1, 2, 3) for m_ in (0, 1) for hf in (0, 1)] + [(4, 0, 0), (4, 1, 0)]
    sW, sMT, sFS, sRG = 28, 29, 30, 31
    sOff, sLB1, sLB2, sLB3, sLBN, sLBN3 = 32, 33, 34, 35, 36, 37
    sColW, sColN = 38, 39
    sRow = 40
    sRowN = 44
    sHC, sP, sPR, sT0, sT1, sHo, sSp = 46, 47, 48, 49, 50, 51, 52
    sFH, sFHp, sFR, sFRo, sHXo, sHXp, sHR, sOut, sMn, sSpin = 53, 54, 55, 56, 57, 60, 61, 62, 63, 64
    vW, vD, vN, vDN = 1, 5, 104, 240
    vA = 9
    vAN = 21
    vL16 = 23
    vC1, vC2, vR = (24, 25), (26, 27), (250, 252)
    vT = 28
    NT = 12
    vH = 40
    vSt, vFl, vPo, vPoll, vFv, vHo = 244, 245, 246, 247, 248, 249
    REG = 49152
    aHP = 144
    aF = 216
    assert aF + 4*NF <= 256
    e("s_cmp_ge_u32 s2, 256")
    e(f"s_cbranch_scc1 L_{name}_end")
    stamp_begin(k, stamps)
    e(f"s_load_dwordx4 s[4:7], s[0:1], {KA_WG}")
    e(f"s_load_dwordx4 s[8:11], s[0:1], {KA_WD}")
    e(f"s_load_dwordx2 s[66:67], s[0:1], {KA_WS}")
    e(f"s_load_dwordx2 s[96:97], s[0:1], {KA_X}")
    e("v_lshrrev_b32 v28, 6, v0")
    e("v_and_b32 v0, 63, v0")
    e(f"v_readfirstlane_b32 s{sW}, v28")
    wg_map(e, mapping, sFS, sMT, sT0, sT1)
    e(f"s_lshl_b32 s{sRG}, s{sMT}, 2")
    e(f"s_add_u32 s{sRG}, s{sRG}, s{sW}")
    SR = f"s[{SW}:{SW+3}]"
    NCH = 27
    k.tr = []
    def tr(label):
        if not trace or len(k.tr) >= 64: return
        if trlead and not (label.startswith("L") or label == "end"): return
        if not trlead and label.startswith("L"): return
        e("s_memtime s[58:59]")
        e("s_waitcnt lgkmcnt(0)")
        e("s_sub_u32 s58, s58, s92")
        e(f"v_writelane_b32 v251, s58, {len(k.tr)}")
        k.tr.append(label)

    def dma_items(c):
        slot = c % 4
        it = []
        for i in range(9):
            grp, r = divmod(i, 4)
            if c < 16:
                b, mat, hf = P1[c]
                m0, so = (sLB1, slot*SLOT + 4096*grp), (sColW, 128*b + (288*hf + 32*grp)*9216)
                v, srd = vW, (SU if mat else SGU)
            elif c < 18:
                m0, so = (sLB1, slot*SLOT + 4096*grp), (sColN, 64*grp*9216)
                v, srd = vN, (SU if P1[c][1] else SGU)
            else:
                nm = order[c-18]
                srd = SD
                if nm == "N":
                    v = vDN
                    if grp < 2: m0, so = (sLBN, slot*SLOT + 4096*grp), (sRowN, 64*grp*1152)
                    else: m0, so = (sLBN3, slot*SLOT), (sRowN+1, 0)
                else:
                    v = vD; side = 2*(nm[0] == "B"); db = int(nm[1])
                    if grp < 2: m0, so = (sLB2, slot*SLOT + 4096*grp), (sRow+side, 128*db + 32*grp*1152)
                    else: m0, so = (sLB3, slot*SLOT + 32768), (sRow+side+1, 128*db)
            if r == 0:
                it.append(("s", f"s_add_u32 m0, s{m0[0]}, {m0[1]}"))
                it.append(("s", f"s_add_u32 s{sOff}, s{so[0]}, {so[1]}"))
            it.append(("m", f"buffer_load_dwordx4 v{v+r}, s[{srd}:{srd+3}], s{sOff} offen offset:{1024*r}{dmaf} lds", ("dma", c)))
        return it
    def hc_items(kks):
        it = []
        for n_, kk in enumerate(kks):
            if n_ == 0 or kk % 4 == 0: it.append(("s", f"s_add_u32 s{sHo}, s{sHC}, {4096*(kk//4)}"))
            it.append(("m", f"buffer_load_dwordx4 a[{4*kk}:{4*kk+3}], v{vL16}, {SR}, s{sHo} offen offset:{1024*(kk%4)} sc1", ("hc", kk)))
        return it
    def emit_item(it):
        if it[0] == "s": e(it[1])
        elif "dma" in drop and " lds" in it[1] and it[2][1] > 3: k.vm.insert(0, it[2]); k.vm_done += 1
        else: k.vmem(it[1], it[2])
    qRG, qT, qT0, qT1, qT2 = 32, 33, 44, 45, 34
    e(f"s_lshr_b32 s{qRG}, s{sFS}, 2")
    e(f"s_lshl_b32 s{qT0}, s{sMT}, 2")
    e(f"s_add_u32 s{qRG}, s{qRG}, s{qT0}")
    e(f"s_and_b32 s{qT0}, s{sFS}, 3")
    e(f"s_min_u32 s{qT1}, s{qT0}, 1")
    e(f"s_lshl_b32 s{qT}, s{qT0}, 1")
    e(f"s_add_u32 s{qT}, s{qT}, s{qT1}")
    e(f"s_add_u32 s{qT}, s{qT}, s{sW}")
    e(f"s_add_u32 s{qT1}, s{qT1}, s{sW}")
    e(f"s_cmp_lt_u32 s{qT1}, 3")
    e("s_cselect_b32 s35, 1, 0")
    e(f"s_mul_i32 s98, s{qRG}, {FLAG_STRIDE}")
    e(f"s_lshl_b32 s99, s{qT}, 7")
    e("s_add_u32 s98, s98, s99")
    e(f"s_add_u32 s98, s98, {WS_FLAG + 90*128}")
    e("s_cmp_eq_u32 s35, 1")
    e("s_cselect_b32 s98, s98, 0x40000000")
    e("v_lshlrev_b32 v2, 4, v0")
    e(f"s_mul_i32 s36, s{qRG}, 36864")
    e(f"s_add_u32 s37, s36, {WS_V}")
    e(f"s_mul_i32 s38, s{qT}, {36864 if fullg else 18432}")
    e(f"s_add_u32 s38, s38, {WS_G}")
    e(f"s_mul_i32 s39, s{sW}, 9216")
    e("s_add_u32 s37, s37, s39")
    e(f"s_add_u32 s39, s39, {3*SLOT}")
    e("v_lshrrev_b32 v5, 5, v0")
    e("v_and_b32 v6, 31, v0")
    e("v_lshrrev_b32 v7, 2, v0")
    e("v_mul_u32_u24 v7, 73728, v7")
    e("v_lshrrev_b32 v8, 4, v0")
    e("v_xor_b32 v8, v8, v0")
    e("v_and_b32 v8, 3, v8")
    e("v_lshl_add_u32 v7, v8, 4, v7")
    e(f"s_mul_i32 s40, s{qRG}, 1152")
    e(f"s_lshl_b32 s{qT1}, s{qT}, 6")
    e(f"s_add_u32 s40, s40, s{qT1}")
    e(f"s_lshl_b32 s42, s{sW}, 12")
    e(f"s_add_u32 s42, s42, {4*SLOT}")
    e("v_lshlrev_b32 v8, 2, v6")
    e(f"s_lshl_b32 s41, s{qRG}, 7")
    e(f"s_add_u32 s41, s41, {WS_MEAN}")
    e("v_and_b32 v10, 1, v0")
    e("v_lshlrev_b32 v10, 4, v10")
    e("v_bfe_u32 v11, v0, 1, 1")
    e("v_and_b32 v12, 1, v0")
    e("v_xor_b32 v12, v12, v11")
    e("v_lshlrev_b32 v12, 15, v12")
    e("v_lshl_or_b32 v11, v11, 31, v12")
    e("v_lshlrev_b32 v3, 2, v0")
    e(f"v_add_u32 v19, {3*SLOT}, v3")
    e("s_waitcnt lgkmcnt(0)")
    tr("L-karg")
    k.srd(20, 66, WS_END)
    for i in range(9):
        if i % 4 == 0:
            e(f"s_add_u32 m0, s39, {1024*i}")
            e(f"s_add_u32 s{qT0}, s37, {1024*i}")
        k.vmem(f"buffer_load_dwordx4 v2, s[20:23], s{qT0} offen offset:{(i&3)*1024} lds", "V")
    vG, vRot = 100, 172
    lq = []
    NG = 36 if fullg else 18
    for f in range(NG):
        it = []
        if f % 4 == 0: it.append(f"s_add_u32 s{qT1}, s38, {(f>>2)*4096}")
        lq.append((it, f"buffer_load_dwordx4 {R(vG+4*f,4)}, v2, s[20:23], s{qT1} offen offset:{(f&3)*1024}", ("g", f)))
    for u in range(4):
        lq.append(([f"s_add_u32 m0, s42, {1024*u}", f"s_add_u32 s43, s40, {(u>>1)*576 + (u&1)*16*73728}"], "buffer_load_dwordx4 v7, s[24:27], s43 offen lds", "x"))
    lq.append(([], "buffer_load_dword v9, v8, s[20:23], s41 offen", "x"))
    def issue():
        pre, ins, tag = lq.pop(0)
        for p in pre: e(p)
        k.vmem(ins, tag)
    lq = [(lq[NG+4][0], lq[NG+4][1], "mean")] + lq[:xpos] + lq[NG:NG+4] + lq[xpos:NG]
    k.srd(24, 96, S*D*2)
    e("s_cmp_eq_u32 s35, 0")
    e(f"s_cbranch_scc1 L_{name}_idle")
    for _ in range(g0): issue()
    tr("L-issued")
    pass
    k.wait(vm="V")
    tr("L-varr")
    e("s_barrier")
    O, E3, XM = 32, 48, 64
    seq = [("lo", f) for f in range(18)] + [("hi", f) for f in range(18)]
    if fullg: seq = [("lo", f) for f in range(36)]
    def step(kind, f):
        if fullg: return f
        pi, j = divmod(f, 9)
        return 18*pi + j + (9 if kind == "hi" else 0)
    RING = [96, 244, 20, 252, 12, 28]
    def rd(n):
        st = step(*seq[n]); b = RING[n % 6]
        for u in (0, 1): k.lds(f"ds_read2st64_b32 {R(b+2*u,2)}, v19 offset0:{4*st+2*u} offset1:{4*st+2*u+1}", ("b", n))
    for n in range(5): rd(n)
    k.wait(vm="mean")
    for i in range(16): e(f"v_sub_f32 v{E3+i}, 0, v9")
    rotdone = {}
    pend = []
    XR = 16
    for n, (kind, f) in enumerate(seq):
        while kind == "lo" and ("g", f) not in k.vm: issue()
        k.wait(vm=("g", f), lg=("b", n))
        accb = O if f < (18 if fullg else 9) else E3
        acc = R(accb, 16)
        if kind == "hi": assert rotdone[f] < n - 1
        a = (vG if kind == "lo" else vRot) + 4*f
        e(f"{MF32} {acc}, {R(a,4)}, {R(RING[n % 6],4)}, {'0' if n == 0 else acc}")
        if n + 5 < 36: rd(n + 5)
        if lq: issue()
        if kind == "lo" and not fullg:
            rr = vRot + 4*f
            pend += [(f"v_alignbit_b32 v{rr+r}, v{vG+4*f+r}, v{vG+4*f+r}, v10", None) for r in range(4)] + [(f"v_xor_b32 v{rr+r}, v11, v{rr+r}", f if r == 3 else None) for r in range(4)]
        if n == (xn if fullg else 17):
            assert "x" not in [z[2] for z in lq]
            pend += [(x, None) for x in ["v_bfe_u32 v7, v0, 2, 2", "v_lshlrev_b32 v7, 4, v7", "v_lshl_add_u32 v7, v6, 6, v7", "v_lshl_add_u32 v7, v5, 3, v7", "v_add_u32 v7, s42, v7",
                                         "v_xor_b32 v16, 16, v7", "v_xor_b32 v17, 32, v7", "v_xor_b32 v18, 48, v7"]]
            pend.append(("XREAD", None))
            adr_ = [(x, None) for x in [f"s_lshl_b32 s{qT0}, s{qT}, 11", f"s_add_u32 s{qT0}, s{qT0}, s36", f"s_add_u32 s{qT0}, s{qT0}, {WS_HC}", f"s_add_u32 s{qT1}, s{qT0}, {18*1024}",
                                         "v_and_b32 v2, 15, v0", "v_lshlrev_b32 v2, 4, v2", "v_lshl_add_u32 v2, v5, 8, v2", "v_bfe_u32 v8, v0, 4, 1", "v_lshl_add_u32 v2, v8, 10, v2"]]
            if not fullg: pend += adr_
            else: pend += [("s_nop 0", None)] * 3
            pend.append(("XWAIT", None))
            for r in range(16): pend += [(f"v_lshlrev_b32 v{XM+2*r}, 16, v{100+r}", None), (f"v_and_b32 v{XM+2*r+1}, 0xffff0000, v{100+r}", None)]
            pend.append(("OREADY", None))
            for i in range(16): pend += [(f"v_add_f32 v{XM+i}, v{XM+i}, v{O+i}", None), (f"v_sub_f32 v{XM+16+i}, v{XM+16+i}, v{O+i}", None)]
            if fullg: pend += adr_
        lim = r_lo if n < 18 else (r_hi if n < 31 else 6)
        if fullg: lim = 3 if n < 31 else 5
        if n == 35: lim = 999
        c_ = 0
        while pend and c_ < lim:
            t_, fin = pend[0]
            if t_ == "OREADY":
                if n < (22 if fullg else 30) or lq: break
                pend.pop(0); continue
            pend.pop(0)
            if t_ == "XREAD":
                k.wait(vm="x")
                xa = [7, 16, 17, 18]
                for u in range(4):
                    for z in (0, 1): k.lds(f"ds_read_b64 {R(100+4*u+2*z,2)}, v{xa[(u&1)+2*z]} offset:{2048*(u>>1)}", "xr")
                c_ += 8
            elif t_ == "XWAIT": k.wait(lg="xr")
            else:
                e(t_); c_ += 1
            if fin is not None: rotdone[fin] = n
        if n == 35: tailn = c_
    tr("L-mfma")
    pass
    e(f"s_mul_i32 s{qT2}, s{qRG}, 9")
    e(f"s_add_u32 s{qT2}, s{qT2}, s{qT}")
    e(f"s_lshl_b32 s{qT2}, s{qT2}, 8")
    e(f"s_add_u32 s{qT2}, s{qT2}, {WS_SS}")
    if tailn < 8: e(f"s_nop {7 - tailn}")
    for u in range(4):
        for i in range(8*(u&1), 8*(u&1)+8):
            x_ = XM + 16*(u>>1) + i
            e(f"v_add_f32 v{x_}, v{x_}, v{E3+i}")
        for i in range(4): e(f"v_cvt_pk_bf16_f32 v{140+4*u+i}, v{XM+8*u+2*i}, v{XM+8*u+2*i+1}")
        k.vmem(f"buffer_store_dwordx4 {R(140+4*u,4)}, v2, s[20:23], s{qT0 if u < 2 else qT1} offen offset:{512*(u&1)} sc1", "st")
    k.tailn = tailn
    e("v_mov_b32 v12, 0"); e("v_mov_b32 v13, 0")
    for i in range(16): e(f"v_dot2c_f32_bf16 v{12+(i&1)}, v{140+i}, v{140+i}")
    e("s_nop 2")
    e("v_add_f32 v12, v12, v13")
    k.vmem(f"buffer_store_dword v12, v3, s[20:23], s{qT2} offen sc1", "st")
    tr("L-stored")
    e(f"s_branch L_{name}_join")
    k.label(f"L_{name}_idle")
    e("s_waitcnt vmcnt(0)")
    e("s_barrier")
    if pf:
        e("s_bfe_u32 s77, s2, 0x20003")
        e("s_lshl_b32 s77, s77, 1")
        e(f"s_and_b32 s76, s{sW}, 1")
        e("s_add_u32 s77, s77, s76")
        sv = list(k.vm)
        k.prefetch_code(name, f"L_{name}_fin", 72, 39, 253, 1, part=(77, 8192))
        k.vm = sv
    if dtouch:
        e(f"s_cmp_eq_u32 s{sW}, 3")
        e(f"s_cbranch_scc1 L_{name}_ldr")
        k.srd(16, 8, D*F*2)
        e(f"s_lshr_b32 s65, s{sFS}, 2")
        e(f"s_lshl_b32 s65, s65, 4")
        e(f"s_add_u32 s65, s65, s{sMT}")
        e("s_mul_i32 s65, s65, 3")
        e(f"s_and_b32 s76, s{sFS}, 3")
        e("s_add_u32 s65, s65, s76")
        e("s_sub_u32 s65, s65, 1")
        e(f"s_mul_i32 s65, s65, {dtouch*8192}")
        e(f"s_add_u32 s65, s65, {D*F*2 - 192*dtouch*8192 if 192*dtouch*8192 < D*F*2 else 0}")
        e("v_lshlrev_b32 v38, 7, v0")
        for i in range(dtouch):
            e("buffer_load_dword v253, v38, s[16:19], s65 offen")
            e("s_add_u32 s65, s65, 8192")
        e(f"s_branch L_{name}_join")
        k.label(f"L_{name}_ldr")
    else:
        e(f"s_cmp_lg_u32 s{sW}, 3")
        e(f"s_cbranch_scc1 L_{name}_join")
    e("v_lshrrev_b32 v28, 3, v0")
    e("v_and_b32 v29, 7, v0")
    e("v_lshrrev_b32 v30, 2, v0")
    e("v_and_b32 v31, 6, v28")
    e("v_xor_b32 v29, v29, v31")
    e("v_lshlrev_b32 v29, 4, v29")
    e(f"v_mul_u32_u24 v{vW}, 9216, v28")
    e(f"v_add_u32 v{vW}, v{vW}, v29")
    if lin: e(f"v_lshlrev_b32 v{vW}, 4, v0")
    for i in range(1, 4): e(f"v_add_u32 v{vW+i}, {i*(8*9216-1024)}, v{vW}")
    e(f"v_lshlrev_b32 v{vL16}, 4, v0")
    e(f"s_lshr_b32 s68, s{sFS}, 1")
    e(f"s_and_b32 s69, s{sFS}, 1")
    e("s_mul_i32 s70, s68, 576")
    e("s_mul_i32 s71, s69, 320")
    e("s_add_u32 s71, s71, s70")
    e(f"s_and_b32 s{sT0}, s{sW}, 1")
    e(f"s_mul_i32 s{sT1}, s{sW}, {72*9216}")
    e(f"s_lshl_b32 s{sColW}, s71, 1")
    e(f"s_add_u32 s{sColW}, s{sColW}, s{sT1}")
    e(f"s_mul_i32 s{sLB1}, s{sW}, 9216")
    e(f"s_mul_i32 s{sHC}, s{sRG}, 36864")
    e(f"s_add_u32 s{sHC}, s{sHC}, {WS_HC}")
    e("v_and_b32 v32, 3, v0")
    e("v_lshlrev_b32 v32, 3, v32")
    e("v_bfe_u32 v33, v0, 3, 2")
    e("v_lshl_add_u32 v33, v33, 5, v32")
    e(f"v_lshl_add_u32 v{vA}, v30, 7, v33")
    for t in range(1, 4): e(f"v_xor_b32 v{vA+t}, {32*t}, v{vA}")
    for r in range(1, 3):
        for t in range(4): e(f"v_add_u32 v{vA+4*r+t}, {r*REG}, v{vA+t}")
    e("v_bfe_u32 v33, v0, 4, 1")
    e("v_lshl_add_u32 v33, v33, 5, v32")
    e(f"v_lshl_add_u32 v{vAN}, v30, 6, v33")
    e(f"v_xor_b32 v{vAN+1}, 32, v{vAN}")
    k.srd(SGU, 4, D*F*2)
    k.srd(16, 6, D*F*2)
    if ldsleep: e(f"s_sleep {ldsleep}")
    for c in range(3):
        b_, mat, hf = P1[c]
        srd = 16 if mat else SGU
        e(f"s_mov_b32 m0, {c*SLOT}")
        e(f"s_lshl_b32 s{sOff}, s71, 1")
        e(f"s_add_u32 s{sOff}, s{sOff}, {288*hf*9216}")
        e("s_mov_b32 s65, 9")
        k.label(f"L_{name}_ld{c}")
        for r in range(4): e(f"buffer_load_dwordx4 v{vW+r}, s[{srd}:{srd+3}], s{sOff} offen offset:{1024*r} lds")
        e("s_add_u32 m0, m0, 4096")
        e(f"s_add_u32 s{sOff}, s{sOff}, {32*9216}")
        e("s_sub_u32 s65, s65, 1")
        e("s_cmp_lg_u32 s65, 0")
        e(f"s_cbranch_scc1 L_{name}_ld{c}")
    k.label(f"L_{name}_join")
    e("v_cmp_eq_u32 vcc, 0, v0")
    e("v_bfrev_b32 v36, 1")
    e(f"v_mov_b32 v{vFv}, 1")
    e(f"v_cndmask_b32 v{vFl}, v36, 0, vcc")
    join_at = len(k.lines)
    e("v_lshrrev_b32 v28, 3, v0")
    e("v_and_b32 v29, 7, v0")
    e("v_lshrrev_b32 v30, 2, v0")
    e("v_and_b32 v31, 6, v28")
    e("v_xor_b32 v29, v29, v31")
    e("v_lshlrev_b32 v29, 4, v29")
    e(f"v_mul_u32_u24 v{vW}, 9216, v28")
    e(f"v_add_u32 v{vW}, v{vW}, v29")
    if lin: e(f"v_lshlrev_b32 v{vW}, 4, v0")
    for i in range(1, 4): e(f"v_add_u32 v{vW+i}, {i*(8*9216-1024)}, v{vW}")
    e(f"v_lshlrev_b32 v{vL16}, 4, v0")
    e(f"s_lshr_b32 s68, s{sFS}, 1")
    e(f"s_and_b32 s69, s{sFS}, 1")
    e("s_mul_i32 s70, s68, 576")
    e("s_mul_i32 s71, s69, 320")
    e("s_add_u32 s71, s71, s70")
    e(f"s_and_b32 s{sT0}, s{sW}, 1")
    e(f"s_mul_i32 s{sT1}, s{sW}, {72*9216}")
    e(f"s_lshl_b32 s{sColW}, s71, 1")
    e(f"s_add_u32 s{sColW}, s{sColW}, s{sT1}")
    e(f"s_mul_i32 s{sLB1}, s{sW}, 9216")
    e(f"s_mul_i32 s{sHC}, s{sRG}, 36864")
    e(f"s_add_u32 s{sHC}, s{sHC}, {WS_HC}")
    e("v_and_b32 v32, 3, v0")
    e("v_lshlrev_b32 v32, 3, v32")
    e("v_bfe_u32 v33, v0, 3, 2")
    e("v_lshl_add_u32 v33, v33, 5, v32")
    e(f"v_lshl_add_u32 v{vA}, v30, 7, v33")
    for t in range(1, 4): e(f"v_xor_b32 v{vA+t}, {32*t}, v{vA}")
    for r in range(1, 3):
        for t in range(4): e(f"v_add_u32 v{vA+4*r+t}, {r*REG}, v{vA+t}")
    e("v_bfe_u32 v33, v0, 4, 1")
    e("v_lshl_add_u32 v33, v33, 5, v32")
    e(f"v_lshl_add_u32 v{vAN}, v30, 6, v33")
    e(f"v_xor_b32 v{vAN+1}, 32, v{vAN}")
    k.srd(SGU, 4, D*F*2)
    k.srd(SU, 6, D*F*2)
    e("v_lshlrev_b32 v39, 2, v0")
    e(f"s_mul_i32 s{sSpin}, s{sRG}, 2304")
    e(f"s_add_u32 s{sSpin}, s{sSpin}, {WS_SS}")
    k.srd(SD, 8, D*F*2)
    k.srd(SO, 10, S*D*2)
    e(f"v_mul_u32_u24 v{vD}, 1152, v28")
    e(f"v_add_u32 v{vD}, v{vD}, v29")
    e("v_and_b32 v31, 3, v0")
    e("v_and_b32 v37, 2, v28")
    e("v_xor_b32 v31, v31, v37")
    e("v_lshlrev_b32 v31, 4, v31")
    e(f"v_mul_u32_u24 v{vN}, 9216, v30")
    e(f"v_add_u32 v{vN}, v{vN}, v31")
    e(f"v_mul_u32_u24 v{vDN}, 1152, v30")
    e(f"v_add_u32 v{vDN}, v{vDN}, v31")
    for i in range(1, 4):
        e(f"v_add_u32 v{vN+i}, {i*(16*9216-1024)}, v{vN}")
        e(f"v_add_u32 v{vD+i}, {i*(8*1152-1024)}, v{vD}")
        e(f"v_add_u32 v{vDN+i}, {i*(16*1152-1024)}, v{vDN}")
    e("s_lshl_b32 s72, s69, 5")
    e("s_add_u32 s72, s72, s70")
    e("s_add_u32 s72, s72, 256")
    e("s_xor_b32 s65, s69, 1")
    e("s_mul_i32 s73, s65, 320")
    e("s_add_u32 s73, s73, s70")
    e("s_lshl_b32 s74, s65, 5")
    e("s_add_u32 s74, s74, s70")
    e("s_add_u32 s74, s74, 256")
    e(f"s_lshl_b32 s{sColN}, s72, 1")
    e(f"s_add_u32 s{sColN}, s{sColN}, s{sT1}")
    e(f"s_add_u32 s{sColN}, s{sColN}, s{sT1}")
    e("s_mul_i32 s75, s69, 640")
    e("s_lshl_b32 s76, s69, 6")
    e("s_add_u32 s76, s76, 512")
    for i, (f, sh) in enumerate([(71, 6), (72, 3), (73, 6), (74, 3)]):
        e(f"s_lshl_b32 s{sRow+i}, s{sW}, {sh}")
        e(f"s_add_u32 s{sRow+i}, s{sRow+i}, s{f}")
        e(f"s_mul_i32 s{sRow+i}, s{sRow+i}, 1152")
        e(f"s_add_u32 s{sRow+i}, s{sRow+i}, s75")
    e(f"s_cmp_lt_u32 s{sW}, 2")
    e(f"s_cselect_b32 s{sRowN}, s71, s73")
    e(f"s_cselect_b32 s{sRowN+1}, s72, s74")
    e(f"s_cselect_b32 s{sLBN}, 0, 18432")
    for i, sh in ((0, 7), (1, 4)):
        e(f"s_lshl_b32 s65, s{sT0}, {sh}")
        e(f"s_add_u32 s{sRowN+i}, s{sRowN+i}, s65")
        e(f"s_mul_i32 s{sRowN+i}, s{sRowN+i}, 1152")
        e(f"s_add_u32 s{sRowN+i}, s{sRowN+i}, s76")
    e(f"s_lshl_b32 s65, s{sT0}, 10")
    e(f"s_add_u32 s{sLBN3}, s{sLBN}, s65")
    e(f"s_add_u32 s{sLBN3}, s{sLBN3}, 16384")
    e(f"s_lshl_b32 s65, s{sT0}, 13")
    e(f"s_add_u32 s{sLBN}, s{sLBN}, s65")
    e(f"s_lshl_b32 s{sLB2}, s{sW}, 13")
    e(f"s_lshl_b32 s{sLB3}, s{sW}, 10")
    e(f"s_lshl_b32 s{sPR}, s{sRG}, 1")
    e(f"s_add_u32 s{sPR}, s{sPR}, s69")
    e(f"s_mul_i32 s{sPR}, s{sPR}, {9*16384}")
    e(f"s_add_u32 s{sPR}, s{sPR}, {WS_P}")
    e(f"s_lshl_b32 s{sP}, s68, 8")
    e(f"s_add_u32 s{sP}, s{sP}, s{sPR}")
    e("s_lshl_b32 s65, s68, 11")
    e(f"s_add_u32 s{sPR}, s{sPR}, s65")
    e(f"s_mul_i32 s65, s{sRG}, {FLAG_STRIDE}")
    e(f"s_add_u32 s65, s65, {WS_FLAG}")
    e(f"s_mul_i32 s{sFH}, s{sFS}, 640")
    e(f"s_add_u32 s{sFH}, s{sFH}, s65")
    e(f"s_xor_b32 s{sFHp}, s{sFS}, 1")
    e(f"s_mul_i32 s{sHXp}, s{sFHp}, 18432")
    e(f"s_mul_i32 s{sFHp}, s{sFHp}, 640")
    e(f"s_add_u32 s{sFHp}, s{sFHp}, s65")
    e(f"s_add_u32 s{sFR}, s65, s75")
    e(f"s_add_u32 s{sFR}, s{sFR}, {80*128}")
    e(f"s_lshl_b32 s{sFRo}, s68, 2")
    e(f"s_add_u32 s{sFRo}, s{sFRo}, s{sFR}")
    e(f"s_mul_i32 s65, s{sRG}, {16*18432}")
    e(f"s_add_u32 s65, s65, {WS_HX}")
    e(f"s_add_u32 s{sHXp}, s{sHXp}, s65")
    e(f"s_mul_i32 s{sHXo}, s{sFS}, 18432")
    e(f"s_add_u32 s{sHXo}, s{sHXo}, s65")
    e(f"s_and_b32 s{sHR}, s68, 3")
    e(f"s_lshl_b32 s{sHR}, s{sHR}, 6")
    e("s_lshr_b32 s65, s68, 2")
    e("s_lshl_b32 s65, s65, 10")
    e(f"s_add_u32 s{sHR}, s{sHR}, s65")
    e(f"s_add_u32 s{sHR}, s{sHR}, s{sHC}")
    e(f"s_mul_i32 s{sOut}, s68, {4*73728}")
    e(f"s_mul_i32 s65, s{sRG}, 1152")
    e(f"s_add_u32 s{sOut}, s{sOut}, s65")
    e(f"s_lshl_b32 s{sMn}, s68, 4")
    e(f"s_lshl_b32 s65, s{sRG}, 7")
    e(f"s_add_u32 s{sMn}, s{sMn}, s65")
    e(f"s_add_u32 s{sMn}, s{sMn}, {WS_MEAN}")
    e("v_and_b32 v32, 3, v0")
    e("v_bfe_u32 v33, v0, 2, 2")
    e("v_bfe_u32 v34, v0, 4, 1")
    e("v_lshrrev_b32 v35, 5, v0")
    e("v_lshrrev_b32 v36, 4, v0")
    e(f"v_lshlrev_b32 v{vSt}, 4, v32")
    e(f"v_lshl_add_u32 v{vHo}, v33, 8, v{vSt}")
    e(f"v_lshl_add_u32 v{vHo}, v34, 3, v{vHo}")
    e(f"v_lshl_add_u32 v{vHo}, v35, 11, v{vHo}")
    e(f"v_lshl_add_u32 v{vSt}, v36, 6, v{vSt}")
    e(f"v_lshl_add_u32 v{vSt}, v33, 11, v{vSt}")
    e("v_and_b32 v36, 7, v0")
    e(f"v_lshlrev_b32 v{vPo}, 2, v36")
    vTch, vTcg, sTch, STG = (251 if not trace else 255), 254, 96, 8
    if any(x is not None for x in tch):
        e(f"s_lshl_b32 s78, s{sMT}, 1")
        e("s_add_u32 s78, s78, s69")
        e("s_lshl_b32 s78, s78, 2")
        e(f"s_add_u32 s78, s78, s{sW}")
        e("s_mul_i32 s79, s68, 1152")
        for i, (u0, cnt_, col) in enumerate([(0, 18, 2), (20, 18, 3), (40, 9, 4)]):
            e(f"s_sub_u32 s65, s78, {u0}")
            e("s_cmp_ge_u32 s65, 9")
            e(f"s_cselect_b32 s{sTch+i}, {640 - 9*64*9216}, 0")
            e(f"s_mul_i32 s77, s65, {64*9216}")
            e(f"s_add_u32 s{sTch+i}, s{sTch+i}, s77")
            e(f"s_add_u32 s{sTch+i}, s{sTch+i}, s79")
            e(f"s_add_u32 s{sTch+i}, s{sTch+i}, {128*col}")
            e(f"s_cmp_lt_u32 s65, {cnt_}")
            e(f"s_cselect_b32 s{sTch+i}, s{sTch+i}, 0x40000000")
        e(f"s_mul_i32 s79, s68, {576*1152}")
        for i in range(3):
            e(f"s_sub_u32 s65, s78, {52 + 16*i}")
            e(f"s_add_u32 s77, s65, {14*i}")
            e("s_lshl_b32 s77, s77, 14")
            e(f"s_add_u32 s{sTch+3+i}, s77, s79")
            e(f"s_cmp_lt_u32 s65, {14 if i < 2 else 13}")
            e(f"s_cselect_b32 s{sTch+3+i}, s{sTch+3+i}, 0x40000000")
        e(f"v_lshlrev_b32 v{vTch}, 8, v0")
        e(f"v_mul_u32_u24 v{vTcg}, 9216, v0")
    defer = []
    rest_ = k.lines[join_at + pubpos:]; k.lines = k.lines[:join_at + pubpos]
    while rest_ and rest_[0].strip().startswith(("s_cselect", "s_addc", "v_cndmask")): k.lines.append(rest_.pop(0))
    tr("L-setup")
    e("s_waitcnt vmcnt(0)")
    tr("L-ack")
    e(f"buffer_store_dword v{vFv}, v{vFl}, {SR}, s98 offen sc1")
    k.lines += rest_
    if clr_pre:
        for r in range(4): e(f"v_mov_b32 v{100+r}, -1")
        for T in [2*db + t for db in sent for t in ((0, 1) if db < 4 else (0,))]:
            e(f"s_add_u32 s{sT1}, s{sPR}, {T*16384}")
            for j in (0, 1): e(f"buffer_store_dwordx4 v[100:103], v{vL16}, {SR}, s{sT1} offen offset:{1024*j} sc1")
    e("s_barrier")
    tr("L-bar")
    k.vm = [("dma", c) for c in range(3) for _ in range(9)]; k.vm_done = len(k.vm)
    k.lg = []; k.lg_done = 0
    e("v_and_b32 v32, 15, v0")
    e("v_min_u32 v32, 8, v32")
    e("v_lshlrev_b32 v32, 7, v32")
    e(f"s_mul_i32 s98, s{sRG}, {FLAG_STRIDE}")
    e(f"s_add_u32 s98, s98, {WS_FLAG + 90*128}")
    e(f"s_mov_b32 s99, {spin_max}")
    k.label(f"L_{name}_hw")
    if psleep: e(f"s_sleep {psleep}")
    e(f"buffer_load_dword v33, v32, {SR}, s98 offen sc1")
    e("s_sub_u32 s99, s99, 1")
    e("s_waitcnt vmcnt(0)")
    e("v_cmp_eq_u32 vcc, 0, v33")
    e("s_cmp_eq_u32 s99, 0")
    e(f"s_cbranch_scc1 L_{name}_hg")
    e(f"s_cbranch_vccnz L_{name}_hw")
    k.label(f"L_{name}_hg")
    tr("L-flags")
    for it in hc_items(range(0, hc0)): emit_item(it)
    tr("L-hc0")
    ss_items = [("m", f"buffer_load_dword v{vH+t}, v39, {SR}, s{sSpin} offen offset:{256*t} sc1", "ss") for t in range(9)]
    lead = hc_items(range(hc0, 26)) + dma_items(3) + hc_items(range(26, 36)) + ss_items

    mf = []
    Q = [112, 144, 176, 208]
    def accP1(b, mat):
        if b == 4: return Q[0] + 16*mat
        return Q[3 - b % 2] if mat else Q[b % 2]
    acc2 = {0: Q[3], 1: Q[1], 2: Q[2], 3: Q[0], 4: Q[3]}
    last_m = {}
    def wide_rd(slot, ks, t):
        a = slot*SLOT + ks*4096
        r = a // REG
        return [(vA + 4*r + t, a - r*REG), (vA + 4*r + t, a - r*REG + 2048)]
    def add(c, rd, kind, ks, Dt, t, first, own, key):
        mf.append(dict(key=key, c=c, rd=rd, B=[(kind, 2*ks), (kind, 2*ks+1)], D=[Dt + 4*(t & 1), Dt + 8 + 4*(t & 1)], Dt=Dt, first=first, own=own))
    def order_jt(nk, tiles, kmajor):
        if chain_mode == 0:
            if kmajor: return [(j, t) for j in range(nk) for t in tiles]
            return [(j, t) for tp in range(0, len(tiles), 2) for j in range(nk) for t in tiles[tp:tp+2]]
        if kmajor or chain_mode == 1: return [(j, t) for kg in range(0, nk, 3) for t in tiles for j in range(kg, kg+3)]
        return [(j, t) for t in tiles for j in range(nk)]
    for c in range(NCH):
        slot = c % 4
        if c < 16:
            b, mat, hf = P1[c]
            for (j, t) in order_jt(9, range(4), c in (0, 2) or chain_mode == 0):
                add(c, wide_rd(slot, j, t), "hc", 9*hf + j, accP1(b, mat) + 16*(t >> 1), t, hf == 0, ("g", b), ("gu"[mat], b, t >> 1))
        elif c < 18:
            mat = P1[c][1]
            for (j, t) in order_jt(18, range(2), chain_mode == 0):
                add(c, [(vAN+t, j*2048), (vAN+t, j*2048+1024)], "hc", j, accP1(4, mat), t, True, ("g", 4), ("gu"[mat], 4, 0))
        else:
            nm = order[c-18]
            if nm == "N":
                for (j, t) in order_jt(18, range(2), chain_mode == 0):
                    add(c, [(vAN+t, j*2048), (vAN+t, j*2048+1024)], "hp" if j >= 9 else "h", j % 9, acc2[4], t, True, ("o", 4), ("o", 4, 0))
            else:
                db = int(nm[1]); isB = nm[0] == "B"
                for (j, t) in order_jt(9, range(4), nm in ("A0", "B0") or (chain_mode == 0 and not isB)):
                    add(c, wide_rd(slot, j, t), "hp" if isB else "h", j, acc2[db] + 16*(t >> 1), t, not isB, ("o", db), ("o", db, t >> 1))
    seq = []
    if chain_mode == 0: seq = [(n, hf) for n in range(len(mf)) for hf in (0, 1)]
    else:
        prevD = None
        for n0 in range(0, len(mf), 3):
            h0 = 1 if mf[n0]["D"][1] == prevD else 0
            seq += [(n0, h0), (n0+1, h0), (n0+2, h0), (n0+2, 1-h0), (n0+1, 1-h0), (n0, 1-h0)]
            prevD = mf[n0]["D"][1-h0]
    opened = set(); isfirst = []
    for g_, (n, hf) in enumerate(seq):
        last_m[mf[n]["key"]] = g_
        key = (mf[n]["c"], mf[n]["D"][hf])
        isfirst.append(mf[n]["first"] and key not in opened); opened.add(key)
    NFR = len(mf); assert NFR == 972
    NM = 2*NFR
    cN = 18 + order.index("N")
    nslot = {16: 0, 17: 1, cN: cN % 4}
    def breg(B):
        kind, j = B
        if kind == "hc": return f"a[{4*j}:{4*j+3}]"
        if kind == "hp": return f"a[{aHP+4*j}:{aHP+4*j+3}]"
        return R(vH + 4*j, 4)

    class Op:
        __slots__ = ("txt", "kind", "deps", "done", "prio", "min_gap", "tag", "cost", "soft")
        def __init__(s, txt, kind="v", deps=(), min_gap=0, prio=0, tag=None):
            s.txt, s.kind, s.deps, s.min_gap, s.prio, s.tag = txt, kind, list(deps), min_gap, prio, tag
            s.done = None; s.soft = 0
            s.cost = 8 if kind == "x" else (5 if kind == "m" or (kind == "v" and (txt.startswith("v_fma_") or txt.startswith("v_cvt_pk") or "0x" in txt)) else 4)
    ops = []
    c1 = -2.0 * math.log2(math.e) * math.sqrt(2.0 / math.pi); c2 = c1 * 0.044715
    chain = [("w", "ss")] + [f"v_add_f32 v{vH}, v{vH}, v{vH+t}" for t in range(1, 9)]
    chain += [f"v_mov_b32 v{vH+1}, v{vH}", None, f"v_permlane32_swap_b32 v{vH}, v{vH+1}", None,
              f"v_add_f32 v{vH}, v{vH}, v{vH+1}", f"v_mov_b32 v{vR[0]}, {fhex(1e-5)}", f"v_fmac_f32 v{vR[0]}, {fhex(1.0/576)}, v{vH}",
              f"v_mov_b32 v{vR[1]}, v{vR[0]}", None, f"v_permlane16_swap_b32 v{vR[0]}, v{vR[1]}", None]
    for hf in (0, 1):
        chain += [("x", f"v_rsq_f32 v{vH+3}, v{vR[hf]}"), None,
                  f"v_mul_f32 v{vC1[hf]}, {fhex(c1)}, v{vH+3}", f"v_mul_f32 v{vH+4}, v{vH+3}, v{vH+3}",
                  f"v_mul_f32 v{vH+4}, v{vH+4}, v{vH+3}", f"v_mul_f32 v{vC2[hf]}, {fhex(c2)}, v{vH+4}"]
    prev = None; skip = 0
    for it in chain:
        if it is None: skip = 2; continue
        if isinstance(it, tuple) and it[0] == "w": o = Op(None, "vmwait", tag=it[1], min_gap=ssg)
        elif isinstance(it, tuple): o = Op(it[1], "x")
        else: o = Op(it, "v")
        if prev is not None: o.deps = [(prev, skip)]
        o.prio = -1; ops.append(o); prev = o; skip = 0
    stats_last = prev
    tfree = {}; tc = [0]; hdone = {}; owner_ops = {}
    def gelu(b, t, pr0):
        AG, AU = accP1(b, 0) + 16*t, accP1(b, 1) + 16*t
        mg = last_m[("g", b, t)] + 5; mu = last_m[("u", b, t)] + 5
        Hb = vH + 16*b + 8*t
        lst = []; res = []
        for i in range(16):
            G, U = AG + i, AU + i
            T = vT + tc[0] % NT; tc[0] += 1
            pr = pr0 + i
            d0 = [(stats_last, 1)] + ([(tfree[T], 0)] if T in tfree else [])
            m1 = Op(f"v_mul_f32 v{T}, v{G}, v{G}", deps=d0, min_gap=mg, prio=pr)
            f1 = Op(f"v_fma_f32 v{T}, v{T}, v{vC2[i>>3]}, v{vC1[i>>3]}", deps=[(m1, 0)], prio=pr)
            m2 = Op(f"v_mul_f32 v{T}, v{T}, v{G}", deps=[(f1, 0)], prio=pr)
            ex = Op(f"v_exp_f32 v{T}, v{T}", "x", deps=[(m2, 0)], prio=pr)
            f2 = Op(f"v_fma_f32 v{T}, v{T}, v{vR[i>>3]}, v{vR[i>>3]}", deps=[(ex, 1)], prio=pr)
            rc = Op(f"v_rcp_f32 v{T}, v{T}", "x", deps=[(f2, 0)], prio=pr)
            m3 = Op(f"v_mul_f32 v{G}, v{G}, v{T}", deps=[(rc, 1)], prio=pr)
            m4 = Op(f"v_mul_f32 v{U}, v{U}, v{G}", deps=[(m3, 0)], min_gap=mu, prio=pr)
            tfree[T] = m3; res.append(m4)
            if gdrop:
                ex.deps = d0; ex.min_gap = mg; rc.deps = [(ex, 1)]
                lst += [ex, rc, m3, m4]
            else: lst += [m1, f1, m2, ex, f2, rc, m3, m4]
            if i & 1:
                cv = Op(f"v_cvt_pk_bf16_f32 v{Hb + i//2}, v{U-1}, v{U}", deps=[(res[i-1], 0), (res[i], 0), (stats_last, 1)], prio=pr + 0.7)
                lst.append(cv); hdone[Hb + i//2] = cv
        return lst
    spins = []
    def flag_ops(last_st, sttag, pub_txt, poll_fn, reg, ident, loads, d, prio, after=None, poll_at=0, nbreg=None):
        w = Op(None, "vmwait", deps=[(last_st, d[0])], tag=sttag, prio=prio)
        pb = Op(pub_txt, "m", deps=[(w, 0)], prio=prio, tag=("pub", ident))
        pl = Op(poll_fn(reg), "m", deps=[(pb, d[1])] + ([(regfree[reg], 0)] if reg in regfree else []), prio=prio, tag=("poll", ident))
        pl.soft = poll_at
        w2 = Op(None, "vmwait", deps=[(pl, d[2])] + ([(after, 0)] if after else []), tag=("poll", ident), prio=prio)
        cm = Op(f"v_cmp_eq_u32 vcc, 0, v{reg}", deps=[(w2, 0)], prio=prio)
        regfree[reg] = cm
        if nbreg is None: br = Op((ident, poll_fn(vSpin)), "chk", deps=[(cm, 1)], prio=prio)
        else: br = Op(f"s_cmp_eq_u64 vcc, 0\n    s_cselect_b32 s{nbreg}, s{sPR}, 0x40000000", "s", deps=[(cm, 1)], prio=prio)
        lst = [w, pb, pl, w2, cm, br]; pv = br
        for kind, txt, tag in loads:
            o = Op(txt, kind, deps=[(pv, ld_sp if (kind == "m" and pv.kind == "m") else 1)], prio=prio, tag=tag); lst.append(o); pv = o
        return lst
    regfree = {}
    vSpin = 253
    PREG = [vPoll, 254, 255]
    lastchk = None
    prev_hst = None
    for b in range(5):
        lst = []
        for t in ((0, 1) if b < 4 else (0,)): lst += gelu(b, t, b*40 + t*16)
        owner_ops[("g", b)] = lst; ops += lst
        nfr = 4 if b < 4 else 2
        so = Op(f"s_add_u32 s{sT0}, s{sHXo}, {4096*b}", "s", deps=[(prev_hst, 0)] if prev_hst else [], prio=b*40, min_gap=288)
        ops.append(so)
        for j in range(nfr):
            fr = 4*b + j
            st = Op(f"buffer_store_dwordx4 {R(vH+4*fr,4)}, v{vL16}, {SR}, s{sT0} offen offset:{1024*j} sc1", "m",
                    deps=[(hdone[vH+4*fr+r], 1) for r in range(4)] + [(so, 0)] + ([(prev_hst, 1)] if prev_hst else []), prio=b*40 + 8*j + 8, tag=("hst", b))
            ops.append(st); prev_hst = st
        grp = [x for x in hgrp if x[-1] == b]
        if not grp: continue
        loads = []
        for bb in grp[0]:
            loads += [("s", f"s_add_u32 s{sSp}, s{sHXp}, {4096*bb}", None)]
            loads += [("m", f"buffer_load_dwordx4 a[{aHP+16*bb+4*j}:{aHP+16*bb+4*j+3}], v{vL16}, {SR}, s{sSp} offen offset:{1024*j} sc1", ("hp", 4*bb+j)) for j in range(4 if bb < 4 else 2)]
        dd = (hpub_d, hpoll_d if b >= 3 else 2*hpoll_d, hchk_d)
        fl = flag_ops(prev_hst, ("hst", b), f"buffer_store_dword v{vFv}, v{vFl}, {SR}, s{sFH} offen offset:{128*b} sc1",
                      (lambda r, b=b: f"buffer_load_dword v{r}, off, {SR}, s{sFHp} offset:{128*b} sc1"), PREG[b % 2], f"h{b}", loads, dd, b*40 + 39, after=lastchk)
        ops += fl; lastchk = fl[-1]
    comp = sorted(range(5), key=lambda db: last_m[("o", db, 0 if db == 4 else 1)])
    prev_st = prev_hst
    tail_blocks = []
    stlast = {}
    def red_pub(db): return f"buffer_store_dword v{vFv}, v{vFl}, {SR}, s{sFRo} offen offset:{128*db} sc1"
    def red_poll(db, reg=vPoll): return f"buffer_load_dword v{reg}, v{vPo}, {SR}, s{sFR} offen offset:{128*db} sc1"
    def red_loads(db, base=None):
        base = sPR if base is None else base
        l = []
        for t in ((0, 1) if db < 4 else (0,)):
            T = 2*db + t
            l.append(("s", f"s_add_u32 s{sSp}, s{base}, {T*16384}", None))
            l += [("m", f"buffer_load_dwordx4 a[{8*T+4*j}:{8*T+4*j+3}], v{vL16}, {SR}, s{sSp} offen offset:{1024*j} sc1", ("rl", db)) for j in range(2)]
        return l
    state = {}; pollreg = {}
    clr_chk = None
    if sent:
        if clr_pre:
            dummy = Op("s_nop 0", "s", prio=-3, min_gap=60); ops.append(dummy)
            fl = flag_ops(dummy, "clr", red_pub(4), (lambda r: red_poll(4, r)), PREG[2], "clr", [], (0, poll_d, chk_d), 500, after=lastchk, poll_at=clr_poll)
            fl[0].prio = fl[1].prio = -3
        else:
            late_clr = clr_at > 1000
            vN_ = 24 if late_clr else vH + 60
            gl_ = [(o, 1) for o in owner_ops[("g", 4)]] if late_clr else []
            mv = [Op(f"v_mov_b32 v{vN_+r}, -1", min_gap=clr_at, prio=-3, deps=gl_) for r in range(4)]
            ops += mv; pv = None
            for db in sent:
                for t in ((0, 1) if db < 4 else (0,)):
                    so = Op(f"s_add_u32 s{sT1}, s{sPR}, {(2*db+t)*16384}", "s", deps=[(pv, 0)] if pv else [], min_gap=clr_at, prio=-3)
                    ops.append(so)
                    for j in (0, 1):
                        st = Op(f"buffer_store_dwordx4 {R(vN_,4)}, v{vL16}, {SR}, s{sT1} offen offset:{1024*j} sc1", "m",
                                deps=[(so, 0)] + [(x, 1) for x in mv] + ([(pv, clr_sp)] if pv else []), prio=-3, tag="clr")
                        ops.append(st); pv = st
            if not late_clr:
                for r in range(4): hdone[vN_+r].deps.append((pv, 2))
            fl = flag_ops(pv, "clr", red_pub(4), (lambda r: red_poll(4, r)), PREG[2], "clr", [], (pub_d, poll_d, chk_d), 500, after=lastchk, poll_at=clr_poll)
        ops += fl; lastchk = fl[-1]; clr_chk = fl[-1]
    for ci, db in enumerate(comp):
        lst = []
        for t in ((0, 1) if db < 4 else (0,)):
            a = acc2[db] + 16*t; mg = last_m[("o", db, t)] + 5
            pr = 1000 + ci*100 + t*40
            pv = None
            for ee in (0, 1):
                cvs = []
                for j in range(4*ee, 4*ee+4):
                    o = Op(f"v_cvt_pk_bf16_f32 v{a+j}, v{a+2*j}, v{a+2*j+1}", min_gap=mg, prio=pr + j, deps=[(pv, 0)] if pv else [])
                    lst.append(o); pv = o
                so = Op(f"s_add_u32 s{sT0}, s{sP}, {(2*db+t)*16384 + ee*8192}", "s", deps=[(prev_st, 0)], min_gap=mg, prio=pr + 4*ee)
                st = Op(f"buffer_store_dwordx4 {R(a+4*ee,4)}, v{vSt}, {SR}, s{sT0} offen sc1", "m", deps=[(pv, 1), (so, 0), (prev_st, st_sp)] + ([(clr_chk, 1)] if db in sent else []), prio=pr + 4*ee + 4, tag=("st", db))
                lst += [so, st]; prev_st = st
        owner_ops[("o", db)] = lst; ops += lst
        est = last_m[("o", db, 0 if db == 4 else 1)] + 16 + st_sp
        if db in sent:
            state[db] = "sent"
            sl = dict(sload)
            if db in sl:
                pv = lastchk
                for kind, txt, tag in red_loads(db):
                    o = Op(txt, kind, deps=[(pv, 1), (prev_st, pub_d)], prio=900 + ci, tag=tag); o.soft = sl[db]; ops.append(o); pv = o
                lastchk = pv; state[db] = "sentl"
            continue
        pat = rpoll[ci] if ci < len(rpoll) else 5000
        fl = flag_ops(prev_st, ("st", db), red_pub(db), (lambda r, db=db: red_poll(db, r)), PREG[ci % 3], f"r{db}", red_loads(db, 96 + db if nb else None), (pub_d, poll_d, chk_d), 900 + ci, after=lastchk, poll_at=pat, nbreg=(96 + db if nb else None))
        tp = max(est + pub_d + poll_d, pat)
        if tp + chk_d < NM - 24: ops += fl; lastchk = fl[-1]; state[db] = "done"
        elif tp < NM - 6: ops += fl[:3]; state[db] = "polled"; pollreg[db] = PREG[ci % 3]
        elif est + pub_d < NM - 6: ops += fl[:2]; state[db] = "pub"
        else: state[db] = "none"
    glast = [(o, 1) for o in owner_ops[("g", 4)]]
    pv = None
    for j in range(5):
        if j < 4:
            s1 = Op(f"s_lshl_b32 s{sHo}, s75, 5", "s", deps=glast + ([(pv, 0)] if pv else []), prio=890, min_gap=res_at)
        else:
            s1 = Op(f"s_lshl_b32 s{sHo}, s76, 5", "s", deps=[(pv, 0)], prio=890)
        s2_ = Op(f"s_add_u32 s{sHo}, s{sHo}, s{sHR}", "s", deps=[(s1, 0)], prio=890)
        lst = [s1, s2_]; pv = s2_
        if 0 < j < 4:
            s3 = Op(f"s_add_u32 s{sHo}, s{sHo}, {4096*j}", "s", deps=[(s2_, 0)], prio=890); lst.append(s3); pv = s3
        ld = Op(f"buffer_load_dwordx2 v[{vT+2*j}:{vT+2*j+1}], v{vHo}, {SR}, s{sHo} offen sc1", "m", deps=[(pv, 0)], prio=890, tag="res")
        ops += lst + [ld]; pv = ld
    mo = Op(f"v_and_b32 v{vT+11}, 60, v39", deps=glast, prio=890) if False else None
    m1_ = Op(f"v_lshrrev_b32 v{vT+11}, 2, v{vL16}", deps=glast, prio=889)
    m2_ = Op(f"v_and_b32 v{vT+11}, 12, v{vT+11}", deps=[(m1_, 0)], prio=889)
    ops += [m1_, m2_, Op(f"buffer_load_dword v{vT+10}, v{vT+11}, {SR}, s{sMn} offen", "m", deps=[(pv, 1), (m2_, 1)], prio=890, tag="res")]
    for i, gp in enumerate(tch):
        if gp is None: continue
        for z in (0, 1):
            if i < 3: txt = f"buffer_load_dword v{vSpin}, v{vTcg}, s[{(SGU, SU)[z]}:{(SGU, SU)[z]+3}], s{sTch+i} offen"
            else: txt = f"buffer_load_dword v{vSpin}, v{vTch}, s[{SD}:{SD+3}], s{sTch+i} offen offset:{128*z}"
            ops.append(Op(txt, "m", min_gap=gp, prio=-2, tag="touch"))
    if otouch:
        o1 = Op(f"v_and_b32 v{PREG[2]}, 3, v0", min_gap=otouch, prio=-2)
        o2 = Op(f"v_mul_u32_u24 v{PREG[2]}, 73728, v{PREG[2]}", deps=[(o1, 0)], prio=-2)
        o3 = Op(f"buffer_load_dword v{vSpin}, v{PREG[2]}, s[{SO}:{SO+3}], s{sOut} offen", "m", deps=[(o2, 1)], prio=-2, tag="touch")
        ops += [o1, o2, o3]
    pending = sorted(ops, key=lambda o: o.prio)

    def ready(o, g):
        if g < o.min_gap or g < o.soft: return False
        for d, lat in o.deps:
            if d.done is None or g < d.done + lat: return False
        return True
    def take(kinds, g, maxcost=99):
        for idx, o in enumerate(pending[:260]):
            if o.kind in kinds and o.cost <= maxcost and ready(o, g):
                pending.pop(idx); o.done = g
                return o
        return None
    nforced = [0]
    def force(o, g):
        if o.done is not None: return
        for d, lat in o.deps: force(d, g)
        assert g >= o.min_gap, (o.txt, g, o.min_gap)
        pending.remove(o); o.done = g - 1
        e("s_nop 1"); emit_op(o); nforced[0] += 1
    def emit_check(ident, poll_txt):
        e(f"s_cbranch_vccnz L_{name}_spin{ident}")
        k.label(f"L_{name}_ret{ident}")
        spins.append((ident, poll_txt))
    def emit_op(o):
        assert not defer or o.prio == -1, o.txt
        if o.kind == "vmwait":
            if o.tag == "ss": assert k.vm.count("ss") == 9 and not defer
            if o.tag != "ss": tr(f"pre-wait{o.tag}")
            k.wait(vm=o.tag)
            if o.tag != "ss": tr(f"post-wait{o.tag}")
        elif o.kind == "chk":
            if "poll" not in drop: emit_check(*o.txt); tr(f"post-chk{o.txt[0]}")
        elif o.kind == "m":
            tg = o.tag[0] if isinstance(o.tag, tuple) else o.tag
            if tg in drop: k.vm.insert(0, o.tag); k.vm_done += 1
            else: k.vmem(o.txt, o.tag)
        else: e(o.txt)
    cur_nslot = [0]
    def emit_half(hidx):
        n, ei = divmod(hidx, 2)
        fr = aF + 4*(n % NF)
        c_ = mf[n]["c"]
        if c_ in nslot and nslot[c_] != cur_nslot[0]:
            d_ = (nslot[c_] - cur_nslot[0]) * SLOT
            for t in (0, 1): e(f"v_add_u32 v{vAN+t}, {d_ & 0xffffffff}, v{vAN+t}")
            cur_nslot[0] = nslot[c_]
        ar, off = mf[n]["rd"][ei]
        k.lds(f"ds_read_b64_tr_b16 a[{fr+2*ei}:{fr+2*ei+1}], v{ar} offset:{off}", ("f", n))
    def barrier(c):
        assert k.vm.count(("dma", c)) == 9, c
        if c > 17: tr(f"pre-bar{c}")
        if trlead == 2 or c < 9: tr(f"L-pre-bar{c}")
        k.wait(vm=[("dma", c)], lg0=(c > 0))
        if trlead == 2 or c < 9: tr(f"L-waited{c}")
        if nobar == 0 or c < 4 or (nobar == 2 and c % 2 == 0): e("s_barrier")
        if trlead != 2 and c < 9: tr(f"L-post-bar{c}")
    stamp_mid(k, stamps, 0)
    bar_done = 0
    rh = 0
    for _ in range(2*P): emit_half(rh); rh += 1
    vq = list(lead)
    forced = 0
    k.wait(lg=("f", 0), vm=mf[0]["B"][seq[0][1]])
    firstseen = {}; last_vm = [-9]
    over = 0; credit = 0.0
    dls = [(0, 8*72 - 4), (1, 12*72 - 4), (2, 16*72 - 4), (3, dfin - (16 if chain_mode == 0 else 2)), (4, dfin)]
    for g in range(NM):
        n, hf = seq[g]
        m = mf[n]; c = m["c"]
        assert rh <= 2*(n + NF), (g, rh)
        assert rh >= 2*n + 2 and k._need(k.lg, k.lg_done, ("f", n)) is None
        B = m["B"][hf]
        if B[0] in ("hc", "hp"): assert B in k.vm and k._need(k.vm, k.vm_done, B) is None, (g, B)
        if B[0] == "h":
            regs = range(vH + 4*B[1], vH + 4*B[1] + 4)
            for r in regs: force(hdone[r], g - 1)
            if any(hdone[r].done >= g - 2 for r in regs): e("s_nop 1")
        if isfirst[g]:
            for own, lst in owner_ops.items():
                if own == m["own"] or own not in firstseen: continue
                if m["Dt"] in firstseen[own]:
                    for o in lst: force(o, g - 1)
                    if any(o.done >= g - 2 for o in lst): e("s_nop 1")
            firstseen.setdefault(m["own"], set()).add(m["Dt"])
        fr = aF + 4*(n % NF); Dr = R(m["D"][hf], 4)
        e(f"{MF16} {Dr}, a[{fr}:{fr+3}], {breg(B)}, {'0' if isfirst[g] else Dr}")
        if g == 287: stamp_mid(k, stamps, 1)
        if g == 1295: stamp_mid(k, stamps, 2)
        slots = 2; free_first = True
        E = 36*(c+1) - 1
        if c + 1 < NCH and g == 2*(E - P + X) + 1:
            while k.vm.count(("dma", c+1)) < 9: emit_item(vq.pop(0)); forced += 1
            barrier(c + 1); bar_done = c + 1; free_first = False; slots -= 1
            for _ in range(padn): e("s_nop 15")
            if c + 1 + dist < NCH: vq += dma_items(c + 1 + dist)
        if g + 1 < NM:
            n1, h1 = seq[g+1]
            nb_ = mf[n1]["B"][h1]
            if chain_mode == 0 or nb_[0] == "hp": nb_ = mf[n1]["B"][1]
            vmt = nb_ if nb_[0] in ("hc", "hp") else None
            if vmt is not None and vmt not in k.vm:
                if vmt[0] == "hc":
                    while vmt not in k.vm: emit_item(vq.pop(0)); forced += 1
                else: force([o for o in ops if o.tag == vmt and o.kind == "m"][0], g)
            if k.wait(lg=("f", n1), vm=vmt):
                if not free_first: slots -= 1
                free_first = False
        if free_first:
            if vq and vq[0][0] == "s": emit_item(vq.pop(0))
            else:
                o = take(("s", "vmwait", "chk"), g)
                if o: emit_op(o)
                elif defer and len(defer[0]) == 1 and defer[0][0].startswith("s_"): e(defer.pop(0)[0])
        def can_half(): return rh < NM and mf[rh//2]["c"] <= bar_done and rh <= g + 2*P + 1
        nrd = 0
        while can_half() and nrd < (2 if rh < g + 2*P else 1):
            emit_half(rh); rh += 1; slots -= 1; nrd += 1
        if slots > 0:
            inlead = c < 4
            nm_ = sum(1 for x in vq if x[0] == "m")
            if vq and vq[0][0] == "m" and vq[0][2] == "ss": go = True
            elif g < fast: go = True
            elif nm_ > 9 or inlead: go = g - last_vm[0] >= (lrate if inlead else 4)
            else: go = g - last_vm[0] >= dmar
            if vq and vq[0][0] == "m" and go:
                emit_item(vq.pop(0)); slots -= 1; last_vm[0] = g
            else:
                o = take(("m",), g)
                if o: emit_op(o); slots -= 1
        if defer and slots > 0:
            for x in defer.pop(0): e(x); slots -= 1
        rate = 0.0; cum = 0
        for b_, dl_ in dls:
            cum += sum((2 if o.kind == "x" else 1) for o in owner_ops[("g", b_)] if o.done is None)
            if cum: rate = max(rate, cum / max(dl_ - g, 1))
        credit = min(credit + rate*margin, 3.0)
        allow = max(slots, min(int(credit), 2 + (rate > 1.6)))
        used = 0
        xo = None
        if allow >= 2 or (allow >= 1 and (credit >= 1.0 or rate == 0)):
            xo = take(("x",), g)
            if xo: allow -= 2; used += 2; xo.done = None
        while allow > 0:
            o = take(("v",), g)
            if not o: break
            emit_op(o); allow -= 1; used += 1
        if xo: xo.done = g; emit_op(xo)
        credit = max(credit - used, -2.0)
        over += max(0, used - max(slots, 0))
    assert not vq
    tr("loopend")
    e("s_nop 7")
    g = NM + 10
    while pending:
        o = take(("v", "x", "s", "m", "vmwait", "chk"), g); g += 1
        if o: emit_op(o)
    stamp_mid(k, stamps, 3)
    tr("laststores")
    vDo = vH; vTp = vH + 24; vA0 = vH + 32
    def publish(db):
        k.wait(vm=("st", db)); k.vmem(red_pub(db), ("pub", db))
    def consume(db, reg):
        e(f"v_cmp_eq_u32 vcc, 0, v{reg}")
        ld = red_loads(db)
        e(ld[0][1])
        emit_check(f"r{db}", red_poll(db, vSpin))
        tr(f"tail-chk{db}")
        for kind, txt, tag in ld[1:]:
            if kind == "s": e(txt)
            else: k.vmem(txt, tag)
    def reduce_blk(db):
        Dr = R(vDo + 4*db, 4)
        k.wait(vm=("rl", db))
        for t in ((0, 1) if db < 4 else (0,)):
            for j in range(2):
                a = 8*(2*db+t) + 4*j
                e(f"{MF16} {Dr}, {R(vA0 + 4*t, 4)}, a[{a}:{a+3}], {Dr}")
    flagged = [db for db in comp if db not in sent]
    for db in flagged:
        if state[db] == "none": publish(db); state[db] = "pub"
    catch = []
    if nb:
        for db in flagged:
            if state[db] == "done":
                e(f"s_cmp_lg_u32 s{96+db}, s{sPR}")
                e(f"s_cbranch_scc1 L_{name}_cu{db}")
                k.label(f"L_{name}_cb{db}")
                catch.append(db)
    for db in flagged:
        if state[db] == "polled":
            k.wait(vm=("poll", f"r{db}")); tr("tail-pollw"); consume(db, pollreg[db]); state[db] = "late"
    rest = [db for db in flagged if state[db] == "pub"]
    for db in rest: k.vmem(red_poll(db, vTp + db), ("tp", db))
    def issue_loads(db, track=True):
        for kind, txt, tag in red_loads(db):
            if kind == "s" or not track: e(txt)
            else: k.vmem(txt, tag)
    for db in comp:
        if state[db] == "sent" and (db != comp[-1] or noack): issue_loads(db)
    vOo, vMo = vH + 40, vH + 41
    e(f"v_and_b32 v{vMo}, 3, v0")
    e(f"v_mul_u32_u24 v{vOo}, 73728, v{vMo}")
    e(f"v_bfe_u32 v{vMo}, v0, 2, 3")
    e(f"v_lshl_add_u32 v{vOo}, v{vMo}, 3, v{vOo}")
    e(f"v_lshrrev_b32 v{vTp+6}, 5, v0")
    e(f"v_lshl_add_u32 v{vMo}, v{vTp+6}, 30, v{vOo}")
    e(f"v_lshl_add_u32 v{vOo}, v{vTp+6}, 6, v{vOo}")
    e(f"v_and_b32 v{vTp+6}, 1, v0")
    e(f"v_lshlrev_b32 v{vTp+6}, 4, v{vTp+6}")
    e(f"v_mov_b32 v{vTp+7}, 0x3f80")
    e(f"v_lshlrev_b32 v{vTp+7}, v{vTp+6}, v{vTp+7}")
    e(f"v_bfe_u32 v{vTp+6}, v0, 1, 3")
    for r in range(8):
        e(f"v_cmp_eq_u32 vcc, {r}, v{vTp+6}")
        e("s_nop 1")
        e(f"v_cndmask_b32 v{vA0+r}, 0, v{vTp+7}, vcc")
    k.wait(vm="res")
    for j in range(5):
        for u in range(2):
            e(f"v_lshlrev_b32 v{vDo+4*j+2*u}, 16, v{vT+2*j+u}")
            e(f"v_and_b32 v{vDo+4*j+2*u+1}, 0xffff0000, v{vT+2*j+u}")
        for u in range(4): e(f"v_add_f32 v{vDo+4*j+u}, v{vDo+4*j+u}, v{vT+10}")
    e("s_nop 1")
    e(f"s_add_u32 s{sT0}, s{sOut}, s75")
    e(f"s_add_u32 s{sT1}, s{sOut}, s76")
    stored = set()
    def out_store(j):
        a = vDo + 4*j
        e(f"v_cvt_pk_bf16_f32 v{a}, v{a}, v{a+1}")
        e(f"v_cvt_pk_bf16_f32 v{a+1}, v{a+2}, v{a+3}")
        if j < 4: k.vmem(f"buffer_store_dwordx2 v[{a}:{a+1}], v{vOo}, s[{SO}:{SO+3}], s{sT0} offen offset:{128*j}{outf}", "out")
        else: k.vmem(f"buffer_store_dwordx2 v[{a}:{a+1}], v{vMo}, s[{SO}:{SO+3}], s{sT1} offen{outf}", "out")
        stored.add(j)
    dn = [db for db in comp if state[db] == "done"]
    for db in dn[:2]: reduce_blk(db)
    tr("tail-a")
    for db in rest:
        k.wait(vm=("tp", db)); consume(db, vTp + db)
    if comp[-1] in sent:
        if not noack:
            k.wait(vm=("st", comp[-1]))
            tr("tail-ack")
            issue_loads(comp[-1])
    for db in dn[2:]: reduce_blk(db)
    for db in flagged:
        if state[db] in ("late", "pub"): reduce_blk(db)
    if early_out:
        e("s_nop 7")
        for db in flagged: out_store(db)
    vZ = vH + 44
    for db in [x for x in comp if x in sent]:
        Dz = R(vZ + 4*db, 4)
        k.wait(vm=("rl", db))
        e(f"s_mov_b32 s{sSpin}, {retry_max}")
        k.label(f"L_{name}_sr{db}")
        first = True
        for t in ((0, 1) if db < 4 else (0,)):
            for j in range(2):
                a = 8*(2*db+t) + 4*j
                e(f"{MF16} {Dz}, {R(vA0 + 4*t, 4)}, a[{a}:{a+3}], {'0' if first else Dz}"); first = False
        e(f"s_sub_u32 s{sSpin}, s{sSpin}, 1")
        e("s_nop 6")
        e(f"v_cmp_u_f32 vcc, v{vZ+4*db}, v{vZ+4*db+1}")
        e(f"v_cmp_u_f32 s[70:71], v{vZ+4*db+2}, v{vZ+4*db+3}")
        e("s_nop 0")
        e("s_or_b64 s[70:71], s[70:71], vcc")
        e(f"s_cbranch_scc1 L_{name}_sx{db}")
        k.label(f"L_{name}_sd{db}")
        tr(f"tail-sent{db}")
        for u in range(4): e(f"v_add_f32 v{vDo+4*db+u}, v{vDo+4*db+u}, v{vZ+4*db+u}")
        if early_out: out_store(db)
    e("s_nop 7")
    for j in range(5):
        if j not in stored: out_store(j)
    if trace:
        tr("end")
        e("s_waitcnt vmcnt(0)")
        tr("drained")
        e("s_lshl_b32 s58, s2, 2")
        e(f"s_add_u32 s58, s58, s{sW}")
        e("s_lshl_b32 s58, s58, 8")
        e(f"s_add_u32 s58, s58, {WS_END + 8*131072}")
        e(f"s_mov_b32 s{SW+2}, {WS_END + 12*131072}")
        e("v_lshlrev_b32 v252, 2, v0")
        e(f"buffer_store_dword v251, v252, {SR}, s58 offen")
        open("trace_labels.txt", "w").write("\n".join(k.tr))
    stamp_end(k, stamps, 66, kidx, sW, 4)
    k.label(f"L_{name}_end")
    e("s_endpgm")
    for ident, ptxt in spins:
        k.label(f"L_{name}_spin{ident}")
        e(f"s_mov_b32 s{sSpin}, {spin_max}")
        k.label(f"L_{name}_spinl{ident}")
        e(ptxt)
        e(f"s_sub_u32 s{sSpin}, s{sSpin}, 1")
        e("s_waitcnt vmcnt(0)")
        e(f"v_cmp_eq_u32 vcc, 0, v{vSpin}")
        e(f"s_cmp_eq_u32 s{sSpin}, 0")
        e(f"s_cbranch_scc1 L_{name}_ret{ident}")
        e(f"s_cbranch_vccnz L_{name}_spinl{ident}")
        e(f"s_branch L_{name}_ret{ident}")
    for db in catch:
        k.label(f"L_{name}_cu{db}")
        e(f"s_mov_b32 s{sSpin}, {spin_max}")
        k.label(f"L_{name}_cul{db}")
        e(red_poll(db, vSpin))
        e(f"s_sub_u32 s{sSpin}, s{sSpin}, 1")
        e("s_waitcnt vmcnt(0)")
        e(f"v_cmp_eq_u32 vcc, 0, v{vSpin}")
        e(f"s_cmp_eq_u32 s{sSpin}, 0")
        e(f"s_cbranch_scc1 L_{name}_cug{db}")
        e(f"s_cbranch_vccnz L_{name}_cul{db}")
        k.label(f"L_{name}_cug{db}")
        issue_loads(db, track=False)
        e("s_waitcnt vmcnt(0)")
        e(f"s_branch L_{name}_cb{db}")
    for db in sent:
        k.label(f"L_{name}_sx{db}")
        e(f"s_cmp_eq_u32 s{sSpin}, 0")
        e(f"s_cbranch_scc1 L_{name}_sd{db}")
        issue_loads(db, track=False)
        e("s_waitcnt vmcnt(0)")
        e(f"s_branch L_{name}_sr{db}")
    k.label(f"L_{name}_fin")
    k.info = (forced, nforced[0], over, dict(state))
    return k, (512, 102, 256), (256, 256, 4*SLOT + 12288)
```

```python
from dsl import *
from layout import *
from k123 import stamp_begin, stamp_mid, stamp_end, Tracer, emit_wprefetch, emit_touch_wg, MF32, R
import math
from k4b import emit_pack_job
DPP = "quad_perm:[1,0,3,2] row_mask:0xf bank_mask:0xf"


def pack_wg(k, name, sW, nw, id0, job0, njob, pk, stamps, kidx):
    e = k.e
    e("s_and_b32 s21, s2, 7")
    e(f"s_sub_u32 s22, s2, {id0}")
    e("s_lshr_b32 s22, s22, 3")
    e(f"s_mul_i32 s22, s22, {nw}")
    e(f"s_add_u32 s22, s22, s{sW}")
    e(f"s_cmp_ge_u32 s22, {njob}")
    e(f"s_cbranch_scc1 L_{name}_end")
    e(f"s_add_u32 s22, s22, {job0}")
    e(f"s_mul_i32 s23, s{sW}, 12288")
    pk(k, 21, 22, 23)
    stamp_end(k, stamps, 46, kidx, sW, 0)


def xt_load(k, s0):
    k.e(f"s_load_dwordx4 s[{s0}:{s0+3}], s[0:1], {KA_WG}")
    k.e(f"s_load_dwordx2 s[{s0+4}:{s0+5}], s[0:1], {KA_WD}")
def xt_prep(k, s0, sU, lane, va, spec):
    e = k.e
    tmp = va + len(spec)
    e(f"s_and_b32 s{s0+7}, s2, 7")
    for n_, (m_, lo, hi) in enumerate(spec):
        e(f"s_add_u32 s{s0+6}, s{sU}, {lo}")
        e(f"s_mul_i32 s{s0+20+n_}, s{s0+7}, {1152 if m_ != 'd' else 576*1152}")
        e(f"s_cmp_lt_u32 s{sU}, {hi - lo}")
        e(f"s_cselect_b32 s{s0+20+n_}, s{s0+20+n_}, 0x40000000")
        e(f"s_lshl_b32 s{s0+6}, s{s0+6}, 6")
        e(f"s_and_b32 s{s0+6}, s{s0+6}, 0x3fff")
        e(f"v_add_u32 v{va+n_}, s{s0+6}, {lane}")
        if m_ in "GU":
            e(f"v_lshrrev_b32 v{tmp}, 2, v{va+n_}")
            e(f"v_mul_u32_u24 v{va+n_}, 9216, v{tmp}")
            e(f"v_and_b32 v{tmp}, 1, {lane}")
            e(f"v_lshl_add_u32 v{va+n_}, v{tmp}, 7, v{va+n_}")
            e(f"v_bfe_u32 v{tmp}, {lane}, 1, 1")
            e(f"v_mul_u32_u24 v{tmp}, 640, v{tmp}")
            e(f"v_add_u32 v{va+n_}, v{va+n_}, v{tmp}")
        elif m_ != "d":
            e(f"v_mul_u32_u24 v{tmp}, 7282, v{va+n_}")
            e(f"v_lshrrev_b32 v{tmp}, 16, v{tmp}")
            e(f"v_mul_u32_u24 v{tmp}, {9216-1152}, v{tmp}")
            e(f"v_lshl_add_u32 v{va+n_}, v{va+n_}, 7, v{tmp}")
        else: e(f"v_lshlrev_b32 v{va+n_}, 7, v{va+n_}")
    for m_ in sorted(set(x[0] for x in spec)):
        i = "gud".index(m_.lower())
        k.srd(s0+8+4*i, s0+2*i, D*F*2)
def xt_fire(k, s0, va, vd, spec, fl=""):
    for n_, (m_, lo, hi) in enumerate(spec):
        i = "gud".index(m_.lower())
        k.e(f"buffer_load_dword v{vd}, v{va+n_}, s[{s0+8+4*i}:{s0+11+4*i}], s{s0+20+n_} offen{fl}")

def gen_k1(name="fwd_kernel", stamps=False, pf=True, wpf=None, trace=False, xf="", xt=None, pk=None, jobs=(0, 0), sf="", wf="", hc16=False, tlb=0):
    NMAIN, NWT = 192, 64
    NP = 8 * (-(-jobs[1] // 4))
    k = Kern(name); e = k.e
    tr = Tracer(k, trace, 199)
    sW, sS2, sCT, sT0, sT1, sT2, sT = 20, 21, 22, 23, 24, 25, 19
    e(f"s_cmp_ge_u32 s2, {NMAIN + NWT + NP}")
    e(f"s_cbranch_scc1 L_{name}_end")
    stamp_begin(k, stamps)
    e(f"s_load_dwordx2 s[4:5], s[0:1], {KA_X}")
    e(f"s_load_dwordx2 s[6:7], s[0:1], {KA_WS}")
    e("v_lshrrev_b32 v1, 6, v0")
    e("v_and_b32 v2, 63, v0")
    e(f"v_readfirstlane_b32 s{sW}, v1")
    if NP:
        e(f"s_cmp_ge_u32 s2, {NMAIN + NWT}")
        e(f"s_cbranch_scc1 L_{name}_pack")
    if pf:
        e("s_bfe_u32 s40, s2, 0x10003")
        e("s_lshl_b32 s40, s40, 2")
        e(f"s_add_u32 s40, s40, s{sW}")
        k.prefetch_code("L_text_begin", "L_text_end", 32, 3, 1, 1, lane="v2", part=(40, 8192))
    e(f"s_cmp_ge_u32 s2, {NMAIN}")
    e(f"s_cbranch_scc1 L_{name}_wt")
    e("v_mov_b32 v0, v2")
    if xt: xt_load(k, 52)
    e(f"s_lshr_b32 s{sT0}, s2, 3")
    e(f"s_mul_hi_u32 s{sT1}, s{sT0}, 0x55555556")
    e(f"s_mul_i32 s{sCT}, s{sT1}, 3")
    e(f"s_sub_u32 s{sCT}, s{sT0}, s{sCT}")
    e(f"s_and_b32 s{sS2}, s2, 7")
    e(f"s_lshl_b32 s{sS2}, s{sS2}, 3")
    e(f"s_add_u32 s{sS2}, s{sS2}, s{sT1}")
    e("v_lshrrev_b32 v4, 3, v0")
    e("v_lshrrev_b32 v5, 4, v0")
    e("v_and_b32 v6, 7, v0")
    e("v_xor_b32 v6, v6, v5")
    e("v_lshlrev_b32 v6, 4, v6")
    e("v_mul_u32_u24 v2, 73728, v4")
    e("v_add_u32 v2, v2, v6")
    e(f"s_and_b32 s26, s{sW}, 1")
    e("s_lshl_b32 s26, s26, 6")
    e("v_xor_b32 v2, s26, v2")
    e(f"s_mul_i32 s27, s{sW}, {8*73728}")
    e(f"s_mul_i32 s{sT2}, s{sS2}, 1152")
    e(f"s_add_u32 s27, s27, s{sT2}")
    e(f"s_lshl_b32 s26, s{sW}, 10")
    e("s_waitcnt lgkmcnt(0)")
    tr("karg")
    k.srd(8, 4, S*D*2)
    for i in range(9):
        e(f"s_add_u32 m0, s26, {4096*i - 128*i}")
        e("s_nop 0")
        k.vmem(f"buffer_load_dwordx4 v2, s[8:11], s27 offen offset:{128*i}{xf} lds", "x")
    tr("issued")
    if xt:
        e(f"s_lshl_b32 s51, s{sT0}, 2")
        e(f"s_add_u32 s51, s51, s{sW}")
        xt_prep(k, 52, 51, "v0", 224, xt[0])
        if xt[1] == "early": xt_fire(k, 52, 224, 1, xt[0])
    k.srd(12, 6, WS_END)
    e("v_lshrrev_b32 v5, 5, v0")
    e("v_and_b32 v35, 31, v0")
    e("v_mov_b32 v31, 0x3f803f80")
    e(f"s_mul_i32 s{sT1}, s{sW}, 18")
    e("v_mul_u32_u24 v10, 9, v5")
    e(f"v_add_u32 v10, s{sT1}, v10")
    e("v_bfe_u32 v13, v0, 1, 3")
    vSA = 180
    for i in range(9):
        e(f"v_add_u32 v11, {i}, v10")
        e("v_lshrrev_b32 v12, 3, v11")
        e("v_and_b32 v11, 7, v11")
        e("v_xor_b32 v11, v11, v13")
        e("v_lshlrev_b32 v11, 4, v11")
        e("v_lshl_add_u32 v11, v12, 12, v11")
        e(f"v_lshl_add_u32 v{vSA+i}, v35, 7, v11")
    e(f"s_lshl_b32 s{sT1}, s{sW}, 9")
    e(f"s_add_u32 s{sT1}, s{sT1}, 36864")
    e(f"v_lshl_add_u32 v34, v0, 3, s{sT1}")
    e(f"s_mul_i32 s{sT}, s{sCT}, 3")
    e(f"s_min_u32 s{sT1}, s{sCT}, 1")
    e(f"s_add_u32 s{sT}, s{sT}, s{sT1}")
    e(f"s_add_u32 s{sT}, s{sT}, s{sW}")
    e(f"s_mul_i32 s18, s{sT1}, s{sW}")
    e("s_cmp_eq_u32 s18, 3")
    e(f"s_cbranch_scc1 L_{name}_hgen")
    vE, vE2 = 40, 76
    e(f"s_lshl_b32 s17, s{sT}, 4")
    e("v_bfe_u32 v4, v0, 1, 4")
    e("v_add_u32 v4, s17, v4")
    e("v_and_b32 v6, 1, v0")
    e("v_cvt_f32_u32 v7, v4")
    e(f"v_mul_f32 v7, {fhex(1.0/288)}, v7")
    e("v_cvt_f32_u32 v8, v6")
    e("v_mul_f32 v8, 0x3e800000, v8")
    e("v_cvt_f32_u32 v9, v5")
    e("v_mul_f32 v10, 0x41000000, v9")
    e("v_fma_f32 v8, v10, v7, v8")
    e("v_and_b32 v30, 1, v4")
    e("v_mul_u32_u24 v30, 0x8000, v30")
    e("v_lshl_or_b32 v30, v30, 16, v30")
    for j in range(9):
        for t in range(8): e(f"v_fmamk_f32 v{10+t}, v7, {fhex(16*j+t)}, v8")
        for t in range(8): e(f"v_cos_f32 v{10+t}, v{10+t}")
        for t in range(4): e(f"v_cvt_pk_bf16_f32 v{vE+4*j+t}, v{10+2*t}, v{11+2*t}")
        for t in range(4): e(f"v_xor_b32 v{vE2+4*j+t}, v30, v{vE+4*j+t}")
        if xt and xt[1] == j: xt_fire(k, 52, 224, 1, xt[0])
    e("v_mov_b32 v10, 0")
    for r in range(36): e(f"v_dot2c_f32_bf16 v10, v{vE+r}, v31")
    e("v_mul_f32 v12, 0.5, v7")
    e("v_lshlrev_b32 v13, 31, v6")
    e("v_xor_b32 v12, v12, v13")
    e("v_cos_f32 v32, v12")
    e("v_sin_f32 v33, v12")
    e("v_mov_b32 v11, v10")
    e("v_and_b32 v13, 1, v4")
    e("v_or_b32 v13, v13, v5")
    e("v_permlane32_swap_b32 v10, v11")
    e("v_cmp_eq_u32 vcc, 0, v13")
    e("v_mov_b32 v113, 0")
    e("v_add_f32 v10, v10, v11")
    e("v_mul_f32 v10, -2.0, v10")
    e("v_cndmask_b32 v10, 0, v10, vcc")
    e("v_mov_b32 v114, 0")
    e("v_mov_b32 v115, 0")
    e("v_cvt_pk_bf16_f32 v112, v10, v113")
    for r in (117, 118, 119): e(f"v_mov_b32 v{r}, 0")
    vF = 120
    e("v_cvt_f32_u32 v10, v35")
    e(f"v_mul_f32 v11, {fhex(1.0/32)}, v10")
    e(f"v_cvt_f32_u32 v12, s{sS2}")
    e(f"v_mul_f32 v12, {fhex(1.0/64)}, v12")
    e("v_fma_f32 v12, v9, 4.0, v12")
    e("v_mul_f32 v12, v12, v11")
    for jj in range(2):
        for t in range(8): e(f"v_fmamk_f32 v{14+t}, v11, {fhex(16*jj + 8*(t >> 2) + (t & 3))}, v12")
        for t in range(8): e(f"v_cos_f32 v{22+t}, v{14+t}")
        for t in range(8): e(f"v_sin_f32 v{14+t}, -v{14+t}")
        for t in range(4): e(f"v_cvt_pk_bf16_f32 v{vF+4*jj+t}, v{22+2*t}, v{23+2*t}")
        for t in range(4): e(f"v_cvt_pk_bf16_f32 v{vF+8+4*jj+t}, v{14+2*t}, v{15+2*t}")
    e("v_bfe_u32 v10, v0, 1, 3")
    e("v_lshlrev_b32 v11, 1, v5")
    e("v_xor_b32 v10, v10, v11")
    e("v_lshlrev_b32 v10, 4, v10")
    e("v_lshl_add_u32 v36, v35, 7, v10")
    e("v_xor_b32 v37, 16, v36")
    e("v_xor_b32 v38, 64, v36")
    e("v_xor_b32 v39, 80, v36")
    e("s_mov_b32 s28, 0x05040100")
    e("s_mov_b32 s29, 0x07060302")
    e("v_lshlrev_b32 v26, 3, v0")
    e(f"s_lshl_b32 s{sT1}, s{sW}, 8")
    e(f"s_add_u32 s{sT1}, s{sT1}, {36864+2048}")
    e(f"v_lshl_add_u32 v27, v0, 2, s{sT1}")
    e(f"v_lshl_add_u32 v28, v5, 4, s{sT1}")
    e(f"s_lshr_b32 s{sT1}, s{sS2}, 3")
    e(f"s_lshl_b32 s{sT1}, s{sT1}, 10")
    e(f"s_bfe_u32 s{sT2}, s{sS2}, 0x10002")
    e(f"s_lshl_b32 s{sT2}, s{sT2}, 9")
    e(f"s_add_u32 s{sT1}, s{sT1}, s{sT2}")
    e(f"s_and_b32 s{sT2}, s{sS2}, 1")
    e(f"s_lshl_b32 s{sT2}, s{sT2}, 8")
    e(f"s_add_u32 s{sT1}, s{sT1}, s{sT2}")
    e(f"s_bfe_u32 s{sT2}, s{sS2}, 0x10001")
    e(f"s_lshl_b32 s{sT2}, s{sT2}, 7")
    e(f"s_add_u32 s{sT1}, s{sT1}, s{sT2}")
    e(f"v_lshl_add_u32 v10, v35, 2, s{sT1}")
    e("v_lshl_add_u32 v11, v5, 1, s17")
    e("v_lshlrev_b32 v11, 13, v11")
    e("v_add_u32 v24, v10, v11")
    e("v_subrev_u32 v24, 8192, v24")
    e("v_sub_u32 v25, v10, v11")
    e(f"v_add_u32 v25, {143*8192}, v25")
    k.srd_off(44, 6, WS_Y, 144*8192)
    k.srd_off(48, 6, WS_Y + 144*8192, 144*8192)
    k.label(f"L_{name}_nogen")
    tr("gen")
    stamp_mid(k, stamps, 0)
    e(f"s_waitcnt vmcnt({len(xt[0]) if xt and xt[1] != 'late' else 0})")
    if xt and xt[1] == "late": xt_fire(k, 52, 224, 1, xt[0])
    tr("xarr")
    e("s_barrier")
    tr("bar")
    stamp_mid(k, stamps, 1)
    for i in range(9): k.lds(f"ds_read_b128 {R(136+4*i,4)}, v{vSA+i}", ("s", i))
    vX = 172
    def xread(j):
        b = vX + 8*(j % 3)
        for x in (0, 1): k.lds(f"ds_read_b128 {R(b+4*x,4)}, v{36+2*(j&1)+x} offset:{(j>>1)*4096}", ("x", j))
    e("v_mov_b32 v10, 0"); e("v_mov_b32 v11, 0"); e("v_mov_b32 v12, 0"); e("v_mov_b32 v13, 0")
    e("s_cmp_eq_u32 s18, 3")
    e(f"s_cbranch_scc1 L_{name}_helper")
    xread(0); xread(1); xread(2)
    def stats_dot(waits=True):
        for i in range(9):
            if waits: k.wait(lg=("s", i))
            for r in range(4):
                e(f"v_dot2c_f32_bf16 v{10+2*(r&1)}, v{136+4*i+r}, v31")
                e(f"v_dot2c_f32_bf16 v{11+2*(r&1)}, v{136+4*i+r}, v{136+4*i+r}")
        e("s_nop 2")
        e("v_add_f32 v10, v10, v12")
        e("v_add_f32 v11, v11, v13")
    stats_dot()
    k.lds("ds_write_b64 v34, v[10:11]", "sw")
    tr("stats")
    A0, A1 = 136, 152
    vD = [8, 200]
    def perms(j):
        b = vX + 8*(j % 3); d = vD[j & 1]
        return [f"v_perm_b32 v{d+r}, v{b+2*r+1}, v{b+2*r}, s28" for r in range(4)] + [f"v_perm_b32 v{d+4+r}, v{b+2*r+1}, v{b+2*r}, s29" for r in range(4)]
    k.wait(lg=["sw", ("x", 0)])
    for p in perms(0): e(p)
    fill = {}
    fill[2] = lambda: e("s_barrier")
    def f3():
        for i in range(4): k.lds(f"ds_read_b64 {R(16+2*i,2)}, v26 offset:{36864+512*i}", "sp")
    fill[3] = f3
    def f7():
        k.wait(lg="sp")
        e("v_add_f32 v16, v16, v18"); e("v_add_f32 v17, v17, v19")
    fill[8] = f7
    fill[9] = lambda: (e("v_add_f32 v20, v20, v22"), e("v_add_f32 v21, v21, v23"))
    fill[10] = lambda: (e("v_add_f32 v16, v16, v20"), e("v_add_f32 v17, v17, v21"))
    fill[11] = lambda: (e("v_mov_b32 v18, v16"), e("v_mov_b32 v19, v17"))
    fill[12] = lambda: (e("v_permlane32_swap_b32 v16, v18"), e("v_permlane32_swap_b32 v17, v19"))
    fill[13] = lambda: (e("v_add_f32 v16, v16, v18"), e("v_add_f32 v17, v17, v19"))
    fill[14] = lambda: (e(f"v_mul_f32 v16, {fhex(1.0/576)}, v16"), e(f"v_mul_f32 v17, {fhex(1.0/576)}, v17"))
    fill[15] = lambda: (e("v_fma_f32 v17, -v16, v16, v17"), e("v_max_f32 v17, 0, v17"))
    fill[16] = lambda: (e(f"v_add_f32 v17, {fhex(1e-5)}, v17"), e("v_cvt_pk_bf16_f32 v116, v16, v117"))
    fill[17] = lambda: e("v_rsq_f32 v17, v17")
    fill[18] = lambda: e(f"v_mul_f32 v17, {fhex(2.0/(2048*576))}, v17")
    fill[19] = lambda: k.lds("ds_write_b32 v27, v17", "rw")
    vRr = 208
    def f22():
        for g in range(4): k.lds(f"ds_read_b128 {R(vRr+4*g,4)}, v28 offset:{32*g}", "rr")
    fill[22] = f22
    def f26():
        e(f"s_cmp_lg_u32 s{sT}, 0")
        e(f"s_cbranch_scc1 L_{name}_nomean")
        e(f"s_lshl_b32 s{sT1}, s{sS2}, 7")
        e(f"s_add_u32 s{sT1}, s{sT1}, {WS_MEAN}")
        e("v_lshlrev_b32 v19, 2, v35")
        e(f"buffer_store_dword v16, v19, s[12:15], s{sT1} offen")
        k.label(f"L_{name}_nomean")
    fill[26] = f26
    e("s_nop 0")
    for j in range(18):
        Bm = R((vE if j < 9 else vE2) + 4*(j % 9), 4)
        d = vD[j & 1]
        nx = perms(j+1) if j + 1 < 18 else []
        for p in (0, 1):
            acc = R(A1 if p else A0, 16)
            e(f"{MF32} {acc}, {R(d+4*p,4)}, {Bm}, {'0' if j == 0 else acc}")
            if p == 0 and nx: k.wait(lg=("x", j+1))
            if p == 0 and j + 3 < 18: xread(j + 3)
            for x in nx[4*p:4*p+4]: e(x)
            n = 2*j + p
            if n in fill: fill[n]()
    e(f"{MF32} {R(A1,16)}, {R(116,4)}, {R(112,4)}, {R(A1,16)}")
    e(f"{MF32} {R(A0,16)}, {R(116,4)}, {R(112,4)}, {R(A0,16)}")
    tr("mfma")
    stamp_mid(k, stamps, 2)
    if wpf: emit_wprefetch(k, sW, 4, "v0", 2, 1, 52, wpf, skip3=True)
    else: e("s_nop 10")
    k.wait(lg="rr")
    Bq, O1, O2 = 40, 56, 72
    for i in range(16): e(f"v_mul_f32 v{Bq+i}, v32, v{A1+i}")
    for i in range(16): e(f"v_fmac_f32_dpp v{Bq+i}, v{A1+i}, v33 {DPP}")
    for i in range(16): e(f"v_mul_f32 v{A0+i}, v{A0+i}, v{vRr+i}")
    for i in range(16): e(f"v_fma_f32 v{O1+i}, v{Bq+i}, v{vRr+i}, v{A0+i}")
    for i in range(8): e(f"v_cvt_pk_bf16_f32 v{88+i}, v{O1+2*i}, v{O1+2*i+1}")
    P1, Q1, P2, Q2 = 172, 152, 224, 240
    w2 = [f"v_fma_f32 v{O2+i}, -v{Bq+i}, v{vRr+i}, v{A0+i}" for i in range(16)] + [f"v_cvt_pk_bf16_f32 v{96+i}, v{O2+2*i}, v{O2+2*i+1}" for i in range(8)]
    e(w2.pop(0)); e(w2.pop(0))
    for (Dd, a, f, first) in [(P1, 88, vF, 1), (Q1, 88, vF+8, 1), (P1, 92, vF+4, 0), (Q1, 92, vF+12, 0)]:
        e(f"{MF32} {R(Dd,16)}, {R(a,4)}, {R(f,4)}, {'0' if first else R(Dd,16)}")
        for _ in range(6):
            if w2: e(w2.pop(0))
    e("s_nop 1")
    tr("comb")
    c1 = []
    for i in range(0, 16, 2):
        c1.append(f"v_sub_f32 v{O1+i}, v{P1+i}, v{Q1+i+1}")
        c1.append(f"v_add_f32 v{O1+i+1}, v{Q1+i}, v{P1+i+1}")
    c1 += [f"v_cvt_pk_bf16_f32 v{88+i}, v{O1+2*i}, v{O1+2*i+1}" for i in range(8)]
    adr = [f"v_add_u32 v{8+i}, {(4*(i>>1)+(i&1))*8192}, v24" for i in range(8)] + [f"v_subrev_u32 v{200+i}, {(4*(i>>1)+(i&1))*8192}, v25" for i in range(8)]
    for n_, (Dd, a, f, first) in enumerate([(P2, 96, vF, 1), (Q2, 96, vF+8, 1), (P2, 100, vF+4, 0), (Q2, 100, vF+12, 0)]):
        e(f"{MF32} {R(Dd,16)}, {R(a,4)}, {R(f,4)}, {'0' if first else R(Dd,16)}")
        src = adr if n_ < 3 else c1
        for _ in range(6):
            if src: e(src.pop(0))
    assert not adr
    for x in c1: e(x)
    for i in range(8): k.vmem(f"buffer_store_dword v{88+i}, v{8+i}, s[44:47], 0 offen{sf}", "st")
    for i in range(0, 16, 2):
        e(f"v_add_f32 v{O2+i}, v{P2+i}, v{Q2+i+1}")
        e(f"v_sub_f32 v{O2+i+1}, v{Q2+i}, v{P2+i+1}")
    for i in range(8): e(f"v_cvt_pk_bf16_f32 v{96+i}, v{O2+2*i}, v{O2+2*i+1}")
    for i in range(8): k.vmem(f"buffer_store_dword v{96+i}, v{200+i}, s[48:51], 0 offen{sf}", "st")
    tr("stored")
    tr.dump(6, sW, 198)
    stamp_end(k, stamps, 6, 0, sW, 3)
    e("s_endpgm")
    k.label(f"L_{name}_hgen")
    if xt and isinstance(xt[1], int):
        e("s_waitcnt vmcnt(0)")
        xt_fire(k, 52, 224, 1, xt[0])
    e(f"s_branch L_{name}_nogen")
    k.label(f"L_{name}_helper")
    e("s_waitcnt lgkmcnt(0)")
    stats_dot(False)
    e("ds_write_b64 v34, v[10:11]")
    e("s_waitcnt lgkmcnt(0)")
    e("s_barrier")
    e("s_endpgm")
    k.label(f"L_{name}_wt")
    e(f"s_load_dwordx4 s[28:31], s[0:1], {KA_WR}")
    e(f"s_sub_u32 s{sT0}, s2, {NMAIN}")
    e("v_lshlrev_b32 v3, 4, v0")
    e(f"s_mul_i32 s{sT1}, s{sT0}, 18496")
    e(f"s_lshl_b32 s{sT2}, s{sW}, 10")
    e("s_waitcnt lgkmcnt(0)")
    k.srd(8, 28, 2048*289*2)
    k.srd(12, 30, 2048*289*2)
    k.srd(16, 6, WS_END)
    for r in range(5):
        for mat in range(2):
            e(f"s_add_u32 m0, s{sT2}, {mat*20480 + r*4096}")
            e(f"s_add_u32 s26, s{sT1}, {r*4096}")
            e(f"buffer_load_dwordx4 v3, s[{8+4*mat}:{11+4*mat}], s26 offen{xf} lds")
    if tlb:
        e(f"s_load_dwordx2 s[34:35], s[0:1], {KA_OUT}")
        e(f"s_lshr_b32 s27, s{sT0}, 3")
        e("s_lshl_b32 s27, s27, 8")
        e("v_add_u32 v12, s27, v0")
        e(f"v_mul_u32_u24 v12, {tlb // 16}, v12")
        e("v_lshlrev_b32 v12, 4, v12")
        e("buffer_load_dword v100, v12, s[16:19], 0 offen")
        e("s_waitcnt lgkmcnt(0)")
        k.srd(36, 34, S*D*2)
        e("buffer_load_dword v101, v12, s[36:39], 0 offen")
    e("v_mov_b32 v8, 0"); e("v_mov_b32 v9, 0"); e("v_mov_b32 v10, 0"); e("v_mov_b32 v11, 0")
    e(f"s_mul_i32 s26, s{sT0}, {FLAG_STRIDE}")
    e(f"s_add_u32 s26, s26, {WS_FLAG}")
    for r in range(3):
        e(f"buffer_store_dwordx4 v[8:11], v3, s[16:19], s26 offen{wf}")
        e("s_add_u32 s26, s26, 4096")
    e(f"s_cmp_eq_u32 s{sW}, 0")
    e("s_cselect_b32 s26, s26, 0x40000000")
    e(f"buffer_store_dwordx4 v[8:11], v3, s[16:19], s26 offen{wf}")
    e(f"s_lshl_b32 s27, s{sT0}, 2")
    e(f"s_add_u32 s27, s27, s{sW}")
    e("s_cmp_ge_u32 s27, 162")
    e(f"s_cbranch_scc1 L_{name}_nog")
    e("s_mul_hi_u32 s28, s27, 0x1c71c71d")
    e("s_mul_i32 s29, s28, 9")
    e("s_sub_u32 s29, s27, s29")
    e("s_and_b32 s30, s28, 1")
    e("s_lshr_b32 s28, s28, 1")
    if hc16:
        e("v_and_b32 v12, 7, v2")
        e("v_bfe_u32 v13, v2, 3, 1")
        e("v_lshl_add_u32 v12, v13, 4, v12")
        e("v_bfe_u32 v13, v2, 4, 1")
        e("v_lshl_add_u32 v12, v13, 3, v12")
    else:
        e("v_and_b32 v12, 0x13, v2")
        e("v_bfe_u32 v13, v2, 2, 1")
        e("v_lshl_add_u32 v12, v13, 3, v12")
        e("v_bfe_u32 v13, v2, 3, 1")
        e("v_lshl_add_u32 v12, v13, 2, v12")
    e("s_lshl_b32 s28, s28, 5")
    e("v_add_u32 v12, s28, v12")
    e("v_cvt_f32_u32 v12, v12")
    e("v_lshrrev_b32 v13, 5, v2")
    e("s_lshl_b32 s29, s29, 4")
    e("s_add_u32 s29, s29, s30")
    e("s_add_u32 s29, s29, 1")
    e("v_lshl_add_u32 v13, v13, 3, s29")
    e("v_cvt_f32_u32 v13, v13")
    for t in range(4):
        e(f"v_add_f32 v{14+t}, {fhex(2*t)}, v13")
        e(f"v_mul_f32 v{14+t}, v{14+t}, v12")
        e(f"v_mul_f32 v{14+t}, {fhex(1.0/576)}, v{14+t}")
    for t in range(4): e(f"v_cos_f32 v{18+t}, v{14+t}")
    for t in range(4): e(f"v_sin_f32 v{14+t}, v{14+t}")
    e("v_lshlrev_b32 v13, 4, v2")
    for t in range(4): e(f"v_cvt_pk_bf16_f32 v{24+t}, v{18+t}, v{14+t}")
    e("s_lshl_b32 s27, s27, 10")
    e(f"s_add_u32 s27, s27, {WS_G}")
    e(f"buffer_store_dwordx4 v[24:27], v13, s[16:19], s27 offen{wf}")
    k.label(f"L_{name}_nog")
    e("v_and_b32 v3, 31, v0")
    e("v_lshrrev_b32 v4, 5, v0")
    e("v_mul_u32_u24 v5, 578, v3")
    e("v_lshl_add_u32 v5, v4, 1, v5")
    e("v_lshlrev_b32 v6, 2, v3")
    e("v_lshl_add_u32 v6, v4, 13, v6")
    e(f"s_lshl_b32 s{sT1}, s{sT0}, 7")
    e(f"s_add_u32 s{sT1}, s{sT1}, {WS_WT}")
    e("s_waitcnt vmcnt(0)")
    e("s_barrier")
    for part in range(6):
        for i in range(6*part, 6*part+6):
            e(f"ds_read_u16 v{30+i}, v5 offset:{2+16*i}")
            e(f"ds_read_u16 v{70+i}, v5 offset:{20480+2+16*i}")
        if part > 0:
            e("s_waitcnt lgkmcnt(12)")
            for i in range(6*part-6, 6*part):
                e(f"v_lshl_or_b32 v{30+i}, v{70+i}, 16, v{30+i}")
                e(f"s_add_u32 s26, s{sT1}, {8*8192*i}")
                e(f"buffer_store_dword v{30+i}, v6, s[16:19], s26 offen{wf}")
    e("s_waitcnt lgkmcnt(0)")
    for i in range(30, 36):
        e(f"v_lshl_or_b32 v{30+i}, v{70+i}, 16, v{30+i}")
        e(f"s_add_u32 s26, s{sT1}, {8*8192*i}")
        e(f"buffer_store_dword v{30+i}, v6, s[16:19], s26 offen{wf}")
    stamp_end(k, stamps, 6, 0, sW, 0)
    if NP:
        e("s_endpgm")
        k.label(f"L_{name}_pack")
        e("v_mov_b32 v0, v2")
        pack_wg(k, name, sW, 4, NMAIN + NWT, jobs[0], jobs[1], pk, stamps, 0)
    k.label(f"L_{name}_end")
    e("s_endpgm")
    return k, (256, 100, 256), (NMAIN + NWT + NP, 256, 49152 if NP else 40960)

def gen_k1b(name="fwd_kernel", stamps=False, pf=True, wpf=None, trace=False, xf="", xt=None, pk=None, jobs=(0, 0), sf="", wf="", hc16=False, tlb=0, pflate=True):
    NMAIN, NWT = 192, 64
    NP = 8 * (-(-jobs[1] // 4))
    k = Kern(name); e = k.e
    tr = Tracer(k, trace, 199)
    sW, sS2, sCT, sT0, sT1, sT2, sT = 20, 21, 22, 23, 24, 25, 19
    e(f"s_cmp_ge_u32 s2, {NMAIN + NWT + NP}")
    e(f"s_cbranch_scc1 L_{name}_end")
    stamp_begin(k, stamps)
    e(f"s_load_dwordx2 s[4:5], s[0:1], {KA_X}")
    e(f"s_load_dwordx2 s[6:7], s[0:1], {KA_WS}")
    e("v_lshrrev_b32 v1, 6, v0")
    e("v_and_b32 v2, 63, v0")
    e(f"v_readfirstlane_b32 s{sW}, v1")
    if NP:
        e(f"s_cmp_ge_u32 s2, {NMAIN + NWT}")
        e(f"s_cbranch_scc1 L_{name}_pack")
    if pf and not pflate:
        e("s_bfe_u32 s40, s2, 0x10003")
        e("s_lshl_b32 s40, s40, 2")
        e(f"s_add_u32 s40, s40, s{sW}")
        k.prefetch_code("L_text_begin", "L_text_end", 32, 3, 1, 1, lane="v2", part=(40, 8192))
    e(f"s_cmp_ge_u32 s2, {NMAIN}")
    e(f"s_cbranch_scc1 L_{name}_wt")
    e("v_mov_b32 v0, v2")
    if xt: xt_load(k, 52)
    e(f"s_lshr_b32 s{sT0}, s2, 3")
    e(f"s_mul_hi_u32 s{sT1}, s{sT0}, 0x55555556")
    e(f"s_mul_i32 s{sCT}, s{sT1}, 3")
    e(f"s_sub_u32 s{sCT}, s{sT0}, s{sCT}")
    e(f"s_and_b32 s{sS2}, s2, 7")
    e(f"s_lshl_b32 s{sS2}, s{sS2}, 3")
    e(f"s_add_u32 s{sS2}, s{sS2}, s{sT1}")
    e("v_lshrrev_b32 v4, 3, v0")
    e("v_lshrrev_b32 v5, 4, v0")
    e("v_and_b32 v6, 7, v0")
    e("v_xor_b32 v6, v6, v5")
    e("v_lshlrev_b32 v6, 4, v6")
    e("v_mul_u32_u24 v2, 73728, v4")
    e("v_add_u32 v2, v2, v6")
    e(f"s_and_b32 s26, s{sW}, 1")
    e("s_lshl_b32 s26, s26, 6")
    e("v_xor_b32 v2, s26, v2")
    e(f"s_mul_i32 s27, s{sW}, {8*73728}")
    e(f"s_mul_i32 s{sT2}, s{sS2}, 1152")
    e(f"s_add_u32 s27, s27, s{sT2}")
    e(f"s_lshl_b32 s26, s{sW}, 10")
    e("s_waitcnt lgkmcnt(0)")
    tr("karg")
    k.srd(8, 4, S*D*2)
    e("s_mov_b32 m0, s26")
    e("s_nop 0")
    for i in range(9):
        k.vmem(f"buffer_load_dwordx4 v2, s[8:11], s27 offen offset:{128*i}{xf} lds", "x")
        if i < 8:
            e(f"s_add_u32 m0, m0, {4096 - 128}")
            e("s_nop 0")
    tr("issued")
    vE, vE2 = 40, 76
    e(f"s_mul_i32 s{sT}, s{sCT}, 3")
    e(f"s_min_u32 s{sT1}, s{sCT}, 1")
    e(f"s_add_u32 s{sT}, s{sT}, s{sT1}")
    e(f"s_add_u32 s{sT}, s{sT}, s{sW}")
    e(f"s_mul_i32 s18, s{sT1}, s{sW}")
    e("s_getpc_b64 s[40:41]")
    k.label(f"L_{name}_tpc")
    e(f"s_add_u32 s40, s40, L_etab-L_{name}_tpc")
    e("s_addc_u32 s41, s41, 0")
    e("s_and_b32 s41, s41, 0xffff")
    e("s_mov_b32 s42, 102400")
    e("s_mov_b32 s43, 0x20000")
    e(f"s_mul_i32 s16, s{sT}, 10240")
    e("s_cmp_eq_u32 s18, 3")
    e("s_cselect_b32 s16, 0x40000000, s16")
    e("v_lshlrev_b32 v34, 4, v0")
    for j in range(10):
        if j and j % 4 == 0: e("s_add_u32 s16, s16, 4096")
        k.vmem(f"buffer_load_dwordx4 {R(vE+4*j if j < 9 else 28, 4)}, v34, s[40:43], s16 offen offset:{1024*(j%4)}", "tab")
    tr("tissued")
    if xt:
        e(f"s_lshl_b32 s51, s{sT0}, 2")
        e(f"s_add_u32 s51, s51, s{sW}")
        xt_prep(k, 52, 51, "v0", 224, xt[0])
        if xt[1] == "early": xt_fire(k, 52, 224, 1, xt[0])
    k.srd(12, 6, WS_END)
    e("v_lshrrev_b32 v5, 5, v0")
    e("v_and_b32 v35, 31, v0")
    e("v_add_u32 v34, s26, v34")
    e("s_cmp_eq_u32 s18, 3")
    e(f"s_cbranch_scc1 L_{name}_nogen")
    e(f"s_lshl_b32 s17, s{sT}, 4")
    e("v_cvt_f32_u32 v9, v5")
    for r in (113, 114, 115, 117, 118, 119): e(f"v_mov_b32 v{r}, 0")
    vF = 120
    e("v_cvt_f32_u32 v10, v35")
    e(f"v_mul_f32 v11, {fhex(1.0/32)}, v10")
    e(f"v_cvt_f32_u32 v12, s{sS2}")
    e(f"v_mul_f32 v12, {fhex(1.0/64)}, v12")
    e("v_fma_f32 v12, v9, 4.0, v12")
    e("v_mul_f32 v12, v12, v11")
    for jj in range(2):
        for t in range(8): e(f"v_fmamk_f32 v{136+t}, v11, {fhex(16*jj + 8*(t >> 2) + (t & 3))}, v12")
        for t in range(8): e(f"v_cos_f32 v{144+t}, v{136+t}")
        for t in range(8): e(f"v_sin_f32 v{136+t}, -v{136+t}")
        for t in range(4): e(f"v_cvt_pk_bf16_f32 v{vF+4*jj+t}, v{144+2*t}, v{145+2*t}")
        for t in range(4): e(f"v_cvt_pk_bf16_f32 v{vF+8+4*jj+t}, v{136+2*t}, v{137+2*t}")
    e("v_bfe_u32 v10, v0, 1, 3")
    e("v_lshlrev_b32 v11, 1, v5")
    e("v_xor_b32 v10, v10, v11")
    e("v_lshlrev_b32 v10, 4, v10")
    e("v_lshl_add_u32 v36, v35, 7, v10")
    e("v_xor_b32 v37, 16, v36")
    e("v_xor_b32 v38, 64, v36")
    e("v_xor_b32 v39, 80, v36")
    e("s_mov_b32 s28, 0x05040100")
    e("s_mov_b32 s29, 0x07060302")
    e("v_lshlrev_b32 v26, 4, v5")
    e("v_lshlrev_b32 v27, 2, v35")
    e(f"s_lshr_b32 s{sT1}, s{sS2}, 3")
    e(f"s_lshl_b32 s{sT1}, s{sT1}, 10")
    e(f"s_bfe_u32 s{sT2}, s{sS2}, 0x10002")
    e(f"s_lshl_b32 s{sT2}, s{sT2}, 9")
    e(f"s_add_u32 s{sT1}, s{sT1}, s{sT2}")
    e(f"s_and_b32 s{sT2}, s{sS2}, 1")
    e(f"s_lshl_b32 s{sT2}, s{sT2}, 8")
    e(f"s_add_u32 s{sT1}, s{sT1}, s{sT2}")
    e(f"s_bfe_u32 s{sT2}, s{sS2}, 0x10001")
    e(f"s_lshl_b32 s{sT2}, s{sT2}, 7")
    e(f"s_add_u32 s{sT1}, s{sT1}, s{sT2}")
    e(f"v_lshl_add_u32 v10, v35, 2, s{sT1}")
    e("v_lshl_add_u32 v11, v5, 1, s17")
    e("v_lshlrev_b32 v11, 13, v11")
    e("v_add_u32 v24, v10, v11")
    e("v_subrev_u32 v24, 8192, v24")
    e("v_sub_u32 v25, v10, v11")
    e(f"v_add_u32 v25, {143*8192}, v25")
    k.srd_off(44, 6, WS_Y, 144*8192)
    k.srd_off(48, 6, WS_Y + 144*8192, 144*8192)
    ntouch = len(xt[0]) if xt else 0
    k.label(f"L_{name}_nogen")
    tr("gen")
    stamp_mid(k, stamps, 0)
    e(f"s_waitcnt vmcnt({10 + (ntouch if xt and xt[1] == 'early' else 0)})")
    if xt and xt[1] != "early": xt_fire(k, 52, 224, 1, xt[0])
    tr("xarr")
    for i in range(9): k.lds(f"ds_read_b128 {R(136+4*i,4)}, v34 offset:{4096*i}", ("s", i))
    e("v_mov_b32 v10, 0"); e("v_mov_b32 v11, 0"); e("v_mov_b32 v12, 0"); e("v_mov_b32 v13, 0")
    e("v_mov_b32 v14, 0x3f803f80")
    e("v_lshrrev_b32 v15, 3, v0")
    e("v_lshlrev_b32 v15, 2, v15")
    e(f"s_lshl_b32 s{sT1}, s{sW}, 5")
    e(f"v_add_u32 v15, s{sT1}, v15")
    for i in range(9):
        k.wait(lg=("s", i))
        for r in range(4):
            e(f"v_dot2c_f32_bf16 v{10+2*(r&1)}, v{136+4*i+r}, v14")
            e(f"v_dot2c_f32_bf16 v{11+2*(r&1)}, v{136+4*i+r}, v{136+4*i+r}")
    e("s_nop 2")
    e("v_add_f32 v10, v10, v12")
    e("v_add_f32 v11, v11, v13")
    for ctl in ("quad_perm:[1,0,3,2]", "quad_perm:[2,3,0,1]", "row_half_mirror"):
        e("s_nop 0")
        e(f"v_add_f32_dpp v10, v10, v10 {ctl} row_mask:0xf bank_mask:0xf")
        e(f"v_add_f32_dpp v11, v11, v11 {ctl} row_mask:0xf bank_mask:0xf")
    e(f"v_mul_f32 v10, {fhex(1.0/576)}, v10")
    e(f"v_mul_f32 v11, {fhex(1.0/576)}, v11")
    e("v_fma_f32 v11, -v10, v10, v11")
    e("v_max_f32 v11, 0, v11")
    e(f"v_add_f32 v11, {fhex(1e-5)}, v11")
    e("v_rsq_f32 v11, v11")
    e("ds_write_b32 v15, v10 offset:36992")
    e(f"v_mul_f32 v11, {fhex(2.0/(2048*576))}, v11")
    e("ds_write_b32 v15, v11 offset:36864")
    e("s_waitcnt lgkmcnt(0)")
    k.lg_done = len(k.lg)
    tr("stats")
    e("s_barrier")
    e("s_cmp_eq_u32 s18, 3")
    e(f"s_cbranch_scc1 L_{name}_end")
    tr("bar")
    stamp_mid(k, stamps, 1)
    vX = 172
    def xread(j):
        b = vX + 8*(j % 3)
        for x in (0, 1): k.lds(f"ds_read_b128 {R(b+4*x,4)}, v{36+2*(j&1)+x} offset:{(j>>1)*4096}", ("x", j))
    xread(0); xread(1); xread(2)
    vRr = 208
    k.lds("ds_read_b32 v16, v27 offset:36992", "mn")
    for g in range(4): k.lds(f"ds_read_b128 {R(vRr+4*g,4)}, v26 offset:{36864+32*g}", "rr")
    A0, A1 = 136, 152
    vD = [8, 200]
    def perms(j):
        b = vX + 8*(j % 3); d = vD[j & 1]
        return [f"v_perm_b32 v{d+r}, v{b+2*r+1}, v{b+2*r}, s28" for r in range(4)] + [f"v_perm_b32 v{d+4+r}, v{b+2*r+1}, v{b+2*r}, s29" for r in range(4)]
    e(f"s_waitcnt vmcnt({ntouch})")
    tr("tab")
    xq = [f"v_xor_b32 v{vE2+r}, v31, v{vE+r}" for r in range(36)] + ["v_mov_b32 v112, v28"]
    for _ in range(12): e(xq.pop(0))
    k.wait(lg=("x", 0))
    for p in perms(0): e(p)
    e("s_nop 0")
    for j in range(18):
        Bm = R((vE if j < 9 else vE2) + 4*(j % 9), 4)
        d = vD[j & 1]
        nx = perms(j+1) if j + 1 < 18 else []
        for p in (0, 1):
            acc = R(A1 if p else A0, 16)
            e(f"{MF32} {acc}, {R(d+4*p,4)}, {Bm}, {'0' if j == 0 else acc}")
            if p == 0 and nx: k.wait(lg=("x", j+1))
            if j + 3 < 18:
                b = vX + 8*((j+3) % 3)
                k.lds(f"ds_read_b128 {R(b+4*p,4)}, v{36+2*((j+3)&1)+p} offset:{((j+3)>>1)*4096}", ("x", j+3))
            for x in nx[4*p:4*p+4]: e(x)
            if xq: e(xq.pop(0))
            if j == 16 and p == 1: e("v_cvt_pk_bf16_f32 v116, v16, v117")
            if j == 17 and p == 0:
                e(f"s_lshl_b32 s{sT1}, s{sS2}, 7")
                e(f"s_add_u32 s{sT1}, s{sT1}, {WS_MEAN}")
                e(f"s_cmp_eq_u32 s{sT}, 0")
                e(f"s_cselect_b32 s{sT1}, s{sT1}, 0x40000000")
                e(f"buffer_store_dword v16, v27, s[12:15], s{sT1} offen")
    e(f"{MF32} {R(A1,16)}, {R(116,4)}, {R(112,4)}, {R(A1,16)}")
    e(f"{MF32} {R(A0,16)}, {R(116,4)}, {R(112,4)}, {R(A0,16)}")
    tr("mfma")
    stamp_mid(k, stamps, 2)
    e("s_nop 10")
    k.wait(lg="rr")
    Bq, O1, O2 = 40, 56, 72
    for i in range(16): e(f"v_mul_f32 v{Bq+i}, v29, v{A1+i}")
    for i in range(16): e(f"v_fmac_f32_dpp v{Bq+i}, v{A1+i}, v30 {DPP}")
    for i in range(16): e(f"v_mul_f32 v{A0+i}, v{A0+i}, v{vRr+i}")
    for i in range(16): e(f"v_fma_f32 v{O1+i}, v{Bq+i}, v{vRr+i}, v{A0+i}")
    for i in range(8): e(f"v_cvt_pk_bf16_f32 v{88+i}, v{O1+2*i}, v{O1+2*i+1}")
    P1, Q1, P2, Q2 = 172, 152, 224, 240
    w2 = [f"v_fma_f32 v{O2+i}, -v{Bq+i}, v{vRr+i}, v{A0+i}" for i in range(16)] + [f"v_cvt_pk_bf16_f32 v{96+i}, v{O2+2*i}, v{O2+2*i+1}" for i in range(8)]
    e(w2.pop(0)); e(w2.pop(0))
    for (Dd, a, f, first) in [(P1, 88, vF, 1), (Q1, 88, vF+8, 1), (P1, 92, vF+4, 0), (Q1, 92, vF+12, 0)]:
        e(f"{MF32} {R(Dd,16)}, {R(a,4)}, {R(f,4)}, {'0' if first else R(Dd,16)}")
        for _ in range(6):
            if w2: e(w2.pop(0))
    e("s_nop 1")
    tr("comb")
    c1 = []
    for i in range(0, 16, 2):
        c1.append(f"v_sub_f32 v{O1+i}, v{P1+i}, v{Q1+i+1}")
        c1.append(f"v_add_f32 v{O1+i+1}, v{Q1+i}, v{P1+i+1}")
    c1 += [f"v_cvt_pk_bf16_f32 v{88+i}, v{O1+2*i}, v{O1+2*i+1}" for i in range(8)]
    adr = [f"v_add_u32 v{8+i}, {(4*(i>>1)+(i&1))*8192}, v24" for i in range(8)] + [f"v_subrev_u32 v{200+i}, {(4*(i>>1)+(i&1))*8192}, v25" for i in range(8)]
    for n_, (Dd, a, f, first) in enumerate([(P2, 96, vF, 1), (Q2, 96, vF+8, 1), (P2, 100, vF+4, 0), (Q2, 100, vF+12, 0)]):
        e(f"{MF32} {R(Dd,16)}, {R(a,4)}, {R(f,4)}, {'0' if first else R(Dd,16)}")
        src = adr if n_ < 3 else c1
        for _ in range(6):
            if src: e(src.pop(0))
    assert not adr
    for x in c1: e(x)
    for i in range(8): k.vmem(f"buffer_store_dword v{88+i}, v{8+i}, s[44:47], 0 offen{sf}", "st")
    for i in range(0, 16, 2):
        e(f"v_add_f32 v{O2+i}, v{P2+i}, v{Q2+i+1}")
        e(f"v_sub_f32 v{O2+i+1}, v{Q2+i}, v{P2+i+1}")
    for i in range(8): e(f"v_cvt_pk_bf16_f32 v{96+i}, v{O2+2*i}, v{O2+2*i+1}")
    for i in range(8): k.vmem(f"buffer_store_dword v{96+i}, v{200+i}, s[48:51], 0 offen{sf}", "st")
    tr("stored")
    tr.dump(6, sW, 198)
    stamp_end(k, stamps, 6, 0, sW, 3)
    e("s_endpgm")
    k.label(f"L_{name}_wt")
    e(f"s_load_dwordx4 s[28:31], s[0:1], {KA_WR}")
    if pf and pflate:
        e("s_bfe_u32 s40, s2, 0x10003")
        e("s_lshl_b32 s40, s40, 2")
        e(f"s_add_u32 s40, s40, s{sW}")
        k.prefetch_code("L_text_begin", "L_text_end", 32, 4, 1, 1, lane="v2", part=(40, 8192))
    e(f"s_sub_u32 s{sT0}, s2, {NMAIN}")
    e("v_lshlrev_b32 v3, 4, v0")
    e(f"s_mul_i32 s{sT1}, s{sT0}, 18496")
    e(f"s_lshl_b32 s{sT2}, s{sW}, 10")
    e("s_waitcnt lgkmcnt(0)")
    k.srd(8, 28, 2048*289*2)
    k.srd(12, 30, 2048*289*2)
    k.srd(16, 6, WS_END)
    for r in range(5):
        for mat in range(2):
            e(f"s_add_u32 m0, s{sT2}, {mat*20480 + r*4096}")
            e(f"s_add_u32 s26, s{sT1}, {r*4096}")
            e(f"buffer_load_dwordx4 v3, s[{8+4*mat}:{11+4*mat}], s26 offen{xf} lds")
    if tlb:
        e(f"s_load_dwordx2 s[34:35], s[0:1], {KA_OUT}")
        e(f"s_lshr_b32 s27, s{sT0}, 3")
        e("s_lshl_b32 s27, s27, 8")
        e("v_add_u32 v12, s27, v0")
        e(f"v_mul_u32_u24 v12, {tlb // 16}, v12")
        e("v_lshlrev_b32 v12, 4, v12")
        e("buffer_load_dword v100, v12, s[16:19], 0 offen")
        e("s_waitcnt lgkmcnt(0)")
        k.srd(36, 34, S*D*2)
        e("buffer_load_dword v101, v12, s[36:39], 0 offen")
    e("v_mov_b32 v8, 0"); e("v_mov_b32 v9, 0"); e("v_mov_b32 v10, 0"); e("v_mov_b32 v11, 0")
    e(f"s_mul_i32 s26, s{sT0}, {FLAG_STRIDE}")
    e(f"s_add_u32 s26, s26, {WS_FLAG}")
    for r in range(3):
        e(f"buffer_store_dwordx4 v[8:11], v3, s[16:19], s26 offen{wf}")
        e("s_add_u32 s26, s26, 4096")
    e(f"s_cmp_eq_u32 s{sW}, 0")
    e("s_cselect_b32 s26, s26, 0x40000000")
    e(f"buffer_store_dwordx4 v[8:11], v3, s[16:19], s26 offen{wf}")
    e(f"s_lshl_b32 s27, s{sT0}, 2")
    e(f"s_add_u32 s27, s27, s{sW}")
    e("s_cmp_ge_u32 s27, 162")
    e(f"s_cbranch_scc1 L_{name}_nog")
    e("s_mul_hi_u32 s28, s27, 0x1c71c71d")
    e("s_mul_i32 s29, s28, 9")
    e("s_sub_u32 s29, s27, s29")
    e("s_and_b32 s30, s28, 1")
    e("s_lshr_b32 s28, s28, 1")
    if hc16:
        e("v_and_b32 v12, 7, v2")
        e("v_bfe_u32 v13, v2, 3, 1")
        e("v_lshl_add_u32 v12, v13, 4, v12")
        e("v_bfe_u32 v13, v2, 4, 1")
        e("v_lshl_add_u32 v12, v13, 3, v12")
    else:
        e("v_and_b32 v12, 0x13, v2")
        e("v_bfe_u32 v13, v2, 2, 1")
        e("v_lshl_add_u32 v12, v13, 3, v12")
        e("v_bfe_u32 v13, v2, 3, 1")
        e("v_lshl_add_u32 v12, v13, 2, v12")
    e("s_lshl_b32 s28, s28, 5")
    e("v_add_u32 v12, s28, v12")
    e("v_cvt_f32_u32 v12, v12")
    e("v_lshrrev_b32 v13, 5, v2")
    e("s_lshl_b32 s29, s29, 4")
    e("s_add_u32 s29, s29, s30")
    e("s_add_u32 s29, s29, 1")
    e("v_lshl_add_u32 v13, v13, 3, s29")
    e("v_cvt_f32_u32 v13, v13")
    for t in range(4):
        e(f"v_add_f32 v{14+t}, {fhex(2*t)}, v13")
        e(f"v_mul_f32 v{14+t}, v{14+t}, v12")
        e(f"v_mul_f32 v{14+t}, {fhex(1.0/576)}, v{14+t}")
    for t in range(4): e(f"v_cos_f32 v{18+t}, v{14+t}")
    for t in range(4): e(f"v_sin_f32 v{14+t}, v{14+t}")
    e("v_lshlrev_b32 v13, 4, v2")
    for t in range(4): e(f"v_cvt_pk_bf16_f32 v{24+t}, v{18+t}, v{14+t}")
    e("s_lshl_b32 s27, s27, 10")
    e(f"s_add_u32 s27, s27, {WS_G}")
    e(f"buffer_store_dwordx4 v[24:27], v13, s[16:19], s27 offen{wf}")
    k.label(f"L_{name}_nog")
    e("v_and_b32 v3, 31, v0")
    e("v_lshrrev_b32 v4, 5, v0")
    e("v_mul_u32_u24 v5, 578, v3")
    e("v_lshl_add_u32 v5, v4, 1, v5")
    e("v_lshlrev_b32 v6, 2, v3")
    e("v_lshl_add_u32 v6, v4, 13, v6")
    e(f"s_lshl_b32 s{sT1}, s{sT0}, 7")
    e(f"s_add_u32 s{sT1}, s{sT1}, {WS_WT}")
    e("s_waitcnt vmcnt(0)")
    e("s_barrier")
    for part in range(6):
        for i in range(6*part, 6*part+6):
            e(f"ds_read_u16 v{30+i}, v5 offset:{2+16*i}")
            e(f"ds_read_u16 v{70+i}, v5 offset:{20480+2+16*i}")
        if part > 0:
            e("s_waitcnt lgkmcnt(12)")
            for i in range(6*part-6, 6*part):
                e(f"v_lshl_or_b32 v{30+i}, v{70+i}, 16, v{30+i}")
                e(f"s_add_u32 s26, s{sT1}, {8*8192*i}")
                e(f"buffer_store_dword v{30+i}, v6, s[16:19], s26 offen{wf}")
    e("s_waitcnt lgkmcnt(0)")
    for i in range(30, 36):
        e(f"v_lshl_or_b32 v{30+i}, v{70+i}, 16, v{30+i}")
        e(f"s_add_u32 s26, s{sT1}, {8*8192*i}")
        e(f"buffer_store_dword v{30+i}, v6, s[16:19], s26 offen{wf}")
    stamp_end(k, stamps, 6, 0, sW, 0)
    if NP:
        e("s_endpgm")
        k.label(f"L_{name}_pack")
        e("v_mov_b32 v0, v2")
        pack_wg(k, name, sW, 4, NMAIN + NWT, jobs[0], jobs[1], pk, stamps, 0)
    k.label(f"L_{name}_end")
    e("s_endpgm")
    return k, (256, 100, 256), (NMAIN + NWT + NP, 256, 49152 if NP else 40960)


def gen_k1c(name="fwd_kernel", stamps=False, pf=True, wpf=None, trace=False, xf="", xt=None, pk=None, jobs=(0, 0), sf="", wf="", hc16=False, tlb=0, pflate=False, nwt=64, fullg=False):
    NMAIN, NWT = 192, 64
    NP = 8 * (-(-jobs[1] // 4))
    k = Kern(name); e = k.e
    tr = Tracer(k, trace, 199)
    sW, sS2, sCT, sT0, sT1, sT2, sT = 20, 21, 22, 23, 24, 25, 19
    e(f"s_cmp_ge_u32 s2, {NMAIN + NWT + NP}")
    e(f"s_cbranch_scc1 L_{name}_end")
    stamp_begin(k, stamps)
    e(f"s_load_dwordx2 s[4:5], s[0:1], {KA_X}")
    e(f"s_load_dwordx2 s[6:7], s[0:1], {KA_WS}")
    e("v_lshrrev_b32 v1, 6, v0")
    e("v_and_b32 v2, 63, v0")
    e(f"v_readfirstlane_b32 s{sW}, v1")
    if NP:
        e(f"s_cmp_ge_u32 s2, {NMAIN + NWT}")
        e(f"s_cbranch_scc1 L_{name}_pack")
    if pf and not pflate:
        e("s_bfe_u32 s40, s2, 0x10003")
        e("s_lshl_b32 s40, s40, 2")
        e(f"s_add_u32 s40, s40, s{sW}")
        k.prefetch_code("L_text_begin", "L_text_end", 32, 3, 1, 1, lane="v2", part=(40, 8192))
    e(f"s_cmp_ge_u32 s2, {NMAIN}")
    e(f"s_cbranch_scc1 L_{name}_wt")
    e("v_mov_b32 v0, v2")
    if xt: xt_load(k, 52)
    e(f"s_lshr_b32 s{sT0}, s2, 3")
    e(f"s_mul_hi_u32 s{sT1}, s{sT0}, 0x55555556")
    e(f"s_mul_i32 s{sCT}, s{sT1}, 3")
    e(f"s_sub_u32 s{sCT}, s{sT0}, s{sCT}")
    e(f"s_and_b32 s{sS2}, s2, 7")
    e(f"s_lshl_b32 s{sS2}, s{sS2}, 3")
    e(f"s_add_u32 s{sS2}, s{sS2}, s{sT1}")
    e("v_lshrrev_b32 v4, 3, v0")
    e("v_lshrrev_b32 v5, 4, v0")
    e("v_and_b32 v6, 7, v0")
    e("v_xor_b32 v6, v6, v5")
    e("v_lshlrev_b32 v6, 4, v6")
    e("v_mul_u32_u24 v2, 73728, v4")
    e("v_add_u32 v2, v2, v6")
    e(f"s_and_b32 s26, s{sW}, 1")
    e("s_lshl_b32 s26, s26, 6")
    e("v_xor_b32 v2, s26, v2")
    e(f"s_mul_i32 s27, s{sW}, {8*73728}")
    e(f"s_mul_i32 s{sT2}, s{sS2}, 1152")
    e(f"s_add_u32 s27, s27, s{sT2}")
    e(f"s_lshl_b32 s26, s{sW}, 10")
    e("s_waitcnt lgkmcnt(0)")
    tr("karg")
    k.srd(8, 4, S*D*2)
    e("s_mov_b32 m0, s26")
    e("s_nop 0")
    for i in range(9):
        k.vmem(f"buffer_load_dwordx4 v2, s[8:11], s27 offen offset:{128*i}{xf} lds", "x")
        if i < 8:
            e(f"s_add_u32 m0, m0, {4096 - 128}")
            e("s_nop 0")
    tr("issued")
    vE, vE2 = 40, 76
    e(f"s_mul_i32 s{sT}, s{sCT}, 3")
    e(f"s_min_u32 s{sT1}, s{sCT}, 1")
    e(f"s_add_u32 s{sT}, s{sT}, s{sT1}")
    e(f"s_add_u32 s{sT}, s{sT}, s{sW}")
    e(f"s_mul_i32 s18, s{sT1}, s{sW}")
    e("v_lshlrev_b32 v34, 4, v0")
    if xt:
        e(f"s_lshl_b32 s51, s{sT0}, 2")
        e(f"s_add_u32 s51, s51, s{sW}")
        xt_prep(k, 52, 51, "v0", 224, xt[0])
        if xt[1] == "early": xt_fire(k, 52, 224, 1, xt[0])
    k.srd(12, 6, WS_END)
    e("v_lshrrev_b32 v5, 5, v0")
    e("v_and_b32 v35, 31, v0")
    e("v_add_u32 v34, s26, v34")
    e("s_cmp_eq_u32 s18, 3")
    e(f"s_cbranch_scc1 L_{name}_hgen")
    e(f"s_lshl_b32 s17, s{sT}, 4")
    e("v_bfe_u32 v4, v0, 1, 4")
    e("v_add_u32 v4, s17, v4")
    e("v_and_b32 v6, 1, v0")
    e("v_cvt_f32_u32 v7, v4")
    e(f"v_mul_f32 v7, {fhex(1.0/288)}, v7")
    e("v_cvt_f32_u32 v8, v6")
    e("v_mul_f32 v8, 0x3e800000, v8")
    e("v_cvt_f32_u32 v9, v5")
    e("v_mul_f32 v10, 0x41000000, v9")
    e("v_fma_f32 v10, v10, v7, v8")
    for t in range(1, 8): e(f"v_add_f32 v{10+t}, v{9+t}, v7")
    e("v_mul_f32 v8, 0x41800000, v7")
    e("v_and_b32 v31, 1, v4")
    e("v_mul_u32_u24 v31, 0x8000, v31")
    e("v_lshl_or_b32 v31, v31, 16, v31")
    e("v_mov_b32 v28, 0")
    e("v_mov_b32 v3, 0x3f803f80")
    for j in range(9):
        for t in range(8): e(f"v_cos_f32 v{18+t}, v{10+t}")
        if j < 8:
            for t in range(8): e(f"v_add_f32 v{10+t}, v8, v{10+t}")
        for t in range(4): e(f"v_cvt_pk_bf16_f32 v{vE+4*j+t}, v{18+2*t}, v{19+2*t}")
        for t in range(4): e(f"v_dot2c_f32_bf16 v28, v{vE+4*j+t}, v3")
        if xt and xt[1] == j: xt_fire(k, 52, 224, 1, xt[0])
    e("v_mul_f32 v12, 0.5, v7")
    e("v_lshlrev_b32 v13, 31, v6")
    e("v_xor_b32 v12, v12, v13")
    e("v_cos_f32 v29, v12")
    e("v_sin_f32 v30, v12")
    e("v_mov_b32 v11, v28")
    e("v_and_b32 v13, 1, v4")
    e("v_or_b32 v13, v13, v5")
    e("v_permlane32_swap_b32 v28, v11")
    e("v_cmp_eq_u32 vcc, 0, v13")
    for r in (113, 114, 115, 117, 118, 119): e(f"v_mov_b32 v{r}, 0")
    e("v_add_f32 v28, v28, v11")
    e("v_mul_f32 v28, -2.0, v28")
    e("v_cndmask_b32 v28, 0, v28, vcc")
    e("v_cvt_pk_bf16_f32 v112, v28, v113")
    vF = 120
    e("v_cvt_f32_u32 v10, v35")
    e(f"v_mul_f32 v11, {fhex(1.0/32)}, v10")
    e(f"v_cvt_f32_u32 v12, s{sS2}")
    e(f"v_mul_f32 v12, {fhex(1.0/64)}, v12")
    e("v_fma_f32 v12, v9, 4.0, v12")
    e("v_mul_f32 v12, v12, v11")
    for jj in range(2):
        for t in range(8): e(f"v_fmamk_f32 v{136+t}, v11, {fhex(16*jj + 8*(t >> 2) + (t & 3))}, v12")
        for t in range(8): e(f"v_cos_f32 v{144+t}, v{136+t}")
        for t in range(8): e(f"v_sin_f32 v{136+t}, -v{136+t}")
        for t in range(4): e(f"v_cvt_pk_bf16_f32 v{vF+4*jj+t}, v{144+2*t}, v{145+2*t}")
        for t in range(4): e(f"v_cvt_pk_bf16_f32 v{vF+8+4*jj+t}, v{136+2*t}, v{137+2*t}")
    e("v_bfe_u32 v10, v0, 1, 3")
    e("v_lshlrev_b32 v11, 1, v5")
    e("v_xor_b32 v10, v10, v11")
    e("v_lshlrev_b32 v10, 4, v10")
    e("v_lshl_add_u32 v36, v35, 7, v10")
    e("v_xor_b32 v37, 16, v36")
    e("v_xor_b32 v38, 64, v36")
    e("v_xor_b32 v39, 80, v36")
    e("s_mov_b32 s28, 0x05040100")
    e("s_mov_b32 s29, 0x07060302")
    e("v_lshlrev_b32 v26, 4, v5")
    e("v_lshlrev_b32 v27, 2, v35")
    e(f"s_lshr_b32 s{sT1}, s{sS2}, 3")
    e(f"s_lshl_b32 s{sT1}, s{sT1}, 10")
    e(f"s_bfe_u32 s{sT2}, s{sS2}, 0x10002")
    e(f"s_lshl_b32 s{sT2}, s{sT2}, 9")
    e(f"s_add_u32 s{sT1}, s{sT1}, s{sT2}")
    e(f"s_and_b32 s{sT2}, s{sS2}, 1")
    e(f"s_lshl_b32 s{sT2}, s{sT2}, 8")
    e(f"s_add_u32 s{sT1}, s{sT1}, s{sT2}")
    e(f"s_bfe_u32 s{sT2}, s{sS2}, 0x10001")
    e(f"s_lshl_b32 s{sT2}, s{sT2}, 7")
    e(f"s_add_u32 s{sT1}, s{sT1}, s{sT2}")
    e(f"v_lshl_add_u32 v10, v35, 2, s{sT1}")
    e("v_lshl_add_u32 v11, v5, 1, s17")
    e("v_lshlrev_b32 v11, 13, v11")
    e("v_add_u32 v24, v10, v11")
    e("v_subrev_u32 v24, 8192, v24")
    e("v_sub_u32 v25, v10, v11")
    e(f"v_add_u32 v25, {143*8192}, v25")
    k.srd_off(44, 6, WS_Y, 144*8192)
    k.srd_off(48, 6, WS_Y + 144*8192, 144*8192)
    ntouch = len(xt[0]) if xt else 0
    k.label(f"L_{name}_nogen")
    tr("gen")
    stamp_mid(k, stamps, 0)
    e(f"s_waitcnt vmcnt({ntouch if xt and xt[1] != 'late' else 0})")
    if xt and xt[1] == "late": xt_fire(k, 52, 224, 1, xt[0])
    tr("xarr")
    for i in range(9): k.lds(f"ds_read_b128 {R(136+4*i,4)}, v34 offset:{4096*i}", ("s", i))
    e("v_mov_b32 v10, 0"); e("v_mov_b32 v11, 0"); e("v_mov_b32 v12, 0"); e("v_mov_b32 v13, 0")
    e("v_mov_b32 v14, 0x3f803f80")
    e("v_lshrrev_b32 v15, 3, v0")
    e("v_lshlrev_b32 v15, 2, v15")
    e(f"s_lshl_b32 s{sT1}, s{sW}, 5")
    e(f"v_add_u32 v15, s{sT1}, v15")
    for i in range(9):
        k.wait(lg=("s", i))
        for r in range(4):
            e(f"v_dot2c_f32_bf16 v{10+2*(r&1)}, v{136+4*i+r}, v14")
            e(f"v_dot2c_f32_bf16 v{11+2*(r&1)}, v{136+4*i+r}, v{136+4*i+r}")
    e("s_nop 2")
    e("v_add_f32 v10, v10, v12")
    e("v_add_f32 v11, v11, v13")
    for ctl in ("quad_perm:[1,0,3,2]", "quad_perm:[2,3,0,1]", "row_half_mirror"):
        e("s_nop 0")
        e(f"v_add_f32_dpp v10, v10, v10 {ctl} row_mask:0xf bank_mask:0xf")
        e(f"v_add_f32_dpp v11, v11, v11 {ctl} row_mask:0xf bank_mask:0xf")
    e(f"v_mul_f32 v10, {fhex(1.0/576)}, v10")
    e(f"v_mul_f32 v11, {fhex(1.0/576)}, v11")
    e("v_fma_f32 v11, -v10, v10, v11")
    e("v_max_f32 v11, 0, v11")
    e(f"v_add_f32 v11, {fhex(1e-5)}, v11")
    e("v_rsq_f32 v11, v11")
    e("ds_write_b32 v15, v10 offset:36992")
    e(f"v_mul_f32 v11, {fhex(2.0/(2048*576))}, v11")
    e("ds_write_b32 v15, v11 offset:36864")
    e("s_waitcnt lgkmcnt(0)")
    k.lg_done = len(k.lg)
    tr("stats")
    e("s_barrier")
    e("s_cmp_eq_u32 s18, 3")
    e(f"s_cbranch_scc1 L_{name}_end")
    tr("bar")
    stamp_mid(k, stamps, 1)
    vX = 172
    def xread(j):
        b = vX + 8*(j % 3)
        for x in (0, 1): k.lds(f"ds_read_b128 {R(b+4*x,4)}, v{36+2*(j&1)+x} offset:{(j>>1)*4096}", ("x", j))
    xread(0); xread(1); xread(2)
    vRr = 208
    k.lds("ds_read_b32 v16, v27 offset:36992", "mn")
    for g in range(4): k.lds(f"ds_read_b128 {R(vRr+4*g,4)}, v26 offset:{36864+32*g}", "rr")
    A0, A1 = 136, 152
    vD = [8, 200]
    def perms(j):
        b = vX + 8*(j % 3); d = vD[j & 1]
        return [f"v_perm_b32 v{d+r}, v{b+2*r+1}, v{b+2*r}, s28" for r in range(4)] + [f"v_perm_b32 v{d+4+r}, v{b+2*r+1}, v{b+2*r}, s29" for r in range(4)]
    xq = [f"v_xor_b32 v{vE2+r}, v31, v{vE+r}" for r in range(36)]
    for _ in range(12): e(xq.pop(0))
    k.wait(lg=("x", 0))
    for p in perms(0): e(p)
    e("s_nop 0")
    for j in range(18):
        Bm = R((vE if j < 9 else vE2) + 4*(j % 9), 4)
        d = vD[j & 1]
        nx = perms(j+1) if j + 1 < 18 else []
        for p in (0, 1):
            acc = R(A1 if p else A0, 16)
            e(f"{MF32} {acc}, {R(d+4*p,4)}, {Bm}, {'0' if j == 0 else acc}")
            if p == 0 and nx: k.wait(lg=("x", j+1))
            if j + 3 < 18:
                b = vX + 8*((j+3) % 3)
                k.lds(f"ds_read_b128 {R(b+4*p,4)}, v{36+2*((j+3)&1)+p} offset:{((j+3)>>1)*4096}", ("x", j+3))
            for x in nx[4*p:4*p+4]: e(x)
            if xq: e(xq.pop(0))
            if j == 16 and p == 1: e("v_cvt_pk_bf16_f32 v116, v16, v117")
            if j == 17 and p == 0:
                e(f"s_lshl_b32 s{sT1}, s{sS2}, 7")
                e(f"s_add_u32 s{sT1}, s{sT1}, {WS_MEAN}")
                e(f"s_cmp_eq_u32 s{sT}, 0")
                e(f"s_cselect_b32 s{sT1}, s{sT1}, 0x40000000")
                e(f"buffer_store_dword v16, v27, s[12:15], s{sT1} offen")
    e(f"{MF32} {R(A1,16)}, {R(116,4)}, {R(112,4)}, {R(A1,16)}")
    e(f"{MF32} {R(A0,16)}, {R(116,4)}, {R(112,4)}, {R(A0,16)}")
    tr("mfma")
    stamp_mid(k, stamps, 2)
    e("s_nop 10")
    k.wait(lg="rr")
    Bq, O1, O2 = 40, 56, 72
    for i in range(16): e(f"v_mul_f32 v{Bq+i}, v29, v{A1+i}")
    for i in range(16): e(f"v_fmac_f32_dpp v{Bq+i}, v{A1+i}, v30 {DPP}")
    for i in range(16): e(f"v_mul_f32 v{A0+i}, v{A0+i}, v{vRr+i}")
    for i in range(16): e(f"v_fma_f32 v{O1+i}, v{Bq+i}, v{vRr+i}, v{A0+i}")
    for i in range(8): e(f"v_cvt_pk_bf16_f32 v{88+i}, v{O1+2*i}, v{O1+2*i+1}")
    P1, Q1, P2, Q2 = 172, 152, 224, 240
    w2 = [f"v_fma_f32 v{O2+i}, -v{Bq+i}, v{vRr+i}, v{A0+i}" for i in range(16)] + [f"v_cvt_pk_bf16_f32 v{96+i}, v{O2+2*i}, v{O2+2*i+1}" for i in range(8)]
    e(w2.pop(0)); e(w2.pop(0))
    for (Dd, a, f, first) in [(P1, 88, vF, 1), (Q1, 88, vF+8, 1), (P1, 92, vF+4, 0), (Q1, 92, vF+12, 0)]:
        e(f"{MF32} {R(Dd,16)}, {R(a,4)}, {R(f,4)}, {'0' if first else R(Dd,16)}")
        for _ in range(6):
            if w2: e(w2.pop(0))
    e("s_nop 1")
    tr("comb")
    c1 = []
    for i in range(0, 16, 2):
        c1.append(f"v_sub_f32 v{O1+i}, v{P1+i}, v{Q1+i+1}")
        c1.append(f"v_add_f32 v{O1+i+1}, v{Q1+i}, v{P1+i+1}")
    c1 += [f"v_cvt_pk_bf16_f32 v{88+i}, v{O1+2*i}, v{O1+2*i+1}" for i in range(8)]
    adr = [f"v_add_u32 v{8+i}, {(4*(i>>1)+(i&1))*8192}, v24" for i in range(8)] + [f"v_subrev_u32 v{200+i}, {(4*(i>>1)+(i&1))*8192}, v25" for i in range(8)]
    for n_, (Dd, a, f, first) in enumerate([(P2, 96, vF, 1), (Q2, 96, vF+8, 1), (P2, 100, vF+4, 0), (Q2, 100, vF+12, 0)]):
        e(f"{MF32} {R(Dd,16)}, {R(a,4)}, {R(f,4)}, {'0' if first else R(Dd,16)}")
        src = adr if n_ < 3 else c1
        for _ in range(6):
            if src: e(src.pop(0))
    assert not adr
    for x in c1: e(x)
    for i in range(8): k.vmem(f"buffer_store_dword v{88+i}, v{8+i}, s[44:47], 0 offen{sf}", "st")
    for i in range(0, 16, 2):
        e(f"v_add_f32 v{O2+i}, v{P2+i}, v{Q2+i+1}")
        e(f"v_sub_f32 v{O2+i+1}, v{Q2+i}, v{P2+i+1}")
    for i in range(8): e(f"v_cvt_pk_bf16_f32 v{96+i}, v{O2+2*i}, v{O2+2*i+1}")
    for i in range(8): k.vmem(f"buffer_store_dword v{96+i}, v{200+i}, s[48:51], 0 offen{sf}", "st")
    tr("stored")
    tr.dump(6, sW, 198)
    stamp_end(k, stamps, 6, 0, sW, 3)
    e("s_endpgm")
    k.label(f"L_{name}_hgen")
    if xt and isinstance(xt[1], int):
        e("s_waitcnt vmcnt(0)")
        xt_fire(k, 52, 224, 1, xt[0])
    e(f"s_branch L_{name}_nogen")
    k.label(f"L_{name}_wt")
    e(f"s_load_dwordx4 s[28:31], s[0:1], {KA_WR}")
    if pf and pflate:
        e("s_bfe_u32 s40, s2, 0x10003")
        e("s_lshl_b32 s40, s40, 2")
        e(f"s_add_u32 s40, s40, s{sW}")
        k.prefetch_code("L_text_begin", "L_text_end", 32, 4, 1, 1, lane="v2", part=(40, 8192))
    e(f"s_sub_u32 s{sT0}, s2, {NMAIN}")
    e("v_lshlrev_b32 v3, 4, v0")
    e(f"s_mul_i32 s{sT1}, s{sT0}, 18496")
    e(f"s_lshl_b32 s{sT2}, s{sW}, 10")
    e("s_waitcnt lgkmcnt(0)")
    k.srd(8, 28, 2048*289*2)
    k.srd(12, 30, 2048*289*2)
    k.srd(16, 6, WS_END)
    for r in range(5):
        for mat in range(2):
            e(f"s_add_u32 m0, s{sT2}, {mat*20480 + r*4096}")
            e(f"s_add_u32 s26, s{sT1}, {r*4096}")
            e(f"buffer_load_dwordx4 v3, s[{8+4*mat}:{11+4*mat}], s26 offen{xf} lds")
    if tlb:
        e(f"s_load_dwordx2 s[34:35], s[0:1], {KA_OUT}")
        e(f"s_lshr_b32 s27, s{sT0}, 3")
        e("s_lshl_b32 s27, s27, 8")
        e("v_add_u32 v12, s27, v0")
        e(f"v_mul_u32_u24 v12, {tlb // 16}, v12")
        e("v_lshlrev_b32 v12, 4, v12")
        e("buffer_load_dword v100, v12, s[16:19], 0 offen")
        e("s_waitcnt lgkmcnt(0)")
        k.srd(36, 34, S*D*2)
        e("buffer_load_dword v101, v12, s[36:39], 0 offen")
    e("v_mov_b32 v8, 0"); e("v_mov_b32 v9, 0"); e("v_mov_b32 v10, 0"); e("v_mov_b32 v11, 0")
    e(f"s_mul_i32 s26, s{sT0}, {FLAG_STRIDE}")
    e(f"s_add_u32 s26, s26, {WS_FLAG}")
    for r in range(3):
        e(f"buffer_store_dwordx4 v[8:11], v3, s[16:19], s26 offen{wf}")
        e("s_add_u32 s26, s26, 4096")
    e(f"s_cmp_eq_u32 s{sW}, 0")
    e("s_cselect_b32 s26, s26, 0x40000000")
    e(f"buffer_store_dwordx4 v[8:11], v3, s[16:19], s26 offen{wf}")
    e(f"s_lshl_b32 s27, s{sT0}, 2")
    e(f"s_add_u32 s27, s27, s{sW}")
    e("s_cmp_ge_u32 s27, 162")
    e(f"s_cbranch_scc1 L_{name}_nog")
    e("s_mul_hi_u32 s28, s27, 0x1c71c71d")
    e("s_mul_i32 s29, s28, 9")
    e("s_sub_u32 s29, s27, s29")
    e("s_and_b32 s30, s28, 1")
    e("s_lshr_b32 s28, s28, 1")
    if hc16:
        e("v_and_b32 v12, 7, v2")
        e("v_bfe_u32 v13, v2, 3, 1")
        e("v_lshl_add_u32 v12, v13, 4, v12")
        e("v_bfe_u32 v13, v2, 4, 1")
        e("v_lshl_add_u32 v12, v13, 3, v12")
    else:
        e("v_and_b32 v12, 0x13, v2")
        e("v_bfe_u32 v13, v2, 2, 1")
        e("v_lshl_add_u32 v12, v13, 3, v12")
        e("v_bfe_u32 v13, v2, 3, 1")
        e("v_lshl_add_u32 v12, v13, 2, v12")
    e("s_lshl_b32 s28, s28, 5")
    e("v_add_u32 v12, s28, v12")
    e("v_cvt_f32_u32 v12, v12")
    e("v_lshrrev_b32 v13, 5, v2")
    e("s_lshl_b32 s29, s29, 4")
    e("s_add_u32 s29, s29, s30")
    e("s_add_u32 s29, s29, 1")
    e("v_lshl_add_u32 v13, v13, 3, s29")
    e("v_cvt_f32_u32 v13, v13")
    if fullg:
        e("s_lshr_b32 s31, s29, 4")
        e("s_sub_u32 s27, s27, s31")
        e("s_lshl_b32 s27, s27, 1")
        e("s_add_u32 s27, s27, s31")
    e("s_lshl_b32 s27, s27, 10")
    e(f"s_add_u32 s27, s27, {WS_G}")
    e("v_lshlrev_b32 v28, 4, v2")
    for hi in range(2 if fullg else 1):
        for t in range(4):
            e(f"v_add_f32 v{14+t}, {fhex(2*t + 144*hi)}, v13")
            e(f"v_mul_f32 v{14+t}, v{14+t}, v12")
            e(f"v_mul_f32 v{14+t}, {fhex(1.0/576)}, v{14+t}")
        for t in range(4): e(f"v_cos_f32 v{18+t}, v{14+t}")
        for t in range(4): e(f"v_sin_f32 v{14+t}, v{14+t}")
        e("s_nop 0")
        for t in range(4): e(f"v_cvt_pk_bf16_f32 v{108+4*hi+t}, v{18+t}, v{14+t}")
        e(f"buffer_store_dwordx4 v[{108+4*hi}:{111+4*hi}], v28, s[16:19], s27 offen{wf}")
        e("s_add_u32 s27, s27, 9216")
    k.label(f"L_{name}_nog")
    e("v_and_b32 v3, 31, v0")
    e("v_lshrrev_b32 v4, 5, v0")
    e("v_mul_u32_u24 v5, 578, v3")
    e("v_lshl_add_u32 v5, v4, 1, v5")
    e("v_lshlrev_b32 v6, 2, v3")
    e("v_lshl_add_u32 v6, v4, 13, v6")
    e(f"s_lshl_b32 s{sT1}, s{sT0}, 7")
    e(f"s_add_u32 s{sT1}, s{sT1}, {WS_WT}")
    e("s_waitcnt vmcnt(0)")
    e("s_barrier")
    for part in range(6):
        for i in range(6*part, 6*part+6):
            e(f"ds_read_u16 v{30+i}, v5 offset:{2+16*i}")
            e(f"ds_read_u16 v{70+i}, v5 offset:{20480+2+16*i}")
        if part > 0:
            e("s_waitcnt lgkmcnt(12)")
            for i in range(6*part-6, 6*part):
                e(f"v_lshl_or_b32 v{30+i}, v{70+i}, 16, v{30+i}")
                e(f"s_add_u32 s26, s{sT1}, {8*8192*i}")
                e(f"buffer_store_dword v{30+i}, v6, s[16:19], s26 offen{wf}")
    e("s_waitcnt lgkmcnt(0)")
    for i in range(30, 36):
        e(f"v_lshl_or_b32 v{30+i}, v{70+i}, 16, v{30+i}")
        e(f"s_add_u32 s26, s{sT1}, {8*8192*i}")
        e(f"buffer_store_dword v{30+i}, v6, s[16:19], s26 offen{wf}")
    stamp_end(k, stamps, 6, 0, sW, 0)
    if NP:
        e("s_endpgm")
        k.label(f"L_{name}_pack")
        e("v_mov_b32 v0, v2")
        pack_wg(k, name, sW, 4, NMAIN + NWT, jobs[0], jobs[1], pk, stamps, 0)
    k.label(f"L_{name}_end")
    e("s_endpgm")
    return k, (256, 100, 256), (NMAIN + NWT + NP, 256, 49152 if NP else 40960)


def etab_text():
    import numpy as np
    def bf(x):
        u = np.asarray(x, dtype=np.float32).view(np.uint32)
        return ((u + 0x7FFF + ((u >> 16) & 1)) >> 16).astype(np.uint32)
    out = np.zeros((10, 10, 64, 4), np.uint32)
    l = np.arange(64); n = l & 31; h = l >> 5; c = n & 1
    for T in range(10):
        kk = 16*T + (n >> 1)
        cs = np.zeros(64)
        for j in range(9):
            v = np.stack([np.cos(2*np.pi*(((16*j + 8*h + t) * kk % 288) / 288.0 + c/4.0)) for t in range(8)], 1)
            v[np.abs(v) < 1e-12] = 0.0
            b = bf(v)
            out[T, j] = b[:, 0::2] | (b[:, 1::2] << 16)
            cs += (b << 16).astype(np.uint32).view(np.float32).astype(np.float64).sum(1)
        tot = cs[:32] + cs[32:]
        corr = np.where((kk % 2 == 0) & (h == 0), -2.0 * np.concatenate([tot, tot]), 0.0)
        ph = 2*np.pi*kk/576.0
        out[T, 9, :, 0] = bf(corr)
        out[T, 9, :, 1] = np.cos(ph).astype(np.float32).view(np.uint32)
        out[T, 9, :, 2] = (np.sin(ph) * np.where(c == 1, -1.0, 1.0)).astype(np.float32).view(np.uint32)
        out[T, 9, :, 3] = np.where(kk % 2 == 1, 0x80008000, 0)
    q = out.reshape(-1).view(np.uint64)
    lines = [".p2align 7", ".type L_etab,@object", "L_etab:"]
    for i in range(0, len(q), 8): lines.append(".quad " + ",".join("0x%x" % x for x in q[i:i+8]))
    lines.append(".size L_etab, 102400")
    return "\n".join(lines) + "\n"

def gen_k2(name="col_kernel", stamps=False, touch=None, trace=False, xt=None, pk=None, jobs=(0, 0), sf='', gt=False, prio=0, t2pos=0):
    NMAIN = 288
    NP = (90 if touch == 'gu' else 81) if touch else 0
    if jobs[1]: NP = 8 * (-(-jobs[1] // 4))
    k = Kern(name); e = k.e
    tr = Tracer(k, trace, 38)
    sW, sT0, sT1, sT2 = 20, 23, 24, 25
    e(f"s_cmp_ge_u32 s2, {NMAIN + NP}")
    e(f"s_cbranch_scc1 L_{name}_end")
    stamp_begin(k, stamps)
    e(f"s_load_dwordx2 s[6:7], s[0:1], {KA_WS}")
    e("v_lshrrev_b32 v1, 6, v0")
    e("v_and_b32 v0, 63, v0")
    e(f"v_readfirstlane_b32 s{sW}, v1")
    if NP:
        e(f"s_cmp_ge_u32 s2, {NMAIN}")
        e(f"s_cbranch_scc1 L_{name}_t")
    if prio:
        e("s_cmp_lt_u32 s2, 256")
        e(f"s_cbranch_scc1 L_{name}_np")
        e(f"s_setprio {prio}")
        k.label(f"L_{name}_np")
    if xt: xt_load(k, 52)
    e("v_lshlrev_b32 v2, 4, v0")
    e("v_lshrrev_b32 v5, 5, v0")
    e("v_and_b32 v35, 31, v0")
    e("v_lshlrev_b32 v3, 2, v35")
    e("v_lshl_add_u32 v3, v5, 8, v3")
    e(f"s_lshl_b32 s{sT0}, s2, 13")
    e(f"s_lshl_b32 s26, s{sW}, 11")
    e(f"s_add_u32 s{sT0}, s{sT0}, s26")
    e(f"s_add_u32 s{sT1}, s{sT0}, {WS_Y}")
    e(f"s_add_u32 s{sT2}, s{sT0}, {WS_WT}")
    e("s_mov_b32 m0, s26")
    vM = 80
    e("v_bfe_u32 v4, v0, 1, 4")
    e(f"s_lshl_b32 s27, s{sW}, 4")
    e("v_add_u32 v4, s27, v4")
    e("v_and_b32 v6, 1, v0")
    e("v_cvt_f32_u32 v7, v4")
    e(f"v_mul_f32 v8, {fhex(1.0/64)}, v7")
    e("v_cvt_f32_u32 v9, v6")
    e("v_mul_f32 v9, 0x3e800000, v9")
    e("v_cvt_f32_u32 v36, v5")
    e("v_add_f32 v10, v36, v36")
    e("v_fma_f32 v9, v10, v8, v9")
    def m1(jp):
        for u in range(8):
            j, t = 2*jp + (u >> 2), u & 3
            e(f"v_fmamk_f32 v{12+u}, v8, {fhex(8*j + 4*(t>>1) + (t&1))}, v9")
        for u in range(8): e(f"v_cos_f32 v{20+u}, v{12+u}")
        for u in range(8): e(f"v_sin_f32 v{12+u}, v{12+u}")
        for u in range(8): e(f"v_cvt_pk_bf16_f32 v{vM+8*jp+u}, v{20+u}, v{12+u}")
    m1(0)
    e("s_waitcnt lgkmcnt(0)")
    tr("karg")
    k.srd(12, 6, WS_END)
    for i in range(2): k.vmem(f"buffer_load_dwordx4 v2, s[12:15], s{sT1} offen offset:{1024*i} lds", "y")
    vWt = 72
    for i in range(8):
        k.vmem(f"buffer_load_dword v{vWt+i}, v3, s[12:15], s{sT2} offen offset:{(4*(i>>1)+(i&1))*128}", "w")
    tr("issued")
    if gt:
        e("s_lshr_b32 s51, s2, 3")
        e("s_lshl_b32 s51, s51, 2")
        e(f"s_add_u32 s51, s51, s{sW}")
        e(f"s_sub_u32 s51, s51, {100 if gt is True else 86}")
        e("s_lshl_b32 s50, s51, 13")
        e(f"s_add_u32 s50, s50, {WS_G}")
        e(f"s_cmp_lt_u32 s51, {21 if gt is True else 41}")
        e("s_cselect_b32 s50, s50, 0x40000000")
        e("v_lshlrev_b32 v164, 7, v0")
        k.vmem("buffer_load_dword v1, v164, s[12:15], s50 offen", "xt")
    if xt:
        e("s_lshr_b32 s51, s2, 3")
        e("s_lshl_b32 s51, s51, 2")
        e(f"s_add_u32 s51, s51, s{sW}")
        e("s_sub_u32 s51, s51, 16")
        xt_prep(k, 52, 51, "v0", 176, xt)
        if t2pos == 0:
            xt_fire(k, 52, 176, 1, xt)
            for _ in xt: k.vm.append("xt")
    m1(1)
    e("v_and_b32 v10, 1, v4")
    e("v_mul_u32_u24 v10, 0x8000, v10")
    e("v_lshl_or_b32 v10, v10, 16, v10")
    for u in range(16): e(f"v_xor_b32 v{vM+16+u}, v10, v{vM+u}")
    e(f"v_mul_f32 v8, {fhex(1.0/2048)}, v7")
    e("v_lshlrev_b32 v10, 31, v6")
    e("v_xor_b32 v8, v8, v10")
    e("v_mul_f32 v9, 4.0, v36")
    e("v_mul_f32 v9, v9, v8")
    for i in range(16): e(f"v_fmamk_f32 v{128+i}, v8, {fhex(8*(i>>2) + (i&3))}, v9")
    for i in range(16): e(f"v_cos_f32 v{112+i}, v{128+i}")
    for i in range(16): e(f"v_sin_f32 v{128+i}, v{128+i}")
    e("v_lshlrev_b32 v34, 2, v0")
    tr("gen")
    k.wait(vm="y")
    tr("yarr")
    if xt and t2pos == 1:
        xt_fire(k, 52, 176, 1, xt)
        for _ in xt: k.vm.append("xt")
    e("s_barrier")
    tr("ybar")
    vY = 40
    for j in range(8):
        for u in (0, 1): k.lds(f"ds_read2st64_b32 {R(vY+4*j+2*u,2)}, v34 offset0:{4*j+2*u} offset1:{4*j+2*u+1}", ("y", j))
        if j == 6: k.wait(lg=("y", 0))
    vF = 144
    fg = ["v_cvt_f32_u32 v10, v35", f"v_mul_f32 v11, {fhex(1.0/32)}, v10", "v_mul_f32 v32, 4.0, v36", "v_mul_f32 v32, v32, v11"]
    fg += [f"v_fmamk_f32 v{14+t}, v11, {fhex(8*(t>>2) + (t&3))}, v32" for t in range(8)]
    fg += [f"v_cos_f32 v{22+t}, v{14+t}" for t in range(8)] + [f"v_sin_f32 v{14+t}, -v{14+t}" for t in range(8)]
    for _ in range(12): e(fg.pop(0))
    stamp_mid(k, stamps, 0)
    D2 = R(160, 16)
    for j in range(8):
        k.wait(lg=("y", j))
        e(f"{MF32} {D2}, {R(vM+4*j,4)}, {R(vY+4*j,4)}, {'0' if j == 0 else D2}")
        for _ in range(2): e(fg.pop(0))
    assert not fg
    tr("stB")
    stamp_mid(k, stamps, 1)
    for t in range(4):
        e(f"v_cvt_pk_bf16_f32 v{vF+t}, v{22+2*t}, v{23+2*t}")
        e(f"v_cvt_pk_bf16_f32 v{vF+8+t}, v{14+2*t}, v{15+2*t}")
    k.wait(vm="w")
    tr("warr")
    for i in range(8):
        e(f"v_lshlrev_b32 v{12+2*i}, 16, v{vWt+i}")
        e(f"v_and_b32 v{13+2*i}, 0xffff0000, v{vWt+i}")
    for i in range(8):
        e(f"v_mul_f32 v{176+2*i}, v{160+2*i}, v{12+2*i}")
        e(f"v_mul_f32 v{177+2*i}, v{160+2*i}, v{13+2*i}")
    e("v_add_u32 v30, s26, v2")
    for hh in (0, 1):
        for i in range(4*hh, 4*hh+4):
            e(f"v_fma_f32 v{176+2*i}, -v{161+2*i}, v{13+2*i}, v{176+2*i}")
            e(f"v_fma_f32 v{177+2*i}, -v{161+2*i}, v{12+2*i}, -v{177+2*i}")
        for i in range(4*hh, 4*hh+4): e(f"v_cvt_pk_bf16_f32 v{72+i}, v{176+2*i}, v{177+2*i}")
        k.lds(f"ds_write_b128 v30, {R(72+4*hh,4)} offset:{8192+1024*hh}")
    tr("wmul")
    e("v_and_b32 v10, 1, v0")
    e("v_mul_u32_u24 v10, 0x8000, v10")
    e("v_lshl_or_b32 v10, v10, 16, v10")
    k.wait(lg0=True)
    e("s_barrier")
    for j in range(8): k.lds(f"ds_read_b128 {R(vY+4*j,4)}, v2 offset:{8192+1024*j}", ("a", j))
    for t in range(4):
        e(f"v_xor_b32 v{vF+4+t}, v10, v{vF+t}")
        e(f"v_xor_b32 v{vF+12+t}, v10, v{vF+8+t}")
    tr("xchg")
    sa = ["s_and_b32 s27, s2, 1", "s_mul_i32 s29, s27, 18432", "s_lshr_b32 s27, s2, 4", "s_lshl_b32 s27, s27, 10", "s_add_u32 s29, s29, s27",
          "s_bfe_u32 s27, s2, 0x20001", "s_lshl_b32 s27, s27, 8", "s_add_u32 s29, s29, s27",
          "s_bfe_u32 s27, s2, 0x10003", "s_lshl_b32 s27, s27, 7", "s_add_u32 s29, s29, s27",
          f"s_mul_i32 s27, s{sW}, {16*36864}", "s_add_u32 s29, s29, s27", f"s_add_u32 s29, s29, {WS_V}",
          "v_mul_u32_u24 v31, 73728, v5", "v_lshl_add_u32 v31, v35, 2, v31"]
    D3 = R(176, 16)
    for j in range(8):
        k.wait(lg=("a", j))
        e(f"{MF32} {D3}, {R(vY+4*j,4)}, {R(vM+4*j,4)}, {'0' if j == 0 else D3}")
        for _ in range(2): e(sa.pop(0))
    e("s_cmp_lg_u32 s2, 287")
    e(f"s_cbranch_scc1 L_{name}_nonyq")
    for i in range(32): e(f"v_mul_f32 v{112+i}, 0.5, v{112+i}")
    k.label(f"L_{name}_nonyq")
    e("s_nop 7")
    for hh in (0, 1):
        for i in range(8*hh, 8*hh+8): e(f"v_mul_f32 v{160+i}, v{176+i}, v{112+i}")
        for i in range(8*hh, 8*hh+8): e(f"v_fmac_f32_dpp v{160+i}, v{176+i}, v{128+i} {DPP}")
        for i in range(4*hh, 4*hh+4): e(f"v_cvt_pk_bf16_f32 v{40+i}, v{160+2*i}, v{161+2*i}")
        e("s_nop 1")
        e(f"{MF32} {R(80,16)}, {R(40+4*hh,4)}, {R(vF+4*hh,4)}, {'0' if hh == 0 else R(80,16)}")
        e(f"{MF32} {R(96,16)}, {R(40+4*hh,4)}, {R(vF+8+4*hh,4)}, {'0' if hh == 0 else R(96,16)}")
    tr("twid")
    for i in range(1, 8): e(f"s_add_u32 s{30+i}, s29, {(4*(i>>1)+(i&1))*36864}")
    e("s_mov_b32 s30, s29")
    e("s_nop 4")
    for i in range(8):
        e(f"v_sub_f32 v{48+2*i}, v{80+2*i}, v{96+2*i+1}")
        e(f"v_add_f32 v{48+2*i+1}, v{96+2*i}, v{80+2*i+1}")
        e(f"v_cvt_pk_bf16_f32 v{40+i}, v{48+2*i}, v{49+2*i}")
        k.vmem(f"buffer_store_dword v{40+i}, v31, s[12:15], s{30+i} offen{sf}", "st")
    tr("stored")
    tr.dump(6, sW, 39)
    stamp_end(k, stamps, 6, 1, sW, 2)
    if NP:
        e("s_endpgm")
        k.label(f"L_{name}_t")
        if jobs[1]: pack_wg(k, name, sW, 4, NMAIN, jobs[0], jobs[1], pk, stamps, 1)
        else:
            emit_touch_wg(k, sW, 4, NMAIN, touch)
            stamp_end(k, stamps, 6, 1, sW, 0)
    k.label(f"L_{name}_end")
    e("s_endpgm")
    return k, (192, 100, 192), (NMAIN + NP, 256, 49152 if jobs[1] else 16384)

def gen_k3(name="inv_kernel", stamps=False, hc16=False, wpf=None, touch=None, trace=False, xt=None, pk=None, jobs=(0, 0), xf='', sf=''):
    NMAIN = 192
    NP = (120 if touch == 'gu' else 54) if touch else 0
    if xt: NP = 64
    if jobs[1]: NP = 8 * (-(-jobs[1] // 3))
    k = Kern(name); e = k.e
    tr = Tracer(k, trace, 4)
    sW, sRG, sT, sT0, sT1, sT2 = 20, 21, 22, 23, 24, 25
    e(f"s_cmp_ge_u32 s2, {NMAIN + NP}")
    e(f"s_cbranch_scc1 L_{name}_end")
    stamp_begin(k, stamps)
    e(f"s_load_dwordx2 s[4:5], s[0:1], {KA_X}")
    e(f"s_load_dwordx2 s[6:7], s[0:1], {KA_WS}")
    e("v_lshrrev_b32 v1, 6, v0")
    e("v_and_b32 v0, 63, v0")
    e(f"v_readfirstlane_b32 s{sW}, v1")
    if NP:
        e(f"s_cmp_ge_u32 s2, {NMAIN}")
        e(f"s_cbranch_scc1 L_{name}_t")
    e(f"s_lshr_b32 s{sT0}, s2, 3")
    e(f"s_mul_hi_u32 s{sT1}, s{sT0}, 0x55555556")
    e(f"s_mul_i32 s{sT}, s{sT1}, 3")
    e(f"s_sub_u32 s{sT}, s{sT0}, s{sT}")
    e(f"s_mul_i32 s{sT}, s{sT}, 3")
    e(f"s_add_u32 s{sT}, s{sT}, s{sW}")
    e(f"s_and_b32 s{sRG}, s2, 7")
    e(f"s_lshl_b32 s{sRG}, s{sRG}, 3")
    e(f"s_add_u32 s{sRG}, s{sRG}, s{sT1}")
    e("v_lshlrev_b32 v2, 4, v0")
    e(f"s_mul_i32 s26, s{sRG}, 36864")
    e(f"s_add_u32 s27, s26, {WS_V}")
    e(f"s_mul_i32 s28, s{sT}, 18432")
    e(f"s_add_u32 s28, s28, {WS_G}")
    e(f"s_mul_i32 s29, s{sW}, 12288")
    e("s_add_u32 s27, s27, s29")
    e("v_lshrrev_b32 v5, 5, v0")
    e("v_and_b32 v6, 31, v0")
    e("v_mul_u32_u24 v7, 73728, v6")
    e(f"v_lshl_add_u32 v7, v5, {3 if hc16 else 4}, v7")
    e(f"s_mul_i32 s30, s{sRG}, 1152")
    e(f"s_lshl_b32 s{sT1}, s{sT}, 6")
    e(f"s_add_u32 s30, s30, s{sT1}")
    e("v_lshlrev_b32 v8, 2, v6")
    e(f"s_lshl_b32 s31, s{sRG}, 7")
    e(f"s_add_u32 s31, s31, {WS_MEAN}")
    e("v_and_b32 v10, 1, v0")
    e("v_lshlrev_b32 v10, 4, v10")
    e("v_bfe_u32 v11, v0, 1, 1")
    e("v_and_b32 v12, 1, v0")
    e("v_xor_b32 v12, v12, v11")
    e("v_lshlrev_b32 v12, 15, v12")
    e("v_lshl_or_b32 v11, v11, 31, v12")
    e("v_lshlrev_b32 v3, 2, v0")
    e("s_waitcnt lgkmcnt(0)")
    tr("karg")
    k.srd(12, 6, WS_END)
    for i in range(12):
        if i % 4 == 0:
            e(f"s_add_u32 m0, s29, {1024*i}")
            e(f"s_add_u32 s{sT0}, s27, {1024*i}")
        k.vmem(f"buffer_load_dwordx4 v2, s[12:15], s{sT0} offen offset:{(i&3)*1024} lds", "V")
    vG = 100
    gorder = [f for j in range(9) for f in (j, 9 + j)]
    for f in gorder:
        e(f"s_add_u32 s{sT1}, s28, {(f>>2)*4096}")
        k.vmem(f"buffer_load_dwordx4 {R(vG+4*f,4)}, v2, s[12:15], s{sT1} offen offset:{(f&3)*1024}", ("g", f))
    k.srd(8, 4, S*D*2)
    for u in range(4):
        if hc16:
            for z in (0, 1): k.vmem(f"buffer_load_dwordx2 {R(16+4*u+2*z,2)}, v7, s[8:11], s30 offen offset:{(u>>1)*576 + (u&1)*16 + 32*z}{xf}", "x")
        else: k.vmem(f"buffer_load_dwordx4 {R(16+4*u,4)}, v7, s[8:11], s30 offen offset:{(u>>1)*576 + (u&1)*32}{xf}", "x")
    k.vmem("buffer_load_dword v9, v8, s[12:15], s31 offen", "x")
    if wpf: emit_wprefetch(k, sW, 3, "v0", 12, 1, 44, wpf)
    tr("issued")
    stamp_mid(k, stamps, 0)
    k.wait(vm="V")
    tr("varr")
    e("s_barrier")
    O, E, XM = 32, 48, 64
    seq = []
    for n_, f in enumerate(gorder):
        seq.append(("lo", f))
        if n_ >= 2: seq.append(("hi", gorder[n_-2]))
    seq += [("hi", gorder[-2]), ("hi", gorder[-1])]
    def step(kind, f):
        pi, j = divmod(f, 9)
        return 18*pi + j + (9 if kind == "hi" else 0)
    RING = [172 + 4*i for i in range(6)]
    ROT = [196, 200, 204]
    def rd(n):
        st = step(*seq[n]); b = RING[n % 6]
        for u in (0, 1): k.lds(f"ds_read2st64_b32 {R(b+2*u,2)}, v3 offset0:{4*st+2*u} offset1:{4*st+2*u+1}", ("b", n))
    for n in range(5): rd(n)
    started = set(); nrot = 0; rotreg = {}; rotdone = {}
    pend = []
    for n, (kind, f) in enumerate(seq):
        k.wait(vm=("g", f), lg=("b", n))
        accb = O if f < 9 else E
        acc = R(accb, 16)
        if kind == "hi":
            assert f in rotdone
            if rotdone[f] >= n - 1 or n >= 33: e("s_nop 1")
        a = vG + 4*f if kind == "lo" else rotreg[f]
        e(f"{MF32} {acc}, {R(a,4)}, {R(RING[n % 6],4)}, {'0' if accb not in started else acc}")
        started.add(accb)
        if n + 5 < 36: rd(n + 5)
        if kind == "lo":
            rr = ROT[nrot % 3]; nrot += 1; rotreg[f] = rr
            pend += [(f"v_alignbit_b32 v{rr+r}, v{vG+4*f+r}, v{vG+4*f+r}, v10", None) for r in range(4)] + [(f"v_xor_b32 v{rr+r}, v11, v{rr+r}", f if r == 3 else None) for r in range(4)]
        lim = 4 if n + 5 < 36 else 6
        for _ in range(lim):
            if pend:
                t_, fin = pend.pop(0); e(t_)
                if fin is not None: rotdone[fin] = n
    tr("mfma")
    stamp_mid(k, stamps, 1)
    k.wait(vm="x")
    for r in range(16):
        e(f"v_lshlrev_b32 v{XM+2*r}, 16, v{16+r}")
        e(f"v_and_b32 v{XM+2*r+1}, 0xffff0000, v{16+r}")
    e(f"s_lshl_b32 s{sT0}, s{sT}, 11")
    e(f"s_add_u32 s{sT0}, s{sT0}, s26")
    e(f"s_add_u32 s{sT0}, s{sT0}, {WS_HC}")
    e(f"s_add_u32 s{sT1}, s{sT0}, {18*1024}")
    e(f"s_mul_i32 s{sT2}, s{sRG}, 9")
    e(f"s_add_u32 s{sT2}, s{sT2}, s{sT}")
    e(f"s_lshl_b32 s{sT2}, s{sT2}, 8")
    e(f"s_add_u32 s{sT2}, s{sT2}, {WS_SS}")
    if hc16:
        e("v_and_b32 v2, 15, v0")
        e("v_lshlrev_b32 v2, 4, v2")
        e("v_lshl_add_u32 v2, v5, 8, v2")
        e("v_bfe_u32 v12, v0, 4, 1")
        e("v_lshl_add_u32 v2, v12, 10, v2")
    for i in range(16): e(f"v_sub_f32 v{E+i}, v{E+i}, v9")
    for u in range(4):
        for i in range(8*(u&1), 8*(u&1)+8):
            x_ = XM + 16*(u>>1) + i
            e(f"v_add_f32 v{x_}, v{x_}, v{E+i}")
            e(f"v_{'add' if u < 2 else 'sub'}_f32 v{x_}, v{x_}, v{O+i}")
        for i in range(4): e(f"v_cvt_pk_bf16_f32 v{16+4*u+i}, v{XM+8*u+2*i}, v{XM+8*u+2*i+1}")
        k.vmem(f"buffer_store_dwordx4 {R(16+4*u,4)}, v2, s[12:15], s{sT0 if u < 2 else sT1} offen offset:{(512 if hc16 else 1024)*(u&1)}{sf}", "st")
    e("v_mov_b32 v12, 0"); e("v_mov_b32 v13, 0")
    for i in range(16): e(f"v_dot2c_f32_bf16 v{12+(i&1)}, v{16+i}, v{16+i}")
    e("s_nop 2")
    e("v_add_f32 v12, v12, v13")
    k.vmem(f"buffer_store_dword v12, v3, s[12:15], s{sT2} offen{sf}", "st")
    tr("stored")
    tr.dump(6, sW, 14)
    stamp_end(k, stamps, 6, 2, sW, 2)
    if NP:
        e("s_endpgm")
        k.label(f"L_{name}_t")
        if jobs[1]:
            pack_wg(k, name, sW, 3, NMAIN, jobs[0], jobs[1], pk, stamps, 2)
            e("s_endpgm")
        elif xt:
            xt_load(k, 52)
            e(f"s_sub_u32 s51, s2, {NMAIN}")
            e("s_lshr_b32 s51, s51, 3")
            e("s_mul_i32 s51, s51, 3")
            e(f"s_add_u32 s51, s51, s{sW}")
            e("s_waitcnt lgkmcnt(0)")
            spec = [(m_, lo + 24*i, hi) for (m_, lo, hi) in xt for i in range(-(-(hi - lo) // 24))]
            assert len(spec) <= 4
            xt_prep(k, 52, 51, "v0", 4, spec)
            xt_fire(k, 52, 4, 1, spec)
        else: emit_touch_wg(k, sW, 3, NMAIN, touch, nper=4)
        stamp_end(k, stamps, 6, 2, sW, 0)
    k.label(f"L_{name}_end")
    e("s_endpgm")
    return k, (208, 100, 208), (NMAIN + NP, 192, 36864)

def gen_k3b(name="inv_kernel", stamps=False, hc16=True, trace=False, g0=7, sf='', wpf=None, xpos=10, r_lo=8, r_hi=4):
    NMAIN = 192
    k = Kern(name); e = k.e
    tr = Tracer(k, trace, 4)
    sW, sRG, sT, sT0, sT1, sT2 = 20, 21, 22, 23, 24, 25
    e(f"s_cmp_ge_u32 s2, {NMAIN}")
    e(f"s_cbranch_scc1 L_{name}_end")
    stamp_begin(k, stamps)
    e(f"s_load_dwordx2 s[6:7], s[0:1], {KA_WS}")
    e(f"s_load_dwordx2 s[4:5], s[0:1], {KA_X}")
    e("v_lshrrev_b32 v1, 6, v0")
    e("v_and_b32 v0, 63, v0")
    e(f"v_readfirstlane_b32 s{sW}, v1")
    e(f"s_lshr_b32 s{sT0}, s2, 3")
    e(f"s_mul_hi_u32 s{sT1}, s{sT0}, 0x55555556")
    e(f"s_mul_i32 s{sT}, s{sT1}, 3")
    e(f"s_sub_u32 s{sT}, s{sT0}, s{sT}")
    e(f"s_mul_i32 s{sT}, s{sT}, 3")
    e(f"s_add_u32 s{sT}, s{sT}, s{sW}")
    e(f"s_and_b32 s{sRG}, s2, 7")
    e(f"s_lshl_b32 s{sRG}, s{sRG}, 3")
    e(f"s_add_u32 s{sRG}, s{sRG}, s{sT1}")
    e("v_lshlrev_b32 v2, 4, v0")
    e(f"s_mul_i32 s26, s{sRG}, 36864")
    e(f"s_add_u32 s27, s26, {WS_V}")
    e(f"s_mul_i32 s28, s{sT}, 18432")
    e(f"s_add_u32 s28, s28, {WS_G}")
    e(f"s_mul_i32 s29, s{sW}, 12288")
    e("s_add_u32 s27, s27, s29")
    e("v_lshrrev_b32 v5, 5, v0")
    e("v_and_b32 v6, 31, v0")
    e("v_lshrrev_b32 v7, 2, v0")
    e("v_mul_u32_u24 v7, 73728, v7")
    e("v_lshrrev_b32 v8, 4, v0")
    e("v_xor_b32 v8, v8, v0")
    e("v_and_b32 v8, 3, v8")
    e("v_lshl_add_u32 v7, v8, 4, v7")
    e(f"s_mul_i32 s30, s{sRG}, 1152")
    e(f"s_lshl_b32 s{sT1}, s{sT}, 6")
    e(f"s_add_u32 s30, s30, s{sT1}")
    e(f"s_lshl_b32 s32, s{sW}, 12")
    e("s_add_u32 s32, s32, 36864")
    e("v_lshlrev_b32 v8, 2, v6")
    e(f"s_lshl_b32 s31, s{sRG}, 7")
    e(f"s_add_u32 s31, s31, {WS_MEAN}")
    e("v_and_b32 v10, 1, v0")
    e("v_lshlrev_b32 v10, 4, v10")
    e("v_bfe_u32 v11, v0, 1, 1")
    e("v_and_b32 v12, 1, v0")
    e("v_xor_b32 v12, v12, v11")
    e("v_lshlrev_b32 v12, 15, v12")
    e("v_lshl_or_b32 v11, v11, 31, v12")
    e("v_lshlrev_b32 v3, 2, v0")
    e("s_waitcnt lgkmcnt(0)")
    tr("karg")
    k.srd(12, 6, WS_END)
    for i in range(12):
        if i % 4 == 0:
            e(f"s_add_u32 m0, s29, {1024*i}")
            e(f"s_add_u32 s{sT0}, s27, {1024*i}")
        k.vmem(f"buffer_load_dwordx4 v2, s[12:15], s{sT0} offen offset:{(i&3)*1024} lds", "V")
    vG, vRot = 100, 172
    lq = []
    for f in range(18):
        it = []
        if f % 4 == 0: it.append(f"s_add_u32 s{sT1}, s28, {(f>>2)*4096}")
        lq.append((it, f"buffer_load_dwordx4 {R(vG+4*f,4)}, v2, s[12:15], s{sT1} offen offset:{(f&3)*1024}", ("g", f)))
    for u in range(4):
        lq.append(([f"s_add_u32 m0, s32, {1024*u}", f"s_add_u32 s33, s30, {(u>>1)*576 + (u&1)*16*73728}"], "buffer_load_dwordx4 v7, s[8:11], s33 offen lds", "x"))
    lq.append(([], "buffer_load_dword v9, v8, s[12:15], s31 offen", "x"))
    def issue():
        pre, ins, tag = lq.pop(0)
        for p in pre: e(p)
        k.vmem(ins, tag)
    lq = [(lq[22][0], lq[22][1], "mean")] + lq[:xpos] + lq[18:22] + lq[xpos:18]
    k.srd(8, 4, S*D*2)
    for _ in range(g0): issue()
    tr("issued")
    stamp_mid(k, stamps, 0)
    k.wait(vm="V")
    tr("varr")
    e("s_barrier")
    O, E, XM = 32, 48, 64
    seq = [("lo", f) for f in range(18)] + [("hi", f) for f in range(18)]
    def step(kind, f):
        pi, j = divmod(f, 9)
        return 18*pi + j + (9 if kind == "hi" else 0)
    RING = [96, 244, 248, 252, 12, 28]
    def rd(n):
        st = step(*seq[n]); b = RING[n % 6]
        for u in (0, 1): k.lds(f"ds_read2st64_b32 {R(b+2*u,2)}, v3 offset0:{4*st+2*u} offset1:{4*st+2*u+1}", ("b", n))
    for n in range(5): rd(n)
    k.wait(vm="mean")
    for i in range(16): e(f"v_sub_f32 v{E+i}, 0, v9")
    rotdone = {}
    pend = []
    XR = 16
    for n, (kind, f) in enumerate(seq):
        while kind == "lo" and ("g", f) not in k.vm: issue()
        k.wait(vm=("g", f), lg=("b", n))
        accb = O if f < 9 else E
        acc = R(accb, 16)
        if kind == "hi": assert rotdone[f] < n - 1
        a = (vG if kind == "lo" else vRot) + 4*f
        e(f"{MF32} {acc}, {R(a,4)}, {R(RING[n % 6],4)}, {'0' if n == 0 else acc}")
        if n + 5 < 36: rd(n + 5)
        if lq: issue()
        if kind == "lo":
            rr = vRot + 4*f
            pend += [(f"v_alignbit_b32 v{rr+r}, v{vG+4*f+r}, v{vG+4*f+r}, v10", None) for r in range(4)] + [(f"v_xor_b32 v{rr+r}, v11, v{rr+r}", f if r == 3 else None) for r in range(4)]
        if n == 17:
            assert not lq
            pend += [(x, None) for x in ["v_bfe_u32 v7, v0, 2, 2", "v_lshlrev_b32 v7, 4, v7", "v_lshl_add_u32 v7, v6, 6, v7", "v_lshl_add_u32 v7, v5, 3, v7", "v_add_u32 v7, s32, v7",
                                         "v_xor_b32 v16, 16, v7", "v_xor_b32 v17, 32, v7", "v_xor_b32 v18, 48, v7"]]
            pend.append(("XREAD", None))
            pend += [(x, None) for x in [f"s_lshl_b32 s{sT0}, s{sT}, 11", f"s_add_u32 s{sT0}, s{sT0}, s26", f"s_add_u32 s{sT0}, s{sT0}, {WS_HC}", f"s_add_u32 s{sT1}, s{sT0}, {18*1024}",
                                         "v_and_b32 v2, 15, v0", "v_lshlrev_b32 v2, 4, v2", "v_lshl_add_u32 v2, v5, 8, v2", "v_bfe_u32 v8, v0, 4, 1", "v_lshl_add_u32 v2, v8, 10, v2"]]
            pend.append(("XWAIT", None))
            for r in range(16): pend += [(f"v_lshlrev_b32 v{XM+2*r}, 16, v{100+r}", None), (f"v_and_b32 v{XM+2*r+1}, 0xffff0000, v{100+r}", None)]
            pend.append(("OREADY", None))
            for i in range(16): pend += [(f"v_add_f32 v{XM+i}, v{XM+i}, v{O+i}", None), (f"v_sub_f32 v{XM+16+i}, v{XM+16+i}, v{O+i}", None)]
        lim = r_lo if n < 18 else (r_hi if n < 31 else 6)
        if n == 35: lim = 999
        c_ = 0
        while pend and c_ < lim:
            t_, fin = pend[0]
            if t_ == "OREADY":
                if n < 30: break
                pend.pop(0); continue
            pend.pop(0)
            if t_ == "XREAD":
                k.wait(vm="x")
                xa = [7, 16, 17, 18]
                for u in range(4):
                    for z in (0, 1): k.lds(f"ds_read_b64 {R(100+4*u+2*z,2)}, v{xa[(u&1)+2*z]} offset:{2048*(u>>1)}", "xr")
                c_ += 8
            elif t_ == "XWAIT": k.wait(lg="xr")
            else:
                e(t_); c_ += 1
            if fin is not None: rotdone[fin] = n
        if n == 35: tailn = c_
    tr("mfma")
    stamp_mid(k, stamps, 1)
    e(f"s_mul_i32 s{sT2}, s{sRG}, 9")
    e(f"s_add_u32 s{sT2}, s{sT2}, s{sT}")
    e(f"s_lshl_b32 s{sT2}, s{sT2}, 8")
    e(f"s_add_u32 s{sT2}, s{sT2}, {WS_SS}")
    if tailn < 8: e(f"s_nop {7 - tailn}")
    for u in range(4):
        for i in range(8*(u&1), 8*(u&1)+8):
            x_ = XM + 16*(u>>1) + i
            e(f"v_add_f32 v{x_}, v{x_}, v{E+i}")
        for i in range(4): e(f"v_cvt_pk_bf16_f32 v{140+4*u+i}, v{XM+8*u+2*i}, v{XM+8*u+2*i+1}")
        k.vmem(f"buffer_store_dwordx4 {R(140+4*u,4)}, v2, s[12:15], s{sT0 if u < 2 else sT1} offen offset:{512*(u&1)}{sf}", "st")
    k.tailn = tailn
    e("v_mov_b32 v12, 0"); e("v_mov_b32 v13, 0")
    for i in range(16): e(f"v_dot2c_f32_bf16 v{12+(i&1)}, v{140+i}, v{140+i}")
    e("s_nop 2")
    e("v_add_f32 v12, v12, v13")
    k.vmem(f"buffer_store_dword v12, v3, s[12:15], s{sT2} offen{sf}", "st")
    tr("stored")
    tr.dump(6, sW, 14)
    stamp_end(k, stamps, 6, 2, sW, 2)
    k.label(f"L_{name}_end")
    e("s_endpgm")
    return k, (256, 100, 256), (NMAIN, 192, 36864 + 12288)
```

```python
from dsl import *
from layout import *
from k123 import stamp_begin, stamp_mid, stamp_end, R
from k4b import wg_map
import math

SLOT = 36864
MF32 = "v_mfma_f32_32x32x16_bf16"
MF16 = "v_mfma_f32_16x16x32_bf16"
P2ORDER = ["A0", "A1", "B0", "B1", "A2", "B2", "A3", "B3", "N"]

def gen_k4h(name="ffn_kernel", P=6, X=3, NF=10, stamps=False, dist=3, mapping=4, kidx=3, pf=True,
            pub_d=80, poll_d=60, chk_d=48, hpub_d=50, hpoll_d=30, hchk_d=36, st_sp=10, spin_max=200000, trace=False, order=None, dmar=6,
            wev=1, hc0=10, rpoll=(1740, 1790, 1880), trlead=False, nobar=0, fast=0, ssg=200, outf='', dfin=None, margin=1.03, sent=(3, 4), clr_at=300, clr_sp=10, clr_poll=1300, sload=(), retry_max=4000, lead_v=0, lrate=4, early_out=True, nb=False, otouch=0, g0=23, xpos=18, r_lo=6, r_hi=4, psleep=0, pubpos=60, drop=(), hgrp=((0,), (1,), (2,), (3,), (4,)), ld_sp=1, res_at=0, noack=False, chain_mode=0, padn=0, gdrop=False, fullg=False, ldsleep=0, xn=8):
    xdma = xhx = lin = False; dmaf = ''; tch = []
    order = order or P2ORDER
    if dfin is None: dfin = 1352 if chain_mode == 0 else 1340
    k = Kern(name); e = k.e
    SGU, SD, SW, SO, SU = 12, 16, 20, 24, 4
    P1 = [(0, 0, 0), (0, 1, 0), (0, 0, 1), (0, 1, 1)] + [(b, m_, hf) for b in (1, 2, 3) for m_ in (0, 1) for hf in (0, 1)] + [(4, 0, 0), (4, 1, 0)]
    sW, sMT, sFS, sRG = 28, 29, 30, 31
    sOff, sLB1, sLB2, sLB3, sLBN, sLBN3 = 32, 33, 34, 35, 36, 37
    sColW, sColN = 38, 39
    sRow = 40
    sRowN = 44
    sHC, sP, sPR, sT0, sT1, sHo, sSp = 46, 47, 48, 49, 50, 51, 52
    sFH, sFHp, sFR, sFRo, sHXo, sHXp, sHR, sOut, sMn, sSpin = 53, 54, 55, 56, 57, 60, 61, 62, 63, 64
    vW, vD, vN, vDN = 1, 5, 104, 240
    vA = 9
    vAN = 21
    vL16 = 23
    vC1, vC2, vR = (24, 25), (26, 27), (250, 252)
    vT = 28
    NT = 12
    vH = 40
    vSt, vFl, vPo, vPoll, vFv, vHo = 244, 245, 246, 247, 248, 249
    REG = 49152
    aHP = 144
    aF = 216
    assert aF + 4*NF <= 256
    e("s_cmp_ge_u32 s2, 256")
    e(f"s_cbranch_scc1 L_{name}_end")
    stamp_begin(k, stamps)
    e(f"s_load_dwordx4 s[4:7], s[0:1], {KA_WG}")
    e(f"s_load_dwordx4 s[8:11], s[0:1], {KA_WD}")
    e(f"s_load_dwordx2 s[66:67], s[0:1], {KA_WS}")
    e(f"s_load_dwordx2 s[96:97], s[0:1], {KA_X}")
    e("v_lshrrev_b32 v28, 6, v0")
    e("v_and_b32 v0, 63, v0")
    e(f"v_readfirstlane_b32 s{sW}, v28")
    wg_map(e, mapping, sFS, sMT, sT0, sT1)
    e(f"s_lshl_b32 s{sRG}, s{sMT}, 2")
    e(f"s_add_u32 s{sRG}, s{sRG}, s{sW}")
    SR = f"s[{SW}:{SW+3}]"
    NCH = 27
    k.tr = []
    def tr(label):
        if not trace or len(k.tr) >= 64: return
        if trlead and not (label.startswith("L") or label == "end"): return
        if not trlead and label.startswith("L"): return
        e("s_memtime s[58:59]")
        e("s_waitcnt lgkmcnt(0)")
        e("s_sub_u32 s58, s58, s92")
        e(f"v_writelane_b32 v251, s58, {len(k.tr)}")
        k.tr.append(label)

    def dma_items(c):
        slot = c % 4
        it = []
        for i in range(9):
            grp, r = divmod(i, 4)
            if c < 16:
                b, mat, hf = P1[c]
                m0, so = (sLB1, slot*SLOT + 4096*grp), (sColW, 128*b + (288*hf + 32*grp)*9216)
                v, srd = vW, (SU if mat else SGU)
            elif c < 18:
                m0, so = (sLB1, slot*SLOT + 4096*grp), (sColN, 64*grp*9216)
                v, srd = vN, (SU if P1[c][1] else SGU)
            else:
                nm = order[c-18]
                srd = SD
                if nm == "N":
                    v = vDN
                    if grp < 2: m0, so = (sLBN, slot*SLOT + 4096*grp), (sRowN, 64*grp*1152)
                    else: m0, so = (sLBN3, slot*SLOT), (sRowN+1, 0)
                else:
                    v = vD; side = 2*(nm[0] == "B"); db = int(nm[1])
                    if grp < 2: m0, so = (sLB2, slot*SLOT + 4096*grp), (sRow+side, 128*db + 32*grp*1152)
                    else: m0, so = (sLB3, slot*SLOT + 32768), (sRow+side+1, 128*db)
            if r == 0:
                it.append(("s", f"s_add_u32 m0, s{m0[0]}, {m0[1]}"))
                it.append(("s", f"s_add_u32 s{sOff}, s{so[0]}, {so[1]}"))
            it.append(("m", f"buffer_load_dwordx4 v{v+r}, s[{srd}:{srd+3}], s{sOff} offen offset:{1024*r}{dmaf} lds", ("dma", c)))
        return it
    def hc_items(kks):
        it = []
        for n_, kk in enumerate(kks):
            if n_ == 0 or kk % 4 == 0: it.append(("s", f"s_add_u32 s{sHo}, s{sHC}, {4096*(kk//4)}"))
            it.append(("m", f"buffer_load_dwordx4 a[{4*kk}:{4*kk+3}], v{vL16}, {SR}, s{sHo} offen offset:{1024*(kk%4)} sc1", ("hc", kk)))
        return it
    def emit_item(it):
        if it[0] == "s": e(it[1])
        elif "dma" in drop and " lds" in it[1] and it[2][1] > 3: k.vm.insert(0, it[2]); k.vm_done += 1
        else: k.vmem(it[1], it[2])
    qRG, qT, qT0, qT1, qT2 = 32, 33, 44, 45, 34
    e(f"s_lshr_b32 s{qRG}, s{sFS}, 2")
    e(f"s_lshl_b32 s{qT0}, s{sMT}, 2")
    e(f"s_add_u32 s{qRG}, s{qRG}, s{qT0}")
    e(f"s_and_b32 s{qT0}, s{sFS}, 3")
    e(f"s_min_u32 s{qT1}, s{qT0}, 1")
    e(f"s_lshl_b32 s{qT}, s{qT0}, 1")
    e(f"s_add_u32 s{qT}, s{qT}, s{qT1}")
    e(f"s_add_u32 s{qT}, s{qT}, s{sW}")
    e(f"s_add_u32 s{qT1}, s{qT1}, s{sW}")
    e(f"s_cmp_lt_u32 s{qT1}, 3")
    e("s_cselect_b32 s35, 1, 0")
    e(f"s_mul_i32 s98, s{qRG}, {FLAG_STRIDE}")
    e(f"s_lshl_b32 s99, s{qT}, 7")
    e("s_add_u32 s98, s98, s99")
    e(f"s_add_u32 s98, s98, {WS_FLAG + 90*128}")
    e("s_cmp_eq_u32 s35, 1")
    e("s_cselect_b32 s98, s98, 0x40000000")
    e("v_lshlrev_b32 v2, 4, v0")
    e(f"s_mul_i32 s36, s{qRG}, 36864")
    e(f"s_add_u32 s37, s36, {WS_V}")
    e(f"s_mul_i32 s38, s{qT}, {36864 if fullg else 18432}")
    e(f"s_add_u32 s38, s38, {WS_G}")
    e(f"s_mul_i32 s39, s{sW}, 9216")
    e("s_add_u32 s37, s37, s39")
    e(f"s_add_u32 s39, s39, {3*SLOT}")
    e("v_lshrrev_b32 v5, 5, v0")
    e("v_and_b32 v6, 31, v0")
    e("v_lshrrev_b32 v7, 2, v0")
    e("v_mul_u32_u24 v7, 73728, v7")
    e("v_lshrrev_b32 v8, 4, v0")
    e("v_xor_b32 v8, v8, v0")
    e("v_and_b32 v8, 3, v8")
    e("v_lshl_add_u32 v7, v8, 4, v7")
    e(f"s_mul_i32 s40, s{qRG}, 1152")
    e(f"s_lshl_b32 s{qT1}, s{qT}, 6")
    e(f"s_add_u32 s40, s40, s{qT1}")
    e(f"s_lshl_b32 s42, s{sW}, 12")
    e(f"s_add_u32 s42, s42, {4*SLOT}")
    e("v_lshlrev_b32 v8, 2, v6")
    e(f"s_lshl_b32 s41, s{qRG}, 7")
    e(f"s_add_u32 s41, s41, {WS_MEAN}")
    e("v_and_b32 v10, 1, v0")
    e("v_lshlrev_b32 v10, 4, v10")
    e("v_bfe_u32 v11, v0, 1, 1")
    e("v_and_b32 v12, 1, v0")
    e("v_xor_b32 v12, v12, v11")
    e("v_lshlrev_b32 v12, 15, v12")
    e("v_lshl_or_b32 v11, v11, 31, v12")
    e("v_lshlrev_b32 v3, 2, v0")
    e(f"v_add_u32 v19, {3*SLOT}, v3")
    e("s_waitcnt lgkmcnt(0)")
    tr("L-karg")
    k.srd(20, 66, WS_END)
    for i in range(9):
        if i % 4 == 0:
            e(f"s_add_u32 m0, s39, {1024*i}")
            e(f"s_add_u32 s{qT0}, s37, {1024*i}")
        k.vmem(f"buffer_load_dwordx4 v2, s[20:23], s{qT0} offen offset:{(i&3)*1024} lds", "V")
    vG, vRot = 100, 172
    lq = []
    NG = 36 if fullg else 18
    for f in range(NG):
        it = []
        if f % 4 == 0: it.append(f"s_add_u32 s{qT1}, s38, {(f>>2)*4096}")
        lq.append((it, f"buffer_load_dwordx4 {R(vG+4*f,4)}, v2, s[20:23], s{qT1} offen offset:{(f&3)*1024}", ("g", f)))
    for u in range(4):
        lq.append(([f"s_add_u32 m0, s42, {1024*u}", f"s_add_u32 s43, s40, {(u>>1)*576 + (u&1)*16*73728}"], "buffer_load_dwordx4 v7, s[24:27], s43 offen lds", "x"))
    lq.append(([], "buffer_load_dword v9, v8, s[20:23], s41 offen", "x"))
    def issue():
        pre, ins, tag = lq.pop(0)
        for p in pre: e(p)
        k.vmem(ins, tag)
    lq = [(lq[NG+4][0], lq[NG+4][1], "mean")] + lq[:xpos] + lq[NG:NG+4] + lq[xpos:NG]
    k.srd(24, 96, S*D*2)
    e("s_cmp_eq_u32 s35, 0")
    e(f"s_cbranch_scc1 L_{name}_idle")
    for _ in range(g0): issue()
    tr("L-issued")
    pass
    k.wait(vm="V")
    tr("L-varr")
    e("s_barrier")
    O, E3, XM = 32, 48, 64
    seq = [("lo", f) for f in range(18)] + [("hi", f) for f in range(18)]
    if fullg: seq = [("lo", f) for f in range(36)]
    def step(kind, f):
        if fullg: return f
        pi, j = divmod(f, 9)
        return 18*pi + j + (9 if kind == "hi" else 0)
    RING = [96, 244, 20, 252, 12, 28]
    def rd(n):
        st = step(*seq[n]); b = RING[n % 6]
        for u in (0, 1): k.lds(f"ds_read2st64_b32 {R(b+2*u,2)}, v19 offset0:{4*st+2*u} offset1:{4*st+2*u+1}", ("b", n))
    for n in range(5): rd(n)
    k.wait(vm="mean")
    for i in range(16): e(f"v_sub_f32 v{E3+i}, 0, v9")
    rotdone = {}
    pend = []
    XR = 16
    for n, (kind, f) in enumerate(seq):
        while kind == "lo" and ("g", f) not in k.vm: issue()
        k.wait(vm=("g", f), lg=("b", n))
        accb = O if f < (18 if fullg else 9) else E3
        acc = R(accb, 16)
        if kind == "hi": assert rotdone[f] < n - 1
        a = (vG if kind == "lo" else vRot) + 4*f
        e(f"{MF32} {acc}, {R(a,4)}, {R(RING[n % 6],4)}, {'0' if n == 0 else acc}")
        if n + 5 < 36: rd(n + 5)
        if lq: issue()
        if kind == "lo" and not fullg:
            rr = vRot + 4*f
            pend += [(f"v_alignbit_b32 v{rr+r}, v{vG+4*f+r}, v{vG+4*f+r}, v10", None) for r in range(4)] + [(f"v_xor_b32 v{rr+r}, v11, v{rr+r}", f if r == 3 else None) for r in range(4)]
        if n == (xn if fullg else 17):
            assert "x" not in [z[2] for z in lq]
            pend += [(x, None) for x in ["v_bfe_u32 v7, v0, 2, 2", "v_lshlrev_b32 v7, 4, v7", "v_lshl_add_u32 v7, v6, 6, v7", "v_lshl_add_u32 v7, v5, 3, v7", "v_add_u32 v7, s42, v7",
                                         "v_xor_b32 v16, 16, v7", "v_xor_b32 v17, 32, v7", "v_xor_b32 v18, 48, v7"]]
            pend.append(("XREAD", None))
            adr_ = [(x, None) for x in [f"s_lshl_b32 s{qT0}, s{qT}, 11", f"s_add_u32 s{qT0}, s{qT0}, s36", f"s_add_u32 s{qT0}, s{qT0}, {WS_HC}", f"s_add_u32 s{qT1}, s{qT0}, {18*1024}",
                                         "v_and_b32 v2, 15, v0", "v_lshlrev_b32 v2, 4, v2", "v_lshl_add_u32 v2, v5, 8, v2", "v_bfe_u32 v8, v0, 4, 1", "v_lshl_add_u32 v2, v8, 10, v2"]]
            if not fullg: pend += adr_
            else: pend += [("s_nop 0", None)] * 3
            pend.append(("XWAIT", None))
            for r in range(16): pend += [(f"v_lshlrev_b32 v{XM+2*r}, 16, v{100+r}", None), (f"v_and_b32 v{XM+2*r+1}, 0xffff0000, v{100+r}", None)]
            pend.append(("OREADY", None))
            for i in range(16): pend += [(f"v_add_f32 v{XM+i}, v{XM+i}, v{O+i}", None), (f"v_sub_f32 v{XM+16+i}, v{XM+16+i}, v{O+i}", None)]
            if fullg: pend += adr_
        lim = r_lo if n < 18 else (r_hi if n < 31 else 6)
        if fullg: lim = 3 if n < 31 else 5
        if n == 35: lim = 999
        c_ = 0
        while pend and c_ < lim:
            t_, fin = pend[0]
            if t_ == "OREADY":
                if n < (22 if fullg else 30) or lq: break
                pend.pop(0); continue
            pend.pop(0)
            if t_ == "XREAD":
                k.wait(vm="x")
                xa = [7, 16, 17, 18]
                for u in range(4):
                    for z in (0, 1): k.lds(f"ds_read_b64 {R(100+4*u+2*z,2)}, v{xa[(u&1)+2*z]} offset:{2048*(u>>1)}", "xr")
                c_ += 8
            elif t_ == "XWAIT": k.wait(lg="xr")
            else:
                e(t_); c_ += 1
            if fin is not None: rotdone[fin] = n
        if n == 35: tailn = c_
    tr("L-mfma")
    pass
    e(f"s_mul_i32 s{qT2}, s{qRG}, 9")
    e(f"s_add_u32 s{qT2}, s{qT2}, s{qT}")
    e(f"s_lshl_b32 s{qT2}, s{qT2}, 8")
    e(f"s_add_u32 s{qT2}, s{qT2}, {WS_SS}")
    if tailn < 8: e(f"s_nop {7 - tailn}")
    for u in range(4):
        for i in range(8*(u&1), 8*(u&1)+8):
            x_ = XM + 16*(u>>1) + i
            e(f"v_add_f32 v{x_}, v{x_}, v{E3+i}")
        for i in range(4): e(f"v_cvt_pk_bf16_f32 v{140+4*u+i}, v{XM+8*u+2*i}, v{XM+8*u+2*i+1}")
        k.vmem(f"buffer_store_dwordx4 {R(140+4*u,4)}, v2, s[20:23], s{qT0 if u < 2 else qT1} offen offset:{512*(u&1)} sc1", "st")
    k.tailn = tailn
    e("v_mov_b32 v12, 0"); e("v_mov_b32 v13, 0")
    for i in range(16): e(f"v_dot2c_f32_bf16 v{12+(i&1)}, v{140+i}, v{140+i}")
    e("s_nop 2")
    e("v_add_f32 v12, v12, v13")
    k.vmem(f"buffer_store_dword v12, v3, s[20:23], s{qT2} offen sc1", "st")
    tr("L-stored")
    e(f"s_branch L_{name}_join")
    k.label(f"L_{name}_idle")
    e("s_waitcnt vmcnt(0)")
    e("s_barrier")
    if pf:
        e("s_bfe_u32 s77, s2, 0x20003")
        e("s_lshl_b32 s77, s77, 1")
        e(f"s_and_b32 s76, s{sW}, 1")
        e("s_add_u32 s77, s77, s76")
        sv = list(k.vm)
        k.prefetch_code(name, f"L_{name}_fin", 72, 39, 253, 1, part=(77, 8192))
        k.vm = sv
    e(f"s_cmp_lg_u32 s{sW}, 3")
    e(f"s_cbranch_scc1 L_{name}_join")
    e("v_lshrrev_b32 v28, 3, v0")
    e("v_and_b32 v29, 7, v0")
    e("v_lshrrev_b32 v30, 2, v0")
    e("v_and_b32 v31, 6, v28")
    e("v_xor_b32 v29, v29, v31")
    e("v_lshlrev_b32 v29, 4, v29")
    e(f"v_mul_u32_u24 v{vW}, 9216, v28")
    e(f"v_add_u32 v{vW}, v{vW}, v29")
    if lin: e(f"v_lshlrev_b32 v{vW}, 4, v0")
    for i in range(1, 4): e(f"v_add_u32 v{vW+i}, {i*(8*9216-1024)}, v{vW}")
    e(f"v_lshlrev_b32 v{vL16}, 4, v0")
    e(f"s_lshr_b32 s68, s{sFS}, 1")
    e(f"s_and_b32 s69, s{sFS}, 1")
    e("s_mul_i32 s70, s68, 576")
    e("s_mul_i32 s71, s69, 320")
    e("s_add_u32 s71, s71, s70")
    e(f"s_and_b32 s{sT0}, s{sW}, 1")
    e(f"s_mul_i32 s{sT1}, s{sW}, {72*9216}")
    e(f"s_lshl_b32 s{sColW}, s71, 1")
    e(f"s_add_u32 s{sColW}, s{sColW}, s{sT1}")
    e(f"s_mul_i32 s{sLB1}, s{sW}, 9216")
    e(f"s_mul_i32 s{sHC}, s{sRG}, 36864")
    e(f"s_add_u32 s{sHC}, s{sHC}, {WS_HC}")
    e("v_and_b32 v32, 3, v0")
    e("v_lshlrev_b32 v32, 3, v32")
    e("v_bfe_u32 v33, v0, 3, 2")
    e("v_lshl_add_u32 v33, v33, 5, v32")
    e(f"v_lshl_add_u32 v{vA}, v30, 7, v33")
    for t in range(1, 4): e(f"v_xor_b32 v{vA+t}, {32*t}, v{vA}")
    for r in range(1, 3):
        for t in range(4): e(f"v_add_u32 v{vA+4*r+t}, {r*REG}, v{vA+t}")
    e("v_bfe_u32 v33, v0, 4, 1")
    e("v_lshl_add_u32 v33, v33, 5, v32")
    e(f"v_lshl_add_u32 v{vAN}, v30, 6, v33")
    e(f"v_xor_b32 v{vAN+1}, 32, v{vAN}")
    k.srd(SGU, 4, D*F*2)
    k.srd(16, 6, D*F*2)
    if ldsleep: e(f"s_sleep {ldsleep}")
    for c in range(3):
        b_, mat, hf = P1[c]
        srd = 16 if mat else SGU
        e(f"s_mov_b32 m0, {c*SLOT}")
        e(f"s_lshl_b32 s{sOff}, s71, 1")
        e(f"s_add_u32 s{sOff}, s{sOff}, {288*hf*9216}")
        e("s_mov_b32 s65, 9")
        k.label(f"L_{name}_ld{c}")
        for r in range(4): e(f"buffer_load_dwordx4 v{vW+r}, s[{srd}:{srd+3}], s{sOff} offen offset:{1024*r} lds")
        e("s_add_u32 m0, m0, 4096")
        e(f"s_add_u32 s{sOff}, s{sOff}, {32*9216}")
        e("s_sub_u32 s65, s65, 1")
        e("s_cmp_lg_u32 s65, 0")
        e(f"s_cbranch_scc1 L_{name}_ld{c}")
    k.label(f"L_{name}_join")
    e("v_cmp_eq_u32 vcc, 0, v0")
    e("v_bfrev_b32 v36, 1")
    e(f"v_mov_b32 v{vFv}, 1")
    e(f"v_cndmask_b32 v{vFl}, v36, 0, vcc")
    join_at = len(k.lines)
    e("v_lshrrev_b32 v28, 3, v0")
    e("v_and_b32 v29, 7, v0")
    e("v_lshrrev_b32 v30, 2, v0")
    e("v_and_b32 v31, 6, v28")
    e("v_xor_b32 v29, v29, v31")
    e("v_lshlrev_b32 v29, 4, v29")
    e(f"v_mul_u32_u24 v{vW}, 9216, v28")
    e(f"v_add_u32 v{vW}, v{vW}, v29")
    if lin: e(f"v_lshlrev_b32 v{vW}, 4, v0")
    for i in range(1, 4): e(f"v_add_u32 v{vW+i}, {i*(8*9216-1024)}, v{vW}")
    e(f"v_lshlrev_b32 v{vL16}, 4, v0")
    e(f"s_lshr_b32 s68, s{sFS}, 1")
    e(f"s_and_b32 s69, s{sFS}, 1")
    e("s_mul_i32 s70, s68, 576")
    e("s_mul_i32 s71, s69, 320")
    e("s_add_u32 s71, s71, s70")
    e(f"s_and_b32 s{sT0}, s{sW}, 1")
    e(f"s_mul_i32 s{sT1}, s{sW}, {72*9216}")
    e(f"s_lshl_b32 s{sColW}, s71, 1")
    e(f"s_add_u32 s{sColW}, s{sColW}, s{sT1}")
    e(f"s_mul_i32 s{sLB1}, s{sW}, 9216")
    e(f"s_mul_i32 s{sHC}, s{sRG}, 36864")
    e(f"s_add_u32 s{sHC}, s{sHC}, {WS_HC}")
    e("v_and_b32 v32, 3, v0")
    e("v_lshlrev_b32 v32, 3, v32")
    e("v_bfe_u32 v33, v0, 3, 2")
    e("v_lshl_add_u32 v33, v33, 5, v32")
    e(f"v_lshl_add_u32 v{vA}, v30, 7, v33")
    for t in range(1, 4): e(f"v_xor_b32 v{vA+t}, {32*t}, v{vA}")
    for r in range(1, 3):
        for t in range(4): e(f"v_add_u32 v{vA+4*r+t}, {r*REG}, v{vA+t}")
    e("v_bfe_u32 v33, v0, 4, 1")
    e("v_lshl_add_u32 v33, v33, 5, v32")
    e(f"v_lshl_add_u32 v{vAN}, v30, 6, v33")
    e(f"v_xor_b32 v{vAN+1}, 32, v{vAN}")
    k.srd(SGU, 4, D*F*2)
    k.srd(SU, 6, D*F*2)
    e("v_lshlrev_b32 v39, 2, v0")
    e(f"s_mul_i32 s{sSpin}, s{sRG}, 2304")
    e(f"s_add_u32 s{sSpin}, s{sSpin}, {WS_SS}")
    k.srd(SD, 8, D*F*2)
    k.srd(SO, 10, S*D*2)
    e(f"v_mul_u32_u24 v{vD}, 1152, v28")
    e(f"v_add_u32 v{vD}, v{vD}, v29")
    e("v_and_b32 v31, 3, v0")
    e("v_and_b32 v37, 2, v28")
    e("v_xor_b32 v31, v31, v37")
    e("v_lshlrev_b32 v31, 4, v31")
    e(f"v_mul_u32_u24 v{vN}, 9216, v30")
    e(f"v_add_u32 v{vN}, v{vN}, v31")
    e(f"v_mul_u32_u24 v{vDN}, 1152, v30")
    e(f"v_add_u32 v{vDN}, v{vDN}, v31")
    for i in range(1, 4):
        e(f"v_add_u32 v{vN+i}, {i*(16*9216-1024)}, v{vN}")
        e(f"v_add_u32 v{vD+i}, {i*(8*1152-1024)}, v{vD}")
        e(f"v_add_u32 v{vDN+i}, {i*(16*1152-1024)}, v{vDN}")
    e("s_lshl_b32 s72, s69, 5")
    e("s_add_u32 s72, s72, s70")
    e("s_add_u32 s72, s72, 256")
    e("s_xor_b32 s65, s69, 1")
    e("s_mul_i32 s73, s65, 320")
    e("s_add_u32 s73, s73, s70")
    e("s_lshl_b32 s74, s65, 5")
    e("s_add_u32 s74, s74, s70")
    e("s_add_u32 s74, s74, 256")
    e(f"s_lshl_b32 s{sColN}, s72, 1")
    e(f"s_add_u32 s{sColN}, s{sColN}, s{sT1}")
    e(f"s_add_u32 s{sColN}, s{sColN}, s{sT1}")
    e("s_mul_i32 s75, s69, 640")
    e("s_lshl_b32 s76, s69, 6")
    e("s_add_u32 s76, s76, 512")
    for i, (f, sh) in enumerate([(71, 6), (72, 3), (73, 6), (74, 3)]):
        e(f"s_lshl_b32 s{sRow+i}, s{sW}, {sh}")
        e(f"s_add_u32 s{sRow+i}, s{sRow+i}, s{f}")
        e(f"s_mul_i32 s{sRow+i}, s{sRow+i}, 1152")
        e(f"s_add_u32 s{sRow+i}, s{sRow+i}, s75")
    e(f"s_cmp_lt_u32 s{sW}, 2")
    e(f"s_cselect_b32 s{sRowN}, s71, s73")
    e(f"s_cselect_b32 s{sRowN+1}, s72, s74")
    e(f"s_cselect_b32 s{sLBN}, 0, 18432")
    for i, sh in ((0, 7), (1, 4)):
        e(f"s_lshl_b32 s65, s{sT0}, {sh}")
        e(f"s_add_u32 s{sRowN+i}, s{sRowN+i}, s65")
        e(f"s_mul_i32 s{sRowN+i}, s{sRowN+i}, 1152")
        e(f"s_add_u32 s{sRowN+i}, s{sRowN+i}, s76")
    e(f"s_lshl_b32 s65, s{sT0}, 10")
    e(f"s_add_u32 s{sLBN3}, s{sLBN}, s65")
    e(f"s_add_u32 s{sLBN3}, s{sLBN3}, 16384")
    e(f"s_lshl_b32 s65, s{sT0}, 13")
    e(f"s_add_u32 s{sLBN}, s{sLBN}, s65")
    e(f"s_lshl_b32 s{sLB2}, s{sW}, 13")
    e(f"s_lshl_b32 s{sLB3}, s{sW}, 10")
    e(f"s_lshl_b32 s{sPR}, s{sRG}, 1")
    e(f"s_add_u32 s{sPR}, s{sPR}, s69")
    e(f"s_mul_i32 s{sPR}, s{sPR}, {9*16384}")
    e(f"s_add_u32 s{sPR}, s{sPR}, {WS_P}")
    e(f"s_lshl_b32 s{sP}, s68, 8")
    e(f"s_add_u32 s{sP}, s{sP}, s{sPR}")
    e("s_lshl_b32 s65, s68, 11")
    e(f"s_add_u32 s{sPR}, s{sPR}, s65")
    e(f"s_mul_i32 s65, s{sRG}, {FLAG_STRIDE}")
    e(f"s_add_u32 s65, s65, {WS_FLAG}")
    e(f"s_mul_i32 s{sFH}, s{sFS}, 640")
    e(f"s_add_u32 s{sFH}, s{sFH}, s65")
    e(f"s_xor_b32 s{sFHp}, s{sFS}, 1")
    e(f"s_mul_i32 s{sHXp}, s{sFHp}, 18432")
    e(f"s_mul_i32 s{sFHp}, s{sFHp}, 640")
    e(f"s_add_u32 s{sFHp}, s{sFHp}, s65")
    e(f"s_add_u32 s{sFR}, s65, s75")
    e(f"s_add_u32 s{sFR}, s{sFR}, {80*128}")
    e(f"s_lshl_b32 s{sFRo}, s68, 2")
    e(f"s_add_u32 s{sFRo}, s{sFRo}, s{sFR}")
    e(f"s_mul_i32 s65, s{sRG}, {16*18432}")
    e(f"s_add_u32 s65, s65, {WS_HX}")
    e(f"s_add_u32 s{sHXp}, s{sHXp}, s65")
    e(f"s_mul_i32 s{sHXo}, s{sFS}, 18432")
    e(f"s_add_u32 s{sHXo}, s{sHXo}, s65")
    e(f"s_and_b32 s{sHR}, s68, 3")
    e(f"s_lshl_b32 s{sHR}, s{sHR}, 6")
    e("s_lshr_b32 s65, s68, 2")
    e("s_lshl_b32 s65, s65, 10")
    e(f"s_add_u32 s{sHR}, s{sHR}, s65")
    e(f"s_add_u32 s{sHR}, s{sHR}, s{sHC}")
    e(f"s_mul_i32 s{sOut}, s68, {4*73728}")
    e(f"s_mul_i32 s65, s{sRG}, 1152")
    e(f"s_add_u32 s{sOut}, s{sOut}, s65")
    e(f"s_lshl_b32 s{sMn}, s68, 4")
    e(f"s_lshl_b32 s65, s{sRG}, 7")
    e(f"s_add_u32 s{sMn}, s{sMn}, s65")
    e(f"s_add_u32 s{sMn}, s{sMn}, {WS_MEAN}")
    e("v_and_b32 v32, 3, v0")
    e("v_bfe_u32 v33, v0, 2, 2")
    e("v_bfe_u32 v34, v0, 4, 1")
    e("v_lshrrev_b32 v35, 5, v0")
    e("v_lshrrev_b32 v36, 4, v0")
    e(f"v_lshlrev_b32 v{vSt}, 4, v32")
    e(f"v_lshl_add_u32 v{vHo}, v33, 8, v{vSt}")
    e(f"v_lshl_add_u32 v{vHo}, v34, 3, v{vHo}")
    e(f"v_lshl_add_u32 v{vHo}, v35, 11, v{vHo}")
    e(f"v_lshl_add_u32 v{vSt}, v36, 6, v{vSt}")
    e(f"v_lshl_add_u32 v{vSt}, v33, 11, v{vSt}")
    e("v_and_b32 v36, 7, v0")
    e(f"v_lshlrev_b32 v{vPo}, 2, v36")
    vTch, vTcg, sTch, STG = (251 if not trace else 255), 254, 96, 8
    if any(x is not None for x in tch):
        e(f"s_lshl_b32 s78, s{sMT}, 1")
        e("s_add_u32 s78, s78, s69")
        e("s_lshl_b32 s78, s78, 2")
        e(f"s_add_u32 s78, s78, s{sW}")
        e("s_mul_i32 s79, s68, 1152")
        for i, (u0, cnt_, col) in enumerate([(0, 18, 2), (20, 18, 3), (40, 9, 4)]):
            e(f"s_sub_u32 s65, s78, {u0}")
            e("s_cmp_ge_u32 s65, 9")
            e(f"s_cselect_b32 s{sTch+i}, {640 - 9*64*9216}, 0")
            e(f"s_mul_i32 s77, s65, {64*9216}")
            e(f"s_add_u32 s{sTch+i}, s{sTch+i}, s77")
            e(f"s_add_u32 s{sTch+i}, s{sTch+i}, s79")
            e(f"s_add_u32 s{sTch+i}, s{sTch+i}, {128*col}")
            e(f"s_cmp_lt_u32 s65, {cnt_}")
            e(f"s_cselect_b32 s{sTch+i}, s{sTch+i}, 0x40000000")
        e(f"s_mul_i32 s79, s68, {576*1152}")
        for i in range(3):
            e(f"s_sub_u32 s65, s78, {52 + 16*i}")
            e(f"s_add_u32 s77, s65, {14*i}")
            e("s_lshl_b32 s77, s77, 14")
            e(f"s_add_u32 s{sTch+3+i}, s77, s79")
            e(f"s_cmp_lt_u32 s65, {14 if i < 2 else 13}")
            e(f"s_cselect_b32 s{sTch+3+i}, s{sTch+3+i}, 0x40000000")
        e(f"v_lshlrev_b32 v{vTch}, 8, v0")
        e(f"v_mul_u32_u24 v{vTcg}, 9216, v0")
    defer = []
    rest_ = k.lines[join_at + pubpos:]; k.lines = k.lines[:join_at + pubpos]
    while rest_ and rest_[0].strip().startswith(("s_cselect", "s_addc", "v_cndmask")): k.lines.append(rest_.pop(0))
    tr("L-setup")
    e("s_waitcnt vmcnt(0)")
    tr("L-ack")
    e(f"buffer_store_dword v{vFv}, v{vFl}, {SR}, s98 offen sc1")
    k.lines += rest_
    e("s_barrier")
    tr("L-bar")
    k.vm = [("dma", c) for c in range(3) for _ in range(9)]; k.vm_done = len(k.vm)
    k.lg = []; k.lg_done = 0
    e("v_and_b32 v32, 15, v0")
    e("v_min_u32 v32, 8, v32")
    e("v_lshlrev_b32 v32, 7, v32")
    e(f"s_mul_i32 s98, s{sRG}, {FLAG_STRIDE}")
    e(f"s_add_u32 s98, s98, {WS_FLAG + 90*128}")
    e(f"s_mov_b32 s99, {spin_max}")
    k.label(f"L_{name}_hw")
    if psleep: e(f"s_sleep {psleep}")
    e(f"buffer_load_dword v33, v32, {SR}, s98 offen sc1")
    e("s_sub_u32 s99, s99, 1")
    e("s_waitcnt vmcnt(0)")
    e("v_cmp_eq_u32 vcc, 0, v33")
    e("s_cmp_eq_u32 s99, 0")
    e(f"s_cbranch_scc1 L_{name}_hg")
    e(f"s_cbranch_vccnz L_{name}_hw")
    k.label(f"L_{name}_hg")
    tr("L-flags")
    for it in hc_items(range(0, hc0)): emit_item(it)
    tr("L-hc0")
    ss_items = [("m", f"buffer_load_dword v{vH+t}, v39, {SR}, s{sSpin} offen offset:{256*t} sc1", "ss") for t in range(9)]
    lead = hc_items(range(hc0, 26)) + dma_items(3) + hc_items(range(26, 36)) + ss_items

    mf = []
    Q = [112, 144, 176, 208]
    def accP1(b, mat):
        if b == 4: return Q[0] + 16*mat
        return Q[3 - b % 2] if mat else Q[b % 2]
    acc2 = {0: Q[3], 1: Q[1], 2: Q[2], 3: Q[0], 4: Q[3]}
    last_m = {}
    def wide_rd(slot, ks, t):
        a = slot*SLOT + ks*4096
        r = a // REG
        return [(vA + 4*r + t, a - r*REG), (vA + 4*r + t, a - r*REG + 2048)]
    def add(c, rd, kind, ks, Dt, t, first, own, key):
        mf.append(dict(key=key, c=c, rd=rd, B=[(kind, 2*ks), (kind, 2*ks+1)], D=[Dt + 4*(t & 1), Dt + 8 + 4*(t & 1)], Dt=Dt, first=first, own=own))
    def order_jt(nk, tiles, kmajor):
        if chain_mode == 0:
            if kmajor: return [(j, t) for j in range(nk) for t in tiles]
            return [(j, t) for tp in range(0, len(tiles), 2) for j in range(nk) for t in tiles[tp:tp+2]]
        if kmajor or chain_mode == 1: return [(j, t) for kg in range(0, nk, 3) for t in tiles for j in range(kg, kg+3)]
        return [(j, t) for t in tiles for j in range(nk)]
    for c in range(NCH):
        slot = c % 4
        if c < 16:
            b, mat, hf = P1[c]
            for (j, t) in order_jt(9, range(4), c in (0, 2) or chain_mode == 0):
                add(c, wide_rd(slot, j, t), "hc", 9*hf + j, accP1(b, mat) + 16*(t >> 1), t, hf == 0, ("g", b), ("gu"[mat], b, t >> 1))
        elif c < 18:
            mat = P1[c][1]
            for (j, t) in order_jt(18, range(2), chain_mode == 0):
                add(c, [(vAN+t, j*2048), (vAN+t, j*2048+1024)], "hc", j, accP1(4, mat), t, True, ("g", 4), ("gu"[mat], 4, 0))
        else:
            nm = order[c-18]
            if nm == "N":
                for (j, t) in order_jt(18, range(2), chain_mode == 0):
                    add(c, [(vAN+t, j*2048), (vAN+t, j*2048+1024)], "hp" if j >= 9 else "h", j % 9, acc2[4], t, True, ("o", 4), ("o", 4, 0))
            else:
                db = int(nm[1]); isB = nm[0] == "B"
                for (j, t) in order_jt(9, range(4), nm in ("A0", "B0") or (chain_mode == 0 and not isB)):
                    add(c, wide_rd(slot, j, t), "hp" if isB else "h", j, acc2[db] + 16*(t >> 1), t, not isB, ("o", db), ("o", db, t >> 1))
    seq = []
    if chain_mode == 0: seq = [(n, hf) for n in range(len(mf)) for hf in (0, 1)]
    else:
        prevD = None
        for n0 in range(0, len(mf), 3):
            h0 = 1 if mf[n0]["D"][1] == prevD else 0
            seq += [(n0, h0), (n0+1, h0), (n0+2, h0), (n0+2, 1-h0), (n0+1, 1-h0), (n0, 1-h0)]
            prevD = mf[n0]["D"][1-h0]
    opened = set(); isfirst = []
    for g_, (n, hf) in enumerate(seq):
        last_m[mf[n]["key"]] = g_
        key = (mf[n]["c"], mf[n]["D"][hf])
        isfirst.append(mf[n]["first"] and key not in opened); opened.add(key)
    NFR = len(mf); assert NFR == 972
    NM = 2*NFR
    cN = 18 + order.index("N")
    nslot = {16: 0, 17: 1, cN: cN % 4}
    def breg(B):
        kind, j = B
        if kind == "hc": return f"a[{4*j}:{4*j+3}]"
        if kind == "hp": return f"a[{aHP+4*j}:{aHP+4*j+3}]"
        return R(vH + 4*j, 4)

    class Op:
        __slots__ = ("txt", "kind", "deps", "done", "prio", "min_gap", "tag", "cost", "soft")
        def __init__(s, txt, kind="v", deps=(), min_gap=0, prio=0, tag=None):
            s.txt, s.kind, s.deps, s.min_gap, s.prio, s.tag = txt, kind, list(deps), min_gap, prio, tag
            s.done = None; s.soft = 0
            s.cost = 8 if kind == "x" else (5 if kind == "m" or (kind == "v" and (txt.startswith("v_fma_") or txt.startswith("v_cvt_pk") or "0x" in txt)) else 4)
    ops = []
    c1 = -2.0 * math.log2(math.e) * math.sqrt(2.0 / math.pi); c2 = c1 * 0.044715
    chain = [("w", "ss")] + [f"v_add_f32 v{vH}, v{vH}, v{vH+t}" for t in range(1, 9)]
    chain += [f"v_mov_b32 v{vH+1}, v{vH}", None, f"v_permlane32_swap_b32 v{vH}, v{vH+1}", None,
              f"v_add_f32 v{vH}, v{vH}, v{vH+1}", f"v_mov_b32 v{vR[0]}, {fhex(1e-5)}", f"v_fmac_f32 v{vR[0]}, {fhex(1.0/576)}, v{vH}",
              f"v_mov_b32 v{vR[1]}, v{vR[0]}", None, f"v_permlane16_swap_b32 v{vR[0]}, v{vR[1]}", None]
    for hf in (0, 1):
        chain += [("x", f"v_rsq_f32 v{vH+3}, v{vR[hf]}"), None,
                  f"v_mul_f32 v{vC1[hf]}, {fhex(c1)}, v{vH+3}", f"v_mul_f32 v{vH+4}, v{vH+3}, v{vH+3}",
                  f"v_mul_f32 v{vH+4}, v{vH+4}, v{vH+3}", f"v_mul_f32 v{vC2[hf]}, {fhex(c2)}, v{vH+4}"]
    prev = None; skip = 0
    for it in chain:
        if it is None: skip = 2; continue
        if isinstance(it, tuple) and it[0] == "w": o = Op(None, "vmwait", tag=it[1], min_gap=ssg)
        elif isinstance(it, tuple): o = Op(it[1], "x")
        else: o = Op(it, "v")
        if prev is not None: o.deps = [(prev, skip)]
        o.prio = -1; ops.append(o); prev = o; skip = 0
    stats_last = prev
    tfree = {}; tc = [0]; hdone = {}; owner_ops = {}
    def gelu(b, t, pr0):
        AG, AU = accP1(b, 0) + 16*t, accP1(b, 1) + 16*t
        mg = last_m[("g", b, t)] + 5; mu = last_m[("u", b, t)] + 5
        Hb = vH + 16*b + 8*t
        lst = []; res = []
        for i in range(16):
            G, U = AG + i, AU + i
            T = vT + tc[0] % NT; tc[0] += 1
            pr = pr0 + i
            d0 = [(stats_last, 1)] + ([(tfree[T], 0)] if T in tfree else [])
            m1 = Op(f"v_mul_f32 v{T}, v{G}, v{G}", deps=d0, min_gap=mg, prio=pr)
            f1 = Op(f"v_fma_f32 v{T}, v{T}, v{vC2[i>>3]}, v{vC1[i>>3]}", deps=[(m1, 0)], prio=pr)
            m2 = Op(f"v_mul_f32 v{T}, v{T}, v{G}", deps=[(f1, 0)], prio=pr)
            ex = Op(f"v_exp_f32 v{T}, v{T}", "x", deps=[(m2, 0)], prio=pr)
            f2 = Op(f"v_fma_f32 v{T}, v{T}, v{vR[i>>3]}, v{vR[i>>3]}", deps=[(ex, 1)], prio=pr)
            rc = Op(f"v_rcp_f32 v{T}, v{T}", "x", deps=[(f2, 0)], prio=pr)
            m3 = Op(f"v_mul_f32 v{G}, v{G}, v{T}", deps=[(rc, 1)], prio=pr)
            m4 = Op(f"v_mul_f32 v{U}, v{U}, v{G}", deps=[(m3, 0)], min_gap=mu, prio=pr)
            tfree[T] = m3; res.append(m4)
            if gdrop:
                ex.deps = d0; ex.min_gap = mg; rc.deps = [(ex, 1)]
                lst += [ex, rc, m3, m4]
            else: lst += [m1, f1, m2, ex, f2, rc, m3, m4]
            if i & 1:
                cv = Op(f"v_cvt_pk_bf16_f32 v{Hb + i//2}, v{U-1}, v{U}", deps=[(res[i-1], 0), (res[i], 0), (stats_last, 1)], prio=pr + 0.7)
                lst.append(cv); hdone[Hb + i//2] = cv
        return lst
    spins = []
    def flag_ops(last_st, sttag, pub_txt, poll_fn, reg, ident, loads, d, prio, after=None, poll_at=0, nbreg=None):
        w = Op(None, "vmwait", deps=[(last_st, d[0])], tag=sttag, prio=prio)
        pb = Op(pub_txt, "m", deps=[(w, 0)], prio=prio, tag=("pub", ident))
        pl = Op(poll_fn(reg), "m", deps=[(pb, d[1])] + ([(regfree[reg], 0)] if reg in regfree else []), prio=prio, tag=("poll", ident))
        pl.soft = poll_at
        w2 = Op(None, "vmwait", deps=[(pl, d[2])] + ([(after, 0)] if after else []), tag=("poll", ident), prio=prio)
        cm = Op(f"v_cmp_eq_u32 vcc, 0, v{reg}", deps=[(w2, 0)], prio=prio)
        regfree[reg] = cm
        if nbreg is None: br = Op((ident, poll_fn(vSpin)), "chk", deps=[(cm, 1)], prio=prio)
        else: br = Op(f"s_cmp_eq_u64 vcc, 0\n    s_cselect_b32 s{nbreg}, s{sPR}, 0x40000000", "s", deps=[(cm, 1)], prio=prio)
        lst = [w, pb, pl, w2, cm, br]; pv = br
        for kind, txt, tag in loads:
            o = Op(txt, kind, deps=[(pv, ld_sp if (kind == "m" and pv.kind == "m") else 1)], prio=prio, tag=tag); lst.append(o); pv = o
        return lst
    regfree = {}
    vSpin = 253
    PREG = [vPoll, 254, 255]
    lastchk = None
    prev_hst = None
    for b in range(5):
        lst = []
        for t in ((0, 1) if b < 4 else (0,)): lst += gelu(b, t, b*40 + t*16)
        owner_ops[("g", b)] = lst; ops += lst
        nfr = 4 if b < 4 else 2
        so = Op(f"s_add_u32 s{sT0}, s{sHXo}, {4096*b}", "s", deps=[(prev_hst, 0)] if prev_hst else [], prio=b*40, min_gap=288)
        ops.append(so)
        for j in range(nfr):
            fr = 4*b + j
            st = Op(f"buffer_store_dwordx4 {R(vH+4*fr,4)}, v{vL16}, {SR}, s{sT0} offen offset:{1024*j} sc1", "m",
                    deps=[(hdone[vH+4*fr+r], 1) for r in range(4)] + [(so, 0)] + ([(prev_hst, 1)] if prev_hst else []), prio=b*40 + 8*j + 8, tag=("hst", b))
            ops.append(st); prev_hst = st
        grp = [x for x in hgrp if x[-1] == b]
        if not grp: continue
        loads = []
        for bb in grp[0]:
            loads += [("s", f"s_add_u32 s{sSp}, s{sHXp}, {4096*bb}", None)]
            loads += [("m", f"buffer_load_dwordx4 a[{aHP+16*bb+4*j}:{aHP+16*bb+4*j+3}], v{vL16}, {SR}, s{sSp} offen offset:{1024*j} sc1", ("hp", 4*bb+j)) for j in range(4 if bb < 4 else 2)]
        dd = (hpub_d, hpoll_d if b >= 3 else 2*hpoll_d, hchk_d)
        fl = flag_ops(prev_hst, ("hst", b), f"buffer_store_dword v{vFv}, v{vFl}, {SR}, s{sFH} offen offset:{128*b} sc1",
                      (lambda r, b=b: f"buffer_load_dword v{r}, off, {SR}, s{sFHp} offset:{128*b} sc1"), PREG[b % 2], f"h{b}", loads, dd, b*40 + 39, after=lastchk)
        ops += fl; lastchk = fl[-1]
    comp = sorted(range(5), key=lambda db: last_m[("o", db, 0 if db == 4 else 1)])
    prev_st = prev_hst
    tail_blocks = []
    stlast = {}
    def red_pub(db): return f"buffer_store_dword v{vFv}, v{vFl}, {SR}, s{sFRo} offen offset:{128*db} sc1"
    def red_poll(db, reg=vPoll): return f"buffer_load_dword v{reg}, v{vPo}, {SR}, s{sFR} offen offset:{128*db} sc1"
    def red_loads(db, base=None):
        base = sPR if base is None else base
        l = []
        for t in ((0, 1) if db < 4 else (0,)):
            T = 2*db + t
            l.append(("s", f"s_add_u32 s{sSp}, s{base}, {T*16384}", None))
            l += [("m", f"buffer_load_dwordx4 a[{8*T+4*j}:{8*T+4*j+3}], v{vL16}, {SR}, s{sSp} offen offset:{1024*j} sc1", ("rl", db)) for j in range(2)]
        return l
    state = {}; pollreg = {}
    clr_chk = None
    if sent:
        late_clr = clr_at > 1000
        vN_ = 24 if late_clr else vH + 60
        gl_ = [(o, 1) for o in owner_ops[("g", 4)]] if late_clr else []
        mv = [Op(f"v_mov_b32 v{vN_+r}, -1", min_gap=clr_at, prio=-3, deps=gl_) for r in range(4)]
        ops += mv; pv = None
        for db in sent:
            for t in ((0, 1) if db < 4 else (0,)):
                so = Op(f"s_add_u32 s{sT1}, s{sPR}, {(2*db+t)*16384}", "s", deps=[(pv, 0)] if pv else [], min_gap=clr_at, prio=-3)
                ops.append(so)
                for j in (0, 1):
                    st = Op(f"buffer_store_dwordx4 {R(vN_,4)}, v{vL16}, {SR}, s{sT1} offen offset:{1024*j} sc1", "m",
                            deps=[(so, 0)] + [(x, 1) for x in mv] + ([(pv, clr_sp)] if pv else []), prio=-3, tag="clr")
                    ops.append(st); pv = st
        if not late_clr:
            for r in range(4): hdone[vN_+r].deps.append((pv, 2))
        fl = flag_ops(pv, "clr", red_pub(4), (lambda r: red_poll(4, r)), PREG[2], "clr", [], (pub_d, poll_d, chk_d), 500, after=lastchk, poll_at=clr_poll)
        ops += fl; lastchk = fl[-1]; clr_chk = fl[-1]
    for ci, db in enumerate(comp):
        lst = []
        for t in ((0, 1) if db < 4 else (0,)):
            a = acc2[db] + 16*t; mg = last_m[("o", db, t)] + 5
            pr = 1000 + ci*100 + t*40
            pv = None
            for ee in (0, 1):
                cvs = []
                for j in range(4*ee, 4*ee+4):
                    o = Op(f"v_cvt_pk_bf16_f32 v{a+j}, v{a+2*j}, v{a+2*j+1}", min_gap=mg, prio=pr + j, deps=[(pv, 0)] if pv else [])
                    lst.append(o); pv = o
                so = Op(f"s_add_u32 s{sT0}, s{sP}, {(2*db+t)*16384 + ee*8192}", "s", deps=[(prev_st, 0)], min_gap=mg, prio=pr + 4*ee)
                st = Op(f"buffer_store_dwordx4 {R(a+4*ee,4)}, v{vSt}, {SR}, s{sT0} offen sc1", "m", deps=[(pv, 1), (so, 0), (prev_st, st_sp)] + ([(clr_chk, 1)] if db in sent else []), prio=pr + 4*ee + 4, tag=("st", db))
                lst += [so, st]; prev_st = st
        owner_ops[("o", db)] = lst; ops += lst
        est = last_m[("o", db, 0 if db == 4 else 1)] + 16 + st_sp
        if db in sent:
            state[db] = "sent"
            sl = dict(sload)
            if db in sl:
                pv = lastchk
                for kind, txt, tag in red_loads(db):
                    o = Op(txt, kind, deps=[(pv, 1), (prev_st, pub_d)], prio=900 + ci, tag=tag); o.soft = sl[db]; ops.append(o); pv = o
                lastchk = pv; state[db] = "sentl"
            continue
        pat = rpoll[ci] if ci < len(rpoll) else 5000
        fl = flag_ops(prev_st, ("st", db), red_pub(db), (lambda r, db=db: red_poll(db, r)), PREG[ci % 3], f"r{db}", red_loads(db, 96 + db if nb else None), (pub_d, poll_d, chk_d), 900 + ci, after=lastchk, poll_at=pat, nbreg=(96 + db if nb else None))
        tp = max(est + pub_d + poll_d, pat)
        if tp + chk_d < NM - 24: ops += fl; lastchk = fl[-1]; state[db] = "done"
        elif tp < NM - 6: ops += fl[:3]; state[db] = "polled"; pollreg[db] = PREG[ci % 3]
        elif est + pub_d < NM - 6: ops += fl[:2]; state[db] = "pub"
        else: state[db] = "none"
    glast = [(o, 1) for o in owner_ops[("g", 4)]]
    pv = None
    for j in range(5):
        if j < 4:
            s1 = Op(f"s_lshl_b32 s{sHo}, s75, 5", "s", deps=glast + ([(pv, 0)] if pv else []), prio=890, min_gap=res_at)
        else:
            s1 = Op(f"s_lshl_b32 s{sHo}, s76, 5", "s", deps=[(pv, 0)], prio=890)
        s2_ = Op(f"s_add_u32 s{sHo}, s{sHo}, s{sHR}", "s", deps=[(s1, 0)], prio=890)
        lst = [s1, s2_]; pv = s2_
        if 0 < j < 4:
            s3 = Op(f"s_add_u32 s{sHo}, s{sHo}, {4096*j}", "s", deps=[(s2_, 0)], prio=890); lst.append(s3); pv = s3
        ld = Op(f"buffer_load_dwordx2 v[{vT+2*j}:{vT+2*j+1}], v{vHo}, {SR}, s{sHo} offen sc1", "m", deps=[(pv, 0)], prio=890, tag="res")
        ops += lst + [ld]; pv = ld
    mo = Op(f"v_and_b32 v{vT+11}, 60, v39", deps=glast, prio=890) if False else None
    m1_ = Op(f"v_lshrrev_b32 v{vT+11}, 2, v{vL16}", deps=glast, prio=889)
    m2_ = Op(f"v_and_b32 v{vT+11}, 12, v{vT+11}", deps=[(m1_, 0)], prio=889)
    ops += [m1_, m2_, Op(f"buffer_load_dword v{vT+10}, v{vT+11}, {SR}, s{sMn} offen", "m", deps=[(pv, 1), (m2_, 1)], prio=890, tag="res")]
    for i, gp in enumerate(tch):
        if gp is None: continue
        for z in (0, 1):
            if i < 3: txt = f"buffer_load_dword v{vSpin}, v{vTcg}, s[{(SGU, SU)[z]}:{(SGU, SU)[z]+3}], s{sTch+i} offen"
            else: txt = f"buffer_load_dword v{vSpin}, v{vTch}, s[{SD}:{SD+3}], s{sTch+i} offen offset:{128*z}"
            ops.append(Op(txt, "m", min_gap=gp, prio=-2, tag="touch"))
    if otouch:
        o1 = Op(f"v_and_b32 v{PREG[2]}, 3, v0", min_gap=otouch, prio=-2)
        o2 = Op(f"v_mul_u32_u24 v{PREG[2]}, 73728, v{PREG[2]}", deps=[(o1, 0)], prio=-2)
        o3 = Op(f"buffer_load_dword v{vSpin}, v{PREG[2]}, s[{SO}:{SO+3}], s{sOut} offen", "m", deps=[(o2, 1)], prio=-2, tag="touch")
        ops += [o1, o2, o3]
    pending = sorted(ops, key=lambda o: o.prio)

    def ready(o, g):
        if g < o.min_gap or g < o.soft: return False
        for d, lat in o.deps:
            if d.done is None or g < d.done + lat: return False
        return True
    def take(kinds, g, maxcost=99):
        for idx, o in enumerate(pending[:260]):
            if o.kind in kinds and o.cost <= maxcost and ready(o, g):
                pending.pop(idx); o.done = g
                return o
        return None
    nforced = [0]
    def force(o, g):
        if o.done is not None: return
        for d, lat in o.deps: force(d, g)
        assert g >= o.min_gap, (o.txt, g, o.min_gap)
        pending.remove(o); o.done = g - 1
        e("s_nop 1"); emit_op(o); nforced[0] += 1
    def emit_check(ident, poll_txt):
        e(f"s_cbranch_vccnz L_{name}_spin{ident}")
        k.label(f"L_{name}_ret{ident}")
        spins.append((ident, poll_txt))
    def emit_op(o):
        assert not defer or o.prio == -1, o.txt
        if o.kind == "vmwait":
            if o.tag == "ss": assert k.vm.count("ss") == 9 and not defer
            if o.tag != "ss": tr(f"pre-wait{o.tag}")
            k.wait(vm=o.tag)
            if o.tag != "ss": tr(f"post-wait{o.tag}")
        elif o.kind == "chk":
            if "poll" not in drop: emit_check(*o.txt); tr(f"post-chk{o.txt[0]}")
        elif o.kind == "m":
            tg = o.tag[0] if isinstance(o.tag, tuple) else o.tag
            if tg in drop: k.vm.insert(0, o.tag); k.vm_done += 1
            else: k.vmem(o.txt, o.tag)
        else: e(o.txt)
    cur_nslot = [0]
    def emit_half(hidx):
        n, ei = divmod(hidx, 2)
        fr = aF + 4*(n % NF)
        c_ = mf[n]["c"]
        if c_ in nslot and nslot[c_] != cur_nslot[0]:
            d_ = (nslot[c_] - cur_nslot[0]) * SLOT
            for t in (0, 1): e(f"v_add_u32 v{vAN+t}, {d_ & 0xffffffff}, v{vAN+t}")
            cur_nslot[0] = nslot[c_]
        ar, off = mf[n]["rd"][ei]
        k.lds(f"ds_read_b64_tr_b16 a[{fr+2*ei}:{fr+2*ei+1}], v{ar} offset:{off}", ("f", n))
    def barrier(c):
        assert k.vm.count(("dma", c)) == 9, c
        if c > 17: tr(f"pre-bar{c}")
        if trlead == 2 or c < 9: tr(f"L-pre-bar{c}")
        k.wait(vm=[("dma", c)], lg0=(c > 0))
        if trlead == 2 or c < 9: tr(f"L-waited{c}")
        if nobar == 0 or c < 4 or (nobar == 2 and c % 2 == 0): e("s_barrier")
        if trlead != 2 and c < 9: tr(f"L-post-bar{c}")
    stamp_mid(k, stamps, 0)
    bar_done = 0
    rh = 0
    for _ in range(2*P): emit_half(rh); rh += 1
    vq = list(lead)
    forced = 0
    k.wait(lg=("f", 0), vm=mf[0]["B"][seq[0][1]])
    firstseen = {}; last_vm = [-9]
    over = 0; credit = 0.0
    dls = [(0, 8*72 - 4), (1, 12*72 - 4), (2, 16*72 - 4), (3, dfin - (16 if chain_mode == 0 else 2)), (4, dfin)]
    for g in range(NM):
        n, hf = seq[g]
        m = mf[n]; c = m["c"]
        assert rh <= 2*(n + NF), (g, rh)
        assert rh >= 2*n + 2 and k._need(k.lg, k.lg_done, ("f", n)) is None
        B = m["B"][hf]
        if B[0] in ("hc", "hp"): assert B in k.vm and k._need(k.vm, k.vm_done, B) is None, (g, B)
        if B[0] == "h":
            regs = range(vH + 4*B[1], vH + 4*B[1] + 4)
            for r in regs: force(hdone[r], g - 1)
            if any(hdone[r].done >= g - 2 for r in regs): e("s_nop 1")
        if isfirst[g]:
            for own, lst in owner_ops.items():
                if own == m["own"] or own not in firstseen: continue
                if m["Dt"] in firstseen[own]:
                    for o in lst: force(o, g - 1)
                    if any(o.done >= g - 2 for o in lst): e("s_nop 1")
            firstseen.setdefault(m["own"], set()).add(m["Dt"])
        fr = aF + 4*(n % NF); Dr = R(m["D"][hf], 4)
        e(f"{MF16} {Dr}, a[{fr}:{fr+3}], {breg(B)}, {'0' if isfirst[g] else Dr}")
        if g == 287: stamp_mid(k, stamps, 1)
        if g == 1295: stamp_mid(k, stamps, 2)
        slots = 2; free_first = True
        E = 36*(c+1) - 1
        if c + 1 < NCH and g == 2*(E - P + X) + 1:
            while k.vm.count(("dma", c+1)) < 9: emit_item(vq.pop(0)); forced += 1
            barrier(c + 1); bar_done = c + 1; free_first = False; slots -= 1
            for _ in range(padn): e("s_nop 15")
            if c + 1 + dist < NCH: vq += dma_items(c + 1 + dist)
        if g + 1 < NM:
            n1, h1 = seq[g+1]
            nb_ = mf[n1]["B"][h1]
            if chain_mode == 0 or nb_[0] == "hp": nb_ = mf[n1]["B"][1]
            vmt = nb_ if nb_[0] in ("hc", "hp") else None
            if vmt is not None and vmt not in k.vm:
                if vmt[0] == "hc":
                    while vmt not in k.vm: emit_item(vq.pop(0)); forced += 1
                else: force([o for o in ops if o.tag == vmt and o.kind == "m"][0], g)
            if k.wait(lg=("f", n1), vm=vmt):
                if not free_first: slots -= 1
                free_first = False
        if free_first:
            if vq and vq[0][0] == "s": emit_item(vq.pop(0))
            else:
                o = take(("s", "vmwait", "chk"), g)
                if o: emit_op(o)
                elif defer and len(defer[0]) == 1 and defer[0][0].startswith("s_"): e(defer.pop(0)[0])
        def can_half(): return rh < NM and mf[rh//2]["c"] <= bar_done and rh <= g + 2*P + 1
        nrd = 0
        while can_half() and nrd < (2 if rh < g + 2*P else 1):
            emit_half(rh); rh += 1; slots -= 1; nrd += 1
        if slots > 0:
            inlead = c < 4
            nm_ = sum(1 for x in vq if x[0] == "m")
            if vq and vq[0][0] == "m" and vq[0][2] == "ss": go = True
            elif g < fast: go = True
            elif nm_ > 9 or inlead: go = g - last_vm[0] >= (lrate if inlead else 4)
            else: go = g - last_vm[0] >= dmar
            if vq and vq[0][0] == "m" and go:
                emit_item(vq.pop(0)); slots -= 1; last_vm[0] = g
            else:
                o = take(("m",), g)
                if o: emit_op(o); slots -= 1
        if defer and slots > 0:
            for x in defer.pop(0): e(x); slots -= 1
        rate = 0.0; cum = 0
        for b_, dl_ in dls:
            cum += sum((2 if o.kind == "x" else 1) for o in owner_ops[("g", b_)] if o.done is None)
            if cum: rate = max(rate, cum / max(dl_ - g, 1))
        credit = min(credit + rate*margin, 3.0)
        allow = max(slots, min(int(credit), 2 + (rate > 1.6)))
        used = 0
        xo = None
        if allow >= 2 or (allow >= 1 and (credit >= 1.0 or rate == 0)):
            xo = take(("x",), g)
            if xo: allow -= 2; used += 2; xo.done = None
        while allow > 0:
            o = take(("v",), g)
            if not o: break
            emit_op(o); allow -= 1; used += 1
        if xo: xo.done = g; emit_op(xo)
        credit = max(credit - used, -2.0)
        over += max(0, used - max(slots, 0))
    assert not vq
    tr("loopend")
    e("s_nop 7")
    g = NM + 10
    while pending:
        o = take(("v", "x", "s", "m", "vmwait", "chk"), g); g += 1
        if o: emit_op(o)
    stamp_mid(k, stamps, 3)
    tr("laststores")
    vDo = vH; vTp = vH + 24; vA0 = vH + 32
    def publish(db):
        k.wait(vm=("st", db)); k.vmem(red_pub(db), ("pub", db))
    def consume(db, reg):
        e(f"v_cmp_eq_u32 vcc, 0, v{reg}")
        ld = red_loads(db)
        e(ld[0][1])
        emit_check(f"r{db}", red_poll(db, vSpin))
        tr(f"tail-chk{db}")
        for kind, txt, tag in ld[1:]:
            if kind == "s": e(txt)
            else: k.vmem(txt, tag)
    def reduce_blk(db):
        Dr = R(vDo + 4*db, 4)
        k.wait(vm=("rl", db))
        for t in ((0, 1) if db < 4 else (0,)):
            for j in range(2):
                a = 8*(2*db+t) + 4*j
                e(f"{MF16} {Dr}, {R(vA0 + 4*t, 4)}, a[{a}:{a+3}], {Dr}")
    flagged = [db for db in comp if db not in sent]
    for db in flagged:
        if state[db] == "none": publish(db); state[db] = "pub"
    catch = []
    if nb:
        for db in flagged:
            if state[db] == "done":
                e(f"s_cmp_lg_u32 s{96+db}, s{sPR}")
                e(f"s_cbranch_scc1 L_{name}_cu{db}")
                k.label(f"L_{name}_cb{db}")
                catch.append(db)
    for db in flagged:
        if state[db] == "polled":
            k.wait(vm=("poll", f"r{db}")); tr("tail-pollw"); consume(db, pollreg[db]); state[db] = "late"
    rest = [db for db in flagged if state[db] == "pub"]
    for db in rest: k.vmem(red_poll(db, vTp + db), ("tp", db))
    def issue_loads(db, track=True):
        for kind, txt, tag in red_loads(db):
            if kind == "s" or not track: e(txt)
            else: k.vmem(txt, tag)
    for db in comp:
        if state[db] == "sent" and (db != comp[-1] or noack): issue_loads(db)
    vOo, vMo = vH + 40, vH + 41
    e(f"v_and_b32 v{vMo}, 3, v0")
    e(f"v_mul_u32_u24 v{vOo}, 73728, v{vMo}")
    e(f"v_bfe_u32 v{vMo}, v0, 2, 3")
    e(f"v_lshl_add_u32 v{vOo}, v{vMo}, 3, v{vOo}")
    e(f"v_lshrrev_b32 v{vTp+6}, 5, v0")
    e(f"v_lshl_add_u32 v{vMo}, v{vTp+6}, 30, v{vOo}")
    e(f"v_lshl_add_u32 v{vOo}, v{vTp+6}, 6, v{vOo}")
    e(f"v_and_b32 v{vTp+6}, 1, v0")
    e(f"v_lshlrev_b32 v{vTp+6}, 4, v{vTp+6}")
    e(f"v_mov_b32 v{vTp+7}, 0x3f80")
    e(f"v_lshlrev_b32 v{vTp+7}, v{vTp+6}, v{vTp+7}")
    e(f"v_bfe_u32 v{vTp+6}, v0, 1, 3")
    for r in range(8):
        e(f"v_cmp_eq_u32 vcc, {r}, v{vTp+6}")
        e("s_nop 1")
        e(f"v_cndmask_b32 v{vA0+r}, 0, v{vTp+7}, vcc")
    k.wait(vm="res")
    for j in range(5):
        for u in range(2):
            e(f"v_lshlrev_b32 v{vDo+4*j+2*u}, 16, v{vT+2*j+u}")
            e(f"v_and_b32 v{vDo+4*j+2*u+1}, 0xffff0000, v{vT+2*j+u}")
        for u in range(4): e(f"v_add_f32 v{vDo+4*j+u}, v{vDo+4*j+u}, v{vT+10}")
    e("s_nop 1")
    e(f"s_add_u32 s{sT0}, s{sOut}, s75")
    e(f"s_add_u32 s{sT1}, s{sOut}, s76")
    stored = set()
    def out_store(j):
        a = vDo + 4*j
        e(f"v_cvt_pk_bf16_f32 v{a}, v{a}, v{a+1}")
        e(f"v_cvt_pk_bf16_f32 v{a+1}, v{a+2}, v{a+3}")
        if j < 4: k.vmem(f"buffer_store_dwordx2 v[{a}:{a+1}], v{vOo}, s[{SO}:{SO+3}], s{sT0} offen offset:{128*j}{outf}", "out")
        else: k.vmem(f"buffer_store_dwordx2 v[{a}:{a+1}], v{vMo}, s[{SO}:{SO+3}], s{sT1} offen{outf}", "out")
        stored.add(j)
    dn = [db for db in comp if state[db] == "done"]
    for db in dn[:2]: reduce_blk(db)
    tr("tail-a")
    for db in rest:
        k.wait(vm=("tp", db)); consume(db, vTp + db)
    if comp[-1] in sent:
        if not noack:
            k.wait(vm=("st", comp[-1]))
            tr("tail-ack")
            issue_loads(comp[-1])
    for db in dn[2:]: reduce_blk(db)
    for db in flagged:
        if state[db] in ("late", "pub"): reduce_blk(db)
    if early_out:
        e("s_nop 7")
        for db in flagged: out_store(db)
    vZ = vH + 44
    for db in [x for x in comp if x in sent]:
        Dz = R(vZ + 4*db, 4)
        k.wait(vm=("rl", db))
        e(f"s_mov_b32 s{sSpin}, {retry_max}")
        k.label(f"L_{name}_sr{db}")
        first = True
        for t in ((0, 1) if db < 4 else (0,)):
            for j in range(2):
                a = 8*(2*db+t) + 4*j
                e(f"{MF16} {Dz}, {R(vA0 + 4*t, 4)}, a[{a}:{a+3}], {'0' if first else Dz}"); first = False
        e(f"s_sub_u32 s{sSpin}, s{sSpin}, 1")
        e("s_nop 6")
        e(f"v_cmp_u_f32 vcc, v{vZ+4*db}, v{vZ+4*db+1}")
        e(f"v_cmp_u_f32 s[70:71], v{vZ+4*db+2}, v{vZ+4*db+3}")
        e("s_nop 0")
        e("s_or_b64 s[70:71], s[70:71], vcc")
        e(f"s_cbranch_scc1 L_{name}_sx{db}")
        k.label(f"L_{name}_sd{db}")
        tr(f"tail-sent{db}")
        for u in range(4): e(f"v_add_f32 v{vDo+4*db+u}, v{vDo+4*db+u}, v{vZ+4*db+u}")
        if early_out: out_store(db)
    e("s_nop 7")
    for j in range(5):
        if j not in stored: out_store(j)
    if trace:
        tr("end")
        e("s_waitcnt vmcnt(0)")
        tr("drained")
        e("s_lshl_b32 s58, s2, 2")
        e(f"s_add_u32 s58, s58, s{sW}")
        e("s_lshl_b32 s58, s58, 8")
        e(f"s_add_u32 s58, s58, {WS_END + 8*131072}")
        e(f"s_mov_b32 s{SW+2}, {WS_END + 12*131072}")
        e("v_lshlrev_b32 v252, 2, v0")
        e(f"buffer_store_dword v251, v252, {SR}, s58 offen")
        open("trace_labels.txt", "w").write("\n".join(k.tr))
    stamp_end(k, stamps, 66, kidx, sW, 4)
    k.label(f"L_{name}_end")
    e("s_endpgm")
    for ident, ptxt in spins:
        k.label(f"L_{name}_spin{ident}")
        e(f"s_mov_b32 s{sSpin}, {spin_max}")
        k.label(f"L_{name}_spinl{ident}")
        e(ptxt)
        e(f"s_sub_u32 s{sSpin}, s{sSpin}, 1")
        e("s_waitcnt vmcnt(0)")
        e(f"v_cmp_eq_u32 vcc, 0, v{vSpin}")
        e(f"s_cmp_eq_u32 s{sSpin}, 0")
        e(f"s_cbranch_scc1 L_{name}_ret{ident}")
        e(f"s_cbranch_vccnz L_{name}_spinl{ident}")
        e(f"s_branch L_{name}_ret{ident}")
    for db in catch:
        k.label(f"L_{name}_cu{db}")
        e(f"s_mov_b32 s{sSpin}, {spin_max}")
        k.label(f"L_{name}_cul{db}")
        e(red_poll(db, vSpin))
        e(f"s_sub_u32 s{sSpin}, s{sSpin}, 1")
        e("s_waitcnt vmcnt(0)")
        e(f"v_cmp_eq_u32 vcc, 0, v{vSpin}")
        e(f"s_cmp_eq_u32 s{sSpin}, 0")
        e(f"s_cbranch_scc1 L_{name}_cug{db}")
        e(f"s_cbranch_vccnz L_{name}_cul{db}")
        k.label(f"L_{name}_cug{db}")
        issue_loads(db, track=False)
        e("s_waitcnt vmcnt(0)")
        e(f"s_branch L_{name}_cb{db}")
    for db in sent:
        k.label(f"L_{name}_sx{db}")
        e(f"s_cmp_eq_u32 s{sSpin}, 0")
        e(f"s_cbranch_scc1 L_{name}_sd{db}")
        issue_loads(db, track=False)
        e("s_waitcnt vmcnt(0)")
        e(f"s_branch L_{name}_sr{db}")
    k.label(f"L_{name}_fin")
    k.info = (forced, nforced[0], over, dict(state))
    return k, (512, 102, 256), (256, 256, 4*SLOT + 12288)
```

```python
from dsl import *
from layout import *
from k123 import stamp_begin, stamp_mid, stamp_end, Tracer, emit_wprefetch, emit_touch_wg, MF32, R
import math
from k4b import emit_pack_job
DPP = "quad_perm:[1,0,3,2] row_mask:0xf bank_mask:0xf"


def pack_wg(k, name, sW, nw, id0, job0, njob, pk, stamps, kidx):
    e = k.e
    e("s_and_b32 s21, s2, 7")
    e(f"s_sub_u32 s22, s2, {id0}")
    e("s_lshr_b32 s22, s22, 3")
    e(f"s_mul_i32 s22, s22, {nw}")
    e(f"s_add_u32 s22, s22, s{sW}")
    e(f"s_cmp_ge_u32 s22, {njob}")
    e(f"s_cbranch_scc1 L_{name}_end")
    e(f"s_add_u32 s22, s22, {job0}")
    e(f"s_mul_i32 s23, s{sW}, 12288")
    pk(k, 21, 22, 23)
    stamp_end(k, stamps, 46, kidx, sW, 0)


def xt_load(k, s0):
    k.e(f"s_load_dwordx4 s[{s0}:{s0+3}], s[0:1], {KA_WG}")
    k.e(f"s_load_dwordx2 s[{s0+4}:{s0+5}], s[0:1], {KA_WD}")
def xt_prep(k, s0, sU, lane, va, spec):
    e = k.e
    tmp = va + len(spec)
    e(f"s_and_b32 s{s0+7}, s2, 7")
    for n_, (m_, lo, hi) in enumerate(spec):
        e(f"s_add_u32 s{s0+6}, s{sU}, {lo}")
        e(f"s_mul_i32 s{s0+20+n_}, s{s0+7}, {1152 if m_ != 'd' else 576*1152}")
        e(f"s_cmp_lt_u32 s{sU}, {hi - lo}")
        e(f"s_cselect_b32 s{s0+20+n_}, s{s0+20+n_}, 0x40000000")
        e(f"s_lshl_b32 s{s0+6}, s{s0+6}, 6")
        e(f"s_and_b32 s{s0+6}, s{s0+6}, 0x3fff")
        e(f"v_add_u32 v{va+n_}, s{s0+6}, {lane}")
        if m_ in "GU":
            e(f"v_lshrrev_b32 v{tmp}, 2, v{va+n_}")
            e(f"v_mul_u32_u24 v{va+n_}, 9216, v{tmp}")
            e(f"v_and_b32 v{tmp}, 1, {lane}")
            e(f"v_lshl_add_u32 v{va+n_}, v{tmp}, 7, v{va+n_}")
            e(f"v_bfe_u32 v{tmp}, {lane}, 1, 1")
            e(f"v_mul_u32_u24 v{tmp}, 640, v{tmp}")
            e(f"v_add_u32 v{va+n_}, v{va+n_}, v{tmp}")
        elif m_ != "d":
            e(f"v_mul_u32_u24 v{tmp}, 7282, v{va+n_}")
            e(f"v_lshrrev_b32 v{tmp}, 16, v{tmp}")
            e(f"v_mul_u32_u24 v{tmp}, {9216-1152}, v{tmp}")
            e(f"v_lshl_add_u32 v{va+n_}, v{va+n_}, 7, v{tmp}")
        else: e(f"v_lshlrev_b32 v{va+n_}, 7, v{va+n_}")
    for m_ in sorted(set(x[0] for x in spec)):
        i = "gud".index(m_.lower())
        k.srd(s0+8+4*i, s0+2*i, D*F*2)
def xt_fire(k, s0, va, vd, spec, fl=""):
    for n_, (m_, lo, hi) in enumerate(spec):
        i = "gud".index(m_.lower())
        k.e(f"buffer_load_dword v{vd}, v{va+n_}, s[{s0+8+4*i}:{s0+11+4*i}], s{s0+20+n_} offen{fl}")

def gen_k1(name="fwd_kernel", stamps=False, pf=True, wpf=None, trace=False, xf="", xt=None, pk=None, jobs=(0, 0), sf="", wf="", hc16=False, tlb=0):
    NMAIN, NWT = 192, 64
    NP = 8 * (-(-jobs[1] // 4))
    k = Kern(name); e = k.e
    tr = Tracer(k, trace, 199)
    sW, sS2, sCT, sT0, sT1, sT2, sT = 20, 21, 22, 23, 24, 25, 19
    e(f"s_cmp_ge_u32 s2, {NMAIN + NWT + NP}")
    e(f"s_cbranch_scc1 L_{name}_end")
    stamp_begin(k, stamps)
    e(f"s_load_dwordx2 s[4:5], s[0:1], {KA_X}")
    e(f"s_load_dwordx2 s[6:7], s[0:1], {KA_WS}")
    e("v_lshrrev_b32 v1, 6, v0")
    e("v_and_b32 v2, 63, v0")
    e(f"v_readfirstlane_b32 s{sW}, v1")
    if NP:
        e(f"s_cmp_ge_u32 s2, {NMAIN + NWT}")
        e(f"s_cbranch_scc1 L_{name}_pack")
    if pf:
        e("s_bfe_u32 s40, s2, 0x10003")
        e("s_lshl_b32 s40, s40, 2")
        e(f"s_add_u32 s40, s40, s{sW}")
        k.prefetch_code("L_text_begin", "L_text_end", 32, 3, 1, 1, lane="v2", part=(40, 8192))
    e(f"s_cmp_ge_u32 s2, {NMAIN}")
    e(f"s_cbranch_scc1 L_{name}_wt")
    e("v_mov_b32 v0, v2")
    if xt: xt_load(k, 52)
    e(f"s_lshr_b32 s{sT0}, s2, 3")
    e(f"s_mul_hi_u32 s{sT1}, s{sT0}, 0x55555556")
    e(f"s_mul_i32 s{sCT}, s{sT1}, 3")
    e(f"s_sub_u32 s{sCT}, s{sT0}, s{sCT}")
    e(f"s_and_b32 s{sS2}, s2, 7")
    e(f"s_lshl_b32 s{sS2}, s{sS2}, 3")
    e(f"s_add_u32 s{sS2}, s{sS2}, s{sT1}")
    e("v_lshrrev_b32 v4, 3, v0")
    e("v_lshrrev_b32 v5, 4, v0")
    e("v_and_b32 v6, 7, v0")
    e("v_xor_b32 v6, v6, v5")
    e("v_lshlrev_b32 v6, 4, v6")
    e("v_mul_u32_u24 v2, 73728, v4")
    e("v_add_u32 v2, v2, v6")
    e(f"s_and_b32 s26, s{sW}, 1")
    e("s_lshl_b32 s26, s26, 6")
    e("v_xor_b32 v2, s26, v2")
    e(f"s_mul_i32 s27, s{sW}, {8*73728}")
    e(f"s_mul_i32 s{sT2}, s{sS2}, 1152")
    e(f"s_add_u32 s27, s27, s{sT2}")
    e(f"s_lshl_b32 s26, s{sW}, 10")
    e("s_waitcnt lgkmcnt(0)")
    tr("karg")
    k.srd(8, 4, S*D*2)
    for i in range(9):
        e(f"s_add_u32 m0, s26, {4096*i - 128*i}")
        e("s_nop 0")
        k.vmem(f"buffer_load_dwordx4 v2, s[8:11], s27 offen offset:{128*i}{xf} lds", "x")
    tr("issued")
    if xt:
        e(f"s_lshl_b32 s51, s{sT0}, 2")
        e(f"s_add_u32 s51, s51, s{sW}")
        xt_prep(k, 52, 51, "v0", 224, xt[0])
        if xt[1] == "early": xt_fire(k, 52, 224, 1, xt[0])
    k.srd(12, 6, WS_END)
    e("v_lshrrev_b32 v5, 5, v0")
    e("v_and_b32 v35, 31, v0")
    e("v_mov_b32 v31, 0x3f803f80")
    e(f"s_mul_i32 s{sT1}, s{sW}, 18")
    e("v_mul_u32_u24 v10, 9, v5")
    e(f"v_add_u32 v10, s{sT1}, v10")
    e("v_bfe_u32 v13, v0, 1, 3")
    vSA = 180
    for i in range(9):
        e(f"v_add_u32 v11, {i}, v10")
        e("v_lshrrev_b32 v12, 3, v11")
        e("v_and_b32 v11, 7, v11")
        e("v_xor_b32 v11, v11, v13")
        e("v_lshlrev_b32 v11, 4, v11")
        e("v_lshl_add_u32 v11, v12, 12, v11")
        e(f"v_lshl_add_u32 v{vSA+i}, v35, 7, v11")
    e(f"s_lshl_b32 s{sT1}, s{sW}, 9")
    e(f"s_add_u32 s{sT1}, s{sT1}, 36864")
    e(f"v_lshl_add_u32 v34, v0, 3, s{sT1}")
    e(f"s_mul_i32 s{sT}, s{sCT}, 3")
    e(f"s_min_u32 s{sT1}, s{sCT}, 1")
    e(f"s_add_u32 s{sT}, s{sT}, s{sT1}")
    e(f"s_add_u32 s{sT}, s{sT}, s{sW}")
    e(f"s_mul_i32 s18, s{sT1}, s{sW}")
    e("s_cmp_eq_u32 s18, 3")
    e(f"s_cbranch_scc1 L_{name}_hgen")
    vE, vE2 = 40, 76
    e(f"s_lshl_b32 s17, s{sT}, 4")
    e("v_bfe_u32 v4, v0, 1, 4")
    e("v_add_u32 v4, s17, v4")
    e("v_and_b32 v6, 1, v0")
    e("v_cvt_f32_u32 v7, v4")
    e(f"v_mul_f32 v7, {fhex(1.0/288)}, v7")
    e("v_cvt_f32_u32 v8, v6")
    e("v_mul_f32 v8, 0x3e800000, v8")
    e("v_cvt_f32_u32 v9, v5")
    e("v_mul_f32 v10, 0x41000000, v9")
    e("v_fma_f32 v8, v10, v7, v8")
    e("v_and_b32 v30, 1, v4")
    e("v_mul_u32_u24 v30, 0x8000, v30")
    e("v_lshl_or_b32 v30, v30, 16, v30")
    for j in range(9):
        for t in range(8): e(f"v_fmamk_f32 v{10+t}, v7, {fhex(16*j+t)}, v8")
        for t in range(8): e(f"v_cos_f32 v{10+t}, v{10+t}")
        for t in range(4): e(f"v_cvt_pk_bf16_f32 v{vE+4*j+t}, v{10+2*t}, v{11+2*t}")
        for t in range(4): e(f"v_xor_b32 v{vE2+4*j+t}, v30, v{vE+4*j+t}")
        if xt and xt[1] == j: xt_fire(k, 52, 224, 1, xt[0])
    e("v_mov_b32 v10, 0")
    for r in range(36): e(f"v_dot2c_f32_bf16 v10, v{vE+r}, v31")
    e("v_mul_f32 v12, 0.5, v7")
    e("v_lshlrev_b32 v13, 31, v6")
    e("v_xor_b32 v12, v12, v13")
    e("v_cos_f32 v32, v12")
    e("v_sin_f32 v33, v12")
    e("v_mov_b32 v11, v10")
    e("v_and_b32 v13, 1, v4")
    e("v_or_b32 v13, v13, v5")
    e("v_permlane32_swap_b32 v10, v11")
    e("v_cmp_eq_u32 vcc, 0, v13")
    e("v_mov_b32 v113, 0")
    e("v_add_f32 v10, v10, v11")
    e("v_mul_f32 v10, -2.0, v10")
    e("v_cndmask_b32 v10, 0, v10, vcc")
    e("v_mov_b32 v114, 0")
    e("v_mov_b32 v115, 0")
    e("v_cvt_pk_bf16_f32 v112, v10, v113")
    for r in (117, 118, 119): e(f"v_mov_b32 v{r}, 0")
    vF = 120
    e("v_cvt_f32_u32 v10, v35")
    e(f"v_mul_f32 v11, {fhex(1.0/32)}, v10")
    e(f"v_cvt_f32_u32 v12, s{sS2}")
    e(f"v_mul_f32 v12, {fhex(1.0/64)}, v12")
    e("v_fma_f32 v12, v9, 4.0, v12")
    e("v_mul_f32 v12, v12, v11")
    for jj in range(2):
        for t in range(8): e(f"v_fmamk_f32 v{14+t}, v11, {fhex(16*jj + 8*(t >> 2) + (t & 3))}, v12")
        for t in range(8): e(f"v_cos_f32 v{22+t}, v{14+t}")
        for t in range(8): e(f"v_sin_f32 v{14+t}, -v{14+t}")
        for t in range(4): e(f"v_cvt_pk_bf16_f32 v{vF+4*jj+t}, v{22+2*t}, v{23+2*t}")
        for t in range(4): e(f"v_cvt_pk_bf16_f32 v{vF+8+4*jj+t}, v{14+2*t}, v{15+2*t}")
    e("v_bfe_u32 v10, v0, 1, 3")
    e("v_lshlrev_b32 v11, 1, v5")
    e("v_xor_b32 v10, v10, v11")
    e("v_lshlrev_b32 v10, 4, v10")
    e("v_lshl_add_u32 v36, v35, 7, v10")
    e("v_xor_b32 v37, 16, v36")
    e("v_xor_b32 v38, 64, v36")
    e("v_xor_b32 v39, 80, v36")
    e("s_mov_b32 s28, 0x05040100")
    e("s_mov_b32 s29, 0x07060302")
    e("v_lshlrev_b32 v26, 3, v0")
    e(f"s_lshl_b32 s{sT1}, s{sW}, 8")
    e(f"s_add_u32 s{sT1}, s{sT1}, {36864+2048}")
    e(f"v_lshl_add_u32 v27, v0, 2, s{sT1}")
    e(f"v_lshl_add_u32 v28, v5, 4, s{sT1}")
    e(f"s_lshr_b32 s{sT1}, s{sS2}, 3")
    e(f"s_lshl_b32 s{sT1}, s{sT1}, 10")
    e(f"s_bfe_u32 s{sT2}, s{sS2}, 0x10002")
    e(f"s_lshl_b32 s{sT2}, s{sT2}, 9")
    e(f"s_add_u32 s{sT1}, s{sT1}, s{sT2}")
    e(f"s_and_b32 s{sT2}, s{sS2}, 1")
    e(f"s_lshl_b32 s{sT2}, s{sT2}, 8")
    e(f"s_add_u32 s{sT1}, s{sT1}, s{sT2}")
    e(f"s_bfe_u32 s{sT2}, s{sS2}, 0x10001")
    e(f"s_lshl_b32 s{sT2}, s{sT2}, 7")
    e(f"s_add_u32 s{sT1}, s{sT1}, s{sT2}")
    e(f"v_lshl_add_u32 v10, v35, 2, s{sT1}")
    e("v_lshl_add_u32 v11, v5, 1, s17")
    e("v_lshlrev_b32 v11, 13, v11")
    e("v_add_u32 v24, v10, v11")
    e("v_subrev_u32 v24, 8192, v24")
    e("v_sub_u32 v25, v10, v11")
    e(f"v_add_u32 v25, {143*8192}, v25")
    k.srd_off(44, 6, WS_Y, 144*8192)
    k.srd_off(48, 6, WS_Y + 144*8192, 144*8192)
    k.label(f"L_{name}_nogen")
    tr("gen")
    stamp_mid(k, stamps, 0)
    e(f"s_waitcnt vmcnt({len(xt[0]) if xt and xt[1] != 'late' else 0})")
    if xt and xt[1] == "late": xt_fire(k, 52, 224, 1, xt[0])
    tr("xarr")
    e("s_barrier")
    tr("bar")
    stamp_mid(k, stamps, 1)
    for i in range(9): k.lds(f"ds_read_b128 {R(136+4*i,4)}, v{vSA+i}", ("s", i))
    vX = 172
    def xread(j):
        b = vX + 8*(j % 3)
        for x in (0, 1): k.lds(f"ds_read_b128 {R(b+4*x,4)}, v{36+2*(j&1)+x} offset:{(j>>1)*4096}", ("x", j))
    e("v_mov_b32 v10, 0"); e("v_mov_b32 v11, 0"); e("v_mov_b32 v12, 0"); e("v_mov_b32 v13, 0")
    e("s_cmp_eq_u32 s18, 3")
    e(f"s_cbranch_scc1 L_{name}_helper")
    xread(0); xread(1); xread(2)
    def stats_dot(waits=True):
        for i in range(9):
            if waits: k.wait(lg=("s", i))
            for r in range(4):
                e(f"v_dot2c_f32_bf16 v{10+2*(r&1)}, v{136+4*i+r}, v31")
                e(f"v_dot2c_f32_bf16 v{11+2*(r&1)}, v{136+4*i+r}, v{136+4*i+r}")
        e("s_nop 2")
        e("v_add_f32 v10, v10, v12")
        e("v_add_f32 v11, v11, v13")
    stats_dot()
    k.lds("ds_write_b64 v34, v[10:11]", "sw")
    tr("stats")
    A0, A1 = 136, 152
    vD = [8, 200]
    def perms(j):
        b = vX + 8*(j % 3); d = vD[j & 1]
        return [f"v_perm_b32 v{d+r}, v{b+2*r+1}, v{b+2*r}, s28" for r in range(4)] + [f"v_perm_b32 v{d+4+r}, v{b+2*r+1}, v{b+2*r}, s29" for r in range(4)]
    k.wait(lg=["sw", ("x", 0)])
    for p in perms(0): e(p)
    fill = {}
    fill[2] = lambda: e("s_barrier")
    def f3():
        for i in range(4): k.lds(f"ds_read_b64 {R(16+2*i,2)}, v26 offset:{36864+512*i}", "sp")
    fill[3] = f3
    def f7():
        k.wait(lg="sp")
        e("v_add_f32 v16, v16, v18"); e("v_add_f32 v17, v17, v19")
    fill[8] = f7
    fill[9] = lambda: (e("v_add_f32 v20, v20, v22"), e("v_add_f32 v21, v21, v23"))
    fill[10] = lambda: (e("v_add_f32 v16, v16, v20"), e("v_add_f32 v17, v17, v21"))
    fill[11] = lambda: (e("v_mov_b32 v18, v16"), e("v_mov_b32 v19, v17"))
    fill[12] = lambda: (e("v_permlane32_swap_b32 v16, v18"), e("v_permlane32_swap_b32 v17, v19"))
    fill[13] = lambda: (e("v_add_f32 v16, v16, v18"), e("v_add_f32 v17, v17, v19"))
    fill[14] = lambda: (e(f"v_mul_f32 v16, {fhex(1.0/576)}, v16"), e(f"v_mul_f32 v17, {fhex(1.0/576)}, v17"))
    fill[15] = lambda: (e("v_fma_f32 v17, -v16, v16, v17"), e("v_max_f32 v17, 0, v17"))
    fill[16] = lambda: (e(f"v_add_f32 v17, {fhex(1e-5)}, v17"), e("v_cvt_pk_bf16_f32 v116, v16, v117"))
    fill[17] = lambda: e("v_rsq_f32 v17, v17")
    fill[18] = lambda: e(f"v_mul_f32 v17, {fhex(2.0/(2048*576))}, v17")
    fill[19] = lambda: k.lds("ds_write_b32 v27, v17", "rw")
    vRr = 208
    def f22():
        for g in range(4): k.lds(f"ds_read_b128 {R(vRr+4*g,4)}, v28 offset:{32*g}", "rr")
    fill[22] = f22
    def f26():
        e(f"s_cmp_lg_u32 s{sT}, 0")
        e(f"s_cbranch_scc1 L_{name}_nomean")
        e(f"s_lshl_b32 s{sT1}, s{sS2}, 7")
        e(f"s_add_u32 s{sT1}, s{sT1}, {WS_MEAN}")
        e("v_lshlrev_b32 v19, 2, v35")
        e(f"buffer_store_dword v16, v19, s[12:15], s{sT1} offen")
        k.label(f"L_{name}_nomean")
    fill[26] = f26
    e("s_nop 0")
    for j in range(18):
        Bm = R((vE if j < 9 else vE2) + 4*(j % 9), 4)
        d = vD[j & 1]
        nx = perms(j+1) if j + 1 < 18 else []
        for p in (0, 1):
            acc = R(A1 if p else A0, 16)
            e(f"{MF32} {acc}, {R(d+4*p,4)}, {Bm}, {'0' if j == 0 else acc}")
            if p == 0 and nx: k.wait(lg=("x", j+1))
            if p == 0 and j + 3 < 18: xread(j + 3)
            for x in nx[4*p:4*p+4]: e(x)
            n = 2*j + p
            if n in fill: fill[n]()
    e(f"{MF32} {R(A1,16)}, {R(116,4)}, {R(112,4)}, {R(A1,16)}")
    e(f"{MF32} {R(A0,16)}, {R(116,4)}, {R(112,4)}, {R(A0,16)}")
    tr("mfma")
    stamp_mid(k, stamps, 2)
    if wpf: emit_wprefetch(k, sW, 4, "v0", 2, 1, 52, wpf, skip3=True)
    else: e("s_nop 10")
    k.wait(lg="rr")
    Bq, O1, O2 = 40, 56, 72
    for i in range(16): e(f"v_mul_f32 v{Bq+i}, v32, v{A1+i}")
    for i in range(16): e(f"v_fmac_f32_dpp v{Bq+i}, v{A1+i}, v33 {DPP}")
    for i in range(16): e(f"v_mul_f32 v{A0+i}, v{A0+i}, v{vRr+i}")
    for i in range(16): e(f"v_fma_f32 v{O1+i}, v{Bq+i}, v{vRr+i}, v{A0+i}")
    for i in range(8): e(f"v_cvt_pk_bf16_f32 v{88+i}, v{O1+2*i}, v{O1+2*i+1}")
    P1, Q1, P2, Q2 = 172, 152, 224, 240
    w2 = [f"v_fma_f32 v{O2+i}, -v{Bq+i}, v{vRr+i}, v{A0+i}" for i in range(16)] + [f"v_cvt_pk_bf16_f32 v{96+i}, v{O2+2*i}, v{O2+2*i+1}" for i in range(8)]
    e(w2.pop(0)); e(w2.pop(0))
    for (Dd, a, f, first) in [(P1, 88, vF, 1), (Q1, 88, vF+8, 1), (P1, 92, vF+4, 0), (Q1, 92, vF+12, 0)]:
        e(f"{MF32} {R(Dd,16)}, {R(a,4)}, {R(f,4)}, {'0' if first else R(Dd,16)}")
        for _ in range(6):
            if w2: e(w2.pop(0))
    e("s_nop 1")
    tr("comb")
    c1 = []
    for i in range(0, 16, 2):
        c1.append(f"v_sub_f32 v{O1+i}, v{P1+i}, v{Q1+i+1}")
        c1.append(f"v_add_f32 v{O1+i+1}, v{Q1+i}, v{P1+i+1}")
    c1 += [f"v_cvt_pk_bf16_f32 v{88+i}, v{O1+2*i}, v{O1+2*i+1}" for i in range(8)]
    adr = [f"v_add_u32 v{8+i}, {(4*(i>>1)+(i&1))*8192}, v24" for i in range(8)] + [f"v_subrev_u32 v{200+i}, {(4*(i>>1)+(i&1))*8192}, v25" for i in range(8)]
    for n_, (Dd, a, f, first) in enumerate([(P2, 96, vF, 1), (Q2, 96, vF+8, 1), (P2, 100, vF+4, 0), (Q2, 100, vF+12, 0)]):
        e(f"{MF32} {R(Dd,16)}, {R(a,4)}, {R(f,4)}, {'0' if first else R(Dd,16)}")
        src = adr if n_ < 3 else c1
        for _ in range(6):
            if src: e(src.pop(0))
    assert not adr
    for x in c1: e(x)
    for i in range(8): k.vmem(f"buffer_store_dword v{88+i}, v{8+i}, s[44:47], 0 offen{sf}", "st")
    for i in range(0, 16, 2):
        e(f"v_add_f32 v{O2+i}, v{P2+i}, v{Q2+i+1}")
        e(f"v_sub_f32 v{O2+i+1}, v{Q2+i}, v{P2+i+1}")
    for i in range(8): e(f"v_cvt_pk_bf16_f32 v{96+i}, v{O2+2*i}, v{O2+2*i+1}")
    for i in range(8): k.vmem(f"buffer_store_dword v{96+i}, v{200+i}, s[48:51], 0 offen{sf}", "st")
    tr("stored")
    tr.dump(6, sW, 198)
    stamp_end(k, stamps, 6, 0, sW, 3)
    e("s_endpgm")
    k.label(f"L_{name}_hgen")
    if xt and isinstance(xt[1], int):
        e("s_waitcnt vmcnt(0)")
        xt_fire(k, 52, 224, 1, xt[0])
    e(f"s_branch L_{name}_nogen")
    k.label(f"L_{name}_helper")
    e("s_waitcnt lgkmcnt(0)")
    stats_dot(False)
    e("ds_write_b64 v34, v[10:11]")
    e("s_waitcnt lgkmcnt(0)")
    e("s_barrier")
    e("s_endpgm")
    k.label(f"L_{name}_wt")
    e(f"s_load_dwordx4 s[28:31], s[0:1], {KA_WR}")
    e(f"s_sub_u32 s{sT0}, s2, {NMAIN}")
    e("v_lshlrev_b32 v3, 4, v0")
    e(f"s_mul_i32 s{sT1}, s{sT0}, 18496")
    e(f"s_lshl_b32 s{sT2}, s{sW}, 10")
    e("s_waitcnt lgkmcnt(0)")
    k.srd(8, 28, 2048*289*2)
    k.srd(12, 30, 2048*289*2)
    k.srd(16, 6, WS_END)
    for r in range(5):
        for mat in range(2):
            e(f"s_add_u32 m0, s{sT2}, {mat*20480 + r*4096}")
            e(f"s_add_u32 s26, s{sT1}, {r*4096}")
            e(f"buffer_load_dwordx4 v3, s[{8+4*mat}:{11+4*mat}], s26 offen{xf} lds")
    if tlb:
        e(f"s_load_dwordx2 s[34:35], s[0:1], {KA_OUT}")
        e(f"s_lshr_b32 s27, s{sT0}, 3")
        e("s_lshl_b32 s27, s27, 8")
        e("v_add_u32 v12, s27, v0")
        e(f"v_mul_u32_u24 v12, {tlb // 16}, v12")
        e("v_lshlrev_b32 v12, 4, v12")
        e("buffer_load_dword v100, v12, s[16:19], 0 offen")
        e("s_waitcnt lgkmcnt(0)")
        k.srd(36, 34, S*D*2)
        e("buffer_load_dword v101, v12, s[36:39], 0 offen")
    e("v_mov_b32 v8, 0"); e("v_mov_b32 v9, 0"); e("v_mov_b32 v10, 0"); e("v_mov_b32 v11, 0")
    e(f"s_mul_i32 s26, s{sT0}, {FLAG_STRIDE}")
    e(f"s_add_u32 s26, s26, {WS_FLAG}")
    for r in range(3):
        e(f"buffer_store_dwordx4 v[8:11], v3, s[16:19], s26 offen{wf}")
        e("s_add_u32 s26, s26, 4096")
    e(f"s_cmp_eq_u32 s{sW}, 0")
    e("s_cselect_b32 s26, s26, 0x40000000")
    e(f"buffer_store_dwordx4 v[8:11], v3, s[16:19], s26 offen{wf}")
    e(f"s_lshl_b32 s27, s{sT0}, 2")
    e(f"s_add_u32 s27, s27, s{sW}")
    e("s_cmp_ge_u32 s27, 162")
    e(f"s_cbranch_scc1 L_{name}_nog")
    e("s_mul_hi_u32 s28, s27, 0x1c71c71d")
    e("s_mul_i32 s29, s28, 9")
    e("s_sub_u32 s29, s27, s29")
    e("s_and_b32 s30, s28, 1")
    e("s_lshr_b32 s28, s28, 1")
    if hc16:
        e("v_and_b32 v12, 7, v2")
        e("v_bfe_u32 v13, v2, 3, 1")
        e("v_lshl_add_u32 v12, v13, 4, v12")
        e("v_bfe_u32 v13, v2, 4, 1")
        e("v_lshl_add_u32 v12, v13, 3, v12")
    else:
        e("v_and_b32 v12, 0x13, v2")
        e("v_bfe_u32 v13, v2, 2, 1")
        e("v_lshl_add_u32 v12, v13, 3, v12")
        e("v_bfe_u32 v13, v2, 3, 1")
        e("v_lshl_add_u32 v12, v13, 2, v12")
    e("s_lshl_b32 s28, s28, 5")
    e("v_add_u32 v12, s28, v12")
    e("v_cvt_f32_u32 v12, v12")
    e("v_lshrrev_b32 v13, 5, v2")
    e("s_lshl_b32 s29, s29, 4")
    e("s_add_u32 s29, s29, s30")
    e("s_add_u32 s29, s29, 1")
    e("v_lshl_add_u32 v13, v13, 3, s29")
    e("v_cvt_f32_u32 v13, v13")
    for t in range(4):
        e(f"v_add_f32 v{14+t}, {fhex(2*t)}, v13")
        e(f"v_mul_f32 v{14+t}, v{14+t}, v12")
        e(f"v_mul_f32 v{14+t}, {fhex(1.0/576)}, v{14+t}")
    for t in range(4): e(f"v_cos_f32 v{18+t}, v{14+t}")
    for t in range(4): e(f"v_sin_f32 v{14+t}, v{14+t}")
    e("v_lshlrev_b32 v13, 4, v2")
    for t in range(4): e(f"v_cvt_pk_bf16_f32 v{24+t}, v{18+t}, v{14+t}")
    e("s_lshl_b32 s27, s27, 10")
    e(f"s_add_u32 s27, s27, {WS_G}")
    e(f"buffer_store_dwordx4 v[24:27], v13, s[16:19], s27 offen{wf}")
    k.label(f"L_{name}_nog")
    e("v_and_b32 v3, 31, v0")
    e("v_lshrrev_b32 v4, 5, v0")
    e("v_mul_u32_u24 v5, 578, v3")
    e("v_lshl_add_u32 v5, v4, 1, v5")
    e("v_lshlrev_b32 v6, 2, v3")
    e("v_lshl_add_u32 v6, v4, 13, v6")
    e(f"s_lshl_b32 s{sT1}, s{sT0}, 7")
    e(f"s_add_u32 s{sT1}, s{sT1}, {WS_WT}")
    e("s_waitcnt vmcnt(0)")
    e("s_barrier")
    for part in range(6):
        for i in range(6*part, 6*part+6):
            e(f"ds_read_u16 v{30+i}, v5 offset:{2+16*i}")
            e(f"ds_read_u16 v{70+i}, v5 offset:{20480+2+16*i}")
        if part > 0:
            e("s_waitcnt lgkmcnt(12)")
            for i in range(6*part-6, 6*part):
                e(f"v_lshl_or_b32 v{30+i}, v{70+i}, 16, v{30+i}")
                e(f"s_add_u32 s26, s{sT1}, {8*8192*i}")
                e(f"buffer_store_dword v{30+i}, v6, s[16:19], s26 offen{wf}")
    e("s_waitcnt lgkmcnt(0)")
    for i in range(30, 36):
        e(f"v_lshl_or_b32 v{30+i}, v{70+i}, 16, v{30+i}")
        e(f"s_add_u32 s26, s{sT1}, {8*8192*i}")
        e(f"buffer_store_dword v{30+i}, v6, s[16:19], s26 offen{wf}")
    stamp_end(k, stamps, 6, 0, sW, 0)
    if NP:
        e("s_endpgm")
        k.label(f"L_{name}_pack")
        e("v_mov_b32 v0, v2")
        pack_wg(k, name, sW, 4, NMAIN + NWT, jobs[0], jobs[1], pk, stamps, 0)
    k.label(f"L_{name}_end")
    e("s_endpgm")
    return k, (256, 100, 256), (NMAIN + NWT + NP, 256, 49152 if NP else 40960)

def gen_k1b(name="fwd_kernel", stamps=False, pf=True, wpf=None, trace=False, xf="", xt=None, pk=None, jobs=(0, 0), sf="", wf="", hc16=False, tlb=0, pflate=True):
    NMAIN, NWT = 192, 64
    NP = 8 * (-(-jobs[1] // 4))
    k = Kern(name); e = k.e
    tr = Tracer(k, trace, 199)
    sW, sS2, sCT, sT0, sT1, sT2, sT = 20, 21, 22, 23, 24, 25, 19
    e(f"s_cmp_ge_u32 s2, {NMAIN + NWT + NP}")
    e(f"s_cbranch_scc1 L_{name}_end")
    stamp_begin(k, stamps)
    e(f"s_load_dwordx2 s[4:5], s[0:1], {KA_X}")
    e(f"s_load_dwordx2 s[6:7], s[0:1], {KA_WS}")
    e("v_lshrrev_b32 v1, 6, v0")
    e("v_and_b32 v2, 63, v0")
    e(f"v_readfirstlane_b32 s{sW}, v1")
    if NP:
        e(f"s_cmp_ge_u32 s2, {NMAIN + NWT}")
        e(f"s_cbranch_scc1 L_{name}_pack")
    if pf and not pflate:
        e("s_bfe_u32 s40, s2, 0x10003")
        e("s_lshl_b32 s40, s40, 2")
        e(f"s_add_u32 s40, s40, s{sW}")
        k.prefetch_code("L_text_begin", "L_text_end", 32, 3, 1, 1, lane="v2", part=(40, 8192))
    e(f"s_cmp_ge_u32 s2, {NMAIN}")
    e(f"s_cbranch_scc1 L_{name}_wt")
    e("v_mov_b32 v0, v2")
    if xt: xt_load(k, 52)
    e(f"s_lshr_b32 s{sT0}, s2, 3")
    e(f"s_mul_hi_u32 s{sT1}, s{sT0}, 0x55555556")
    e(f"s_mul_i32 s{sCT}, s{sT1}, 3")
    e(f"s_sub_u32 s{sCT}, s{sT0}, s{sCT}")
    e(f"s_and_b32 s{sS2}, s2, 7")
    e(f"s_lshl_b32 s{sS2}, s{sS2}, 3")
    e(f"s_add_u32 s{sS2}, s{sS2}, s{sT1}")
    e("v_lshrrev_b32 v4, 3, v0")
    e("v_lshrrev_b32 v5, 4, v0")
    e("v_and_b32 v6, 7, v0")
    e("v_xor_b32 v6, v6, v5")
    e("v_lshlrev_b32 v6, 4, v6")
    e("v_mul_u32_u24 v2, 73728, v4")
    e("v_add_u32 v2, v2, v6")
    e(f"s_and_b32 s26, s{sW}, 1")
    e("s_lshl_b32 s26, s26, 6")
    e("v_xor_b32 v2, s26, v2")
    e(f"s_mul_i32 s27, s{sW}, {8*73728}")
    e(f"s_mul_i32 s{sT2}, s{sS2}, 1152")
    e(f"s_add_u32 s27, s27, s{sT2}")
    e(f"s_lshl_b32 s26, s{sW}, 10")
    e("s_waitcnt lgkmcnt(0)")
    tr("karg")
    k.srd(8, 4, S*D*2)
    e("s_mov_b32 m0, s26")
    e("s_nop 0")
    for i in range(9):
        k.vmem(f"buffer_load_dwordx4 v2, s[8:11], s27 offen offset:{128*i}{xf} lds", "x")
        if i < 8:
            e(f"s_add_u32 m0, m0, {4096 - 128}")
            e("s_nop 0")
    tr("issued")
    vE, vE2 = 40, 76
    e(f"s_mul_i32 s{sT}, s{sCT}, 3")
    e(f"s_min_u32 s{sT1}, s{sCT}, 1")
    e(f"s_add_u32 s{sT}, s{sT}, s{sT1}")
    e(f"s_add_u32 s{sT}, s{sT}, s{sW}")
    e(f"s_mul_i32 s18, s{sT1}, s{sW}")
    e("s_getpc_b64 s[40:41]")
    k.label(f"L_{name}_tpc")
    e(f"s_add_u32 s40, s40, L_etab-L_{name}_tpc")
    e("s_addc_u32 s41, s41, 0")
    e("s_and_b32 s41, s41, 0xffff")
    e("s_mov_b32 s42, 102400")
    e("s_mov_b32 s43, 0x20000")
    e(f"s_mul_i32 s16, s{sT}, 10240")
    e("s_cmp_eq_u32 s18, 3")
    e("s_cselect_b32 s16, 0x40000000, s16")
    e("v_lshlrev_b32 v34, 4, v0")
    for j in range(10):
        if j and j % 4 == 0: e("s_add_u32 s16, s16, 4096")
        k.vmem(f"buffer_load_dwordx4 {R(vE+4*j if j < 9 else 28, 4)}, v34, s[40:43], s16 offen offset:{1024*(j%4)}", "tab")
    tr("tissued")
    if xt:
        e(f"s_lshl_b32 s51, s{sT0}, 2")
        e(f"s_add_u32 s51, s51, s{sW}")
        xt_prep(k, 52, 51, "v0", 224, xt[0])
        if xt[1] == "early": xt_fire(k, 52, 224, 1, xt[0])
    k.srd(12, 6, WS_END)
    e("v_lshrrev_b32 v5, 5, v0")
    e("v_and_b32 v35, 31, v0")
    e("v_add_u32 v34, s26, v34")
    e("s_cmp_eq_u32 s18, 3")
    e(f"s_cbranch_scc1 L_{name}_nogen")
    e(f"s_lshl_b32 s17, s{sT}, 4")
    e("v_cvt_f32_u32 v9, v5")
    for r in (113, 114, 115, 117, 118, 119): e(f"v_mov_b32 v{r}, 0")
    vF = 120
    e("v_cvt_f32_u32 v10, v35")
    e(f"v_mul_f32 v11, {fhex(1.0/32)}, v10")
    e(f"v_cvt_f32_u32 v12, s{sS2}")
    e(f"v_mul_f32 v12, {fhex(1.0/64)}, v12")
    e("v_fma_f32 v12, v9, 4.0, v12")
    e("v_mul_f32 v12, v12, v11")
    for jj in range(2):
        for t in range(8): e(f"v_fmamk_f32 v{136+t}, v11, {fhex(16*jj + 8*(t >> 2) + (t & 3))}, v12")
        for t in range(8): e(f"v_cos_f32 v{144+t}, v{136+t}")
        for t in range(8): e(f"v_sin_f32 v{136+t}, -v{136+t}")
        for t in range(4): e(f"v_cvt_pk_bf16_f32 v{vF+4*jj+t}, v{144+2*t}, v{145+2*t}")
        for t in range(4): e(f"v_cvt_pk_bf16_f32 v{vF+8+4*jj+t}, v{136+2*t}, v{137+2*t}")
    e("v_bfe_u32 v10, v0, 1, 3")
    e("v_lshlrev_b32 v11, 1, v5")
    e("v_xor_b32 v10, v10, v11")
    e("v_lshlrev_b32 v10, 4, v10")
    e("v_lshl_add_u32 v36, v35, 7, v10")
    e("v_xor_b32 v37, 16, v36")
    e("v_xor_b32 v38, 64, v36")
    e("v_xor_b32 v39, 80, v36")
    e("s_mov_b32 s28, 0x05040100")
    e("s_mov_b32 s29, 0x07060302")
    e("v_lshlrev_b32 v26, 4, v5")
    e("v_lshlrev_b32 v27, 2, v35")
    e(f"s_lshr_b32 s{sT1}, s{sS2}, 3")
    e(f"s_lshl_b32 s{sT1}, s{sT1}, 10")
    e(f"s_bfe_u32 s{sT2}, s{sS2}, 0x10002")
    e(f"s_lshl_b32 s{sT2}, s{sT2}, 9")
    e(f"s_add_u32 s{sT1}, s{sT1}, s{sT2}")
    e(f"s_and_b32 s{sT2}, s{sS2}, 1")
    e(f"s_lshl_b32 s{sT2}, s{sT2}, 8")
    e(f"s_add_u32 s{sT1}, s{sT1}, s{sT2}")
    e(f"s_bfe_u32 s{sT2}, s{sS2}, 0x10001")
    e(f"s_lshl_b32 s{sT2}, s{sT2}, 7")
    e(f"s_add_u32 s{sT1}, s{sT1}, s{sT2}")
    e(f"v_lshl_add_u32 v10, v35, 2, s{sT1}")
    e("v_lshl_add_u32 v11, v5, 1, s17")
    e("v_lshlrev_b32 v11, 13, v11")
    e("v_add_u32 v24, v10, v11")
    e("v_subrev_u32 v24, 8192, v24")
    e("v_sub_u32 v25, v10, v11")
    e(f"v_add_u32 v25, {143*8192}, v25")
    k.srd_off(44, 6, WS_Y, 144*8192)
    k.srd_off(48, 6, WS_Y + 144*8192, 144*8192)
    ntouch = len(xt[0]) if xt else 0
    k.label(f"L_{name}_nogen")
    tr("gen")
    stamp_mid(k, stamps, 0)
    e(f"s_waitcnt vmcnt({10 + (ntouch if xt and xt[1] == 'early' else 0)})")
    if xt and xt[1] != "early": xt_fire(k, 52, 224, 1, xt[0])
    tr("xarr")
    for i in range(9): k.lds(f"ds_read_b128 {R(136+4*i,4)}, v34 offset:{4096*i}", ("s", i))
    e("v_mov_b32 v10, 0"); e("v_mov_b32 v11, 0"); e("v_mov_b32 v12, 0"); e("v_mov_b32 v13, 0")
    e("v_mov_b32 v14, 0x3f803f80")
    e("v_lshrrev_b32 v15, 3, v0")
    e("v_lshlrev_b32 v15, 2, v15")
    e(f"s_lshl_b32 s{sT1}, s{sW}, 5")
    e(f"v_add_u32 v15, s{sT1}, v15")
    for i in range(9):
        k.wait(lg=("s", i))
        for r in range(4):
            e(f"v_dot2c_f32_bf16 v{10+2*(r&1)}, v{136+4*i+r}, v14")
            e(f"v_dot2c_f32_bf16 v{11+2*(r&1)}, v{136+4*i+r}, v{136+4*i+r}")
    e("s_nop 2")
    e("v_add_f32 v10, v10, v12")
    e("v_add_f32 v11, v11, v13")
    for ctl in ("quad_perm:[1,0,3,2]", "quad_perm:[2,3,0,1]", "row_half_mirror"):
        e("s_nop 0")
        e(f"v_add_f32_dpp v10, v10, v10 {ctl} row_mask:0xf bank_mask:0xf")
        e(f"v_add_f32_dpp v11, v11, v11 {ctl} row_mask:0xf bank_mask:0xf")
    e(f"v_mul_f32 v10, {fhex(1.0/576)}, v10")
    e(f"v_mul_f32 v11, {fhex(1.0/576)}, v11")
    e("v_fma_f32 v11, -v10, v10, v11")
    e("v_max_f32 v11, 0, v11")
    e(f"v_add_f32 v11, {fhex(1e-5)}, v11")
    e("v_rsq_f32 v11, v11")
    e("ds_write_b32 v15, v10 offset:36992")
    e(f"v_mul_f32 v11, {fhex(2.0/(2048*576))}, v11")
    e("ds_write_b32 v15, v11 offset:36864")
    e("s_waitcnt lgkmcnt(0)")
    k.lg_done = len(k.lg)
    tr("stats")
    e("s_barrier")
    e("s_cmp_eq_u32 s18, 3")
    e(f"s_cbranch_scc1 L_{name}_end")
    tr("bar")
    stamp_mid(k, stamps, 1)
    vX = 172
    def xread(j):
        b = vX + 8*(j % 3)
        for x in (0, 1): k.lds(f"ds_read_b128 {R(b+4*x,4)}, v{36+2*(j&1)+x} offset:{(j>>1)*4096}", ("x", j))
    xread(0); xread(1); xread(2)
    vRr = 208
    k.lds("ds_read_b32 v16, v27 offset:36992", "mn")
    for g in range(4): k.lds(f"ds_read_b128 {R(vRr+4*g,4)}, v26 offset:{36864+32*g}", "rr")
    A0, A1 = 136, 152
    vD = [8, 200]
    def perms(j):
        b = vX + 8*(j % 3); d = vD[j & 1]
        return [f"v_perm_b32 v{d+r}, v{b+2*r+1}, v{b+2*r}, s28" for r in range(4)] + [f"v_perm_b32 v{d+4+r}, v{b+2*r+1}, v{b+2*r}, s29" for r in range(4)]
    e(f"s_waitcnt vmcnt({ntouch})")
    tr("tab")
    xq = [f"v_xor_b32 v{vE2+r}, v31, v{vE+r}" for r in range(36)] + ["v_mov_b32 v112, v28"]
    for _ in range(12): e(xq.pop(0))
    k.wait(lg=("x", 0))
    for p in perms(0): e(p)
    e("s_nop 0")
    for j in range(18):
        Bm = R((vE if j < 9 else vE2) + 4*(j % 9), 4)
        d = vD[j & 1]
        nx = perms(j+1) if j + 1 < 18 else []
        for p in (0, 1):
            acc = R(A1 if p else A0, 16)
            e(f"{MF32} {acc}, {R(d+4*p,4)}, {Bm}, {'0' if j == 0 else acc}")
            if p == 0 and nx: k.wait(lg=("x", j+1))
            if j + 3 < 18:
                b = vX + 8*((j+3) % 3)
                k.lds(f"ds_read_b128 {R(b+4*p,4)}, v{36+2*((j+3)&1)+p} offset:{((j+3)>>1)*4096}", ("x", j+3))
            for x in nx[4*p:4*p+4]: e(x)
            if xq: e(xq.pop(0))
            if j == 16 and p == 1: e("v_cvt_pk_bf16_f32 v116, v16, v117")
            if j == 17 and p == 0:
                e(f"s_lshl_b32 s{sT1}, s{sS2}, 7")
                e(f"s_add_u32 s{sT1}, s{sT1}, {WS_MEAN}")
                e(f"s_cmp_eq_u32 s{sT}, 0")
                e(f"s_cselect_b32 s{sT1}, s{sT1}, 0x40000000")
                e(f"buffer_store_dword v16, v27, s[12:15], s{sT1} offen")
    e(f"{MF32} {R(A1,16)}, {R(116,4)}, {R(112,4)}, {R(A1,16)}")
    e(f"{MF32} {R(A0,16)}, {R(116,4)}, {R(112,4)}, {R(A0,16)}")
    tr("mfma")
    stamp_mid(k, stamps, 2)
    e("s_nop 10")
    k.wait(lg="rr")
    Bq, O1, O2 = 40, 56, 72
    for i in range(16): e(f"v_mul_f32 v{Bq+i}, v29, v{A1+i}")
    for i in range(16): e(f"v_fmac_f32_dpp v{Bq+i}, v{A1+i}, v30 {DPP}")
    for i in range(16): e(f"v_mul_f32 v{A0+i}, v{A0+i}, v{vRr+i}")
    for i in range(16): e(f"v_fma_f32 v{O1+i}, v{Bq+i}, v{vRr+i}, v{A0+i}")
    for i in range(8): e(f"v_cvt_pk_bf16_f32 v{88+i}, v{O1+2*i}, v{O1+2*i+1}")
    P1, Q1, P2, Q2 = 172, 152, 224, 240
    w2 = [f"v_fma_f32 v{O2+i}, -v{Bq+i}, v{vRr+i}, v{A0+i}" for i in range(16)] + [f"v_cvt_pk_bf16_f32 v{96+i}, v{O2+2*i}, v{O2+2*i+1}" for i in range(8)]
    e(w2.pop(0)); e(w2.pop(0))
    for (Dd, a, f, first) in [(P1, 88, vF, 1), (Q1, 88, vF+8, 1), (P1, 92, vF+4, 0), (Q1, 92, vF+12, 0)]:
        e(f"{MF32} {R(Dd,16)}, {R(a,4)}, {R(f,4)}, {'0' if first else R(Dd,16)}")
        for _ in range(6):
            if w2: e(w2.pop(0))
    e("s_nop 1")
    tr("comb")
    c1 = []
    for i in range(0, 16, 2):
        c1.append(f"v_sub_f32 v{O1+i}, v{P1+i}, v{Q1+i+1}")
        c1.append(f"v_add_f32 v{O1+i+1}, v{Q1+i}, v{P1+i+1}")
    c1 += [f"v_cvt_pk_bf16_f32 v{88+i}, v{O1+2*i}, v{O1+2*i+1}" for i in range(8)]
    adr = [f"v_add_u32 v{8+i}, {(4*(i>>1)+(i&1))*8192}, v24" for i in range(8)] + [f"v_subrev_u32 v{200+i}, {(4*(i>>1)+(i&1))*8192}, v25" for i in range(8)]
    for n_, (Dd, a, f, first) in enumerate([(P2, 96, vF, 1), (Q2, 96, vF+8, 1), (P2, 100, vF+4, 0), (Q2, 100, vF+12, 0)]):
        e(f"{MF32} {R(Dd,16)}, {R(a,4)}, {R(f,4)}, {'0' if first else R(Dd,16)}")
        src = adr if n_ < 3 else c1
        for _ in range(6):
            if src: e(src.pop(0))
    assert not adr
    for x in c1: e(x)
    for i in range(8): k.vmem(f"buffer_store_dword v{88+i}, v{8+i}, s[44:47], 0 offen{sf}", "st")
    for i in range(0, 16, 2):
        e(f"v_add_f32 v{O2+i}, v{P2+i}, v{Q2+i+1}")
        e(f"v_sub_f32 v{O2+i+1}, v{Q2+i}, v{P2+i+1}")
    for i in range(8): e(f"v_cvt_pk_bf16_f32 v{96+i}, v{O2+2*i}, v{O2+2*i+1}")
    for i in range(8): k.vmem(f"buffer_store_dword v{96+i}, v{200+i}, s[48:51], 0 offen{sf}", "st")
    tr("stored")
    tr.dump(6, sW, 198)
    stamp_end(k, stamps, 6, 0, sW, 3)
    e("s_endpgm")
    k.label(f"L_{name}_wt")
    e(f"s_load_dwordx4 s[28:31], s[0:1], {KA_WR}")
    if pf and pflate:
        e("s_bfe_u32 s40, s2, 0x10003")
        e("s_lshl_b32 s40, s40, 2")
        e(f"s_add_u32 s40, s40, s{sW}")
        k.prefetch_code("L_text_begin", "L_text_end", 32, 4, 1, 1, lane="v2", part=(40, 8192))
    e(f"s_sub_u32 s{sT0}, s2, {NMAIN}")
    e("v_lshlrev_b32 v3, 4, v0")
    e(f"s_mul_i32 s{sT1}, s{sT0}, 18496")
    e(f"s_lshl_b32 s{sT2}, s{sW}, 10")
    e("s_waitcnt lgkmcnt(0)")
    k.srd(8, 28, 2048*289*2)
    k.srd(12, 30, 2048*289*2)
    k.srd(16, 6, WS_END)
    for r in range(5):
        for mat in range(2):
            e(f"s_add_u32 m0, s{sT2}, {mat*20480 + r*4096}")
            e(f"s_add_u32 s26, s{sT1}, {r*4096}")
            e(f"buffer_load_dwordx4 v3, s[{8+4*mat}:{11+4*mat}], s26 offen{xf} lds")
    if tlb:
        e(f"s_load_dwordx2 s[34:35], s[0:1], {KA_OUT}")
        e(f"s_lshr_b32 s27, s{sT0}, 3")
        e("s_lshl_b32 s27, s27, 8")
        e("v_add_u32 v12, s27, v0")
        e(f"v_mul_u32_u24 v12, {tlb // 16}, v12")
        e("v_lshlrev_b32 v12, 4, v12")
        e("buffer_load_dword v100, v12, s[16:19], 0 offen")
        e("s_waitcnt lgkmcnt(0)")
        k.srd(36, 34, S*D*2)
        e("buffer_load_dword v101, v12, s[36:39], 0 offen")
    e("v_mov_b32 v8, 0"); e("v_mov_b32 v9, 0"); e("v_mov_b32 v10, 0"); e("v_mov_b32 v11, 0")
    e(f"s_mul_i32 s26, s{sT0}, {FLAG_STRIDE}")
    e(f"s_add_u32 s26, s26, {WS_FLAG}")
    for r in range(3):
        e(f"buffer_store_dwordx4 v[8:11], v3, s[16:19], s26 offen{wf}")
        e("s_add_u32 s26, s26, 4096")
    e(f"s_cmp_eq_u32 s{sW}, 0")
    e("s_cselect_b32 s26, s26, 0x40000000")
    e(f"buffer_store_dwordx4 v[8:11], v3, s[16:19], s26 offen{wf}")
    e(f"s_lshl_b32 s27, s{sT0}, 2")
    e(f"s_add_u32 s27, s27, s{sW}")
    e("s_cmp_ge_u32 s27, 162")
    e(f"s_cbranch_scc1 L_{name}_nog")
    e("s_mul_hi_u32 s28, s27, 0x1c71c71d")
    e("s_mul_i32 s29, s28, 9")
    e("s_sub_u32 s29, s27, s29")
    e("s_and_b32 s30, s28, 1")
    e("s_lshr_b32 s28, s28, 1")
    if hc16:
        e("v_and_b32 v12, 7, v2")
        e("v_bfe_u32 v13, v2, 3, 1")
        e("v_lshl_add_u32 v12, v13, 4, v12")
        e("v_bfe_u32 v13, v2, 4, 1")
        e("v_lshl_add_u32 v12, v13, 3, v12")
    else:
        e("v_and_b32 v12, 0x13, v2")
        e("v_bfe_u32 v13, v2, 2, 1")
        e("v_lshl_add_u32 v12, v13, 3, v12")
        e("v_bfe_u32 v13, v2, 3, 1")
        e("v_lshl_add_u32 v12, v13, 2, v12")
    e("s_lshl_b32 s28, s28, 5")
    e("v_add_u32 v12, s28, v12")
    e("v_cvt_f32_u32 v12, v12")
    e("v_lshrrev_b32 v13, 5, v2")
    e("s_lshl_b32 s29, s29, 4")
    e("s_add_u32 s29, s29, s30")
    e("s_add_u32 s29, s29, 1")
    e("v_lshl_add_u32 v13, v13, 3, s29")
    e("v_cvt_f32_u32 v13, v13")
    for t in range(4):
        e(f"v_add_f32 v{14+t}, {fhex(2*t)}, v13")
        e(f"v_mul_f32 v{14+t}, v{14+t}, v12")
        e(f"v_mul_f32 v{14+t}, {fhex(1.0/576)}, v{14+t}")
    for t in range(4): e(f"v_cos_f32 v{18+t}, v{14+t}")
    for t in range(4): e(f"v_sin_f32 v{14+t}, v{14+t}")
    e("v_lshlrev_b32 v13, 4, v2")
    for t in range(4): e(f"v_cvt_pk_bf16_f32 v{24+t}, v{18+t}, v{14+t}")
    e("s_lshl_b32 s27, s27, 10")
    e(f"s_add_u32 s27, s27, {WS_G}")
    e(f"buffer_store_dwordx4 v[24:27], v13, s[16:19], s27 offen{wf}")
    k.label(f"L_{name}_nog")
    e("v_and_b32 v3, 31, v0")
    e("v_lshrrev_b32 v4, 5, v0")
    e("v_mul_u32_u24 v5, 578, v3")
    e("v_lshl_add_u32 v5, v4, 1, v5")
    e("v_lshlrev_b32 v6, 2, v3")
    e("v_lshl_add_u32 v6, v4, 13, v6")
    e(f"s_lshl_b32 s{sT1}, s{sT0}, 7")
    e(f"s_add_u32 s{sT1}, s{sT1}, {WS_WT}")
    e("s_waitcnt vmcnt(0)")
    e("s_barrier")
    for part in range(6):
        for i in range(6*part, 6*part+6):
            e(f"ds_read_u16 v{30+i}, v5 offset:{2+16*i}")
            e(f"ds_read_u16 v{70+i}, v5 offset:{20480+2+16*i}")
        if part > 0:
            e("s_waitcnt lgkmcnt(12)")
            for i in range(6*part-6, 6*part):
                e(f"v_lshl_or_b32 v{30+i}, v{70+i}, 16, v{30+i}")
                e(f"s_add_u32 s26, s{sT1}, {8*8192*i}")
                e(f"buffer_store_dword v{30+i}, v6, s[16:19], s26 offen{wf}")
    e("s_waitcnt lgkmcnt(0)")
    for i in range(30, 36):
        e(f"v_lshl_or_b32 v{30+i}, v{70+i}, 16, v{30+i}")
        e(f"s_add_u32 s26, s{sT1}, {8*8192*i}")
        e(f"buffer_store_dword v{30+i}, v6, s[16:19], s26 offen{wf}")
    stamp_end(k, stamps, 6, 0, sW, 0)
    if NP:
        e("s_endpgm")
        k.label(f"L_{name}_pack")
        e("v_mov_b32 v0, v2")
        pack_wg(k, name, sW, 4, NMAIN + NWT, jobs[0], jobs[1], pk, stamps, 0)
    k.label(f"L_{name}_end")
    e("s_endpgm")
    return k, (256, 100, 256), (NMAIN + NWT + NP, 256, 49152 if NP else 40960)


def gen_k1c(name="fwd_kernel", stamps=False, pf=True, wpf=None, trace=False, xf="", xt=None, pk=None, jobs=(0, 0), sf="", wf="", hc16=False, tlb=0, pflate=False, nwt=64, fullg=False):
    NMAIN, NWT = 192, 64
    NP = 8 * (-(-jobs[1] // 4))
    k = Kern(name); e = k.e
    tr = Tracer(k, trace, 199)
    sW, sS2, sCT, sT0, sT1, sT2, sT = 20, 21, 22, 23, 24, 25, 19
    e(f"s_cmp_ge_u32 s2, {NMAIN + NWT + NP}")
    e(f"s_cbranch_scc1 L_{name}_end")
    stamp_begin(k, stamps)
    e(f"s_load_dwordx2 s[4:5], s[0:1], {KA_X}")
    e(f"s_load_dwordx2 s[6:7], s[0:1], {KA_WS}")
    e("v_lshrrev_b32 v1, 6, v0")
    e("v_and_b32 v2, 63, v0")
    e(f"v_readfirstlane_b32 s{sW}, v1")
    if NP:
        e(f"s_cmp_ge_u32 s2, {NMAIN + NWT}")
        e(f"s_cbranch_scc1 L_{name}_pack")
    if pf and not pflate:
        e("s_bfe_u32 s40, s2, 0x10003")
        e("s_lshl_b32 s40, s40, 2")
        e(f"s_add_u32 s40, s40, s{sW}")
        k.prefetch_code("L_text_begin", "L_text_end", 32, 3, 1, 1, lane="v2", part=(40, 8192))
    e(f"s_cmp_ge_u32 s2, {NMAIN}")
    e(f"s_cbranch_scc1 L_{name}_wt")
    e("v_mov_b32 v0, v2")
    if xt: xt_load(k, 52)
    e(f"s_lshr_b32 s{sT0}, s2, 3")
    e(f"s_mul_hi_u32 s{sT1}, s{sT0}, 0x55555556")
    e(f"s_mul_i32 s{sCT}, s{sT1}, 3")
    e(f"s_sub_u32 s{sCT}, s{sT0}, s{sCT}")
    e(f"s_and_b32 s{sS2}, s2, 7")
    e(f"s_lshl_b32 s{sS2}, s{sS2}, 3")
    e(f"s_add_u32 s{sS2}, s{sS2}, s{sT1}")
    e("v_lshrrev_b32 v4, 3, v0")
    e("v_lshrrev_b32 v5, 4, v0")
    e("v_and_b32 v6, 7, v0")
    e("v_xor_b32 v6, v6, v5")
    e("v_lshlrev_b32 v6, 4, v6")
    e("v_mul_u32_u24 v2, 73728, v4")
    e("v_add_u32 v2, v2, v6")
    e(f"s_and_b32 s26, s{sW}, 1")
    e("s_lshl_b32 s26, s26, 6")
    e("v_xor_b32 v2, s26, v2")
    e(f"s_mul_i32 s27, s{sW}, {8*73728}")
    e(f"s_mul_i32 s{sT2}, s{sS2}, 1152")
    e(f"s_add_u32 s27, s27, s{sT2}")
    e(f"s_lshl_b32 s26, s{sW}, 10")
    e("s_waitcnt lgkmcnt(0)")
    tr("karg")
    k.srd(8, 4, S*D*2)
    e("s_mov_b32 m0, s26")
    e("s_nop 0")
    for i in range(9):
        k.vmem(f"buffer_load_dwordx4 v2, s[8:11], s27 offen offset:{128*i}{xf} lds", "x")
        if i < 8:
            e(f"s_add_u32 m0, m0, {4096 - 128}")
            e("s_nop 0")
    tr("issued")
    vE, vE2 = 40, 76
    e(f"s_mul_i32 s{sT}, s{sCT}, 3")
    e(f"s_min_u32 s{sT1}, s{sCT}, 1")
    e(f"s_add_u32 s{sT}, s{sT}, s{sT1}")
    e(f"s_add_u32 s{sT}, s{sT}, s{sW}")
    e(f"s_mul_i32 s18, s{sT1}, s{sW}")
    e("v_lshlrev_b32 v34, 4, v0")
    if xt:
        e(f"s_lshl_b32 s51, s{sT0}, 2")
        e(f"s_add_u32 s51, s51, s{sW}")
        xt_prep(k, 52, 51, "v0", 224, xt[0])
        if xt[1] == "early": xt_fire(k, 52, 224, 1, xt[0])
    k.srd(12, 6, WS_END)
    e("v_lshrrev_b32 v5, 5, v0")
    e("v_and_b32 v35, 31, v0")
    e("v_add_u32 v34, s26, v34")
    e("s_cmp_eq_u32 s18, 3")
    e(f"s_cbranch_scc1 L_{name}_hgen")
    e(f"s_lshl_b32 s17, s{sT}, 4")
    e("v_bfe_u32 v4, v0, 1, 4")
    e("v_add_u32 v4, s17, v4")
    e("v_and_b32 v6, 1, v0")
    e("v_cvt_f32_u32 v7, v4")
    e(f"v_mul_f32 v7, {fhex(1.0/288)}, v7")
    e("v_cvt_f32_u32 v8, v6")
    e("v_mul_f32 v8, 0x3e800000, v8")
    e("v_cvt_f32_u32 v9, v5")
    e("v_mul_f32 v10, 0x41000000, v9")
    e("v_fma_f32 v10, v10, v7, v8")
    for t in range(1, 8): e(f"v_add_f32 v{10+t}, v{9+t}, v7")
    e("v_mul_f32 v8, 0x41800000, v7")
    e("v_and_b32 v31, 1, v4")
    e("v_mul_u32_u24 v31, 0x8000, v31")
    e("v_lshl_or_b32 v31, v31, 16, v31")
    e("v_mov_b32 v28, 0")
    e("v_mov_b32 v3, 0x3f803f80")
    for j in range(9):
        for t in range(8): e(f"v_cos_f32 v{18+t}, v{10+t}")
        if j < 8:
            for t in range(8): e(f"v_add_f32 v{10+t}, v8, v{10+t}")
        for t in range(4): e(f"v_cvt_pk_bf16_f32 v{vE+4*j+t}, v{18+2*t}, v{19+2*t}")
        for t in range(4): e(f"v_dot2c_f32_bf16 v28, v{vE+4*j+t}, v3")
        if xt and xt[1] == j: xt_fire(k, 52, 224, 1, xt[0])
    e("v_mul_f32 v12, 0.5, v7")
    e("v_lshlrev_b32 v13, 31, v6")
    e("v_xor_b32 v12, v12, v13")
    e("v_cos_f32 v29, v12")
    e("v_sin_f32 v30, v12")
    e("v_mov_b32 v11, v28")
    e("v_and_b32 v13, 1, v4")
    e("v_or_b32 v13, v13, v5")
    e("v_permlane32_swap_b32 v28, v11")
    e("v_cmp_eq_u32 vcc, 0, v13")
    for r in (113, 114, 115, 117, 118, 119): e(f"v_mov_b32 v{r}, 0")
    e("v_add_f32 v28, v28, v11")
    e("v_mul_f32 v28, -2.0, v28")
    e("v_cndmask_b32 v28, 0, v28, vcc")
    e("v_cvt_pk_bf16_f32 v112, v28, v113")
    vF = 120
    e("v_cvt_f32_u32 v10, v35")
    e(f"v_mul_f32 v11, {fhex(1.0/32)}, v10")
    e(f"v_cvt_f32_u32 v12, s{sS2}")
    e(f"v_mul_f32 v12, {fhex(1.0/64)}, v12")
    e("v_fma_f32 v12, v9, 4.0, v12")
    e("v_mul_f32 v12, v12, v11")
    for jj in range(2):
        for t in range(8): e(f"v_fmamk_f32 v{136+t}, v11, {fhex(16*jj + 8*(t >> 2) + (t & 3))}, v12")
        for t in range(8): e(f"v_cos_f32 v{144+t}, v{136+t}")
        for t in range(8): e(f"v_sin_f32 v{136+t}, -v{136+t}")
        for t in range(4): e(f"v_cvt_pk_bf16_f32 v{vF+4*jj+t}, v{144+2*t}, v{145+2*t}")
        for t in range(4): e(f"v_cvt_pk_bf16_f32 v{vF+8+4*jj+t}, v{136+2*t}, v{137+2*t}")
    e("v_bfe_u32 v10, v0, 1, 3")
    e("v_lshlrev_b32 v11, 1, v5")
    e("v_xor_b32 v10, v10, v11")
    e("v_lshlrev_b32 v10, 4, v10")
    e("v_lshl_add_u32 v36, v35, 7, v10")
    e("v_xor_b32 v37, 16, v36")
    e("v_xor_b32 v38, 64, v36")
    e("v_xor_b32 v39, 80, v36")
    e("s_mov_b32 s28, 0x05040100")
    e("s_mov_b32 s29, 0x07060302")
    e("v_lshlrev_b32 v26, 4, v5")
    e("v_lshlrev_b32 v27, 2, v35")
    e(f"s_lshr_b32 s{sT1}, s{sS2}, 3")
    e(f"s_lshl_b32 s{sT1}, s{sT1}, 10")
    e(f"s_bfe_u32 s{sT2}, s{sS2}, 0x10002")
    e(f"s_lshl_b32 s{sT2}, s{sT2}, 9")
    e(f"s_add_u32 s{sT1}, s{sT1}, s{sT2}")
    e(f"s_and_b32 s{sT2}, s{sS2}, 1")
    e(f"s_lshl_b32 s{sT2}, s{sT2}, 8")
    e(f"s_add_u32 s{sT1}, s{sT1}, s{sT2}")
    e(f"s_bfe_u32 s{sT2}, s{sS2}, 0x10001")
    e(f"s_lshl_b32 s{sT2}, s{sT2}, 7")
    e(f"s_add_u32 s{sT1}, s{sT1}, s{sT2}")
    e(f"v_lshl_add_u32 v10, v35, 2, s{sT1}")
    e("v_lshl_add_u32 v11, v5, 1, s17")
    e("v_lshlrev_b32 v11, 13, v11")
    e("v_add_u32 v24, v10, v11")
    e("v_subrev_u32 v24, 8192, v24")
    e("v_sub_u32 v25, v10, v11")
    e(f"v_add_u32 v25, {143*8192}, v25")
    k.srd_off(44, 6, WS_Y, 144*8192)
    k.srd_off(48, 6, WS_Y + 144*8192, 144*8192)
    ntouch = len(xt[0]) if xt else 0
    k.label(f"L_{name}_nogen")
    tr("gen")
    stamp_mid(k, stamps, 0)
    e(f"s_waitcnt vmcnt({ntouch if xt and xt[1] != 'late' else 0})")
    if xt and xt[1] == "late": xt_fire(k, 52, 224, 1, xt[0])
    tr("xarr")
    for i in range(9): k.lds(f"ds_read_b128 {R(136+4*i,4)}, v34 offset:{4096*i}", ("s", i))
    e("v_mov_b32 v10, 0"); e("v_mov_b32 v11, 0"); e("v_mov_b32 v12, 0"); e("v_mov_b32 v13, 0")
    e("v_mov_b32 v14, 0x3f803f80")
    e("v_lshrrev_b32 v15, 3, v0")
    e("v_lshlrev_b32 v15, 2, v15")
    e(f"s_lshl_b32 s{sT1}, s{sW}, 5")
    e(f"v_add_u32 v15, s{sT1}, v15")
    for i in range(9):
        k.wait(lg=("s", i))
        for r in range(4):
            e(f"v_dot2c_f32_bf16 v{10+2*(r&1)}, v{136+4*i+r}, v14")
            e(f"v_dot2c_f32_bf16 v{11+2*(r&1)}, v{136+4*i+r}, v{136+4*i+r}")
    e("s_nop 2")
    e("v_add_f32 v10, v10, v12")
    e("v_add_f32 v11, v11, v13")
    for ctl in ("quad_perm:[1,0,3,2]", "quad_perm:[2,3,0,1]", "row_half_mirror"):
        e("s_nop 0")
        e(f"v_add_f32_dpp v10, v10, v10 {ctl} row_mask:0xf bank_mask:0xf")
        e(f"v_add_f32_dpp v11, v11, v11 {ctl} row_mask:0xf bank_mask:0xf")
    e(f"v_mul_f32 v10, {fhex(1.0/576)}, v10")
    e(f"v_mul_f32 v11, {fhex(1.0/576)}, v11")
    e("v_fma_f32 v11, -v10, v10, v11")
    e("v_max_f32 v11, 0, v11")
    e(f"v_add_f32 v11, {fhex(1e-5)}, v11")
    e("v_rsq_f32 v11, v11")
    e("ds_write_b32 v15, v10 offset:36992")
    e(f"v_mul_f32 v11, {fhex(2.0/(2048*576))}, v11")
    e("ds_write_b32 v15, v11 offset:36864")
    e("s_waitcnt lgkmcnt(0)")
    k.lg_done = len(k.lg)
    tr("stats")
    e("s_barrier")
    e("s_cmp_eq_u32 s18, 3")
    e(f"s_cbranch_scc1 L_{name}_end")
    tr("bar")
    stamp_mid(k, stamps, 1)
    vX = 172
    def xread(j):
        b = vX + 8*(j % 3)
        for x in (0, 1): k.lds(f"ds_read_b128 {R(b+4*x,4)}, v{36+2*(j&1)+x} offset:{(j>>1)*4096}", ("x", j))
    xread(0); xread(1); xread(2)
    vRr = 208
    k.lds("ds_read_b32 v16, v27 offset:36992", "mn")
    for g in range(4): k.lds(f"ds_read_b128 {R(vRr+4*g,4)}, v26 offset:{36864+32*g}", "rr")
    A0, A1 = 136, 152
    vD = [8, 200]
    def perms(j):
        b = vX + 8*(j % 3); d = vD[j & 1]
        return [f"v_perm_b32 v{d+r}, v{b+2*r+1}, v{b+2*r}, s28" for r in range(4)] + [f"v_perm_b32 v{d+4+r}, v{b+2*r+1}, v{b+2*r}, s29" for r in range(4)]
    xq = [f"v_xor_b32 v{vE2+r}, v31, v{vE+r}" for r in range(36)]
    for _ in range(12): e(xq.pop(0))
    k.wait(lg=("x", 0))
    for p in perms(0): e(p)
    e("s_nop 0")
    for j in range(18):
        Bm = R((vE if j < 9 else vE2) + 4*(j % 9), 4)
        d = vD[j & 1]
        nx = perms(j+1) if j + 1 < 18 else []
        for p in (0, 1):
            acc = R(A1 if p else A0, 16)
            e(f"{MF32} {acc}, {R(d+4*p,4)}, {Bm}, {'0' if j == 0 else acc}")
            if p == 0 and nx: k.wait(lg=("x", j+1))
            if j + 3 < 18:
                b = vX + 8*((j+3) % 3)
                k.lds(f"ds_read_b128 {R(b+4*p,4)}, v{36+2*((j+3)&1)+p} offset:{((j+3)>>1)*4096}", ("x", j+3))
            for x in nx[4*p:4*p+4]: e(x)
            if xq: e(xq.pop(0))
            if j == 16 and p == 1: e("v_cvt_pk_bf16_f32 v116, v16, v117")
            if j == 17 and p == 0:
                e(f"s_lshl_b32 s{sT1}, s{sS2}, 7")
                e(f"s_add_u32 s{sT1}, s{sT1}, {WS_MEAN}")
                e(f"s_cmp_eq_u32 s{sT}, 0")
                e(f"s_cselect_b32 s{sT1}, s{sT1}, 0x40000000")
                e(f"buffer_store_dword v16, v27, s[12:15], s{sT1} offen")
    e(f"{MF32} {R(A1,16)}, {R(116,4)}, {R(112,4)}, {R(A1,16)}")
    e(f"{MF32} {R(A0,16)}, {R(116,4)}, {R(112,4)}, {R(A0,16)}")
    tr("mfma")
    stamp_mid(k, stamps, 2)
    e("s_nop 10")
    k.wait(lg="rr")
    Bq, O1, O2 = 40, 56, 72
    for i in range(16): e(f"v_mul_f32 v{Bq+i}, v29, v{A1+i}")
    for i in range(16): e(f"v_fmac_f32_dpp v{Bq+i}, v{A1+i}, v30 {DPP}")
    for i in range(16): e(f"v_mul_f32 v{A0+i}, v{A0+i}, v{vRr+i}")
    for i in range(16): e(f"v_fma_f32 v{O1+i}, v{Bq+i}, v{vRr+i}, v{A0+i}")
    for i in range(8): e(f"v_cvt_pk_bf16_f32 v{88+i}, v{O1+2*i}, v{O1+2*i+1}")
    P1, Q1, P2, Q2 = 172, 152, 224, 240
    w2 = [f"v_fma_f32 v{O2+i}, -v{Bq+i}, v{vRr+i}, v{A0+i}" for i in range(16)] + [f"v_cvt_pk_bf16_f32 v{96+i}, v{O2+2*i}, v{O2+2*i+1}" for i in range(8)]
    e(w2.pop(0)); e(w2.pop(0))
    for (Dd, a, f, first) in [(P1, 88, vF, 1), (Q1, 88, vF+8, 1), (P1, 92, vF+4, 0), (Q1, 92, vF+12, 0)]:
        e(f"{MF32} {R(Dd,16)}, {R(a,4)}, {R(f,4)}, {'0' if first else R(Dd,16)}")
        for _ in range(6):
            if w2: e(w2.pop(0))
    e("s_nop 1")
    tr("comb")
    c1 = []
    for i in range(0, 16, 2):
        c1.append(f"v_sub_f32 v{O1+i}, v{P1+i}, v{Q1+i+1}")
        c1.append(f"v_add_f32 v{O1+i+1}, v{Q1+i}, v{P1+i+1}")
    c1 += [f"v_cvt_pk_bf16_f32 v{88+i}, v{O1+2*i}, v{O1+2*i+1}" for i in range(8)]
    adr = [f"v_add_u32 v{8+i}, {(4*(i>>1)+(i&1))*8192}, v24" for i in range(8)] + [f"v_subrev_u32 v{200+i}, {(4*(i>>1)+(i&1))*8192}, v25" for i in range(8)]
    for n_, (Dd, a, f, first) in enumerate([(P2, 96, vF, 1), (Q2, 96, vF+8, 1), (P2, 100, vF+4, 0), (Q2, 100, vF+12, 0)]):
        e(f"{MF32} {R(Dd,16)}, {R(a,4)}, {R(f,4)}, {'0' if first else R(Dd,16)}")
        src = adr if n_ < 3 else c1
        for _ in range(6):
            if src: e(src.pop(0))
    assert not adr
    for x in c1: e(x)
    for i in range(8): k.vmem(f"buffer_store_dword v{88+i}, v{8+i}, s[44:47], 0 offen{sf}", "st")
    for i in range(0, 16, 2):
        e(f"v_add_f32 v{O2+i}, v{P2+i}, v{Q2+i+1}")
        e(f"v_sub_f32 v{O2+i+1}, v{Q2+i}, v{P2+i+1}")
    for i in range(8): e(f"v_cvt_pk_bf16_f32 v{96+i}, v{O2+2*i}, v{O2+2*i+1}")
    for i in range(8): k.vmem(f"buffer_store_dword v{96+i}, v{200+i}, s[48:51], 0 offen{sf}", "st")
    tr("stored")
    tr.dump(6, sW, 198)
    stamp_end(k, stamps, 6, 0, sW, 3)
    e("s_endpgm")
    k.label(f"L_{name}_hgen")
    if xt and isinstance(xt[1], int):
        e("s_waitcnt vmcnt(0)")
        xt_fire(k, 52, 224, 1, xt[0])
    e(f"s_branch L_{name}_nogen")
    k.label(f"L_{name}_wt")
    e(f"s_load_dwordx4 s[28:31], s[0:1], {KA_WR}")
    if pf and pflate:
        e("s_bfe_u32 s40, s2, 0x10003")
        e("s_lshl_b32 s40, s40, 2")
        e(f"s_add_u32 s40, s40, s{sW}")
        k.prefetch_code("L_text_begin", "L_text_end", 32, 4, 1, 1, lane="v2", part=(40, 8192))
    e(f"s_sub_u32 s{sT0}, s2, {NMAIN}")
    e("v_lshlrev_b32 v3, 4, v0")
    e(f"s_mul_i32 s{sT1}, s{sT0}, 18496")
    e(f"s_lshl_b32 s{sT2}, s{sW}, 10")
    e("s_waitcnt lgkmcnt(0)")
    k.srd(8, 28, 2048*289*2)
    k.srd(12, 30, 2048*289*2)
    k.srd(16, 6, WS_END)
    for r in range(5):
        for mat in range(2):
            e(f"s_add_u32 m0, s{sT2}, {mat*20480 + r*4096}")
            e(f"s_add_u32 s26, s{sT1}, {r*4096}")
            e(f"buffer_load_dwordx4 v3, s[{8+4*mat}:{11+4*mat}], s26 offen{xf} lds")
    if tlb:
        e(f"s_load_dwordx2 s[34:35], s[0:1], {KA_OUT}")
        e(f"s_lshr_b32 s27, s{sT0}, 3")
        e("s_lshl_b32 s27, s27, 8")
        e("v_add_u32 v12, s27, v0")
        e(f"v_mul_u32_u24 v12, {tlb // 16}, v12")
        e("v_lshlrev_b32 v12, 4, v12")
        e("buffer_load_dword v100, v12, s[16:19], 0 offen")
        e("s_waitcnt lgkmcnt(0)")
        k.srd(36, 34, S*D*2)
        e("buffer_load_dword v101, v12, s[36:39], 0 offen")
    e("v_mov_b32 v8, 0"); e("v_mov_b32 v9, 0"); e("v_mov_b32 v10, 0"); e("v_mov_b32 v11, 0")
    e(f"s_mul_i32 s26, s{sT0}, {FLAG_STRIDE}")
    e(f"s_add_u32 s26, s26, {WS_FLAG}")
    for r in range(3):
        e(f"buffer_store_dwordx4 v[8:11], v3, s[16:19], s26 offen{wf}")
        e("s_add_u32 s26, s26, 4096")
    e(f"s_cmp_eq_u32 s{sW}, 0")
    e("s_cselect_b32 s26, s26, 0x40000000")
    e(f"buffer_store_dwordx4 v[8:11], v3, s[16:19], s26 offen{wf}")
    e(f"s_lshl_b32 s27, s{sT0}, 2")
    e(f"s_add_u32 s27, s27, s{sW}")
    e("s_cmp_ge_u32 s27, 162")
    e(f"s_cbranch_scc1 L_{name}_nog")
    e("s_mul_hi_u32 s28, s27, 0x1c71c71d")
    e("s_mul_i32 s29, s28, 9")
    e("s_sub_u32 s29, s27, s29")
    e("s_and_b32 s30, s28, 1")
    e("s_lshr_b32 s28, s28, 1")
    if hc16:
        e("v_and_b32 v12, 7, v2")
        e("v_bfe_u32 v13, v2, 3, 1")
        e("v_lshl_add_u32 v12, v13, 4, v12")
        e("v_bfe_u32 v13, v2, 4, 1")
        e("v_lshl_add_u32 v12, v13, 3, v12")
    else:
        e("v_and_b32 v12, 0x13, v2")
        e("v_bfe_u32 v13, v2, 2, 1")
        e("v_lshl_add_u32 v12, v13, 3, v12")
        e("v_bfe_u32 v13, v2, 3, 1")
        e("v_lshl_add_u32 v12, v13, 2, v12")
    e("s_lshl_b32 s28, s28, 5")
    e("v_add_u32 v12, s28, v12")
    e("v_cvt_f32_u32 v12, v12")
    e("v_lshrrev_b32 v13, 5, v2")
    e("s_lshl_b32 s29, s29, 4")
    e("s_add_u32 s29, s29, s30")
    e("s_add_u32 s29, s29, 1")
    e("v_lshl_add_u32 v13, v13, 3, s29")
    e("v_cvt_f32_u32 v13, v13")
    if fullg:
        e("s_lshr_b32 s31, s29, 4")
        e("s_sub_u32 s27, s27, s31")
        e("s_lshl_b32 s27, s27, 1")
        e("s_add_u32 s27, s27, s31")
    e("s_lshl_b32 s27, s27, 10")
    e(f"s_add_u32 s27, s27, {WS_G}")
    e("v_lshlrev_b32 v28, 4, v2")
    for hi in range(2 if fullg else 1):
        for t in range(4):
            e(f"v_add_f32 v{14+t}, {fhex(2*t + 144*hi)}, v13")
            e(f"v_mul_f32 v{14+t}, v{14+t}, v12")
            e(f"v_mul_f32 v{14+t}, {fhex(1.0/576)}, v{14+t}")
        for t in range(4): e(f"v_cos_f32 v{18+t}, v{14+t}")
        for t in range(4): e(f"v_sin_f32 v{14+t}, v{14+t}")
        e("s_nop 0")
        for t in range(4): e(f"v_cvt_pk_bf16_f32 v{108+4*hi+t}, v{18+t}, v{14+t}")
        e(f"buffer_store_dwordx4 v[{108+4*hi}:{111+4*hi}], v28, s[16:19], s27 offen{wf}")
        e("s_add_u32 s27, s27, 9216")
    k.label(f"L_{name}_nog")
    e("v_and_b32 v3, 31, v0")
    e("v_lshrrev_b32 v4, 5, v0")
    e("v_mul_u32_u24 v5, 578, v3")
    e("v_lshl_add_u32 v5, v4, 1, v5")
    e("v_lshlrev_b32 v6, 2, v3")
    e("v_lshl_add_u32 v6, v4, 13, v6")
    e(f"s_lshl_b32 s{sT1}, s{sT0}, 7")
    e(f"s_add_u32 s{sT1}, s{sT1}, {WS_WT}")
    e("s_waitcnt vmcnt(0)")
    e("s_barrier")
    for part in range(6):
        for i in range(6*part, 6*part+6):
            e(f"ds_read_u16 v{30+i}, v5 offset:{2+16*i}")
            e(f"ds_read_u16 v{70+i}, v5 offset:{20480+2+16*i}")
        if part > 0:
            e("s_waitcnt lgkmcnt(12)")
            for i in range(6*part-6, 6*part):
                e(f"v_lshl_or_b32 v{30+i}, v{70+i}, 16, v{30+i}")
                e(f"s_add_u32 s26, s{sT1}, {8*8192*i}")
                e(f"buffer_store_dword v{30+i}, v6, s[16:19], s26 offen{wf}")
    e("s_waitcnt lgkmcnt(0)")
    for i in range(30, 36):
        e(f"v_lshl_or_b32 v{30+i}, v{70+i}, 16, v{30+i}")
        e(f"s_add_u32 s26, s{sT1}, {8*8192*i}")
        e(f"buffer_store_dword v{30+i}, v6, s[16:19], s26 offen{wf}")
    stamp_end(k, stamps, 6, 0, sW, 0)
    if NP:
        e("s_endpgm")
        k.label(f"L_{name}_pack")
        e("v_mov_b32 v0, v2")
        pack_wg(k, name, sW, 4, NMAIN + NWT, jobs[0], jobs[1], pk, stamps, 0)
    k.label(f"L_{name}_end")
    e("s_endpgm")
    return k, (256, 100, 256), (NMAIN + NWT + NP, 256, 49152 if NP else 40960)


def etab_text():
    import numpy as np
    def bf(x):
        u = np.asarray(x, dtype=np.float32).view(np.uint32)
        return ((u + 0x7FFF + ((u >> 16) & 1)) >> 16).astype(np.uint32)
    out = np.zeros((10, 10, 64, 4), np.uint32)
    l = np.arange(64); n = l & 31; h = l >> 5; c = n & 1
    for T in range(10):
        kk = 16*T + (n >> 1)
        cs = np.zeros(64)
        for j in range(9):
            v = np.stack([np.cos(2*np.pi*(((16*j + 8*h + t) * kk % 288) / 288.0 + c/4.0)) for t in range(8)], 1)
            v[np.abs(v) < 1e-12] = 0.0
            b = bf(v)
            out[T, j] = b[:, 0::2] | (b[:, 1::2] << 16)
            cs += (b << 16).astype(np.uint32).view(np.float32).astype(np.float64).sum(1)
        tot = cs[:32] + cs[32:]
        corr = np.where((kk % 2 == 0) & (h == 0), -2.0 * np.concatenate([tot, tot]), 0.0)
        ph = 2*np.pi*kk/576.0
        out[T, 9, :, 0] = bf(corr)
        out[T, 9, :, 1] = np.cos(ph).astype(np.float32).view(np.uint32)
        out[T, 9, :, 2] = (np.sin(ph) * np.where(c == 1, -1.0, 1.0)).astype(np.float32).view(np.uint32)
        out[T, 9, :, 3] = np.where(kk % 2 == 1, 0x80008000, 0)
    q = out.reshape(-1).view(np.uint64)
    lines = [".p2align 7", ".type L_etab,@object", "L_etab:"]
    for i in range(0, len(q), 8): lines.append(".quad " + ",".join("0x%x" % x for x in q[i:i+8]))
    lines.append(".size L_etab, 102400")
    return "\n".join(lines) + "\n"

def gen_k2(name="col_kernel", stamps=False, touch=None, trace=False, xt=None, pk=None, jobs=(0, 0), sf='', gt=False, prio=0):
    NMAIN = 288
    NP = (90 if touch == 'gu' else 81) if touch else 0
    if jobs[1]: NP = 8 * (-(-jobs[1] // 4))
    k = Kern(name); e = k.e
    tr = Tracer(k, trace, 38)
    sW, sT0, sT1, sT2 = 20, 23, 24, 25
    e(f"s_cmp_ge_u32 s2, {NMAIN + NP}")
    e(f"s_cbranch_scc1 L_{name}_end")
    stamp_begin(k, stamps)
    e(f"s_load_dwordx2 s[6:7], s[0:1], {KA_WS}")
    e("v_lshrrev_b32 v1, 6, v0")
    e("v_and_b32 v0, 63, v0")
    e(f"v_readfirstlane_b32 s{sW}, v1")
    if NP:
        e(f"s_cmp_ge_u32 s2, {NMAIN}")
        e(f"s_cbranch_scc1 L_{name}_t")
    if prio:
        e("s_cmp_lt_u32 s2, 256")
        e(f"s_cbranch_scc1 L_{name}_np")
        e(f"s_setprio {prio}")
        k.label(f"L_{name}_np")
    if xt: xt_load(k, 52)
    e("v_lshlrev_b32 v2, 4, v0")
    e("v_lshrrev_b32 v5, 5, v0")
    e("v_and_b32 v35, 31, v0")
    e("v_lshlrev_b32 v3, 2, v35")
    e("v_lshl_add_u32 v3, v5, 8, v3")
    e(f"s_lshl_b32 s{sT0}, s2, 13")
    e(f"s_lshl_b32 s26, s{sW}, 11")
    e(f"s_add_u32 s{sT0}, s{sT0}, s26")
    e(f"s_add_u32 s{sT1}, s{sT0}, {WS_Y}")
    e(f"s_add_u32 s{sT2}, s{sT0}, {WS_WT}")
    e("s_mov_b32 m0, s26")
    vM = 80
    e("v_bfe_u32 v4, v0, 1, 4")
    e(f"s_lshl_b32 s27, s{sW}, 4")
    e("v_add_u32 v4, s27, v4")
    e("v_and_b32 v6, 1, v0")
    e("v_cvt_f32_u32 v7, v4")
    e(f"v_mul_f32 v8, {fhex(1.0/64)}, v7")
    e("v_cvt_f32_u32 v9, v6")
    e("v_mul_f32 v9, 0x3e800000, v9")
    e("v_cvt_f32_u32 v36, v5")
    e("v_add_f32 v10, v36, v36")
    e("v_fma_f32 v9, v10, v8, v9")
    def m1(jp):
        for u in range(8):
            j, t = 2*jp + (u >> 2), u & 3
            e(f"v_fmamk_f32 v{12+u}, v8, {fhex(8*j + 4*(t>>1) + (t&1))}, v9")
        for u in range(8): e(f"v_cos_f32 v{20+u}, v{12+u}")
        for u in range(8): e(f"v_sin_f32 v{12+u}, v{12+u}")
        for u in range(8): e(f"v_cvt_pk_bf16_f32 v{vM+8*jp+u}, v{20+u}, v{12+u}")
    m1(0)
    e("s_waitcnt lgkmcnt(0)")
    tr("karg")
    k.srd(12, 6, WS_END)
    for i in range(2): k.vmem(f"buffer_load_dwordx4 v2, s[12:15], s{sT1} offen offset:{1024*i} lds", "y")
    vWt = 72
    for i in range(8):
        k.vmem(f"buffer_load_dword v{vWt+i}, v3, s[12:15], s{sT2} offen offset:{(4*(i>>1)+(i&1))*128}", "w")
    tr("issued")
    if gt:
        e("s_lshr_b32 s51, s2, 3")
        e("s_lshl_b32 s51, s51, 2")
        e(f"s_add_u32 s51, s51, s{sW}")
        e(f"s_sub_u32 s51, s51, {100 if gt is True else 86}")
        e("s_lshl_b32 s50, s51, 13")
        e(f"s_add_u32 s50, s50, {WS_G}")
        e(f"s_cmp_lt_u32 s51, {21 if gt is True else 41}")
        e("s_cselect_b32 s50, s50, 0x40000000")
        e("v_lshlrev_b32 v164, 7, v0")
        k.vmem("buffer_load_dword v1, v164, s[12:15], s50 offen", "xt")
    if xt:
        e("s_lshr_b32 s51, s2, 3")
        e("s_lshl_b32 s51, s51, 2")
        e(f"s_add_u32 s51, s51, s{sW}")
        e("s_sub_u32 s51, s51, 16")
        xt_prep(k, 52, 51, "v0", 160, xt)
        xt_fire(k, 52, 160, 1, xt)
        for _ in xt: k.vm.append("xt")
    m1(1)
    e("v_and_b32 v10, 1, v4")
    e("v_mul_u32_u24 v10, 0x8000, v10")
    e("v_lshl_or_b32 v10, v10, 16, v10")
    for u in range(16): e(f"v_xor_b32 v{vM+16+u}, v10, v{vM+u}")
    e(f"v_mul_f32 v8, {fhex(1.0/2048)}, v7")
    e("v_lshlrev_b32 v10, 31, v6")
    e("v_xor_b32 v8, v8, v10")
    e("v_mul_f32 v9, 4.0, v36")
    e("v_mul_f32 v9, v9, v8")
    for i in range(16): e(f"v_fmamk_f32 v{128+i}, v8, {fhex(8*(i>>2) + (i&3))}, v9")
    for i in range(16): e(f"v_cos_f32 v{112+i}, v{128+i}")
    for i in range(16): e(f"v_sin_f32 v{128+i}, v{128+i}")
    e("v_lshlrev_b32 v34, 2, v0")
    tr("gen")
    k.wait(vm="y")
    tr("yarr")
    e("s_barrier")
    tr("ybar")
    vY = 40
    for j in range(8):
        for u in (0, 1): k.lds(f"ds_read2st64_b32 {R(vY+4*j+2*u,2)}, v34 offset0:{4*j+2*u} offset1:{4*j+2*u+1}", ("y", j))
        if j == 6: k.wait(lg=("y", 0))
    vF = 144
    fg = ["v_cvt_f32_u32 v10, v35", f"v_mul_f32 v11, {fhex(1.0/32)}, v10", "v_mul_f32 v32, 4.0, v36", "v_mul_f32 v32, v32, v11"]
    fg += [f"v_fmamk_f32 v{14+t}, v11, {fhex(8*(t>>2) + (t&3))}, v32" for t in range(8)]
    fg += [f"v_cos_f32 v{22+t}, v{14+t}" for t in range(8)] + [f"v_sin_f32 v{14+t}, -v{14+t}" for t in range(8)]
    for _ in range(12): e(fg.pop(0))
    stamp_mid(k, stamps, 0)
    D2 = R(160, 16)
    for j in range(8):
        k.wait(lg=("y", j))
        e(f"{MF32} {D2}, {R(vM+4*j,4)}, {R(vY+4*j,4)}, {'0' if j == 0 else D2}")
        for _ in range(2): e(fg.pop(0))
    assert not fg
    tr("stB")
    stamp_mid(k, stamps, 1)
    for t in range(4):
        e(f"v_cvt_pk_bf16_f32 v{vF+t}, v{22+2*t}, v{23+2*t}")
        e(f"v_cvt_pk_bf16_f32 v{vF+8+t}, v{14+2*t}, v{15+2*t}")
    k.wait(vm="w")
    tr("warr")
    for i in range(8):
        e(f"v_lshlrev_b32 v{12+2*i}, 16, v{vWt+i}")
        e(f"v_and_b32 v{13+2*i}, 0xffff0000, v{vWt+i}")
    for i in range(8):
        e(f"v_mul_f32 v{176+2*i}, v{160+2*i}, v{12+2*i}")
        e(f"v_mul_f32 v{177+2*i}, v{160+2*i}, v{13+2*i}")
    e("v_add_u32 v30, s26, v2")
    for hh in (0, 1):
        for i in range(4*hh, 4*hh+4):
            e(f"v_fma_f32 v{176+2*i}, -v{161+2*i}, v{13+2*i}, v{176+2*i}")
            e(f"v_fma_f32 v{177+2*i}, -v{161+2*i}, v{12+2*i}, -v{177+2*i}")
        for i in range(4*hh, 4*hh+4): e(f"v_cvt_pk_bf16_f32 v{72+i}, v{176+2*i}, v{177+2*i}")
        k.lds(f"ds_write_b128 v30, {R(72+4*hh,4)} offset:{8192+1024*hh}")
    tr("wmul")
    e("v_and_b32 v10, 1, v0")
    e("v_mul_u32_u24 v10, 0x8000, v10")
    e("v_lshl_or_b32 v10, v10, 16, v10")
    k.wait(lg0=True)
    e("s_barrier")
    for j in range(8): k.lds(f"ds_read_b128 {R(vY+4*j,4)}, v2 offset:{8192+1024*j}", ("a", j))
    for t in range(4):
        e(f"v_xor_b32 v{vF+4+t}, v10, v{vF+t}")
        e(f"v_xor_b32 v{vF+12+t}, v10, v{vF+8+t}")
    tr("xchg")
    sa = ["s_and_b32 s27, s2, 1", "s_mul_i32 s29, s27, 18432", "s_lshr_b32 s27, s2, 4", "s_lshl_b32 s27, s27, 10", "s_add_u32 s29, s29, s27",
          "s_bfe_u32 s27, s2, 0x20001", "s_lshl_b32 s27, s27, 8", "s_add_u32 s29, s29, s27",
          "s_bfe_u32 s27, s2, 0x10003", "s_lshl_b32 s27, s27, 7", "s_add_u32 s29, s29, s27",
          f"s_mul_i32 s27, s{sW}, {16*36864}", "s_add_u32 s29, s29, s27", f"s_add_u32 s29, s29, {WS_V}",
          "v_mul_u32_u24 v31, 73728, v5", "v_lshl_add_u32 v31, v35, 2, v31"]
    D3 = R(176, 16)
    for j in range(8):
        k.wait(lg=("a", j))
        e(f"{MF32} {D3}, {R(vY+4*j,4)}, {R(vM+4*j,4)}, {'0' if j == 0 else D3}")
        for _ in range(2): e(sa.pop(0))
    e("s_cmp_lg_u32 s2, 287")
    e(f"s_cbranch_scc1 L_{name}_nonyq")
    for i in range(32): e(f"v_mul_f32 v{112+i}, 0.5, v{112+i}")
    k.label(f"L_{name}_nonyq")
    e("s_nop 7")
    for hh in (0, 1):
        for i in range(8*hh, 8*hh+8): e(f"v_mul_f32 v{160+i}, v{176+i}, v{112+i}")
        for i in range(8*hh, 8*hh+8): e(f"v_fmac_f32_dpp v{160+i}, v{176+i}, v{128+i} {DPP}")
        for i in range(4*hh, 4*hh+4): e(f"v_cvt_pk_bf16_f32 v{40+i}, v{160+2*i}, v{161+2*i}")
        e("s_nop 1")
        e(f"{MF32} {R(80,16)}, {R(40+4*hh,4)}, {R(vF+4*hh,4)}, {'0' if hh == 0 else R(80,16)}")
        e(f"{MF32} {R(96,16)}, {R(40+4*hh,4)}, {R(vF+8+4*hh,4)}, {'0' if hh == 0 else R(96,16)}")
    tr("twid")
    for i in range(1, 8): e(f"s_add_u32 s{30+i}, s29, {(4*(i>>1)+(i&1))*36864}")
    e("s_mov_b32 s30, s29")
    e("s_nop 4")
    for i in range(8):
        e(f"v_sub_f32 v{48+2*i}, v{80+2*i}, v{96+2*i+1}")
        e(f"v_add_f32 v{48+2*i+1}, v{96+2*i}, v{80+2*i+1}")
        e(f"v_cvt_pk_bf16_f32 v{40+i}, v{48+2*i}, v{49+2*i}")
        k.vmem(f"buffer_store_dword v{40+i}, v31, s[12:15], s{30+i} offen{sf}", "st")
    tr("stored")
    tr.dump(6, sW, 39)
    stamp_end(k, stamps, 6, 1, sW, 2)
    if NP:
        e("s_endpgm")
        k.label(f"L_{name}_t")
        if jobs[1]: pack_wg(k, name, sW, 4, NMAIN, jobs[0], jobs[1], pk, stamps, 1)
        else:
            emit_touch_wg(k, sW, 4, NMAIN, touch)
            stamp_end(k, stamps, 6, 1, sW, 0)
    k.label(f"L_{name}_end")
    e("s_endpgm")
    return k, (192, 100, 192), (NMAIN + NP, 256, 49152 if jobs[1] else 16384)

def gen_k3(name="inv_kernel", stamps=False, hc16=False, wpf=None, touch=None, trace=False, xt=None, pk=None, jobs=(0, 0), xf='', sf=''):
    NMAIN = 192
    NP = (120 if touch == 'gu' else 54) if touch else 0
    if xt: NP = 64
    if jobs[1]: NP = 8 * (-(-jobs[1] // 3))
    k = Kern(name); e = k.e
    tr = Tracer(k, trace, 4)
    sW, sRG, sT, sT0, sT1, sT2 = 20, 21, 22, 23, 24, 25
    e(f"s_cmp_ge_u32 s2, {NMAIN + NP}")
    e(f"s_cbranch_scc1 L_{name}_end")
    stamp_begin(k, stamps)
    e(f"s_load_dwordx2 s[4:5], s[0:1], {KA_X}")
    e(f"s_load_dwordx2 s[6:7], s[0:1], {KA_WS}")
    e("v_lshrrev_b32 v1, 6, v0")
    e("v_and_b32 v0, 63, v0")
    e(f"v_readfirstlane_b32 s{sW}, v1")
    if NP:
        e(f"s_cmp_ge_u32 s2, {NMAIN}")
        e(f"s_cbranch_scc1 L_{name}_t")
    e(f"s_lshr_b32 s{sT0}, s2, 3")
    e(f"s_mul_hi_u32 s{sT1}, s{sT0}, 0x55555556")
    e(f"s_mul_i32 s{sT}, s{sT1}, 3")
    e(f"s_sub_u32 s{sT}, s{sT0}, s{sT}")
    e(f"s_mul_i32 s{sT}, s{sT}, 3")
    e(f"s_add_u32 s{sT}, s{sT}, s{sW}")
    e(f"s_and_b32 s{sRG}, s2, 7")
    e(f"s_lshl_b32 s{sRG}, s{sRG}, 3")
    e(f"s_add_u32 s{sRG}, s{sRG}, s{sT1}")
    e("v_lshlrev_b32 v2, 4, v0")
    e(f"s_mul_i32 s26, s{sRG}, 36864")
    e(f"s_add_u32 s27, s26, {WS_V}")
    e(f"s_mul_i32 s28, s{sT}, 18432")
    e(f"s_add_u32 s28, s28, {WS_G}")
    e(f"s_mul_i32 s29, s{sW}, 12288")
    e("s_add_u32 s27, s27, s29")
    e("v_lshrrev_b32 v5, 5, v0")
    e("v_and_b32 v6, 31, v0")
    e("v_mul_u32_u24 v7, 73728, v6")
    e(f"v_lshl_add_u32 v7, v5, {3 if hc16 else 4}, v7")
    e(f"s_mul_i32 s30, s{sRG}, 1152")
    e(f"s_lshl_b32 s{sT1}, s{sT}, 6")
    e(f"s_add_u32 s30, s30, s{sT1}")
    e("v_lshlrev_b32 v8, 2, v6")
    e(f"s_lshl_b32 s31, s{sRG}, 7")
    e(f"s_add_u32 s31, s31, {WS_MEAN}")
    e("v_and_b32 v10, 1, v0")
    e("v_lshlrev_b32 v10, 4, v10")
    e("v_bfe_u32 v11, v0, 1, 1")
    e("v_and_b32 v12, 1, v0")
    e("v_xor_b32 v12, v12, v11")
    e("v_lshlrev_b32 v12, 15, v12")
    e("v_lshl_or_b32 v11, v11, 31, v12")
    e("v_lshlrev_b32 v3, 2, v0")
    e("s_waitcnt lgkmcnt(0)")
    tr("karg")
    k.srd(12, 6, WS_END)
    for i in range(12):
        if i % 4 == 0:
            e(f"s_add_u32 m0, s29, {1024*i}")
            e(f"s_add_u32 s{sT0}, s27, {1024*i}")
        k.vmem(f"buffer_load_dwordx4 v2, s[12:15], s{sT0} offen offset:{(i&3)*1024} lds", "V")
    vG = 100
    gorder = [f for j in range(9) for f in (j, 9 + j)]
    for f in gorder:
        e(f"s_add_u32 s{sT1}, s28, {(f>>2)*4096}")
        k.vmem(f"buffer_load_dwordx4 {R(vG+4*f,4)}, v2, s[12:15], s{sT1} offen offset:{(f&3)*1024}", ("g", f))
    k.srd(8, 4, S*D*2)
    for u in range(4):
        if hc16:
            for z in (0, 1): k.vmem(f"buffer_load_dwordx2 {R(16+4*u+2*z,2)}, v7, s[8:11], s30 offen offset:{(u>>1)*576 + (u&1)*16 + 32*z}{xf}", "x")
        else: k.vmem(f"buffer_load_dwordx4 {R(16+4*u,4)}, v7, s[8:11], s30 offen offset:{(u>>1)*576 + (u&1)*32}{xf}", "x")
    k.vmem("buffer_load_dword v9, v8, s[12:15], s31 offen", "x")
    if wpf: emit_wprefetch(k, sW, 3, "v0", 12, 1, 44, wpf)
    tr("issued")
    stamp_mid(k, stamps, 0)
    k.wait(vm="V")
    tr("varr")
    e("s_barrier")
    O, E, XM = 32, 48, 64
    seq = []
    for n_, f in enumerate(gorder):
        seq.append(("lo", f))
        if n_ >= 2: seq.append(("hi", gorder[n_-2]))
    seq += [("hi", gorder[-2]), ("hi", gorder[-1])]
    def step(kind, f):
        pi, j = divmod(f, 9)
        return 18*pi + j + (9 if kind == "hi" else 0)
    RING = [172 + 4*i for i in range(6)]
    ROT = [196, 200, 204]
    def rd(n):
        st = step(*seq[n]); b = RING[n % 6]
        for u in (0, 1): k.lds(f"ds_read2st64_b32 {R(b+2*u,2)}, v3 offset0:{4*st+2*u} offset1:{4*st+2*u+1}", ("b", n))
    for n in range(5): rd(n)
    started = set(); nrot = 0; rotreg = {}; rotdone = {}
    pend = []
    for n, (kind, f) in enumerate(seq):
        k.wait(vm=("g", f), lg=("b", n))
        accb = O if f < 9 else E
        acc = R(accb, 16)
        if kind == "hi":
            assert f in rotdone
            if rotdone[f] >= n - 1 or n >= 33: e("s_nop 1")
        a = vG + 4*f if kind == "lo" else rotreg[f]
        e(f"{MF32} {acc}, {R(a,4)}, {R(RING[n % 6],4)}, {'0' if accb not in started else acc}")
        started.add(accb)
        if n + 5 < 36: rd(n + 5)
        if kind == "lo":
            rr = ROT[nrot % 3]; nrot += 1; rotreg[f] = rr
            pend += [(f"v_alignbit_b32 v{rr+r}, v{vG+4*f+r}, v{vG+4*f+r}, v10", None) for r in range(4)] + [(f"v_xor_b32 v{rr+r}, v11, v{rr+r}", f if r == 3 else None) for r in range(4)]
        lim = 4 if n + 5 < 36 else 6
        for _ in range(lim):
            if pend:
                t_, fin = pend.pop(0); e(t_)
                if fin is not None: rotdone[fin] = n
    tr("mfma")
    stamp_mid(k, stamps, 1)
    k.wait(vm="x")
    for r in range(16):
        e(f"v_lshlrev_b32 v{XM+2*r}, 16, v{16+r}")
        e(f"v_and_b32 v{XM+2*r+1}, 0xffff0000, v{16+r}")
    e(f"s_lshl_b32 s{sT0}, s{sT}, 11")
    e(f"s_add_u32 s{sT0}, s{sT0}, s26")
    e(f"s_add_u32 s{sT0}, s{sT0}, {WS_HC}")
    e(f"s_add_u32 s{sT1}, s{sT0}, {18*1024}")
    e(f"s_mul_i32 s{sT2}, s{sRG}, 9")
    e(f"s_add_u32 s{sT2}, s{sT2}, s{sT}")
    e(f"s_lshl_b32 s{sT2}, s{sT2}, 8")
    e(f"s_add_u32 s{sT2}, s{sT2}, {WS_SS}")
    if hc16:
        e("v_and_b32 v2, 15, v0")
        e("v_lshlrev_b32 v2, 4, v2")
        e("v_lshl_add_u32 v2, v5, 8, v2")
        e("v_bfe_u32 v12, v0, 4, 1")
        e("v_lshl_add_u32 v2, v12, 10, v2")
    for i in range(16): e(f"v_sub_f32 v{E+i}, v{E+i}, v9")
    for u in range(4):
        for i in range(8*(u&1), 8*(u&1)+8):
            x_ = XM + 16*(u>>1) + i
            e(f"v_add_f32 v{x_}, v{x_}, v{E+i}")
            e(f"v_{'add' if u < 2 else 'sub'}_f32 v{x_}, v{x_}, v{O+i}")
        for i in range(4): e(f"v_cvt_pk_bf16_f32 v{16+4*u+i}, v{XM+8*u+2*i}, v{XM+8*u+2*i+1}")
        k.vmem(f"buffer_store_dwordx4 {R(16+4*u,4)}, v2, s[12:15], s{sT0 if u < 2 else sT1} offen offset:{(512 if hc16 else 1024)*(u&1)}{sf}", "st")
    e("v_mov_b32 v12, 0"); e("v_mov_b32 v13, 0")
    for i in range(16): e(f"v_dot2c_f32_bf16 v{12+(i&1)}, v{16+i}, v{16+i}")
    e("s_nop 2")
    e("v_add_f32 v12, v12, v13")
    k.vmem(f"buffer_store_dword v12, v3, s[12:15], s{sT2} offen{sf}", "st")
    tr("stored")
    tr.dump(6, sW, 14)
    stamp_end(k, stamps, 6, 2, sW, 2)
    if NP:
        e("s_endpgm")
        k.label(f"L_{name}_t")
        if jobs[1]:
            pack_wg(k, name, sW, 3, NMAIN, jobs[0], jobs[1], pk, stamps, 2)
            e("s_endpgm")
        elif xt:
            xt_load(k, 52)
            e(f"s_sub_u32 s51, s2, {NMAIN}")
            e("s_lshr_b32 s51, s51, 3")
            e("s_mul_i32 s51, s51, 3")
            e(f"s_add_u32 s51, s51, s{sW}")
            e("s_waitcnt lgkmcnt(0)")
            spec = [(m_, lo + 24*i, hi) for (m_, lo, hi) in xt for i in range(-(-(hi - lo) // 24))]
            assert len(spec) <= 4
            xt_prep(k, 52, 51, "v0", 4, spec)
            xt_fire(k, 52, 4, 1, spec)
        else: emit_touch_wg(k, sW, 3, NMAIN, touch, nper=4)
        stamp_end(k, stamps, 6, 2, sW, 0)
    k.label(f"L_{name}_end")
    e("s_endpgm")
    return k, (208, 100, 208), (NMAIN + NP, 192, 36864)

def gen_k3b(name="inv_kernel", stamps=False, hc16=True, trace=False, g0=7, sf='', wpf=None, xpos=10, r_lo=8, r_hi=4):
    NMAIN = 192
    k = Kern(name); e = k.e
    tr = Tracer(k, trace, 4)
    sW, sRG, sT, sT0, sT1, sT2 = 20, 21, 22, 23, 24, 25
    e(f"s_cmp_ge_u32 s2, {NMAIN}")
    e(f"s_cbranch_scc1 L_{name}_end")
    stamp_begin(k, stamps)
    e(f"s_load_dwordx2 s[6:7], s[0:1], {KA_WS}")
    e(f"s_load_dwordx2 s[4:5], s[0:1], {KA_X}")
    e("v_lshrrev_b32 v1, 6, v0")
    e("v_and_b32 v0, 63, v0")
    e(f"v_readfirstlane_b32 s{sW}, v1")
    e(f"s_lshr_b32 s{sT0}, s2, 3")
    e(f"s_mul_hi_u32 s{sT1}, s{sT0}, 0x55555556")
    e(f"s_mul_i32 s{sT}, s{sT1}, 3")
    e(f"s_sub_u32 s{sT}, s{sT0}, s{sT}")
    e(f"s_mul_i32 s{sT}, s{sT}, 3")
    e(f"s_add_u32 s{sT}, s{sT}, s{sW}")
    e(f"s_and_b32 s{sRG}, s2, 7")
    e(f"s_lshl_b32 s{sRG}, s{sRG}, 3")
    e(f"s_add_u32 s{sRG}, s{sRG}, s{sT1}")
    e("v_lshlrev_b32 v2, 4, v0")
    e(f"s_mul_i32 s26, s{sRG}, 36864")
    e(f"s_add_u32 s27, s26, {WS_V}")
    e(f"s_mul_i32 s28, s{sT}, 18432")
    e(f"s_add_u32 s28, s28, {WS_G}")
    e(f"s_mul_i32 s29, s{sW}, 12288")
    e("s_add_u32 s27, s27, s29")
    e("v_lshrrev_b32 v5, 5, v0")
    e("v_and_b32 v6, 31, v0")
    e("v_lshrrev_b32 v7, 2, v0")
    e("v_mul_u32_u24 v7, 73728, v7")
    e("v_lshrrev_b32 v8, 4, v0")
    e("v_xor_b32 v8, v8, v0")
    e("v_and_b32 v8, 3, v8")
    e("v_lshl_add_u32 v7, v8, 4, v7")
    e(f"s_mul_i32 s30, s{sRG}, 1152")
    e(f"s_lshl_b32 s{sT1}, s{sT}, 6")
    e(f"s_add_u32 s30, s30, s{sT1}")
    e(f"s_lshl_b32 s32, s{sW}, 12")
    e("s_add_u32 s32, s32, 36864")
    e("v_lshlrev_b32 v8, 2, v6")
    e(f"s_lshl_b32 s31, s{sRG}, 7")
    e(f"s_add_u32 s31, s31, {WS_MEAN}")
    e("v_and_b32 v10, 1, v0")
    e("v_lshlrev_b32 v10, 4, v10")
    e("v_bfe_u32 v11, v0, 1, 1")
    e("v_and_b32 v12, 1, v0")
    e("v_xor_b32 v12, v12, v11")
    e("v_lshlrev_b32 v12, 15, v12")
    e("v_lshl_or_b32 v11, v11, 31, v12")
    e("v_lshlrev_b32 v3, 2, v0")
    e("s_waitcnt lgkmcnt(0)")
    tr("karg")
    k.srd(12, 6, WS_END)
    for i in range(12):
        if i % 4 == 0:
            e(f"s_add_u32 m0, s29, {1024*i}")
            e(f"s_add_u32 s{sT0}, s27, {1024*i}")
        k.vmem(f"buffer_load_dwordx4 v2, s[12:15], s{sT0} offen offset:{(i&3)*1024} lds", "V")
    vG, vRot = 100, 172
    lq = []
    for f in range(18):
        it = []
        if f % 4 == 0: it.append(f"s_add_u32 s{sT1}, s28, {(f>>2)*4096}")
        lq.append((it, f"buffer_load_dwordx4 {R(vG+4*f,4)}, v2, s[12:15], s{sT1} offen offset:{(f&3)*1024}", ("g", f)))
    for u in range(4):
        lq.append(([f"s_add_u32 m0, s32, {1024*u}", f"s_add_u32 s33, s30, {(u>>1)*576 + (u&1)*16*73728}"], "buffer_load_dwordx4 v7, s[8:11], s33 offen lds", "x"))
    lq.append(([], "buffer_load_dword v9, v8, s[12:15], s31 offen", "x"))
    def issue():
        pre, ins, tag = lq.pop(0)
        for p in pre: e(p)
        k.vmem(ins, tag)
    lq = [(lq[22][0], lq[22][1], "mean")] + lq[:xpos] + lq[18:22] + lq[xpos:18]
    k.srd(8, 4, S*D*2)
    for _ in range(g0): issue()
    tr("issued")
    stamp_mid(k, stamps, 0)
    k.wait(vm="V")
    tr("varr")
    e("s_barrier")
    O, E, XM = 32, 48, 64
    seq = [("lo", f) for f in range(18)] + [("hi", f) for f in range(18)]
    def step(kind, f):
        pi, j = divmod(f, 9)
        return 18*pi + j + (9 if kind == "hi" else 0)
    RING = [96, 244, 248, 252, 12, 28]
    def rd(n):
        st = step(*seq[n]); b = RING[n % 6]
        for u in (0, 1): k.lds(f"ds_read2st64_b32 {R(b+2*u,2)}, v3 offset0:{4*st+2*u} offset1:{4*st+2*u+1}", ("b", n))
    for n in range(5): rd(n)
    k.wait(vm="mean")
    for i in range(16): e(f"v_sub_f32 v{E+i}, 0, v9")
    rotdone = {}
    pend = []
    XR = 16
    for n, (kind, f) in enumerate(seq):
        while kind == "lo" and ("g", f) not in k.vm: issue()
        k.wait(vm=("g", f), lg=("b", n))
        accb = O if f < 9 else E
        acc = R(accb, 16)
        if kind == "hi": assert rotdone[f] < n - 1
        a = (vG if kind == "lo" else vRot) + 4*f
        e(f"{MF32} {acc}, {R(a,4)}, {R(RING[n % 6],4)}, {'0' if n == 0 else acc}")
        if n + 5 < 36: rd(n + 5)
        if lq: issue()
        if kind == "lo":
            rr = vRot + 4*f
            pend += [(f"v_alignbit_b32 v{rr+r}, v{vG+4*f+r}, v{vG+4*f+r}, v10", None) for r in range(4)] + [(f"v_xor_b32 v{rr+r}, v11, v{rr+r}", f if r == 3 else None) for r in range(4)]
        if n == 17:
            assert not lq
            pend += [(x, None) for x in ["v_bfe_u32 v7, v0, 2, 2", "v_lshlrev_b32 v7, 4, v7", "v_lshl_add_u32 v7, v6, 6, v7", "v_lshl_add_u32 v7, v5, 3, v7", "v_add_u32 v7, s32, v7",
                                         "v_xor_b32 v16, 16, v7", "v_xor_b32 v17, 32, v7", "v_xor_b32 v18, 48, v7"]]
            pend.append(("XREAD", None))
            pend += [(x, None) for x in [f"s_lshl_b32 s{sT0}, s{sT}, 11", f"s_add_u32 s{sT0}, s{sT0}, s26", f"s_add_u32 s{sT0}, s{sT0}, {WS_HC}", f"s_add_u32 s{sT1}, s{sT0}, {18*1024}",
                                         "v_and_b32 v2, 15, v0", "v_lshlrev_b32 v2, 4, v2", "v_lshl_add_u32 v2, v5, 8, v2", "v_bfe_u32 v8, v0, 4, 1", "v_lshl_add_u32 v2, v8, 10, v2"]]
            pend.append(("XWAIT", None))
            for r in range(16): pend += [(f"v_lshlrev_b32 v{XM+2*r}, 16, v{100+r}", None), (f"v_and_b32 v{XM+2*r+1}, 0xffff0000, v{100+r}", None)]
            pend.append(("OREADY", None))
            for i in range(16): pend += [(f"v_add_f32 v{XM+i}, v{XM+i}, v{O+i}", None), (f"v_sub_f32 v{XM+16+i}, v{XM+16+i}, v{O+i}", None)]
        lim = r_lo if n < 18 else (r_hi if n < 31 else 6)
        if n == 35: lim = 999
        c_ = 0
        while pend and c_ < lim:
            t_, fin = pend[0]
            if t_ == "OREADY":
                if n < 30: break
                pend.pop(0); continue
            pend.pop(0)
            if t_ == "XREAD":
                k.wait(vm="x")
                xa = [7, 16, 17, 18]
                for u in range(4):
                    for z in (0, 1): k.lds(f"ds_read_b64 {R(100+4*u+2*z,2)}, v{xa[(u&1)+2*z]} offset:{2048*(u>>1)}", "xr")
                c_ += 8
            elif t_ == "XWAIT": k.wait(lg="xr")
            else:
                e(t_); c_ += 1
            if fin is not None: rotdone[fin] = n
        if n == 35: tailn = c_
    tr("mfma")
    stamp_mid(k, stamps, 1)
    e(f"s_mul_i32 s{sT2}, s{sRG}, 9")
    e(f"s_add_u32 s{sT2}, s{sT2}, s{sT}")
    e(f"s_lshl_b32 s{sT2}, s{sT2}, 8")
    e(f"s_add_u32 s{sT2}, s{sT2}, {WS_SS}")
    if tailn < 8: e(f"s_nop {7 - tailn}")
    for u in range(4):
        for i in range(8*(u&1), 8*(u&1)+8):
            x_ = XM + 16*(u>>1) + i
            e(f"v_add_f32 v{x_}, v{x_}, v{E+i}")
        for i in range(4): e(f"v_cvt_pk_bf16_f32 v{140+4*u+i}, v{XM+8*u+2*i}, v{XM+8*u+2*i+1}")
        k.vmem(f"buffer_store_dwordx4 {R(140+4*u,4)}, v2, s[12:15], s{sT0 if u < 2 else sT1} offen offset:{512*(u&1)}{sf}", "st")
    k.tailn = tailn
    e("v_mov_b32 v12, 0"); e("v_mov_b32 v13, 0")
    for i in range(16): e(f"v_dot2c_f32_bf16 v{12+(i&1)}, v{140+i}, v{140+i}")
    e("s_nop 2")
    e("v_add_f32 v12, v12, v13")
    k.vmem(f"buffer_store_dword v12, v3, s[12:15], s{sT2} offen{sf}", "st")
    tr("stored")
    tr.dump(6, sW, 14)
    stamp_end(k, stamps, 6, 2, sW, 2)
    k.label(f"L_{name}_end")
    e("s_endpgm")
    return k, (256, 100, 256), (NMAIN, 192, 36864 + 12288)
```

```python
import sys, json
from build12 import *
def probe(kind, G):
    k = Kern("probe_kernel"); e = k.e
    e("s_memrealtime s[10:11]")
    e("s_cmp_ge_u32 s2, 1")
    e("s_cbranch_scc1 L_probe_end")
    e(f"s_load_dwordx2 s[6:7], s[0:1], {KA_WS}")
    e("s_waitcnt lgkmcnt(0)")
    k.srd(12, 6, WS_END + 8*131072)
    e("v_and_b32 v3, 3, v0")
    e("v_lshl_add_u32 v3, v0, 2, v3")
    e("v_lshlrev_b32 v3, 8, v3")
    e(f"s_mov_b32 s20, {WS_END + 2*131072}")
    e("buffer_load_dwordx4 v[4:7], v3, s[12:15], s20 offen")
    e("buffer_load_dwordx4 v[8:11], v3, s[12:15], s20 offen offset:16")
    e(f"s_mov_b32 s21, {WS_END}")
    e("buffer_load_dword v12, off, s[12:15], s21")
    e("s_waitcnt vmcnt(0)")
    e("v_readfirstlane_b32 s22, v4")
    if kind == "all":
        e("v_readfirstlane_b32 s23, v12"); e("s_sub_u32 s24, s10, s23")
    elif kind == "kb2probe": e("s_sub_u32 s24, s10, s22")
    else:
        if kind == "endmax": e("v_subrev_u32 v13, s22, v5")
        elif kind == "tailavg": e("v_sub_u32 v13, v6, v10")
        elif kind == "mid0": e("v_mov_b32 v13, v7")
        elif kind == "p2": e("v_sub_u32 v13, v10, v9")
        elif kind == "p1": e("v_sub_u32 v13, v9, v7")
        op = "s_max_u32" if kind == "endmax" else "s_add_u32"
        e("s_mov_b32 s24, 0")
        e("s_nop 1")
        for l in range(64):
            e(f"v_readlane_b32 s25, v13, {l}")
            e(f"{op} s24, s24, s25")
        if kind != "endmax": e("s_lshr_b32 s24, s24, 10")
    e("s_min_u32 s24, s24, 10000")
    e(f"s_mul_i32 s24, s24, {G}")
    k.label("L_probe_l")
    e("s_memrealtime s[26:27]")
    e("s_waitcnt lgkmcnt(0)")
    e("s_sub_u32 s26, s26, s10")
    e("s_cmp_lt_u32 s26, s24")
    e("s_cbranch_scc1 L_probe_l")
    k.label("L_probe_end")
    e("s_endpgm")
    return k, (16, 40, 16), (1, 64, 0)
opts = json.loads(sys.argv[1])
for nm, G in [("all", 0), ("all", 2), ("kb2probe", 2), ("endmax", 2), ("tailavg", 8), ("mid0", 8), ("p1", 4), ("p2", 4)]:
    ks = [gen_k1c(stamps=True, hc16=True, **opts["k1"]), gen_k2(stamps=True, **opts["k2"]), gen_k4h(stamps=True, kidx=2, **opts.get("k4", {})), probe(nm, G)]
    open(f"../dev/pr_{nm}{G}.s", "w").write(assemble_file(HDR, [(k, *l) for k, r, l in ks], [(k, *r) for k, r, l in ks]))
```
